```python
import torch

def _softmax(x, axis=-1):
    return torch.softmax(x, dim=axis)

def _gelu(x):
    return torch.nn.functional.gelu(x, approximate='tanh')

def _silu(x):
    return torch.nn.functional.silu(x)

def _sigmoid(x):
    return torch.sigmoid(x)

def _layernorm(x, axis=-1, eps=1e-05):
    m = x.mean(dim=axis, keepdim=True)
    v = x.var(dim=axis, keepdim=True, unbiased=False)
    return (x - m) / torch.sqrt(v + eps)

def _scatter_add(tgt, idx, src, axis=0):
    return tgt.clone().index_add_(axis, idx, src)

def _segment_sum(src, seg, n):
    out = torch.zeros((n,) + src.shape[1:], dtype=src.dtype)
    return out.index_add_(0, seg, src)

def _pad(x, pw):
    flat = tuple((v for pair in reversed(pw) for v in pair))
    return torch.nn.functional.pad(x, flat)
kernel_name = 'sequential_preLN__linear_attn_block__mixer_gmlp__prompt'

def setup_inputs():

    _w = lambda a: (lambda t: t.to(torch.bfloat16) if t.is_floating_point() else t)(torch.as_tensor(a))

    def _A_setup():
        B, S, D = (1, 2048, 512)
        return {'x': _w((lambda *s: torch.randn(*s, dtype=torch.bfloat16) * 0.05)(B, S, D)), 'wqkv': _w((lambda *s: torch.randn(*s, dtype=torch.bfloat16) * 0.05)(D, 3 * D)), 'wo': _w((lambda *s: torch.randn(*s, dtype=torch.bfloat16) * 0.05)(D, D))}
    _A_in = _A_setup()

    def _B_setup():
        B, S, D, F = (1, 2048, 512, 1792)
        Fh = F // 2
        return {'x': _w((lambda *s: torch.randn(*s, dtype=torch.bfloat16) * 0.05)(B, S, D)), 'w_in': _w((lambda *s: torch.randn(*s, dtype=torch.bfloat16) * 0.4)(D, 2 * Fh)), 'w_sp': _w(0.01 * (lambda *s: torch.randn(*s, dtype=torch.bfloat16) * 0.4)(S, S)), 'b_sp': _w(1.0 + 0.01 * (lambda *s: torch.randn(*s, dtype=torch.bfloat16) * 0.05)(S)), 'w_out': _w((lambda *s: torch.randn(*s, dtype=torch.bfloat16) * 0.05)(Fh, D))}
    _B_in = _B_setup()
    return {'A_x': _A_in['x'], 'A_wqkv': _A_in['wqkv'], 'A_wo': _A_in['wo'], 'B_x': _B_in['x'], 'B_w_in': _B_in['w_in'], 'B_w_sp': _B_in['w_sp'], 'B_b_sp': _B_in['b_sp'], 'B_w_out': _B_in['w_out']}

def reference(A_x, A_wqkv, A_wo, B_x, B_w_in, B_w_sp, B_b_sp, B_w_out):

    def _A_ref(x, wqkv, wo):
        B, S, D = x.shape
        H = 32
        Dh = D // H
        qkv = (lambda x, *d: x.permute(*d))((x @ wqkv).reshape(B, S, 3, H, Dh), 2, 0, 3, 1, 4)
        q, k, v = (qkv[0], qkv[1], qkv[2])
        phi = lambda t: torch.where(t > 0, t + 1, torch.exp(t)) + 1e-06
        pq, pk = (phi(q), phi(k))
        kv = torch.einsum('bhsd,bhse->bhde', pk, v)
        z = torch.einsum('bhsd->bhd', pk)
        num = torch.einsum('bhqd,bhde->bhqe', pq, kv)
        den = torch.einsum('bhqd,bhd->bhq', pq, z)[..., None] + 1e-06
        o = num / den
        return (lambda x, *d: x.permute(*d))(o, 0, 2, 1, 3).reshape(B, S, D) @ wo

    def _B_ref(x, w_in, w_sp, b_sp, w_out):
        B, S, D = x.shape
        F = w_in.shape[-1]
        Fh = F // 2
        z = _gelu(torch.einsum('bsd,df->bsf', x, w_in))
        z1 = z[..., :Fh].clone()
        z2 = _layernorm(z[..., Fh:], axis=-1)
        g = torch.einsum('ts,bsf->btf', w_sp, z2) + b_sp[None, :, None]
        return torch.einsum('bsf,fd->bsd', z1 * g, w_out)
    x = A_x
    h = x + _A_ref(_layernorm(x, axis=-1), A_wqkv, A_wo)
    h2 = h + _B_ref(_layernorm(h, axis=-1), B_w_in, B_w_sp, B_b_sp, B_w_out)
    return h2
```

```python
class Asm:
    def __init__(self):
        self.lines = []
        self.launch = []
        self.kds = []
        self.uid = 0
    def __call__(self, s=""):
        for l in s.split("\n"):
            l = l.rstrip()
            if l.strip() == "":
                continue
            if l.strip().endswith(":") or l.strip().startswith("."):
                self.lines.append(l.strip())
            else:
                self.lines.append("    " + l.strip())
    def label(self, base="L"):
        self.uid += 1
        return f"{base}_{self.uid}"
    def begin_kernel(self, name, grid, block, lds):
        self.launch.append(f"; @launch kernel={name} grid=({grid},1,1) block=({block},1,1) lds={lds}")
        self.lines.append(f".globl {name}")
        self.lines.append(".p2align 8")
        self.lines.append(f".type {name},@function")
        self.lines.append(f"{name}:")
    def end_kernel(self, name, vgpr, agpr, sgpr=102):
        acc = (vgpr + 3) // 4 * 4
        nfv = acc + agpr if agpr else vgpr
        self.kds.append(f""".p2align 6
.amdhsa_kernel {name}
  .amdhsa_next_free_vgpr {nfv}
  .amdhsa_next_free_sgpr {sgpr}
  .amdhsa_accum_offset {acc}
  .amdhsa_group_segment_fixed_size 0
  .amdhsa_kernarg_size 88
  .amdhsa_user_sgpr_count 2
  .amdhsa_user_sgpr_kernarg_segment_ptr 1
  .amdhsa_system_sgpr_workgroup_id_x 1
  .amdhsa_float_denorm_mode_32 3
  .amdhsa_float_denorm_mode_16_64 3
.end_amdhsa_kernel""")
    def text(self, header=""):
        out = []
        if header:
            out.append(header.rstrip("\n"))
        out += self.launch
        out.append('.amdgcn_target "amdgcn-amd-amdhsa--gfx950"')
        out.append(".text")
        out += self.lines
        out.append('.section .rodata,"a"')
        out += self.kds
        return "\n".join(out) + "\n"

def vr(a, n=1):
    return f"v{a}" if n == 1 else f"v[{a}:{a+n-1}]"
def ar(a, n=1):
    return f"a{a}" if n == 1 else f"a[{a}:{a+n-1}]"
def sr(a, n=1):
    return f"s{a}" if n == 1 else f"s[{a}:{a+n-1}]"

def srd(A, d, ptr, nbytes):
    A(f"s_mov_b32 s{d}, s{ptr}")
    A(f"s_and_b32 s{d+1}, s{ptr+1}, 0xffff")
    A(f"s_mov_b32 s{d+2}, {nbytes}")
    A(f"s_mov_b32 s{d+3}, 0x20000")
```

```python
import re

REG_RE = re.compile(r"^(-|\|)?(abs\()?([vas])(\d+|\[(\d+):(\d+)\])\)?\|?$")

def regs_of(tok):
    tok = tok.strip()
    if tok in ("vcc",): return [("s", "vcc_lo"), ("s", "vcc_hi")]
    if tok in ("vcc_lo", "vcc_hi", "m0", "exec_lo", "exec_hi"): return [("s", tok)]
    if tok == "exec": return [("s", "exec_lo"), ("s", "exec_hi")]
    m = REG_RE.match(tok)
    if not m: return []
    k = m.group(3)
    if m.group(5) is not None:
        return [(k, i) for i in range(int(m.group(5)), int(m.group(6)) + 1)]
    return [(k, int(m.group(4)))]

TRANS = ("v_exp_f32", "v_log_f32", "v_rcp_f32", "v_rsq_f32", "v_sqrt_f32", "v_sin_f32", "v_cos_f32")

class Ins:
    __slots__ = ("text", "op", "dst", "src", "kind", "tag", "mods", "stdata", "passes", "A", "B", "C")
    def __init__(self, text, tag=None):
        self.text = text; self.tag = tag
        t = text.split(";")[0].strip()
        parts = t.split(None, 1)
        self.op = op = parts[0]
        rest = parts[1] if len(parts) > 1 else ""
        ops = []; cur = ""; depth = 0
        for ch in rest:
            if ch in "[(": depth += 1
            if ch in "])": depth -= 1
            if ch == "," and depth == 0: ops.append(cur.strip()); cur = ""
            else: cur += ch
        if cur.strip(): ops.append(cur.strip())
        mods = ""
        if ops:
            sp = ops[-1].split(None, 1)
            ops[-1] = sp[0]
            if len(sp) > 1: mods = sp[1]
        self.mods = mods
        self.dst = []; self.src = []; self.stdata = []; self.passes = 0
        self.A = self.B = self.C = []
        R = regs_of
        if op.startswith("v_mfma"):
            self.kind = "mfma"
            self.dst = R(ops[0]); self.A = R(ops[1]); self.B = R(ops[2]); self.C = R(ops[3])
            self.src = self.A + self.B + self.C
            self.passes = 8 if "32x32" in op else 4
        elif op.startswith("ds_"):
            self.kind = "ds"
            if op.startswith("ds_read") or op.startswith("ds_bpermute") or op.startswith("ds_swizzle"):
                self.dst = R(ops[0])
                for o in ops[1:]: self.src += R(o)
            else:
                for o in ops: self.src += R(o)
        elif op.startswith("buffer_") or op.startswith("global_"):
            self.kind = "vmem"
            lds = " lds" in (" " + mods)
            if op.startswith("buffer_inv") or op.startswith("buffer_wbl2"):
                pass
            elif op.startswith("buffer_load"):
                if lds:
                    for o in ops: self.src += R(o)
                    self.src += [("s", "m0")]
                    self.kind = "dma"
                else:
                    self.dst = R(ops[0])
                    for o in ops[1:]: self.src += R(o)
            elif op.startswith("global_load"):
                self.dst = R(ops[0])
                for o in ops[1:]: self.src += R(o)
            elif op.startswith("buffer_store") or op.startswith("buffer_atomic"):
                for o in ops: self.src += R(o)
                self.stdata = R(ops[0])
                if "atomic" in op and "sc0" in mods: self.dst = R(ops[0])
            elif op.startswith("global_store") or op.startswith("global_atomic"):
                for o in ops: self.src += R(o)
                self.stdata = R(ops[1])
            else:
                raise ValueError(text)
        elif op.startswith("s_load") or op.startswith("s_memrealtime") or op.startswith("s_memtime"):
            self.kind = "smem"
            self.dst = R(ops[0])
            for o in ops[1:]: self.src += R(o)
        elif op.startswith("s_"):
            self.kind = "salu"
            if op.startswith(("s_cmp", "s_cbranch", "s_branch", "s_waitcnt", "s_barrier", "s_nop", "s_sleep", "s_endpgm", "s_setprio", "s_bitcmp")):
                for o in ops: self.src += R(o)
                if op.startswith("s_cbranch_vcc"): self.src += R("vcc")
            else:
                self.dst = R(ops[0])
                for o in ops[1:]: self.src += R(o)
                if "saveexec" in op: self.dst += R("exec")
        elif op.startswith("v_"):
            self.kind = "valu"
            if op.startswith("v_cmp"):
                self.dst = R(ops[0])
                for o in ops[1:]: self.src += R(o)
            elif op.startswith("v_permlane") and "swap" in op:
                self.dst = R(ops[0]) + R(ops[1]); self.src = list(self.dst)
            elif op.startswith(("v_add_co", "v_sub_co", "v_addc_co", "v_subb_co")):
                self.dst = R(ops[0]) + R(ops[1])
                for o in ops[2:]: self.src += R(o)
            else:
                self.dst = R(ops[0])
                for o in ops[1:]: self.src += R(o)
                if op.startswith(("v_fmac", "v_dot2c", "v_pk_fmac")) or "_dpp" in op or op.startswith("v_writelane"):
                    self.src += self.dst
                if op.startswith("v_cndmask") and len(ops) == 3: self.src += R("vcc")
        else:
            raise ValueError("unknown op: " + text)

class Prog:
    def __init__(self):
        self.items = []
        self.uid = 0
    def __call__(self, s, tag=None):
        for l in s.split("\n"):
            l = l.strip()
            if not l or l.startswith(";"): continue
            if l.endswith(":"): self.items.append(("label", l[:-1]))
            elif l.startswith("."): self.items.append(("raw", l))
            else: self.items.append(Ins(l, tag))
    def add(self, lst):
        for x in lst:
            if isinstance(x, str): self(x)
            elif isinstance(x, tuple) and x[0] == "T": self(x[1], x[2])
            else: self.items.append(x)
    def lab(self, base="L"):
        self.uid += 1; return f"{base}{self.uid}"
    def wait_tag(self, *tags): self.items.append(("wait_tag", tags))
    def wait_ds(self): self.items.append(("wait_ds",))
    def cond_begin(self): self.items.append(("cond_begin",))
    def cond_end(self): self.items.append(("cond_end",))
    def comment(self, t): self.items.append(("raw", "; " + t))

    def finalize(self):
        out = []
        vm = []
        lg = []
        sm = []
        hist = []
        stack = []
        def age(n):
            nonlocal hist
            hist = [(a + n, i) for a, i in hist if a + n < 24]
        def emit_text(t, states=1):
            out.append("    " + t); age(states)
        def need_vm(pred):
            n = None
            for idx, e in enumerate(vm):
                if pred(e): n = sum(1 for y in vm[idx + 1:] if not y["opt"]); last = idx
            return (n, last) if n is not None else None
        def need_lg(pred):
            n = None
            for idx, e in enumerate(lg):
                if pred(e): n = sum(1 for y in lg[idx + 1:] if not y["opt"]); last = idx
            return (n, last) if n is not None else None
        def do_wait(v, l, smem=False):
            nonlocal vm, lg, sm
            parts = []
            if v is not None:
                v = (min(v[0], 63), v[1])
                parts.append(f"vmcnt({v[0]})"); vm = vm[v[1] + 1:]
            if smem:
                parts.append("lgkmcnt(0)"); lg = []; sm = []
            elif l is not None:
                n = l[0]
                if sm: n = 0
                if n > 15:
                    n = 15
                parts.append(f"lgkmcnt({n})")
                if n == 0: lg = []; sm = []
                else: lg = lg[max(l[1] + 1, len(lg) - n) if all(not y['opt'] for y in lg) else l[1] + 1:]
            if parts: emit_text("s_waitcnt " + " ".join(parts))
        def hazard(i):
            need = 0
            rs = set(i.src); ws = set(i.dst)
            for a, p in hist:
                pd = set(p.dst); req = 0
                if p.kind == "valu":
                    vd = {r for r in pd if r[0] in "va"}; sd = {r for r in pd if r[0] == "s"}
                    if i.kind == "mfma" and vd & rs: req = max(req, 2)
                    if i.kind == "valu":
                        if i.op.startswith(("v_readfirstlane", "v_readlane")) and vd & rs: req = max(req, 1)
                        if ("_dpp" in i.op or i.op.startswith("v_permlane")) and vd & rs: req = max(req, 2)
                        if sd & rs: req = max(req, 2)
                        if p.op.startswith(TRANS) and vd & rs: req = max(req, 1)
                        if p.op.startswith("v_dot2") and vd & (rs | ws):
                            if i.op == p.op:
                                ab = set(i.src[:2]) if not i.op.startswith("v_dot2c") else set(i.src[:2])
                                if vd & ab: req = max(req, 3)
                            else: req = max(req, 3)
                    if p.op.startswith("v_dot2") and i.kind in ("vmem", "ds", "dma", "mfma") and vd & rs: req = max(req, 3)
                    if i.kind in ("vmem", "dma") and sd & rs: req = max(req, 5)
                    if i.kind == "salu" and sd & rs: req = max(req, 1)
                if p.kind == "mfma":
                    n = {4: 8, 8: 12}[p.passes]
                    if i.kind == "mfma":
                        if pd & (set(i.A) | set(i.B)): req = max(req, n)
                        if pd & set(i.C) and not (i.C == p.dst and i.passes == p.passes): req = max(req, n - 2)
                        if pd & ws and not (i.C == p.dst): req = max(req, n - 2)
                    elif i.kind in ("valu", "vmem", "ds", "dma"):
                        if pd & (rs | ws): req = max(req, n)
                    if i.kind == "valu" and set(p.C) & ws: req = max(req, {4: 3, 8: 7}[p.passes])
                if p.kind == "salu" and ("s", "m0") in pd and i.kind == "dma": req = max(req, 1)
                if p.kind == "vmem" and len(p.stdata) >= 3 and set(p.stdata) & ws: req = max(req, 2)
                if req - a > need: need = req - a
            return need
        for it in self.items:
            if isinstance(it, tuple):
                k = it[0]
                if k == "label": out.append(it[1] + ":")
                elif k == "raw": out.append(it[1])
                elif k == "wait_tag":
                    tags = set(it[1])
                    do_wait(need_vm(lambda e: e["tag"] in tags), None)
                elif k == "wait_ds":
                    if lg or sm: do_wait(None, None, smem=True)
                elif k == "cond_begin":
                    stack.append(([dict(e) for e in vm], [dict(e) for e in lg], list(sm), list(hist)))
                    for e in vm: e["old"] = len(stack)
                    for e in lg: e["old"] = len(stack)
                elif k == "cond_end":
                    svm, slg, ssm, shist = stack.pop()
                    d = len(stack) + 1
                    newvm = [dict(e, opt=True) for e in vm if e.get("old", 99) > d or "old" not in e]
                    newlg = [dict(e, opt=True) for e in lg if e.get("old", 99) > d or "old" not in e]
                    vm = svm + newvm; lg = slg + newlg; sm = list(set(ssm) | set(sm))
                    hist = hist + shist
                elif k == "reset":
                    vm = []; lg = []; sm = []
                continue
            i = it
            touched = set(i.src) | set(i.dst)
            if i.op == "s_waitcnt":
                m = re.search(r"vmcnt\((\d+)\)", i.text)
                if m:
                    n = int(m.group(1))
                    if n == 0: vm = []
                    elif not any(e["opt"] for e in vm): vm = vm[max(0, len(vm) - n):]
                m = re.search(r"lgkmcnt\((\d+)\)", i.text)
                if m and int(m.group(1)) == 0: lg = []; sm = []
                emit_text(i.text); continue
            v = need_vm(lambda e: e["dst"] & touched)
            l = need_lg(lambda e: e["dst"] & touched)
            s = bool(set(sm) & touched)
            if v is not None or l is not None or s: do_wait(v, l, s)
            n = hazard(i)
            while n > 0:
                c = min(n, 16); emit_text(f"s_nop {c-1}", c); n -= c
            if i.op == "s_nop":
                emit_text(i.text, int(i.text.split()[1]) + 1); continue
            emit_text(i.text)
            hist.append((0, i))
            if i.kind in ("vmem", "dma"):
                vm.append(dict(dst=set(i.dst), tag=i.tag, opt=False))
                assert sum(1 for e in vm) <= 200
            elif i.kind == "ds": lg.append(dict(dst=set(i.dst), tag=i.tag, opt=False))
            elif i.kind == "smem": sm += i.dst
        return out

def interleave(main, fill, every=1, per=1, start=0):
    out = []; fi = 0
    for idx, m in enumerate(main):
        out.append(m)
        if idx >= start and (idx - start) % every == every - 1:
            for _ in range(per):
                if fi < len(fill): out.append(fill[fi]); fi += 1
    out += fill[fi:]
    return out

def spread(main, fill):
    out = []; n = len(main); m = len(fill); fi = 0
    for idx, x in enumerate(main):
        out.append(x)
        tgt = (idx + 1) * m // n
        while fi < tgt: out.append(fill[fi]); fi += 1
    return out
```

```python
import sys, struct
sys.path.insert(0, "gen")
from asmlib import Asm, vr, ar, sr
from emit import Prog, spread, interleave

NAME = "sequential_preLN__linear_attn_block__mixer_gmlp__prompt_kernel"
def f2u(x): return struct.unpack("<I", struct.pack("<f", x))[0]

F1, F2, F3, F3B, F4 = 0x0, 0x4000, 0x5000, 0x7000, 0x8000
KV = 0xA000; KVS = 1152
STAMP = 0x20000
STATS = 0x40000
PQ, H, Z2, Z1, U = 0x100000, 0x300000, 0x500000, 0x900000, 0xD00000
WS_BYTES = 0x1100000
R1 = 16
SX, SWQKV, SWO, SWIN, SWSP, SBSP, SWOUT, SOUT, SWS, SDBG = 8, 12, 16, 20, 24, 28, 32, 36, 40, 44
def S(d): return f"s[{d}:{d+3}]"
sX, sJ, sW = 48, 49, 50
sLOG2E, sEPS6, sK2, sONE, sSPIN = 52, 54, 56, 58, 51
vL16, vI, vG, vFLAG = 1, 2, 3, 4
vT = [8, 9, 10, 11]
SPIN_MAX = 1 << 16

class G:
    def __init__(self, stop=99, stamps=False):
        self.P = Prog(); self.stop = stop; self.stamps = stamps; self.nst = 0
    def stamp(self):
        if self.stamps:
            k = self.nst; self.nst += 1
            self.P(f"s_memrealtime s[98:99]")
            self.P(f"v_writelane_b32 v7, s98, {k}")
    def dma(self, voff, srd, soff, tag, off=0):
        o = f" offset:{off}" if off else ""
        self.P(f"buffer_load_dwordx4 v{voff}, {S(srd)}, s{soff} offen{o} lds", tag)

    def prologue(self):
        P = self.P
        P(f"""
        s_cmp_ge_u32 s2, 256
        s_cbranch_scc1 L_end
        s_load_dwordx16 s[64:79], s[0:1], 0
        s_load_dwordx4 s[80:83], s[0:1], 64
        s_load_dwordx2 s[84:85], s[0:1], 80
        v_lshrrev_b32 v1, 6, v0
        v_and_b32 v0, 63, v0
        v_readfirstlane_b32 s{sW}, v1
        s_and_b32 s{sX}, s2, 7
        s_lshr_b32 s{sJ}, s2, 3
        v_lshlrev_b32 v{vL16}, 4, v0
        v_and_b32 v{vI}, 15, v0
        v_lshrrev_b32 v{vG}, 4, v0
        """)
        if self.stamps: P("v_mov_b32 v7, 0")
        self.stamp()
        sizes = [(SX, 64, 2097152), (SWQKV, 66, 1572864), (SWO, 68, 524288), (SWIN, 72, 1835008), (SWSP, 74, 8388608),
                 (SBSP, 76, 4096), (SWOUT, 78, 917504), (SOUT, 80, 2097152), (SDBG, 82, 256), (SWS, 84, WS_BYTES)]
        P(f"""
        s_lshl_b32 s60, s2, 2
        v_lshl_add_u32 v{vFLAG}, v0, 10, s60
        s_lshr_b32 s61, s{sJ}, 4
        s_lshl_b32 s62, s{sX}, 1
        s_add_u32 s61, s61, s62
        s_and_b32 s62, s{sJ}, 15
        s_lshl_b32 s63, s62, 4
        s_add_u32 s63, s63, s61
        s_lshl_b32 s63, s63, 2
        s_add_u32 s63, s63, {F3 - 17*1024}
        v_lshl_add_u32 v5, v0, 10, s63
        v_cmp_lt_u32 vcc, 16, v0
        v_cndmask_b32 v{vFLAG}, v{vFLAG}, v5, vcc
        s_lshl_b32 s63, s61, 7
        s_lshl_b32 s62, s62, 2
        s_add_u32 s63, s63, s62
        s_add_u32 s62, s63, {F2}
        v_writelane_b32 v{vFLAG}, s62, 16
        s_add_u32 s62, s63, {F3B}
        v_writelane_b32 v{vFLAG}, s62, 25
        s_lshr_b32 s61, s{sJ}, 3
        s_lshl_b32 s62, s{sX}, 2
        s_add_u32 s61, s61, s62
        s_lshl_b32 s61, s61, 7
        s_and_b32 s62, s{sJ}, 7
        s_lshl_b32 s62, s62, 2
        s_add_u32 s61, s61, s62
        s_add_u32 s61, s61, {F4}
        v_writelane_b32 v{vFLAG}, s61, 26
        s_mov_b32 s{sLOG2E}, {f2u(1.4426950408889634):#x}
        s_mov_b32 s{sLOG2E+1}, {f2u(1.4426950408889634):#x}
        s_mov_b32 s{sEPS6}, {f2u(1e-6):#x}
        s_mov_b32 s{sEPS6+1}, {f2u(1e-6):#x}
        s_mov_b32 s{sK2}, {f2u(-2.302208198*0.044715):#x}
        s_mov_b32 s{sK2+1}, {f2u(-2.302208198*0.044715):#x}
        s_mov_b32 s{sONE}, 1.0
        s_mov_b32 s{sONE+1}, 1.0
        """)
        P("s_waitcnt lgkmcnt(0)")
        for d, p, n in sizes:
            P(f"s_mov_b32 s{d}, s{p}\ns_and_b32 s{d+1}, s{p+1}, 0xffff\ns_mov_b32 s{d+2}, {n}\ns_mov_b32 s{d+3}, 0x20000")

    def set_flag(self, mask):
        P = self.P
        P(f"s_mov_b64 exec, {mask:#x}\nv_mov_b32 v5, 1\nbuffer_store_dword v5, v{vFLAG}, {S(SWS)}, 0 offen sc1\ns_mov_b64 exec, -1")

    def wave0(self, fn):
        P = self.P; L = P.lab("Lw")
        P(f"s_cmp_lg_u32 s{sW}, 0\ns_cbranch_scc1 {L}")
        P.cond_begin(); fn(); P.cond_end()
        P(f"{L}:")

    def poll(self, vaddr, x4=False, srd=SWS, expect=None, soff="0"):
        P = self.P; L = P.lab("Lp"); E = P.lab("Le")
        P(f"s_mov_b32 s{sSPIN}, 0\n{L}:")
        if x4:
            P(f"buffer_load_dwordx4 v[12:15], v{vaddr}, {S(srd)}, {soff} offen sc1\ns_waitcnt vmcnt(0)")
            P("v_and_b32 v12, v12, v13\nv_and_b32 v14, v14, v15\nv_and_b32 v12, v12, v14")
        else:
            P(f"buffer_load_dword v12, v{vaddr}, {S(srd)}, {soff} offen sc1\ns_waitcnt vmcnt(0)")
        if expect is None: P("v_cmp_ne_u32 vcc, 1, v12")
        else: P(f"v_cmp_gt_u32 vcc, {expect}, v12")
        P(f"""s_add_u32 s{sSPIN}, s{sSPIN}, 1
        s_cbranch_vccz {E}
        s_cmp_lt_u32 s{sSPIN}, {SPIN_MAX}
        s_cbranch_scc1 {L}
        {E}:""")

    def barrier(self):
        self.P.wait_ds(); self.P("s_barrier")

    def rowstats(self, sums, n, outA, outB, tmp):
        P = self.P
        regs = [r for p in sums for r in p]
        for op in ("v_permlane32_swap_b32", "v_permlane16_swap_b32"):
            for k, r in enumerate(regs): P(f"v_mov_b32 v{tmp+k}, v{r}")
            for k, r in enumerate(regs): P(f"{op} v{tmp+k}, v{r}")
            for k, r in enumerate(regs): P(f"v_add_f32 v{r}, v{r}, v{tmp+k}")
        self.finstats(sums, n, outA, outB, tmp)
    def finstats(self, sums, n, outA, outB, tmp):
        P = self.P
        for k, (s, q) in enumerate(sums):
            P(f"v_mul_f32 v{s}, {f2u(1.0/n):#x}, v{s}")
            P(f"v_mul_f32 v{q}, {f2u(1.0/n):#x}, v{q}")
            P(f"v_fma_f32 v{q}, -v{s}, v{s}, v{q}")
            P(f"v_max_f32 v{q}, 0, v{q}")
            P(f"v_add_f32 v{q}, {f2u(1e-5):#x}, v{q}")
            P(f"v_rsq_f32 v{outA[k]}, v{q}")
            P(f"v_mul_f32 v{outB[k]}, -v{s}, v{outA[k]}" if False else f"v_mul_f32 v{tmp}, v{s}, v{outA[k]}")
            P(f"v_sub_f32 v{outB[k]}, 0, v{tmp}")

    def phi_pair(self, x, t, out):
        return [f"v_pk_mul_f32 {vr(t,2)}, {vr(x,2)}, s[{sLOG2E}:{sLOG2E+1}]",
                f"v_max_f32 v{x}, 0, v{x}", f"v_max_f32 v{x+1}, 0, v{x+1}",
                f"v_min_f32 v{t}, 0, v{t}", f"v_min_f32 v{t+1}, 0, v{t+1}",
                f"v_exp_f32 v{t}, v{t}", f"v_exp_f32 v{t+1}, v{t+1}",
                f"v_pk_add_f32 {vr(x,2)}, {vr(x,2)}, s[{sEPS6}:{sEPS6+1}]",
                f"v_pk_add_f32 {vr(x,2)}, {vr(x,2)}, {vr(t,2)}",
                f"v_cvt_pk_bf16_f32 v{out}, v{x}, v{x+1}"]
    def gelu_pair(self, x, t, k1):
        return [f"v_pk_mul_f32 {vr(t,2)}, {vr(x,2)}, {vr(x,2)}",
                f"v_pk_fma_f32 {vr(t,2)}, {vr(t,2)}, s[{sK2}:{sK2+1}], {vr(k1,2)}",
                f"v_pk_mul_f32 {vr(t,2)}, {vr(t,2)}, {vr(x,2)}",
                f"v_exp_f32 v{t}, v{t}", f"v_exp_f32 v{t+1}, v{t+1}",
                f"v_pk_add_f32 {vr(t,2)}, {vr(t,2)}, s[{sONE}:{sONE+1}]",
                f"v_rcp_f32 v{t}, v{t}", f"v_rcp_f32 v{t+1}, v{t+1}",
                f"v_pk_mul_f32 {vr(x,2)}, {vr(x,2)}, {vr(t,2)}"]
    @staticmethod
    def bc(r):
        return vr(r & ~1, 2), r & 1
    def affine_pair(self, x, t, A, B, cs, a_bc, cs_bc):
        if a_bc:
            bn, bb = self.bc(B); an, ab = self.bc(A)
            return [f"v_pk_mul_f32 {vr(t,2)}, {vr(cs,2)}, {bn} op_sel:[0,{bb}] op_sel_hi:[1,{bb}]",
                    f"v_pk_fma_f32 {vr(x,2)}, {vr(x,2)}, {an}, {vr(t,2)} op_sel:[0,{ab},0] op_sel_hi:[1,{ab},1]"]
        cn, cb = self.bc(cs)
        return [f"v_pk_mul_f32 {vr(t,2)}, {vr(B,2)}, {cn} op_sel:[0,{cb}] op_sel_hi:[1,{cb}]",
                f"v_pk_fma_f32 {vr(x,2)}, {vr(x,2)}, {vr(A,2)}, {vr(t,2)}"]
    @staticmethod
    def zipped(lists):
        out = []; n = max(len(l) for l in lists)
        for k in range(n):
            for l in lists:
                if k < len(l): out.append(l[k])
        return out

    def phase1(self):
        P = self.P
        SCR = 147456
        vX = [216, 217]; vWd = [218, 219]; vA = [220, 221]; vO = [222, 223]; vB = 224
        OWN = 16; BK = 24; BV = 32; ONES = 40; ACK = 48; ACV = 64; CSK = 80; CSV = 84; SUM = 88; SQ = 89
        ACQ = 96; CSQ = 112; ST = 120
        sXo, sWo, sM = 60, 61, 62
        P("v_mov_b32 v12, 0\nv_mov_b32 v13, 0\nv_mov_b32 v14, 0\nv_mov_b32 v15, 0")
        def z0():
            P(f"s_mov_b64 exec, {(1<<27)-1:#x}\nbuffer_store_dword v12, v{vFLAG}, {S(SWS)}, 0 offen sc1\ns_mov_b64 exec, -1", "init")
        self.wave0(z0)
        L = P.lab("Lz")
        P(f"s_cmp_lg_u32 s{sW}, 1\ns_cbranch_scc1 {L}"); P.cond_begin()
        P(f"""s_lshr_b32 s86, s{sJ}, 4
        s_lshl_b32 s87, s{sX}, 1
        s_add_u32 s86, s86, s87
        s_lshl_b32 s86, s86, 4
        s_and_b32 s87, s{sJ}, 15
        s_add_u32 s86, s86, s87
        s_lshl_b32 s86, s86, 10
        s_add_u32 s86, s86, {STATS}""")
        P(f"buffer_store_dwordx4 v[12:15], v{vL16}, {S(SWS)}, s86 offen sc1", "init")
        P.cond_end(); P(f"{L}:")
        L = P.lab("Lz")
        P(f"s_cmp_lg_u32 s{sW}, 2\ns_cbranch_scc1 {L}\ns_cmp_ge_u32 s2, 36\ns_cbranch_scc1 {L}"); P.cond_begin()
        P(f"s_lshl_b32 s86, s2, 10\ns_add_u32 s86, s86, {KV}")
        P(f"buffer_store_dwordx4 v[12:15], v{vL16}, {S(SWS)}, s86 offen sc1", "init")
        P.cond_end(); P(f"{L}:")
        P(f"""
        s_lshr_b32 s86, s{sJ}, 3
        s_lshl_b32 s87, s{sX}, 2
        s_add_u32 s86, s86, s87
        s_lshl_b32 s88, s86, 16
        s_lshl_b32 s87, s{sW}, 14
        s_add_u32 s88, s88, s87
        s_and_b32 s89, s{sJ}, 7
        s_lshl_b32 s90, s89, 7
        s_mul_i32 s87, s{sW}, {16*3072}
        s_add_u32 s90, s90, s87
        s_lshl_b32 s91, s{sW}, 11
        v_lshrrev_b32 v5, 3, v0
        v_and_b32 v6, 7, v0
        v_xor_b32 v12, v6, v{vG}
        v_lshlrev_b32 v12, 4, v12
        v_lshl_add_u32 v{vX[0]}, v5, 10, v12
        v_xor_b32 v12, 64, v12
        v_lshl_add_u32 v{vX[1]}, v5, 10, v12
        v_add_u32 v{vX[1]}, 8192, v{vX[1]}
        v_and_b32 v12, 2, v5
        v_xor_b32 v12, v6, v12
        v_lshlrev_b32 v12, 4, v12
        v_mul_u32_u24 v13, 3072, v5
        v_add_u32 v{vWd[0]}, v13, v12
        v_xor_b32 v12, 64, v12
        v_add_u32 v{vWd[1]}, v13, v12
        v_add_u32 v{vWd[1]}, {8*3072}, v{vWd[1]}
        """)
        def issue_stage(s):
            slot = (s % 6) * 24576
            if s < 8:
                parts = [(0, SX, vX, 88, s * 128), (8192, SWQKV, vWd, 90, s * 64 * 3072 + 1024), (16384, SWQKV, vWd, 90, s * 64 * 3072 + 2048)]
            else:
                cs = [c for c in range(3 * (s - 8), min(8, 3 * (s - 8) + 3))]
                parts = [(8192 * k, SWQKV, vWd, 90, c * 64 * 3072) for k, c in enumerate(cs)]
            for lo, srd, vo, sb, so in parts:
                P(f"s_add_u32 s{sXo}, s{sb}, {so}")
                for i in range(2):
                    P(f"s_add_u32 m0, s91, {slot + lo + i * 1024}")
                    self.dma(vo[i], srd, sXo, f"st{s}")
        for s in range(2): issue_stage(s)
        def cpf():
            P(f"""s_getpc_b64 s[86:87]
            L_pc:
            s_lshl_b32 s92, s89, 13
            v_lshl_add_u32 v12, v0, 7, s92
            v_min_u32 v12, L_end-L_pc, v12
            global_load_dword v13, v12, s[86:87]""")
        self.wave0(cpf)
        for s in range(2, 6): issue_stage(s)
        P(f"""
        v_lshrrev_b32 v12, 1, v{vI}
        v_xor_b32 v12, v12, v{vG}
        v_lshlrev_b32 v12, 4, v12
        v_lshl_add_u32 v{vA[0]}, v{vI}, 7, v12
        v_xor_b32 v{vA[1]}, 64, v{vA[0]}
        v_add_u32 v{vO[0]}, s91, v{vA[0]}
        v_add_u32 v{vO[1]}, s91, v{vA[1]}
        v_lshrrev_b32 v12, 2, v{vI}
        v_lshl_add_u32 v13, v{vG}, 3, v12
        v_and_b32 v14, 2, v12
        v_and_b32 v15, 1, v{vG}
        v_lshl_or_b32 v14, v15, 2, v14
        v_bfe_u32 v15, v0, 1, 1
        s_lshl_b32 s86, s{sW}, 1
        v_add_u32 v15, s86, v15
        v_xor_b32 v14, v14, v15
        v_lshlrev_b32 v14, 4, v14
        v_lshl_add_u32 v14, v13, 7, v14
        v_and_b32 v15, 1, v0
        v_lshl_add_u32 v{vB}, v15, 3, v14
        """)
        for k in range(4): P(f"v_mov_b32 v{ONES+k}, 0x3f803f80")
        P(f"v_mov_b32 v{SUM}, 0\nv_mov_b32 v{SQ}, 0")
        cur = 0
        def setbase(slot, regs):
            nonlocal cur
            want = (slot // 2) * 49152
            if want != cur:
                for r in regs:
                    P(f"v_add_u32 v{r}, {want - cur}, v{r}" if want > cur else f"v_subrev_u32 v{r}, {cur - want}, v{r}")
                cur = want
            return (slot % 2) * 24576
        for s in range(8):
            P.wait_tag(f"st{s}", "init"); self.barrier()
            if s == 0:
                def cnt():
                    P(f"""s_cmp_lt_u32 s2, 36
                    s_cselect_b32 s86, 3, 2
                    s_mov_b32 s87, 0
                    s_mov_b64 exec, s[86:87]
                    v_lshlrev_b32 v12, 7, v0
                    v_mov_b32 v13, 1
                    buffer_atomic_add v13, v12, {S(SDBG)}, 0 offen sc1
                    s_mov_b64 exec, -1""")
                self.wave0(cnt)
                self.stamp()
            if 1 <= s <= 5: issue_stage(s + 5)
            so = setbase(s % 6, vA + vO + [vB])
            for t in range(2):
                ks = 2 * s + t
                for rf in range(4): P(f"ds_read_b128 {ar((ks*4+rf)*4,4)}, v{vA[t]} offset:{so + rf*2048}")
                P(f"ds_read_b128 {vr(OWN+4*t,4)}, v{vO[t]} offset:{so}")
                for base, lo in ((BK, 8192), (BV, 16384)):
                    for h in range(2): P(f"ds_read_b64_tr_b16 {vr(base+4*t+2*h,2)}, v{vB} offset:{so + lo + t*4096 + h*512}")
            for t in range(2):
                ks = 2 * s + t
                m = []
                for base, acc, cs in ((BK, ACK, CSK), (BV, ACV, CSV)):
                    for rf in range(4):
                        c = vr(acc+4*rf,4) if ks else "0"
                        m.append(f"v_mfma_f32_16x16x32_bf16 {vr(acc+4*rf,4)}, {ar((ks*4+rf)*4,4)}, {vr(base+4*t,4)}, {c}")
                    m.append(f"v_mfma_f32_16x16x32_bf16 {vr(cs,4)}, {vr(ONES,4)}, {vr(base+4*t,4)}, {vr(cs,4) if ks else '0'}")
                d = []
                for k in range(4):
                    d.append(f"v_dot2_f32_bf16 v{SUM}, v{OWN+4*t+k}, v{ONES}, v{SUM}")
                    d.append(f"v_dot2_f32_bf16 v{SQ}, v{OWN+4*t+k}, v{OWN+4*t+k}, v{SQ}")
                P.add(interleave(m, d, 1, 1, 1))
        self.stamp()
        self.rowstats([(SUM, SQ)], 512, [90], [91], 92)
        P(f"""s_lshl_b32 s86, s{sW}, 6
        s_add_u32 s86, s86, {SCR}
        v_lshl_add_u32 v12, v{vI}, 2, s86
        ds_write_b32 v12, v90
        ds_write_b32 v12, v91 offset:256""")
        P(f"buffer_load_dword v94, off, {S(SDBG)}, 0 sc1")
        P.wait_tag("st8"); self.barrier()
        P(f"v_lshlrev_b32 v12, 4, v{vG}\nv_add_u32 v12, {SCR}, v12\nv_lshlrev_b32 v13, 2, v{vI}\nv_add_u32 v13, {SCR}, v13")
        for rf in range(4):
            P(f"ds_read_b128 {vr(ST+8*rf,4)}, v12 offset:{rf*64}\nds_read_b128 {vr(ST+8*rf+4,4)}, v12 offset:{256+rf*64}")
        STQ = 152
        for rf in range(4):
            P(f"ds_read_b32 v{STQ+2*rf}, v13 offset:{rf*64}\nds_read_b32 v{STQ+2*rf+1}, v13 offset:{256+rf*64}")
        def qreads(c, so):
            out = []
            for t in range(2):
                for h in range(2): out.append(f"ds_read_b64_tr_b16 {vr(BK+8*(c&1)+4*t+2*h,2)}, v{vB} offset:{so + t*4096 + h*512}")
            return out
        def qmfma(c):
            out = []
            for t in range(2):
                ks = 2 * c + t; b = vr(BK+8*(c&1)+4*t,4)
                for rf in range(4):
                    out.append(f"v_mfma_f32_16x16x32_bf16 {vr(ACQ+4*rf,4)}, {b}, {ar((ks*4+rf)*4,4)}, {vr(ACQ+4*rf,4) if ks else '0'}")
                out.append(f"v_mfma_f32_16x16x32_bf16 {vr(CSQ,4)}, {b}, {vr(ONES,4)}, {vr(CSQ,4) if ks else '0'}")
            return out
        PK = 160; PV = 168; TT = 176
        ek = []
        for rf in range(4):
            ls = []
            for hp in range(2):
                x = ACK + 4*rf + 2*hp; t = TT + 2*hp
                ls.append(self.affine_pair(x, t, ST+8*rf+2*hp, ST+8*rf+4+2*hp, CSK, False, True) + self.phi_pair(x, t, PK + 2*rf + hp))
                x = ACV + 4*rf + 2*hp; t = TT + 4 + 2*hp
                ls.append(self.affine_pair(x, t, ST+8*rf+2*hp, ST+8*rf+4+2*hp, CSV, False, True) + [f"v_cvt_pk_bf16_f32 v{PV+2*rf+hp}, v{x}, v{x+1}"])
            ek += self.zipped(ls)
        so = setbase(2, [vB])
        P.add(qreads(0, so) + qreads(1, so + 8192))
        mm = qmfma(0) + qreads(2, so + 16384) + qmfma(1) + qmfma(2)
        P.add(spread(ek, mm))
        KVD = 184; ZD = 188
        P(f"""v_mfma_f32_16x16x32_bf16 {vr(KVD,4)}, {vr(PK,4)}, {vr(PV,4)}, 0
        v_mfma_f32_16x16x32_bf16 {vr(ZD,4)}, {vr(PK,4)}, {vr(ONES,4)}, 0
        v_mfma_f32_16x16x32_bf16 {vr(KVD,4)}, {vr(PK+4,4)}, {vr(PV+4,4)}, {vr(KVD,4)}
        v_mfma_f32_16x16x32_bf16 {vr(ZD,4)}, {vr(PK+4,4)}, {vr(ONES,4)}, {vr(ZD,4)}""")
        P(f"""s_add_u32 s86, s91, {SCR + 1024}
        v_add_u32 v14, s86, v{vL16}
        v_lshl_add_u32 v15, v{vG}, 4, s86
        v_lshl_add_u32 v12, v0, 2, s86
        ds_write_b128 v14, {vr(KVD,4)}
        ds_write_b128 v15, {vr(ZD,4)} offset:1024""")
        P.wait_ds()
        for t in range(5): P(f"ds_read_b32 v{192+t}, v12 offset:{t*256}")
        L = P.lab("Lk"); E = P.lab("Le")
        P(f"""s_mov_b32 s{sSPIN}, 0
        v_cmp_gt_u32 vcc, 36, v94
        s_cbranch_vccz {E}""")
        P.cond_begin()
        P(f"""{L}:
        buffer_load_dword v94, off, {S(SDBG)}, 0 sc1
        s_waitcnt vmcnt(0)
        v_cmp_gt_u32 vcc, 36, v94
        s_add_u32 s{sSPIN}, s{sSPIN}, 1
        s_cbranch_vccz {E}
        s_cmp_lt_u32 s{sSPIN}, {SPIN_MAX}
        s_cbranch_scc1 {L}""")
        P.cond_end(); P(f"{E}:")
        P(f"""s_lshl_b32 s86, s89, 2
        s_add_u32 s86, s86, s{sW}
        s_mul_i32 s87, s86, {KVS}
        s_add_u32 s87, s87, {KV}
        v_lshlrev_b32 v12, 2, v0""")
        for t in range(4): P(f"buffer_atomic_add_f32 v{192+t}, v12, {S(SWS)}, s87 offen offset:{t*256} sc1")
        P(f"s_mov_b64 exec, 0xffff\nbuffer_atomic_add_f32 v196, v12, {S(SWS)}, s87 offen offset:1024 sc1\ns_mov_b64 exec, -1")
        self.stamp()
        P.wait_tag("st9"); self.barrier()
        so = setbase(3, [vB])
        P.add(qreads(3, so) + qreads(4, so + 8192) + qmfma(3) + qreads(5, so + 16384) + qmfma(4))
        P.wait_tag("st10"); self.barrier()
        so = setbase(4, [vB])
        P.add(qreads(6, so) + qmfma(5) + qreads(7, so + 8192) + qmfma(6) + qmfma(7))
        PQR = 160
        ls = []
        for rf in range(4):
            for hp in range(2):
                x = ACQ + 4*rf + 2*hp; t = TT + 2*((2*rf+hp) % 4)
                ls.append(self.affine_pair(x, t, STQ+2*rf, STQ+2*rf+1, CSQ+2*hp, True, False) + self.phi_pair(x, t, PQR + 2*rf + hp))
        P.add(self.zipped(ls[:4]) + self.zipped(ls[4:]))
        P(f"""s_lshr_b32 s87, s{sJ}, 3
        s_lshl_b32 s92, s{sX}, 2
        s_add_u32 s87, s87, s92
        s_lshl_b32 s87, s87, 6
        s_add_u32 s87, s87, s86
        s_lshl_b32 s87, s87, 10
        s_add_u32 s87, s87, {PQ}
        s_add_u32 s92, s87, 32768
        buffer_store_dwordx4 {vr(PQR,4)}, v{vL16}, {S(SWS)}, s87 offen sc1
        buffer_store_dwordx4 {vr(PQR+4,4)}, v{vL16}, {S(SWS)}, s92 offen sc1
        s_waitcnt vmcnt(0)""")
        self.barrier()
        self.wave0(lambda: self.set_flag(0xffff))
        self.stamp()

    def phase2(self):
        P = self.P
        XT = 155648; EX = 65536
        vD = 5
        P(f"""
        s_lshr_b32 s88, s{sJ}, 2
        s_lshl_b32 s86, s{sX}, 3
        s_add_u32 s88, s88, s86
        s_and_b32 s89, s{sJ}, 3
        v_lshrrev_b32 v12, 3, v0
        v_and_b32 v13, 6, v12
        v_and_b32 v14, 7, v0
        v_xor_b32 v13, v13, v14
        v_lshlrev_b32 v6, 4, v13
        v_lshl_add_u32 v16, v12, 10, v6
        s_lshl_b32 s90, s{sW}, 17
        s_lshl_b32 s86, s89, 8
        s_add_u32 s90, s90, s86
        s_lshl_b32 s91, s{sW}, 15
        """)
        for st in range(2):
            for i in range(16):
                P(f"s_add_u32 s60, s90, {i*8192 + st*128}\ns_add_u32 m0, s91, {st*16384 + i*1024}")
                self.dma(16, SWO, 60, "wo")
        P(f"""s_lshl_b32 s86, s{sW}, 3
        v_add_u32 v12, s86, v{vG}
        v_xor_b32 v13, v12, v{vI}
        v_and_b32 v13, 15, v13
        v_lshlrev_b32 v13, 4, v13
        v_lshl_add_u32 v17, v12, 10, v13
        v_xor_b32 v13, 64, v13
        v_lshl_add_u32 v18, v12, 10, v13
        v_add_u32 v18, 4096, v18
        s_lshl_b32 s60, s88, 15
        s_lshl_b32 s86, s89, 8
        s_add_u32 s60, s60, s86
        s_lshl_b32 s86, s{sW}, 11
        s_add_u32 m0, s86, {XT}""")
        self.dma(17, SX, 60, "xt")
        P(f"s_add_u32 m0, s86, {XT + 1024}")
        self.dma(18, SX, 60, "xt")
        P(f"""v_lshrrev_b32 v12, 2, v{vI}
        v_lshl_add_u32 v12, v{vG}, 2, v12
        v_and_b32 v13, 6, v12
        v_bfe_u32 v14, v0, 1, 1
        v_xor_b32 v13, v13, v14
        v_and_b32 v14, 1, v0
        v_lshlrev_b32 v14, 3, v14
        v_lshl_add_u32 v14, v12, 7, v14
        v_lshl_add_u32 v{vT[0]}, v13, 4, v14
        v_xor_b32 v{vT[1]}, 32, v{vT[0]}
        v_xor_b32 v{vT[2]}, 64, v{vT[0]}
        v_xor_b32 v{vT[3]}, 96, v{vT[0]}""")
        P(f"s_and_b32 s86, s{sW}, 1\ns_lshl_b32 s86, s86, 6")
        for p in range(4):
            P(f"s_add_u32 s87, s{sW}, {p}\ns_and_b32 s87, s87, 2\ns_lshl_b32 s87, s87, 13\ns_add_u32 s87, s87, s91")
            for cf in range(2):
                P(f"v_xor_b32 v{20+2*p+cf}, s86, v{vT[2*(p&1)+cf]}\nv_add_u32 v{20+2*p+cf}, s87, v{20+2*p+cf}")
        P.wait_tag("wo", "xt")
        for kk in range(4):
            for p in range(4):
                for cf in range(2):
                    for h in range(2):
                        P(f"ds_read_b64_tr_b16 {ar(((kk*4+p)*2+cf)*4+2*h,2)}, v{20+2*p+cf} offset:{kk*4096 + h*2048}")
        P(f"""s_lshl_b32 s86, s{sW}, 3
        s_mul_i32 s92, s86, {KVS}
        s_add_u32 s92, s92, {KV}
        s_add_u32 s93, s92, {4*KVS}
        s_lshl_b32 s94, s88, 5
        s_add_u32 s94, s94, s86
        s_lshl_b32 s94, s94, 10
        s_add_u32 s94, s94, {PQ}
        s_add_u32 s95, s94, 4096
        v_and_b32 v12, 7, v0
        v_mul_u32_u24 v12, {KVS}, v12
        v_lshl_add_u32 v19, v{vG}, 4, v12""")
        EPSQ = 208
        for k in range(4): P(f"v_mov_b32 v{EPSQ+k}, s{sEPS6}")
        self.stamp()
        def pl():
            P(f"v_mov_b32 v16, 128")
            self.poll(16, srd=SDBG, expect=None) if False else None
            L = P.lab("Lc"); E = P.lab("Le")
            P(f"""s_mov_b32 s{sSPIN}, 0
            s_movk_i32 s86, 256
            {L}:
            buffer_load_dword v12, v16, {S(SDBG)}, 0 offen sc1
            s_waitcnt vmcnt(0)
            v_cmp_gt_u32 vcc, s86, v12
            s_add_u32 s{sSPIN}, s{sSPIN}, 1
            s_cbranch_vccz {E}
            s_cmp_lt_u32 s{sSPIN}, {SPIN_MAX}
            s_cbranch_scc1 {L}
            {E}:""")
            P(f"s_and_b32 s86, s2, {R1-1}\ns_lshl_b32 s86, s86, 10")
            self.poll(vL16, x4=True, soff="s86")
        self.wave0(pl)
        self.barrier()
        self.stamp()
        KR = 16; KP = 48; ZR = 64; ZC = 68; ZP = 70; PQR = 86; ACC = 128; OF = 192; ND = 212
        P(f"buffer_load_dwordx4 {vr(ZR,4)}, v19, {S(SWS)}, s92 offen offset:1024 sc1")
        for h in range(8):
            P(f"buffer_load_dwordx4 {vr(KR+4*h,4)}, v{vL16}, {S(SWS)}, s{92+h//4} offen offset:{(h%4)*KVS} sc1")
            P(f"buffer_load_dwordx4 {vr(PQR+4*h,4)}, v{vL16}, {S(SWS)}, s{94+h//4} offen offset:{(h%4)*1024} sc1")
        self.win_dma(0)
        P(f"v_cvt_pk_bf16_f32 v{ZC}, v{ZR}, v{ZR+1}\nv_cvt_pk_bf16_f32 v{ZC+1}, v{ZR+2}, v{ZR+3}")
        for h in range(8):
            for k in range(2): P(f"v_mov_b32_dpp v{ZP+2*h+k}, v{ZC+k} row_newbcast:{h} row_mask:0xf bank_mask:0xf")
        def ostep(kk):
            m = []; v = []
            for hh in range(2):
                h = 2*kk + hh
                m.append(f"v_cvt_pk_bf16_f32 v{KP+2*h}, v{KR+4*h}, v{KR+4*h+1}")
                m.append(f"v_cvt_pk_bf16_f32 v{KP+2*h+1}, v{KR+4*h+2}, v{KR+4*h+3}")
            for hh in range(2):
                h = 2*kk + hh
                for a in range(2):
                    nd = ND + 8*(2*hh+a)
                    m.append(f"v_mfma_f32_16x16x16_bf16 {vr(nd+4,4)}, {vr(ZP+2*h,2)}, {vr(PQR+4*h+2*a,2)}, {vr(EPSQ,4)}")
                    m.append(f"v_mfma_f32_16x16x16_bf16 {vr(nd,4)}, {vr(KP+2*h,2)}, {vr(PQR+4*h+2*a,2)}, 0")
            ls = []
            for hh in range(2):
                for a in range(2):
                    nd = ND + 8*(2*hh+a); o = OF + 8*(kk&1) + 4*a + 2*hh
                    ls.append([f"v_rcp_f32 v{nd+4}, v{nd+4}",
                               f"v_pk_mul_f32 {vr(nd,2)}, {vr(nd,2)}, {vr(nd+4,2)} op_sel_hi:[1,0]",
                               f"v_pk_mul_f32 {vr(nd+2,2)}, {vr(nd+2,2)}, {vr(nd+4,2)} op_sel_hi:[1,0]",
                               f"v_cvt_pk_bf16_f32 v{o}, v{nd}, v{nd+1}", f"v_cvt_pk_bf16_f32 v{o+1}, v{nd+2}, v{nd+3}"])
            return m, self.zipped(ls)
        def gstep(kk):
            m = []
            for p in range(4):
                for cf in range(2):
                    for a in range(2):
                        acc = vr(ACC + ((p*2+a)*2+cf)*4, 4)
                        m.append(f"v_mfma_f32_16x16x32_bf16 {acc}, {ar(((kk*4+p)*2+cf)*4,4)}, {vr(OF+8*(kk&1)+4*a,4)}, {acc if kk else '0'}")
            return m
        m, v = ostep(0); P.add(m + v)
        for kk in range(4):
            g = gstep(kk)
            if kk < 3:
                m, v = ostep(kk+1)
                P.add(m + g[:4] + interleave(g[4:], v, 1, 2))
            else: P.add(g)
        self.stamp()
        for p in range(1, 4):
            P(f"s_add_u32 s86, s{sW}, {p}\ns_and_b32 s86, s86, 3\ns_mul_i32 s86, s86, 12288\ns_add_u32 s86, s86, {EX + (p-1)*4096}")
            P(f"v_add_u32 v{12+p}, s86, v{vL16}")
            for q in range(4): P(f"ds_write_b128 v{12+p}, {vr(ACC+(p*4+q)*4,4)} offset:{q*1024}")
        P(f"""s_mul_i32 s86, s{sW}, 12288
        s_add_u32 s86, s86, {EX}
        v_add_u32 v12, s86, v{vL16}
        s_lshl_b32 s86, s{sW}, 2
        v_lshrrev_b32 v16, 1, v{vG}
        v_add_u32 v16, s86, v16
        v_xor_b32 v16, v16, v{vI}
        v_lshlrev_b32 v16, 4, v16
        v_lshl_add_u32 v16, v{vI}, 8, v16
        v_and_b32 v17, 1, v{vG}
        v_lshl_add_u32 v16, v17, 3, v16
        v_add_u32 v16, {XT}, v16
        v_xor_b32 v17, 32, v16""")
        XR = 20
        for a in range(2):
            for cf in range(2): P(f"ds_read_b64 {vr(XR+(a*2+cf)*2,2)}, v{16+cf} offset:{a*4096}")
        self.barrier()
        RB = 32
        for k in range(12): P(f"ds_read_b128 {vr(RB+4*k,4)}, v12 offset:{k*1024}")
        XF = 80
        for q in range(4):
            for k in range(2):
                P(f"v_lshlrev_b32 v{XF+4*q+2*k}, 16, v{XR+2*q+k}\nv_and_b32 v{XF+4*q+2*k+1}, 0xffff0000, v{XR+2*q+k}")
            for k in range(2): P(f"v_pk_add_f32 {vr(ACC+4*q+2*k,2)}, {vr(ACC+4*q+2*k,2)}, {vr(XF+4*q+2*k,2)}")
        for p in range(3):
            for q in range(4):
                for k in range(2): P(f"v_pk_add_f32 {vr(ACC+4*q+2*k,2)}, {vr(ACC+4*q+2*k,2)}, {vr(RB+(p*4+q)*4+2*k,2)}")
        HO = 96
        for q in range(4):
            for k in range(2): P(f"v_cvt_pk_bf16_f32 v{HO+2*q+k}, v{ACC+4*q+2*k}, v{ACC+4*q+2*k+1}")
        P(f"""s_lshl_b32 s86, s88, 5
        s_lshl_b32 s87, s89, 2
        s_add_u32 s86, s86, s87
        s_add_u32 s86, s86, s{sW}
        s_lshl_b32 s86, s86, 10
        s_add_u32 s86, s86, {H}
        s_add_u32 s87, s86, 16384
        buffer_store_dwordx4 {vr(HO,4)}, v{vL16}, {S(SWS)}, s86 offen sc1
        buffer_store_dwordx4 {vr(HO+4,4)}, v{vL16}, {S(SWS)}, s87 offen sc1
        s_waitcnt vmcnt(0)""")
        self.barrier()
        self.wave0(lambda: self.set_flag(1 << 16))
        self.stamp()

    def win_dma(self, half):
        P = self.P
        P(f"""v_lshrrev_b32 v12, 3, v0
        v_mul_u32_u24 v12, 3584, v12
        v_add_u32 v12, v12, v6
        s_and_b32 s86, s{sJ}, 15
        s_min_u32 s86, s86, 13
        s_lshl_b32 s86, s86, 7
        s_mul_i32 s87, s{sW}, {128*3584}
        s_add_u32 s86, s86, s87
        s_lshl_b32 s87, s{sW}, 14""")
        for i in range(16):
            P(f"s_add_u32 s60, s86, {i*8*3584 + (1792 if half == 0 else 0)}\ns_add_u32 m0, s87, {half*65536 + i*1024}")
            self.dma(12, SWIN, 60, f"win{half}")

    def wsp_setup(self):
        P = self.P
        P(f"""v_lshrrev_b32 v12, 3, v0
        v_and_b32 v13, 7, v0
        v_xor_b32 v13, v13, v{vG}
        v_lshlrev_b32 v13, 4, v13
        v_lshl_add_u32 v244, v12, 12, v13
        v_xor_b32 v245, 64, v244
        v_add_u32 v245, 32768, v245
        s_lshr_b32 s96, s{sJ}, 3
        s_lshl_b32 s86, s{sX}, 2
        s_add_u32 s96, s96, s86
        s_lshl_b32 s96, s96, 18
        s_lshl_b32 s86, s{sW}, 10
        s_add_u32 s96, s96, s86
        s_lshl_b32 s97, s{sW}, 14
        v_lshrrev_b32 v12, 1, v{vI}
        v_xor_b32 v12, v12, v{vG}
        v_lshlrev_b32 v12, 4, v12
        v_lshl_add_u32 v12, v{vI}, 7, v12
        v_xor_b32 v13, 64, v12""")
        for p in range(4):
            P(f"s_add_u32 s86, s{sW}, {p}\ns_and_b32 s86, s86, 3\ns_lshl_b32 s86, s86, 11\ns_add_u32 s86, s86, s97")
            P(f"v_add_u32 v{246+2*p}, s86, v12\nv_add_u32 v{247+2*p}, s86, v13")
    def wsp_slot(self, c): return (c & 1) * 8192 + ((c >> 1) & 1) * 65536
    def wsp_issue(self, c):
        out = []
        for i in range(8):
            out.append(f"s_add_u32 s60, s96, {(i>>1)*65536 + c*128}")
            out.append(f"s_add_u32 m0, s97, {self.wsp_slot(c) + i*1024}")
            out.append(("T", f"buffer_load_dwordx4 v{244+(i&1)}, {S(SWSP)}, s60 offen lds", f"wsp{c}"))
        return out
    def wsp_read(self, c):
        P = self.P
        P.wait_tag(f"wsp{c}")
        hi = self.wsp_slot(c) >= 65536
        if hi:
            for r in range(246, 254): P(f"v_add_u32 v{r}, 65536, v{r}")
        for t in range(2):
            for p in range(4):
                P(f"ds_read_b128 {ar(((2*c+t)*4+p)*4,4)}, v{246+2*p+t} offset:{(c&1)*8192}")
        if hi:
            for r in range(246, 254): P(f"v_subrev_u32 v{r}, 65536, v{r}")

    def phase3(self):
        P = self.P
        SCR = 131072
        HF = 16; BB = 144; A2 = 176; A1 = 208
        SS = [(240, 241), (242, 243)]
        AON, AEX, ACS = 240, 244, 248
        Lskip = "L_p3skip"; Ljoin = "L_p3join"
        P(f"""s_lshr_b32 s88, s{sJ}, 4
        s_lshl_b32 s86, s{sX}, 1
        s_add_u32 s88, s88, s86
        s_and_b32 s89, s{sJ}, 15
        s_cmp_ge_u32 s89, 14
        s_cbranch_scc1 {Lskip}""")
        P(f"v_mov_b32 v12, 0x3f803f80")
        for k in range(4): P(f"v_accvgpr_write_b32 a{AON+k}, v12")
        P(f"s_lshl_b32 s86, s{sW}, 5\nv_xor_b32 v15, s86, v{vT[0]}")
        for t in range(16):
            for h in range(2): P(f"ds_read_b64_tr_b16 {vr(HF+4*t+2*h,2)}, v15 offset:{t*4096 + h*2048}")
        for t in range(16):
            P(f"v_mfma_f32_16x16x32_bf16 {ar(ACS,4)}, {ar(AON,4)}, {vr(HF+4*t,4)}, {ar(ACS,4) if t else '0'}")
        P(f"""s_lshl_b32 s86, s{sW}, 6
        s_add_u32 s86, s86, {SCR}
        v_lshl_add_u32 v14, v{vI}, 2, s86
        ds_write_b32 v14, a{ACS}""")
        P(f"""s_lshl_b32 s90, s88, 3
        s_lshl_b32 s86, s{sW}, 1
        s_add_u32 s90, s90, s86
        s_lshl_b32 s90, s90, 14
        s_add_u32 s90, s90, {H}""")
        def pl():
            P(f"s_lshl_b32 s86, s88, 7\ns_add_u32 s86, s86, {F2}\nv_lshlrev_b32 v16, 2, v{vI}")
            self.poll(16, soff="s86")
        self.wave0(pl)
        self.barrier()
        self.stamp()
        for t in range(16):
            if t % 4 == 0: P(f"s_add_u32 s60, s90, {t*1024}\ns_add_u32 s61, s90, {16384 + t*1024}")
            for a in range(2): P(f"buffer_load_dwordx4 {vr(HF+(t*2+a)*4,4)}, v{vL16}, {S(SWS)}, s{60+a} offen offset:{(t%4)*1024} sc1")
        self.win_dma(1)
        CS2 = 244
        P(f"v_lshlrev_b32 v12, 2, v{vI}\nv_add_u32 v12, {SCR}, v12")
        for f in range(4): P(f"ds_read_b32 v{CS2+f}, v12 offset:{f*64}")
        P(f"v_mov_b32 v13, 0x3f803f80")
        for s, q in SS: P(f"v_mov_b32 v{s}, 0\nv_mov_b32 v{q}, 0")
        def breads(t, base):
            return [f"ds_read_b64_tr_b16 {vr(BB+16*(t&1)+4*f+2*h,2)}, v{vT[f]} offset:{base + t*4096 + h*2048}" for f in range(4) for h in range(2)]
        P.add(breads(0, 0))
        for t in range(16):
            m = []
            for f in range(4):
                for a in range(2):
                    acc = vr(A2 + (a*4+f)*4, 4)
                    m.append(f"v_mfma_f32_16x16x32_bf16 {acc}, {vr(HF+(t*2+a)*4,4)}, {vr(BB+16*(t&1)+4*f,4)}, {acc if t else '0'}")
            d = []
            for k in range(4):
                for a in range(2):
                    r = HF + (t*2+a)*4 + k
                    d.append(f"v_dot2_f32_bf16 v{SS[a][0]}, v{r}, v13, v{SS[a][0]}")
                    d.append(f"v_dot2_f32_bf16 v{SS[a][1]}, v{r}, v{r}, v{SS[a][1]}")
            nxt = breads(t+1, 0) if t < 15 else []
            P.add(nxt + interleave(m, d, 1, 2))
        self.stamp()
        LA = [248, 250]; LB = [249, 251]
        self.rowstats(SS, 512, LA, LB, BB)
        P(f"""s_lshl_b32 s91, s{sW}, 10
        s_add_u32 s91, s91, {SCR + 1024}
        v_lshl_add_u32 v12, v{vI}, 2, s91
        v_lshl_add_u32 v14, v{vG}, 4, s91""")
        for a in range(2): P(f"ds_write_b32 v12, v{LA[a]} offset:{a*64}\nds_write_b32 v12, v{LB[a]} offset:{128+a*64}")
        P.wait_ds()
        RA = BB; RBb = BB + 8
        for a in range(2): P(f"ds_read_b128 {vr(RA+4*a,4)}, v14 offset:{a*64}\nds_read_b128 {vr(RBb+4*a,4)}, v14 offset:{128+a*64}")
        K1 = 252
        P(f"v_mov_b32 v{K1}, {f2u(-2.302208198):#x}\nv_mov_b32 v{K1+1}, {f2u(-2.302208198):#x}")
        TT = BB + 16
        SM = A1; SQ2 = A1 + 8
        for f in range(4):
            ls = []
            for a in range(2):
                for hp in range(2):
                    x = A2 + (a*4+f)*4 + 2*hp; t = TT + 2*(2*a+hp); sm = SM + 4*a + 2*hp; sq = SQ2 + 4*a + 2*hp
                    l = self.affine_pair(x, t, RA+4*a+2*hp, RBb+4*a+2*hp, CS2+f, False, True) + self.gelu_pair(x, t, K1)
                    if f == 0: l += [f"v_pk_mul_f32 {vr(sq,2)}, {vr(x,2)}, {vr(x,2)}", f"v_pk_mov_b32 {vr(sm,2)}, {vr(x,2)}, {vr(x,2)} op_sel:[0,1]"]
                    else: l += [f"v_pk_fma_f32 {vr(sq,2)}, {vr(x,2)}, {vr(x,2)}, {vr(sq,2)}", f"v_pk_add_f32 {vr(sm,2)}, {vr(sm,2)}, {vr(x,2)}"]
                    ls.append(l)
            P.add(self.zipped(ls))
        def val(a, r, st): return (SQ2 if st else SM) + 4*a + r
        L1 = A1 + 16; L2 = A1 + 24
        l1 = []
        for r in range(4):
            for st in range(2):
                d = L1 + 2*r + st
                l1.append(f"v_add_f32_dpp v{d}, v{val(0,r,st)}, v{val(0,r,st)} row_ror:8 row_mask:0xf bank_mask:0x3")
        for r in range(4):
            for st in range(2):
                d = L1 + 2*r + st
                l1.append(f"v_add_f32_dpp v{d}, v{val(1,r,st)}, v{val(1,r,st)} row_ror:8 row_mask:0xf bank_mask:0xc")
        P.add(l1)
        for rh, bm in ((0, 0x5), (1, 0xa)):
            for rl in range(2):
                for st in range(2):
                    s_ = L1 + 2*(2*rh+rl) + st
                    P(f"v_add_f32_dpp v{L2+2*rl+st}, v{s_}, v{s_} row_half_mirror row_mask:0xf bank_mask:{bm:#x}")
        for qp in ("[1,0,3,2]", "[2,3,0,1]"):
            for k in range(4): P(f"v_add_f32_dpp v{L2+k}, v{L2+k}, v{L2+k} quad_perm:{qp} row_mask:0xf bank_mask:0xf")
        P(f"v_or_b32 v{L2+1}, 0x80000000, v{L2+1}\nv_or_b32 v{L2+3}, 0x80000000, v{L2+3}")
        P(f"""v_bfe_u32 v12, v0, 3, 1
        v_lshlrev_b32 v12, 7, v12
        v_lshl_add_u32 v12, v{vG}, 5, v12
        v_bfe_u32 v15, v0, 2, 1
        v_lshl_add_u32 v12, v15, 4, v12
        s_lshl_b32 s92, s88, 14
        s_lshl_b32 s86, s{sW}, 8
        s_add_u32 s92, s92, s86
        s_add_u32 s92, s92, {STATS}
        s_lshl_b32 s86, s89, 10
        s_add_u32 s86, s86, s92
        s_mov_b32 exec_lo, 0x11111111
        s_mov_b32 exec_hi, 0x11111111
        buffer_store_dwordx4 {vr(L2,4)}, v12, {S(SWS)}, s86 offen sc1
        s_mov_b64 exec, -1""")
        self.stamp()
        LAB = [BB + 40 - 40]
        P.wait_tag("win1"); self.barrier()
        for k in range(4): P(f"v_mov_b32 v{240+k}, v{248+k}")
        LA = [240, 242]; LB = [241, 243]
        self.wsp_setup()
        P(f"s_lshl_b32 s86, s{sW}, 5\nv_xor_b32 v15, s86, v{vT[0]}\nv_add_u32 v15, 65536, v15")
        for f in range(4): P(f"v_add_u32 v{vT[f]}, 65536, v{vT[f]}")
        def xreads(t): return [f"ds_read_b64_tr_b16 {ar(AEX+8*(t&1)+2*h,2)}, v15 offset:{t*4096 + h*2048}" for h in range(2)]
        ACS1 = 236
        P.add(breads(0, 0) + xreads(0))
        iss = self.wsp_issue(0) + self.wsp_issue(1)
        for t in range(16):
            m = []
            for f in range(4):
                for a in range(2):
                    acc = vr(A1 + (a*4+f)*4, 4)
                    m.append(f"v_mfma_f32_16x16x32_bf16 {acc}, {vr(BB+16*(t&1)+4*f,4)}, {vr(HF+(t*2+a)*4,4)}, {acc if t else '0'}")
            m.append(f"v_mfma_f32_16x16x32_bf16 {ar(ACS1,4)}, {ar(AON,4)}, {ar(AEX+8*(t&1),4)}, {ar(ACS1,4) if t else '0'}")
            nxt = breads(t+1, 0) + xreads(t+1) if t < 15 else []
            P.add(nxt + interleave(m, iss[3*t:3*t+3], 2, 3))
        for f in range(4): P(f"v_subrev_u32 v{vT[f]}, 65536, v{vT[f]}")
        P(f"""s_lshl_b32 s86, s{sW}, 6
        s_add_u32 s86, s86, {SCR + 256}
        v_lshl_add_u32 v15, v{vI}, 2, s86
        ds_write_b32 v15, a{ACS1}""")
        self.stamp()
        self.wsp_read(0); self.wsp_read(1)
        GS = HF
        P(f"""v_lshrrev_b32 v12, 5, v0
        v_lshlrev_b32 v12, 10, v12
        v_and_b32 v13, 31, v0
        v_lshl_add_u32 v12, v13, 3, v12
        s_add_u32 s93, s92, 4096
        s_add_u32 s94, s92, 8192
        s_add_u32 s95, s92, 12288""")
        L = P.lab("Lg"); E = P.lab("Le")
        P(f"s_mov_b32 s{sSPIN}, 0\n{L}:")
        for m_ in range(7): P(f"buffer_load_dwordx2 {vr(GS+2*m_,2)}, v12, {S(SWS)}, s{92+m_//2} offen offset:{(m_%2)*2048} sc1")
        P("s_waitcnt vmcnt(0)")
        P(f"v_and_b32 v13, v{GS+1}, v{GS+3}")
        for m_ in range(2, 7): P(f"v_and_b32 v13, v13, v{GS+2*m_+1}")
        P(f"""v_cmp_le_i32 vcc, 0, v13
        s_add_u32 s{sSPIN}, s{sSPIN}, 1
        s_cbranch_vccz {E}
        s_cmp_lt_u32 s{sSPIN}, {SPIN_MAX}
        s_cbranch_scc1 {L}
        {E}:""")
        for m_ in range(1, 7): P(f"v_pk_add_f32 {vr(GS,2)}, {vr(GS,2)}, {vr(GS+2*m_,2)}")
        P(f"""v_sub_f32 v{GS+1}, 0, v{GS+1}
        v_mov_b32 v{GS+2}, v{GS}
        v_mov_b32 v{GS+3}, v{GS+1}
        v_permlane32_swap_b32 v{GS+2}, v{GS}
        v_permlane32_swap_b32 v{GS+3}, v{GS+1}
        v_pk_add_f32 {vr(GS,2)}, {vr(GS,2)}, {vr(GS+2,2)}""")
        self.finstats([(GS, GS+1)], 896, [GS+4], [GS+5], GS+6)
        P(f"""v_and_b32 v13, 31, v0
        v_lshl_add_u32 v13, v13, 2, s91
        ds_write_b32 v13, v{GS+4} offset:256
        ds_write_b32 v13, v{GS+5} offset:384""")
        P.wait_ds()
        for a in range(2): P(f"ds_read_b128 {vr(RA+4*a,4)}, v14 offset:{256+a*64}\nds_read_b128 {vr(RBb+4*a,4)}, v14 offset:{384+a*64}")
        P(f"""v_bfe_u32 v12, v0, 4, 1
        v_bfe_u32 v13, v0, 5, 1
        v_lshl_add_u32 v12, v12, 1, v13
        v_lshl_add_u32 v12, v12, 4, v{vI}
        v_lshlrev_b32 v12, 4, v12
        s_lshl_b32 s93, s88, 2
        s_add_u32 s93, s93, s{sW}
        s_mul_i32 s93, s93, 7168
        s_add_u32 s93, s93, {Z2}""")
        ZO = HF + 16
        for f in range(4):
            for a in range(2):
                for hp in range(2):
                    x = A2 + (a*4+f)*4 + 2*hp
                    P(f"v_pk_fma_f32 {vr(x,2)}, {vr(x,2)}, {vr(RA+4*a+2*hp,2)}, {vr(RBb+4*a+2*hp,2)}")
            for a in range(2):
                for hp in range(2):
                    x = A2 + (a*4+f)*4 + 2*hp
                    P(f"v_cvt_pk_bf16_f32 v{ZO+4*f+2*a+hp}, v{x}, v{x+1}")
            P(f"""s_lshl_b32 s86, s89, 2
            s_add_u32 s86, s86, {f}
            s_mul_i32 s87, s86, 37
            s_lshr_b32 s87, s87, 8
            s_mul_i32 s87, s87, {64*7 - 7}
            s_add_u32 s86, s86, s87
            s_lshl_b32 s86, s86, 10
            s_add_u32 s86, s86, s93""")
            for hp in range(2): P(f"v_permlane16_swap_b32 v{ZO+4*f+hp}, v{ZO+4*f+2+hp}")
            P(f"buffer_store_dwordx4 {vr(ZO+4*f,4)}, v12, {S(SWS)}, s86 offen sc1")
        P("s_waitcnt vmcnt(0)")
        self.barrier()
        self.wave0(lambda: self.set_flag(0xff << 17))
        self.stamp()
        for c in range(2, 6): P.add(self.wsp_issue(c))
        C1 = HF + 32
        P(f"v_lshlrev_b32 v12, 4, v{vG}\nv_add_u32 v12, {SCR+256}, v12")
        for f in range(4): P(f"ds_read_b128 {vr(C1+4*f,4)}, v12 offset:{f*64}")
        P(f"""v_lshlrev_b32 v13, 3, v0
        s_lshl_b32 s93, s88, 3
        s_lshl_b32 s86, s{sW}, 1
        s_add_u32 s93, s93, s86
        s_mul_i32 s93, s93, 56
        s_lshl_b32 s86, s89, 2
        s_add_u32 s93, s93, s86
        s_lshl_b32 s93, s93, 9
        s_add_u32 s93, s93, {Z1}
        s_add_u32 s94, s93, {56*512}""")
        P(f"v_mov_b32 v{K1+2}, {f2u(-2.302208198):#x}\nv_mov_b32 v{K1+3}, {f2u(-2.302208198):#x}")
        Z1O = HF + 48
        for f in range(4):
            ls = []
            for a in range(2):
                for hp in range(2):
                    x = A1 + (a*4+f)*4 + 2*hp; t = TT + 2*(2*a+hp)
                    ls.append(self.affine_pair(x, t, LA[a], LB[a], C1+4*f+2*hp, True, False) + self.gelu_pair(x, t, K1+2)
                              + [f"v_cvt_pk_bf16_f32 v{Z1O+(a*4+f)*2+hp}, v{x}, v{x+1}"])
            P.add(self.zipped(ls))
            for a in range(2): P(f"buffer_store_dwordx2 {vr(Z1O+(a*4+f)*2,2)}, v13, {S(SWS)}, s{93+a} offen offset:{f*512} sc1")
        self.wsp_read(2); self.wsp_read(3)
        P.wait_ds()
        self.wsp_read(4); self.wsp_read(5)
        P.wait_ds()
        P.add(self.wsp_issue(6) + self.wsp_issue(7))
        self.wsp_read(6); self.wsp_read(7)
        P("s_waitcnt vmcnt(0) lgkmcnt(0)")
        P(f"s_branch {Ljoin}")
        P(f"{Lskip}:")
        P.items.append(("reset",))
        P("s_waitcnt vmcnt(0) lgkmcnt(0)")
        self.wsp_setup()
        for c in range(4): P.add(self.wsp_issue(c))
        for c in range(4): self.wsp_read(c)
        P.wait_ds()
        for c in range(4, 8): P.add(self.wsp_issue(c))
        for c in range(4, 8): self.wsp_read(c)
        P("s_waitcnt vmcnt(0) lgkmcnt(0)")
        P(f"{Ljoin}:")
        P("s_nop 7")
        self.barrier()
        self.wave0(lambda: self.set_flag(1 << 25))
        self.stamp()

    def phase4(self):
        P = self.P
        ACC = 16; BB = 128; WO = 49152
        P(f"""s_lshr_b32 s88, s{sJ}, 3
        s_lshl_b32 s86, s{sX}, 2
        s_add_u32 s88, s88, s86
        s_and_b32 s89, s{sJ}, 7
        s_mul_i32 s90, s89, 7
        s_add_u32 s91, s90, 6
        s_lshr_b32 s90, s90, 2
        s_lshr_b32 s91, s91, 2
        s_lshl_b32 s92, s89, 6
        s_lshl_b32 s86, s{sW}, 4
        s_add_u32 s92, s92, s86
        s_mul_i32 s92, s92, 7168
        s_add_u32 s92, s92, {Z2}
        v_add_u32 v240, 4096, v{vL16}""")
        def pl():
            P(f"""s_lshl_b32 s86, s90, 4
            s_lshl_b32 s87, s91, 4
            s_add_u32 s87, s87, 15
            v_add_u32 v16, s86, v0
            v_min_u32 v16, s87, v16
            v_lshlrev_b32 v16, 2, v16
            s_lshl_b32 s86, s{sX}, 10
            s_add_u32 s86, s86, {F3}""")
            self.poll(16, soff="s86")
        self.wave0(pl)
        self.barrier()
        self.stamp()
        def bload(ks):
            out = [f"s_add_u32 s60, s92, {ks*7168}"]
            for f in range(7):
                out.append(f"buffer_load_dwordx4 {vr(BB+28*(ks&3)+4*f,4)}, v{vL16 if f < 4 else 240}, {S(SWS)}, s60 offen offset:{(f%4)*1024} sc1")
            return out
        for ks in range(4): P.add(bload(ks))
        def wout(k):
            return [f"s_add_u32 s61, s93, {k*4*8192}", f"s_add_u32 m0, s94, {k*4096}",
                    ("T", f"buffer_load_dwordx4 v241, {S(SWOUT)}, s61 offen lds", "wout")]
        P(f"""v_lshrrev_b32 v12, 3, v0
        v_lshl_add_u32 v241, v12, 10, v6
        s_lshl_b32 s93, s{sW}, 13
        s_lshl_b32 s86, s89, 7
        s_add_u32 s93, s93, s86
        s_lshl_b32 s94, s{sW}, 10
        s_add_u32 s94, s94, {WO}""")
        Z1R = BB; BS = BB + 14; HR = 244
        for ks in range(16):
            m = []
            for f in range(7):
                for p in range(4):
                    acc = vr(ACC + (p*7+f)*4, 4)
                    m.append(f"v_mfma_f32_16x16x32_bf16 {acc}, {vr(BB+28*(ks&3)+4*f,4)}, {ar((ks*4+p)*4,4)}, {acc if ks else '0'}")
            if ks >= 1 and ks + 3 < 16:
                ld = bload(ks + 3)
                P.add(interleave(m, ld, 3, 1))
            elif ks == 13:
                P.add(m)
            elif ks == 14:
                P(f"""s_lshr_b32 s86, s88, 1
                s_lshl_b32 s86, s86, 7
                s_add_u32 s86, s86, {F3B}
                v_add_u32 v242, s90, v0
                v_min_u32 v242, s91, v242
                v_lshlrev_b32 v242, 2, v242""")
                self.poll(242, soff="s86")
                P(f"""s_lshl_b32 s95, s88, 2
                s_add_u32 s95, s95, s{sW}
                s_mul_i32 s86, s95, 56
                s_mul_i32 s87, s89, 7
                s_add_u32 s86, s86, s87
                s_lshl_b32 s86, s86, 9
                s_add_u32 s86, s86, {Z1}
                v_lshlrev_b32 v242, 3, v0""")
                for f in range(7): P(f"buffer_load_dwordx2 {vr(Z1R+2*f,2)}, v242, {S(SWS)}, s86 offen offset:{f*512} sc1")
                P(f"""s_lshl_b32 s86, s95, 5
                v_lshlrev_b32 v243, 1, v{vI}
                buffer_load_ushort v{BS}, v243, {S(SBSP)}, s86 offen
                s_lshl_b32 s86, s95, 4
                s_lshl_b32 s87, s89, 1
                s_add_u32 s86, s86, s87
                s_lshl_b32 s86, s86, 10
                s_add_u32 s86, s86, {H}
                buffer_load_dwordx4 {vr(HR,4)}, v{vL16}, {S(SWS)}, s86 offen sc1
                buffer_load_dwordx4 {vr(HR+4,4)}, v{vL16}, {S(SWS)}, s86 offen offset:1024 sc1""")
                w = []
                for k in range(9, 28): w += wout(k)
                P.add(interleave(m, w, 1, 2))
            else:
                P.add(m)
        self.stamp()
        for p in range(1, 4):
            P(f"s_add_u32 s86, s{sW}, {p}\ns_and_b32 s86, s86, 3\ns_mul_i32 s86, s86, 21504\ns_add_u32 s86, s86, {(p-1)*7168}")
            P(f"v_add_u32 v{12+p}, s86, v{vL16}")
            for f in range(7): P(f"ds_write_b128 v{12+p}, {vr(ACC+(p*7+f)*4,4)} offset:{f*1024}")
        P(f"s_mul_i32 s86, s{sW}, 21504\nv_add_u32 v12, s86, v{vL16}")
        self.barrier()
        RB = ACC + 28
        for k in range(21): P(f"ds_read_b128 {vr(RB+4*k,4)}, v12 offset:{k*1024}")
        P(f"v_lshlrev_b32 v{BS}, 16, v{BS}")
        ZF = BB + 16; UO = BB + 48
        for f in range(7):
            for k in range(2):
                P(f"v_lshlrev_b32 v{ZF+4*f+2*k}, 16, v{Z1R+2*f+k}\nv_and_b32 v{ZF+4*f+2*k+1}, 0xffff0000, v{Z1R+2*f+k}")
                P(f"v_pk_add_f32 {vr(ACC+4*f+2*k,2)}, {vr(ACC+4*f+2*k,2)}, {vr(BS,2)} op_sel_hi:[1,0]")
        for p in range(3):
            for f in range(7):
                for k in range(2): P(f"v_pk_add_f32 {vr(ACC+4*f+2*k,2)}, {vr(ACC+4*f+2*k,2)}, {vr(RB+(p*7+f)*4+2*k,2)}")
        for f in range(7):
            for k in range(2): P(f"v_pk_mul_f32 {vr(ACC+4*f+2*k,2)}, {vr(ACC+4*f+2*k,2)}, {vr(ZF+4*f+2*k,2)}")
            for k in range(2): P(f"v_cvt_pk_bf16_f32 v{UO+2*f+k}, v{ACC+4*f+2*k}, v{ACC+4*f+2*k+1}")
        Lo = P.lab("Lo"); Le = P.lab("Le")
        P(f"""s_mul_i32 s86, s95, 28
        s_mul_i32 s87, s89, 7
        s_lshr_b32 s87, s87, 1
        s_add_u32 s86, s86, s87
        s_lshl_b32 s86, s86, 10
        s_add_u32 s86, s86, {U}
        s_bitcmp1_b32 s89, 0
        s_cbranch_scc1 {Lo}""")
        P.cond_begin()
        for k in range(3): P(f"buffer_store_dwordx4 {vr(UO+4*k,4)}, v{vL16}, {S(SWS)}, s86 offen offset:{k*1024} sc1")
        P(f"buffer_store_dwordx2 {vr(UO+12,2)}, v242, {S(SWS)}, s86 offen offset:3072 sc1")
        P(f"s_branch {Le}")
        P.cond_end()
        P(f"{Lo}:")
        P.cond_begin()
        P(f"buffer_store_dwordx2 {vr(UO,2)}, v242, {S(SWS)}, s86 offen offset:512 sc1")
        for k in range(3): P(f"buffer_store_dwordx4 {vr(UO+2+4*k,4)}, v{vL16}, {S(SWS)}, s86 offen offset:{1024+k*1024} sc1")
        P.cond_end()
        P(f"{Le}:")
        P("s_waitcnt vmcnt(0)")
        self.barrier()
        self.wave0(lambda: self.set_flag(1 << 26))
        self.stamp()
        for k in range(9): P.add(wout(k))
        self.wout = wout

    def phase5(self):
        P = self.P
        UF = 16; ACC = 128; WO = 49152; HR = 244
        def breg(kk, f):
            if kk < 16: return ("a", kk*16 + 4*f)
            if kk < 22: return ("v", 144 + (kk-16)*16 + 4*f)
            return ("a", (kk-22)*16 + 4*f)
        def rn(k, r, n): return ar(r, n) if k == "a" else vr(r, n)
        cur = [0]
        def breads(kk):
            out = []
            want = WO if kk < 16 else WO + 65536
            if cur[0] != want:
                out += [f"v_add_u32 v{vT[f]}, {want - cur[0]}, v{vT[f]}" for f in range(4)]; cur[0] = want
            for f in range(4):
                k, r = breg(kk, f)
                for h in range(2): out.append(f"ds_read_b64_tr_b16 {rn(k, r+2*h, 2)}, v{vT[f]} offset:{(kk%16)*4096 + h*2048}")
            return out
        for kk in list(range(9, 22)): P.add(breads(kk))
        P.wait_tag("wout"); self.barrier()
        P.add([f"v_subrev_u32 v{vT[f]}, 65536, v{vT[f]}" for f in range(4)]); cur[0] = WO
        for kk in range(9): P.add(breads(kk))
        P(f"""s_mul_i32 s92, s95, {28*1024}
        s_add_u32 s92, s92, {U}""")
        def pl():
            P(f"s_lshl_b32 s86, s88, 7\ns_add_u32 s86, s86, {F4}\nv_and_b32 v16, 7, v0\nv_lshlrev_b32 v16, 2, v16")
            self.poll(16, soff="s86")
        self.wave0(pl)
        self.barrier()
        self.stamp()
        for kk in range(28):
            if kk % 4 == 0: P(f"s_add_u32 s60, s92, {kk*1024}")
            if kk % 7 == 3:
                for h in range(2): P(f"buffer_load_dwordx2 {vr(UF+4*kk+2*h,2)}, v242, {S(SWS)}, s60 offen offset:{(kk%4)*1024 + h*512} sc1")
            else:
                P(f"buffer_load_dwordx4 {vr(UF+4*kk,4)}, v{vL16}, {S(SWS)}, s60 offen offset:{(kk%4)*1024} sc1")
        for kk in range(28):
            for f in range(4):
                k, r = breg(kk, f); acc = vr(ACC+4*f, 4)
                P(f"v_mfma_f32_16x16x32_bf16 {acc}, {rn(k, r, 4)}, {vr(UF+4*kk,4)}, {acc if kk else '0'}")
            if 1 <= kk <= 6: P.add(breads(22 + kk - 1))
        HF = 144; OO = 160
        for f in range(4):
            for k in range(2):
                P(f"v_lshlrev_b32 v{HF+4*f+2*k}, 16, v{HR+2*f+k}\nv_and_b32 v{HF+4*f+2*k+1}, 0xffff0000, v{HR+2*f+k}")
        P(f"""v_bfe_u32 v12, v0, 4, 1
        v_bfe_u32 v13, v0, 5, 1
        v_lshl_add_u32 v12, v12, 1, v13
        v_lshlrev_b32 v12, 4, v12
        v_lshl_add_u32 v12, v{vI}, 10, v12
        s_lshl_b32 s86, s95, 14
        s_lshl_b32 s87, s89, 7
        s_add_u32 s86, s86, s87""")
        for f in range(4):
            for k in range(2): P(f"v_pk_add_f32 {vr(ACC+4*f+2*k,2)}, {vr(ACC+4*f+2*k,2)}, {vr(HF+4*f+2*k,2)}")
            for k in range(2): P(f"v_cvt_pk_bf16_f32 v{OO+2*f+k}, v{ACC+4*f+2*k}, v{ACC+4*f+2*k+1}")
        for c in range(2):
            for k in range(2): P(f"v_permlane16_swap_b32 v{OO+4*c+k}, v{OO+4*c+2+k}")
            P(f"buffer_store_dwordx4 {vr(OO+4*c,4)}, v12, {S(SOUT)}, s86 offen offset:{c*64}")
        self.stamp()

    def build(self):
        P = self.P
        self.prologue()
        for k, ph in enumerate([self.phase1, self.phase2, self.phase3, self.phase4, self.phase5]):
            if k < self.stop: ph()
        if self.stamps:
            P(f"""s_lshl_b32 s86, s2, 10
            s_lshl_b32 s87, s{sW}, 8
            s_add_u32 s86, s86, s87
            s_add_u32 s86, s86, {0x80000}
            v_lshlrev_b32 v12, 2, v0
            buffer_store_dword v7, v12, {S(SWS)}, s86 offen""")
        P("L_end:\ns_endpgm")
        A = Asm()
        A.begin_kernel(NAME, 256, 256, 163840)
        A.lines += P.finalize()
        A.end_kernel(NAME, 256, 256)
        return A

HEADER = open("sequential_preLN__linear_attn_block__mixer_gmlp__prompt.s.ref").read().split("; Override")[0]
def generate(path, **kw):
    A = G(**kw).build()
    open(path, "w").write(A.text(HEADER))
if __name__ == "__main__":
    import argparse
    ap = argparse.ArgumentParser(); ap.add_argument("out"); ap.add_argument("--stop", type=int, default=99); ap.add_argument("--stamps", action="store_true")
    a = ap.parse_args()
    generate(a.out, stop=a.stop, stamps=a.stamps)
```

```python
import re

REG_RE = re.compile(r"^(-|\|)?(abs\()?([vas])(\d+|\[(\d+):(\d+)\])\)?\|?$")

def regs_of(tok):
    tok = tok.strip()
    if tok in ("vcc",): return [("s", "vcc_lo"), ("s", "vcc_hi")]
    if tok in ("vcc_lo", "vcc_hi", "m0", "exec_lo", "exec_hi"): return [("s", tok)]
    if tok == "exec": return [("s", "exec_lo"), ("s", "exec_hi")]
    m = REG_RE.match(tok)
    if not m: return []
    k = m.group(3)
    if m.group(5) is not None:
        return [(k, i) for i in range(int(m.group(5)), int(m.group(6)) + 1)]
    return [(k, int(m.group(4)))]

TRANS = ("v_exp_f32", "v_log_f32", "v_rcp_f32", "v_rsq_f32", "v_sqrt_f32", "v_sin_f32", "v_cos_f32")

class Ins:
    __slots__ = ("text", "op", "dst", "src", "kind", "tag", "mods", "stdata", "passes", "A", "B", "C")
    def __init__(self, text, tag=None):
        self.text = text; self.tag = tag
        t = text.split(";")[0].strip()
        parts = t.split(None, 1)
        self.op = op = parts[0]
        rest = parts[1] if len(parts) > 1 else ""
        ops = []; cur = ""; depth = 0
        for ch in rest:
            if ch in "[(": depth += 1
            if ch in "])": depth -= 1
            if ch == "," and depth == 0: ops.append(cur.strip()); cur = ""
            else: cur += ch
        if cur.strip(): ops.append(cur.strip())
        mods = ""
        if ops:
            sp = ops[-1].split(None, 1)
            ops[-1] = sp[0]
            if len(sp) > 1: mods = sp[1]
        self.mods = mods
        self.dst = []; self.src = []; self.stdata = []; self.passes = 0
        self.A = self.B = self.C = []
        R = regs_of
        if op.startswith("v_mfma"):
            self.kind = "mfma"
            self.dst = R(ops[0]); self.A = R(ops[1]); self.B = R(ops[2]); self.C = R(ops[3])
            self.src = self.A + self.B + self.C
            self.passes = 8 if "32x32" in op else 4
        elif op.startswith("ds_"):
            self.kind = "ds"
            if op.startswith("ds_read") or op.startswith("ds_bpermute") or op.startswith("ds_swizzle"):
                self.dst = R(ops[0])
                for o in ops[1:]: self.src += R(o)
            else:
                for o in ops: self.src += R(o)
        elif op.startswith("buffer_") or op.startswith("global_"):
            self.kind = "vmem"
            lds = " lds" in (" " + mods)
            if op.startswith("buffer_inv") or op.startswith("buffer_wbl2"):
                pass
            elif op.startswith("buffer_load"):
                if lds:
                    for o in ops: self.src += R(o)
                    self.src += [("s", "m0")]
                    self.kind = "dma"
                else:
                    self.dst = R(ops[0])
                    for o in ops[1:]: self.src += R(o)
            elif op.startswith("global_load"):
                self.dst = R(ops[0])
                for o in ops[1:]: self.src += R(o)
            elif op.startswith("buffer_store") or op.startswith("buffer_atomic"):
                for o in ops: self.src += R(o)
                self.stdata = R(ops[0])
                if "atomic" in op and "sc0" in mods: self.dst = R(ops[0])
            elif op.startswith("global_store") or op.startswith("global_atomic"):
                for o in ops: self.src += R(o)
                self.stdata = R(ops[1])
            else:
                raise ValueError(text)
        elif op.startswith("s_load") or op.startswith("s_memrealtime") or op.startswith("s_memtime"):
            self.kind = "smem"
            self.dst = R(ops[0])
            for o in ops[1:]: self.src += R(o)
        elif op.startswith("s_"):
            self.kind = "salu"
            if op.startswith(("s_cmp", "s_cbranch", "s_branch", "s_waitcnt", "s_barrier", "s_nop", "s_sleep", "s_endpgm", "s_setprio", "s_bitcmp")):
                for o in ops: self.src += R(o)
                if op.startswith("s_cbranch_vcc"): self.src += R("vcc")
            else:
                self.dst = R(ops[0])
                for o in ops[1:]: self.src += R(o)
                if "saveexec" in op: self.dst += R("exec")
        elif op.startswith("v_"):
            self.kind = "valu"
            if op.startswith("v_cmp"):
                self.dst = R(ops[0])
                for o in ops[1:]: self.src += R(o)
            elif op.startswith("v_permlane") and "swap" in op:
                self.dst = R(ops[0]) + R(ops[1]); self.src = list(self.dst)
            elif op.startswith(("v_add_co", "v_sub_co", "v_addc_co", "v_subb_co")):
                self.dst = R(ops[0]) + R(ops[1])
                for o in ops[2:]: self.src += R(o)
            else:
                self.dst = R(ops[0])
                for o in ops[1:]: self.src += R(o)
                if op.startswith(("v_fmac", "v_dot2c", "v_pk_fmac")) or "_dpp" in op or op.startswith("v_writelane"):
                    self.src += self.dst
                if op.startswith("v_cndmask") and len(ops) == 3: self.src += R("vcc")
        else:
            raise ValueError("unknown op: " + text)

class Prog:
    def __init__(self):
        self.items = []
        self.uid = 0
    def __call__(self, s, tag=None):
        for l in s.split("\n"):
            l = l.strip()
            if not l or l.startswith(";"): continue
            if l.endswith(":"): self.items.append(("label", l[:-1]))
            elif l.startswith("."): self.items.append(("raw", l))
            else: self.items.append(Ins(l, tag))
    def add(self, lst):
        for x in lst:
            if isinstance(x, str): self(x)
            elif isinstance(x, tuple) and x[0] == "T": self(x[1], x[2])
            else: self.items.append(x)
    def lab(self, base="L"):
        self.uid += 1; return f"{base}{self.uid}"
    def wait_tag(self, *tags): self.items.append(("wait_tag", tags))
    def wait_ds(self): self.items.append(("wait_ds",))
    @staticmethod
    def WT(*tags): return ("wait_tag", tags)
    @staticmethod
    def WD(*tags): return ("wait_dstag", tags)
    def cond_begin(self): self.items.append(("cond_begin",))
    def cond_end(self): self.items.append(("cond_end",))
    def comment(self, t): self.items.append(("raw", "; " + t))

    def finalize(self):
        out = []
        vm = []
        lg = []
        sm = []
        hist = []
        stack = []
        def age(n):
            nonlocal hist
            hist = [(a + n, i) for a, i in hist if a + n < 24]
        def emit_text(t, states=1):
            out.append("    " + t); age(states)
        def need_vm(pred):
            n = None
            for idx, e in enumerate(vm):
                if pred(e): n = sum(1 for y in vm[idx + 1:] if not y["opt"]); last = idx
            return (n, last) if n is not None else None
        def need_lg(pred):
            n = None
            for idx, e in enumerate(lg):
                if pred(e): n = sum(1 for y in lg[idx + 1:] if not y["opt"]); last = idx
            return (n, last) if n is not None else None
        def do_wait(v, l, smem=False):
            nonlocal vm, lg, sm
            parts = []
            if v is not None:
                v = (min(v[0], 63), v[1])
                parts.append(f"vmcnt({v[0]})"); vm = vm[v[1] + 1:]
            if smem:
                parts.append("lgkmcnt(0)"); lg = []; sm = []
            elif l is not None:
                n = l[0]
                if sm: n = 0
                if n > 15:
                    n = 15
                parts.append(f"lgkmcnt({n})")
                if n == 0: lg = []; sm = []
                else: lg = lg[max(l[1] + 1, len(lg) - n) if all(not y['opt'] for y in lg) else l[1] + 1:]
            if parts: emit_text("s_waitcnt " + " ".join(parts))
        def hazard(i):
            need = 0
            rs = set(i.src); ws = set(i.dst)
            for a, p in hist:
                pd = set(p.dst); req = 0
                if p.kind == "valu":
                    vd = {r for r in pd if r[0] in "va"}; sd = {r for r in pd if r[0] == "s"}
                    if i.kind == "mfma" and vd & rs: req = max(req, 2)
                    if i.kind == "valu":
                        if i.op.startswith(("v_readfirstlane", "v_readlane")) and vd & rs: req = max(req, 1)
                        if ("_dpp" in i.op or i.op.startswith("v_permlane")) and vd & rs: req = max(req, 2)
                        if sd & rs: req = max(req, 2)
                        if p.op.startswith(TRANS) and vd & rs: req = max(req, 1)
                        if p.op.startswith("v_dot2") and vd & (rs | ws):
                            if i.op == p.op:
                                ab = set(i.src[:2]) if not i.op.startswith("v_dot2c") else set(i.src[:2])
                                if vd & ab: req = max(req, 3)
                            else: req = max(req, 3)
                    if p.op.startswith("v_dot2") and i.kind in ("vmem", "ds", "dma", "mfma") and vd & rs: req = max(req, 3)
                    if i.kind in ("vmem", "dma") and sd & rs: req = max(req, 5)
                    if i.kind == "salu" and sd & rs: req = max(req, 1)
                if p.kind == "mfma":
                    n = {4: 8, 8: 12}[p.passes]
                    if i.kind == "mfma":
                        if pd & (set(i.A) | set(i.B)): req = max(req, n)
                        if pd & set(i.C) and not (i.C == p.dst and i.passes == p.passes): req = max(req, n - 2)
                        if pd & ws and not (i.C == p.dst): req = max(req, n - 2)
                    elif i.kind in ("valu", "vmem", "ds", "dma"):
                        if pd & (rs | ws): req = max(req, n)
                    if i.kind == "valu" and set(p.C) & ws: req = max(req, {4: 3, 8: 7}[p.passes])
                if p.kind == "salu" and ("s", "m0") in pd and i.kind == "dma": req = max(req, 1)
                if p.kind == "vmem" and len(p.stdata) >= 3 and set(p.stdata) & ws: req = max(req, 2)
                if req - a > need: need = req - a
            return need
        for it in self.items:
            if isinstance(it, tuple):
                k = it[0]
                if k == "label": out.append(it[1] + ":")
                elif k == "raw": out.append(it[1])
                elif k == "wait_tag":
                    tags = set(it[1])
                    do_wait(need_vm(lambda e: e["tag"] in tags), None)
                elif k == "wait_dstag":
                    tags = set(it[1])
                    do_wait(None, need_lg(lambda e: e["tag"] in tags))
                elif k == "NOPIF": pass
                elif k == "wait_ds":
                    if lg or sm: do_wait(None, None, smem=True)
                elif k == "cond_begin":
                    stack.append(([dict(e) for e in vm], [dict(e) for e in lg], list(sm), list(hist)))
                    for e in vm: e["old"] = len(stack)
                    for e in lg: e["old"] = len(stack)
                elif k == "cond_end":
                    svm, slg, ssm, shist = stack.pop()
                    d = len(stack) + 1
                    newvm = [dict(e, opt=True) for e in vm if e.get("old", 99) > d or "old" not in e]
                    newlg = [dict(e, opt=True) for e in lg if e.get("old", 99) > d or "old" not in e]
                    vm = svm + newvm; lg = slg + newlg; sm = list(set(ssm) | set(sm))
                    hist = hist + shist
                elif k == "reset":
                    vm = []; lg = []; sm = []
                continue
            i = it
            touched = set(i.src) | set(i.dst)
            if i.op == "s_waitcnt":
                m = re.search(r"vmcnt\((\d+)\)", i.text)
                if m:
                    n = int(m.group(1))
                    if n == 0: vm = []
                    elif not any(e["opt"] for e in vm): vm = vm[max(0, len(vm) - n):]
                m = re.search(r"lgkmcnt\((\d+)\)", i.text)
                if m and int(m.group(1)) == 0: lg = []; sm = []
                emit_text(i.text); continue
            v = need_vm(lambda e: e["dst"] & touched)
            l = need_lg(lambda e: e["dst"] & touched)
            s = bool(set(sm) & touched)
            if v is not None or l is not None or s: do_wait(v, l, s)
            n = hazard(i)
            while n > 0:
                c = min(n, 16); emit_text(f"s_nop {c-1}", c); n -= c
            if i.op == "s_nop":
                emit_text(i.text, int(i.text.split()[1]) + 1); continue
            emit_text(i.text)
            hist.append((0, i))
            if i.kind in ("vmem", "dma"):
                vm.append(dict(dst=set(i.dst), tag=i.tag, opt=False))
                assert sum(1 for e in vm) <= 200
            elif i.kind == "ds": lg.append(dict(dst=set(i.dst), tag=i.tag, opt=False))
            elif i.kind == "smem": sm += i.dst
        return out

def interleave(main, fill, every=1, per=1, start=0):
    out = []; fi = 0
    for idx, m in enumerate(main):
        out.append(m)
        if idx >= start and (idx - start) % every == every - 1:
            for _ in range(per):
                if fi < len(fill): out.append(fill[fi]); fi += 1
    out += fill[fi:]
    return out

def spread(main, fill):
    out = []; n = len(main); m = len(fill); fi = 0
    for idx, x in enumerate(main):
        out.append(x)
        tgt = (idx + 1) * m // n
        while fi < tgt: out.append(fill[fi]); fi += 1
    return out
```

```python
import sys, struct
sys.path.insert(0, "gen")
from asmlib import Asm, vr, ar, sr
from emit import Prog, spread, interleave

NAME = "sequential_preLN__linear_attn_block__mixer_gmlp__prompt_kernel"
def f2u(x): return struct.unpack("<I", struct.pack("<f", x))[0]

F1, F2, F3, F3B, F4 = 0x0, 0x2000, 0x2800, 0x4800, 0x5000
F1B = 0x6000
KV = 0xA000; KVS = 1152
STATS = 0x1100000
EPOCH = 0x9000; KZ = 0x9080
sE = 4
STAMP = 0x80000
HST = 0xC0000
PQ, H, Z2, Z1, U = 0x100000, 0x300000, 0x500000, 0x900000, 0xD00000
WS_BYTES = 0x1200000
R1 = 8
SX, SWQKV, SWO, SWIN, SWSP, SBSP, SWOUT, SOUT, SWS, SDBG = 8, 12, 16, 20, 24, 28, 32, 36, 40, 44
def S(d): return f"s[{d}:{d+3}]"
sX, sJ, sW, sSPIN = 48, 49, 50, 51
sLOG2E, sEPS6, sK2, sONE = 52, 54, 56, 58
sA8, sA4 = 62, 63
sRB, sCBK, sTB5 = 100, 101, 3
vL16, vI, vG, vFLAG, vSW = 1, 2, 3, 4, 6
vT = [8, 9, 10, 11]
SPIN_MAX = 1 << 16
MF = "v_mfma_f32_16x16x32_bf16"
K1C = -2.302208198

def mix(m, f, lead=0):
    if not m: return list(f)
    return m[:lead] + spread(m[lead:], f)

def weave(a, b, g=3):
    groups = [b[i:i+g] for i in range(0, len(b), g)]
    if not groups: return list(a)
    out = []; n = len(groups); ai = 0
    for k, grp in enumerate(groups):
        tgt = (k * len(a) + len(a) // 2) // n if len(a) else 0
        out += a[ai:tgt]; ai = max(ai, tgt); out += grp
    return out + a[ai:]

class G:
    def __init__(self, stop=99, stamps=False, opt=None):
        self.P = Prog(); self.stop = stop; self.stamps = stamps; self.nst = 0; self.names = []
        self.opt = opt or {}
    def stamp(self, name):
        if self.stamps:
            k = self.nst; self.nst += 1; self.names.append(name)
            self.P(f"s_memrealtime s[98:99]\nv_writelane_b32 v7, s98, {k}")
    def dmai(self, voff, srd, soff, tag):
        return ("T", f"buffer_load_dwordx4 v{voff}, {S(srd)}, s{soff} offen lds", tag)

    def prologue(self):
        P = self.P
        P(f"""
        s_cmp_ge_u32 s2, 256
        s_cbranch_scc1 L_end
        s_load_dwordx4 s[64:67], s[0:1], 0
        s_load_dwordx2 s[84:85], s[0:1], 80
        s_load_dwordx2 s[68:69], s[0:1], 16
        s_load_dwordx8 s[72:79], s[0:1], 32
        s_load_dwordx4 s[80:83], s[0:1], 64
        v_lshrrev_b32 v1, 6, v0
        v_and_b32 v0, 63, v0
        v_readfirstlane_b32 s{sW}, v1
        s_and_b32 s{sX}, s2, 7
        s_lshr_b32 s{sJ}, s2, 3
        v_lshlrev_b32 v{vL16}, 4, v0
        v_and_b32 v{vI}, 15, v0
        v_lshrrev_b32 v{vG}, 4, v0
        s_lshr_b32 s{sA8}, s{sX}, 1
        s_lshl_b32 s{sA8}, s{sA8}, 3
        s_lshr_b32 s86, s{sJ}, 2
        s_add_u32 s{sA8}, s{sA8}, s86
        s_and_b32 s{sA4}, s{sX}, 1
        s_lshl_b32 s{sA4}, s{sA4}, 2
        s_and_b32 s86, s{sJ}, 3
        s_add_u32 s{sA4}, s{sA4}, s86
        """)
        if self.stamps: P("v_mov_b32 v7, 0\ns_memtime s[98:99]\nv_writelane_b32 v7, s98, 62")
        self.stamp("start")

    def srds(self, lst):
        for d, p, n in lst:
            self.P(f"s_mov_b32 s{d}, s{p}\ns_and_b32 s{d+1}, s{p+1}, 0xffff\ns_mov_b32 s{d+2}, {n}\ns_mov_b32 s{d+3}, 0x20000")

    def late_setup(self):
        P = self.P
        self.srds([(SWO, 68, 524288), (SWIN, 72, 1835008), (SWSP, 74, 8388608), (SBSP, 76, 4096), (SWOUT, 78, 917504),
                   (SOUT, 80, 2097152), (SWS, 84, WS_BYTES)])
        P(f"s_mov_b32 s86, {EPOCH}\nbuffer_load_dword v225, off, {S(SWS)}, s86 sc1")
        P(f"""
        s_lshr_b32 s{sRB}, s{sJ}, 4
        s_lshl_b32 s86, s{sX}, 1
        s_add_u32 s{sRB}, s{sRB}, s86
        s_and_b32 s{sCBK}, s{sJ}, 15
        s_lshr_b32 s{sTB5}, s{sJ}, 3
        s_lshl_b32 s86, s{sX}, 2
        s_add_u32 s{sTB5}, s{sTB5}, s86
        s_lshl_b32 s86, s2, 2
        v_lshl_add_u32 v{vFLAG}, v0, 10, s86
        s_lshl_b32 s86, s{sCBK}, 4
        s_add_u32 s86, s86, s{sRB}
        s_lshl_b32 s86, s86, 2
        s_add_u32 s86, s86, {F3 - 17*1024 + (1<<32) if F3 < 17*1024 else F3 - 17*1024}
        v_lshl_add_u32 v5, v0, 10, s86
        v_cmp_lt_u32 vcc, 16, v0
        v_cndmask_b32 v{vFLAG}, v{vFLAG}, v5, vcc
        s_lshl_b32 s86, s{sRB}, 7
        s_lshl_b32 s87, s{sCBK}, 2
        s_add_u32 s86, s86, s87
        s_add_u32 s87, s86, {F2}
        v_writelane_b32 v{vFLAG}, s87, 16
        s_add_u32 s87, s86, {F3B}
        v_writelane_b32 v{vFLAG}, s87, 25
        s_lshl_b32 s86, s{sA8}, 7
        s_lshl_b32 s87, s{sA4}, 2
        s_add_u32 s86, s86, s87
        s_add_u32 s87, s86, {F4}
        v_writelane_b32 v{vFLAG}, s87, 26
        s_add_u32 s87, s86, {F1B}
        v_writelane_b32 v{vFLAG}, s87, 27
        s_mov_b32 s{sLOG2E}, {f2u(1.4426950408889634):#x}
        s_mov_b32 s{sLOG2E+1}, {f2u(1.4426950408889634):#x}
        s_mov_b32 s{sEPS6}, {f2u(1e-6):#x}
        s_mov_b32 s{sEPS6+1}, {f2u(1e-6):#x}
        s_mov_b32 s{sK2}, {f2u(K1C*0.044715):#x}
        s_mov_b32 s{sK2+1}, {f2u(K1C*0.044715):#x}
        s_mov_b32 s{sONE}, 1.0
        s_mov_b32 s{sONE+1}, 1.0
        """)

    def set_flag(self, mask):
        self.P(f"s_mov_b64 exec, {mask:#x}\nv_mov_b32 v5, s{sE}\nbuffer_store_dword v5, v{vFLAG}, {S(SWS)}, 0 offen sc1\ns_mov_b64 exec, -1")
    def wave(self, w, fn):
        P = self.P; L = P.lab("Lw")
        P(f"s_cmp_lg_u32 s{sW}, {w}\ns_cbranch_scc1 {L}")
        P.cond_begin(); fn(); P.cond_end()
        P(f"{L}:")
    def wave0(self, fn): self.wave(0, fn)
    def spin_tail(self, L, E):
        self.P(f"""s_add_u32 s{sSPIN}, s{sSPIN}, 1
        s_cbranch_vccz {E}
        s_cmp_lt_u32 s{sSPIN}, {SPIN_MAX}
        s_cbranch_scc1 {L}""")
    def poll(self, vaddr, x4=False, soff="0"):
        P = self.P; L = P.lab("Lp"); E = P.lab("Le")
        P(f"s_mov_b32 s{sSPIN}, 0\n{L}:")
        if x4:
            P(f"buffer_load_dwordx4 v[12:15], v{vaddr}, {S(SWS)}, {soff} offen sc1\ns_waitcnt vmcnt(0)")
            P("\n".join(f"v_xor_b32 v{r}, s{sE}, v{r}" for r in range(12, 16)) + "\nv_or3_b32 v12, v12, v13, v14\nv_or_b32 v12, v12, v15\nv_cmp_ne_u32 vcc, 0, v12")
        else:
            P(f"buffer_load_dword v12, v{vaddr}, {S(SWS)}, {soff} offen sc1\ns_waitcnt vmcnt(0)\nv_cmp_ne_u32 vcc, s{sE}, v12")
        self.spin_tail(L, E); P(f"{E}:")
    def check_retry(self, reg, load, cmp):
        P = self.P; L = P.lab("Lk"); E = P.lab("Le")
        P(f"s_mov_b32 s{sSPIN}, 0\n{cmp}\ns_cbranch_vccz {E}")
        P.cond_begin()
        P(f"{L}:\n{load}\ns_waitcnt vmcnt(0)\n{cmp}")
        self.spin_tail(L, E)
        P.cond_end(); P(f"{E}:")
    def barrier(self, pre=None):
        if pre and self.stamps and self.opt.get("fine"):
            k = self.nst; self.nst += 1; self.names.append(pre)
            self.P("s_memrealtime s[98:99]"); self.P.wait_ds(); self.P(f"s_barrier\nv_writelane_b32 v7, s98, {k}")
        else:
            self.P.wait_ds(); self.P("s_barrier")

    def xreduce(self, regs, tmp, ops=("v_permlane32_swap_b32", "v_permlane16_swap_b32")):
        P = self.P
        for op in ops:
            for k, r in enumerate(regs): P(f"v_mov_b32 v{tmp+k}, v{r}")
            for k, r in enumerate(regs): P(f"{op} v{tmp+k}, v{r}")
            for k, r in enumerate(regs): P(f"v_add_f32 v{r}, v{r}, v{tmp+k}")
    def finstats(self, sums, n, outA, outB):
        ls = []
        for k, (s, q) in enumerate(sums):
            ls.append([f"v_mul_f32 v{s}, {f2u(-1.0/n):#x}, v{s}", f"v_mul_f32 v{q}, {f2u(1.0/n):#x}, v{q}",
                       f"v_fma_f32 v{q}, -v{s}, v{s}, v{q}", f"v_max_f32 v{q}, 0, v{q}", f"v_add_f32 v{q}, {f2u(1e-5):#x}, v{q}",
                       f"v_rsq_f32 v{outA[k]}, v{q}", f"v_mul_f32 v{outB[k]}, v{s}, v{outA[k]}"])
        self.P.add(self.zipped(ls))
    def phi_pair(self, x, t, out):
        return [f"v_pk_mul_f32 {vr(t,2)}, {vr(x,2)}, s[{sLOG2E}:{sLOG2E+1}]",
                f"v_max_f32 v{x}, 0, v{x}", f"v_max_f32 v{x+1}, 0, v{x+1}",
                f"v_min_f32 v{t}, 0, v{t}", f"v_min_f32 v{t+1}, 0, v{t+1}",
                f"v_exp_f32 v{t}, v{t}", f"v_exp_f32 v{t+1}, v{t+1}",
                f"v_pk_add_f32 {vr(x,2)}, {vr(x,2)}, s[{sEPS6}:{sEPS6+1}]",
                f"v_pk_add_f32 {vr(x,2)}, {vr(x,2)}, {vr(t,2)}",
                f"v_cvt_pk_bf16_f32 v{out}, v{x}, v{x+1}"]
    def gelu_pair(self, x, t, k1):
        return [f"v_pk_mul_f32 {vr(t,2)}, {vr(x,2)}, {vr(x,2)}",
                f"v_pk_fma_f32 {vr(t,2)}, {vr(t,2)}, s[{sK2}:{sK2+1}], {vr(k1,2)}",
                f"v_pk_mul_f32 {vr(t,2)}, {vr(t,2)}, {vr(x,2)}",
                f"v_exp_f32 v{t}, v{t}", f"v_exp_f32 v{t+1}, v{t+1}",
                f"v_pk_add_f32 {vr(t,2)}, {vr(t,2)}, s[{sONE}:{sONE+1}]",
                f"v_rcp_f32 v{t}, v{t}", f"v_rcp_f32 v{t+1}, v{t+1}",
                f"v_pk_mul_f32 {vr(x,2)}, {vr(x,2)}, {vr(t,2)}"]
    @staticmethod
    def bc(r): return vr(r & ~1, 2), r & 1
    def affine_pair(self, x, t, A, B, cs, a_bc):
        if a_bc:
            bn, bb = self.bc(B); an, ab = self.bc(A)
            return [f"v_pk_mul_f32 {vr(t,2)}, {vr(cs,2)}, {bn} op_sel:[0,{bb}] op_sel_hi:[1,{bb}]",
                    f"v_pk_fma_f32 {vr(x,2)}, {vr(x,2)}, {an}, {vr(t,2)} op_sel:[0,{ab},0] op_sel_hi:[1,{ab},1]"]
        cn, cb = self.bc(cs)
        return [f"v_pk_mul_f32 {vr(t,2)}, {vr(B,2)}, {cn} op_sel:[0,{cb}] op_sel_hi:[1,{cb}]",
                f"v_pk_fma_f32 {vr(x,2)}, {vr(x,2)}, {vr(A,2)}, {vr(t,2)}"]
    @staticmethod
    def zipped(lists):
        out = []; n = max(len(l) for l in lists)
        for k in range(n):
            for l in lists:
                if k < len(l): out.append(l[k])
        return out

    def phase1(self):
        P = self.P
        SCR = 147456
        vX = [216, 217]; vWd = [218, 219]; vA = [220, 221]; vO = [222, 223]; vB = 224
        OWN = 16; BK = 24; BV = 32; ONES = 40; ACK = 48; ACV = 64; CSK = 80; CSV = 84; DS = 88; DQ = 92
        ACQ = 96; CSQ = 112; ST = 120; STQ = 152
        P(f"""
        s_lshl_b32 s88, s{sA8}, 16
        s_lshl_b32 s87, s{sW}, 14
        s_add_u32 s88, s88, s87
        s_lshl_b32 s90, s{sA4}, 7
        s_mul_i32 s87, s{sW}, {16*3072}
        s_add_u32 s90, s90, s87
        s_lshl_b32 s91, s{sW}, 11
        v_lshrrev_b32 v5, 3, v0
        v_and_b32 v6, 7, v0
        v_xor_b32 v12, v6, v{vG}
        v_lshlrev_b32 v12, 4, v12
        v_lshl_add_u32 v{vX[0]}, v5, 10, v12
        v_xor_b32 v12, 64, v12
        v_lshl_add_u32 v{vX[1]}, v5, 10, v12
        v_add_u32 v{vX[1]}, 8192, v{vX[1]}
        v_and_b32 v12, 2, v5
        v_xor_b32 v12, v6, v12
        v_lshlrev_b32 v12, 4, v12
        v_mul_u32_u24 v13, 3072, v5
        v_add_u32 v{vWd[0]}, v13, v12
        v_xor_b32 v12, 64, v12
        v_add_u32 v{vWd[1]}, v13, v12
        v_add_u32 v{vWd[1]}, {8*3072}, v{vWd[1]}
        s_waitcnt lgkmcnt(0)
        """)
        self.srds([(SX, 64, 2097152), (SWQKV, 66, 1572864)])
        def issue_stage(s):
            slot = (s % 6) * 24576; out = []
            if s < 8:
                parts = [(0, SX, vX, 88, s * 128), (8192, SWQKV, vWd, 90, s * 64 * 3072 + 1024), (16384, SWQKV, vWd, 90, s * 64 * 3072 + 2048)]
            else:
                parts = [(8192 * k, SWQKV, vWd, 90, c * 64 * 3072) for k, c in enumerate(range(3 * (s - 8), min(8, 3 * (s - 8) + 3)))]
            for lo, srd, vo, sb, so in parts:
                out += [f"s_add_u32 m0, s91, {slot + lo}", f"s_add_u32 s60, s{sb}, {so}", self.dmai(vo[0], srd, 60, f"st{s}")]
                out += [f"s_add_u32 m0, s91, {slot + lo + 1024}", ("NOPIF",), self.dmai(vo[1], srd, 60, f"st{s}")]
            return out
        D = self.opt.get("D", 3)
        for s in range(2): P.add(issue_stage(s))
        if self.opt.get("coop", 2) == 2:
            P("v_lshlrev_b32 v12, 7, v0")
            self.wave(1, lambda: P(f"s_lshl_b32 s86, s2, 13\ns_mov_b32 exec_lo, 0xfcfcfcfc\ns_mov_b32 exec_hi, 0xfcfcfcfc\nbuffer_load_dword v235, v12, {S(SX)}, s86 offen\ns_mov_b64 exec, -1"))
            self.wave(2, lambda: P(f"s_mul_i32 s86, s2, {36*128}\ns_add_u32 s86, s86, {3072*128}\ns_mov_b32 exec_hi, 15\nbuffer_load_dword v236, v12, {S(SWQKV)}, s86 offen\ns_mov_b64 exec, -1"))
        if self.opt.get("coop", 2) == 1:
            L = P.lab("Lc"); E = P.lab("Lc")
            P(f"""s_cmp_eq_u32 s{sW}, 3
            s_cbranch_scc1 {L}
            s_mul_i32 s86, s{sJ}, {16*3072}
            s_lshl_b32 s87, s{sW}, 10
            s_add_u32 s86, s86, s87
            s_and_b32 s87, s{sX}, 1
            s_lshl_b32 s87, s87, 9
            s_add_u32 s86, s86, s87
            v_lshrrev_b32 v12, 2, v0
            v_mul_u32_u24 v12, 3072, v12
            v_and_b32 v13, 3, v0
            v_lshl_add_u32 v12, v13, 7, v12""")
            P.cond_begin(); P(f"buffer_load_dword v235, v12, {S(SWQKV)}, s86 offen\ns_branch {E}"); P.cond_end()
            P(f"""{L}:
            s_lshl_b32 s86, s{sA8}, 16
            s_and_b32 s87, s{sJ}, 3
            s_lshl_b32 s87, s87, 14
            s_add_u32 s86, s86, s87
            s_add_u32 s87, s86, 8192
            v_lshlrev_b32 v12, 7, v0""")
            P.cond_begin(); P(f"buffer_load_dword v236, v12, {S(SX)}, s86 offen\nbuffer_load_dword v237, v12, {S(SX)}, s87 offen"); P.cond_end()
            P(f"{E}:")
        self.late_setup()
        def w0():
            P(f"""s_getpc_b64 s[86:87]
            L_pc:
            s_and_b32 s92, s{sJ}, 7
            s_lshl_b32 s92, s92, 13
            v_lshl_add_u32 v231, v0, 7, s92
            v_min_u32 v231, L_end-L_pc, v231
            global_load_dword v239, v231, s[86:87]""")
        self.wave(0, w0)
        P(f"""s_lshl_b32 s93, s{sA4}, 2
        s_add_u32 s93, s93, s{sW}
        s_mul_i32 s94, s93, {KVS}
        s_add_u32 s94, s94, {KV}
        s_lshl_b32 s95, s{sA4}, 2
        s_add_u32 s95, s95, {KZ}""")
        L = P.lab("Lz")
        P(f"s_cmp_lg_u32 s{sA8}, 0\ns_cbranch_scc1 {L}"); P.cond_begin()
        P(f"""v_mov_b32 v12, 0
        v_mov_b32 v13, 0
        v_mov_b32 v14, 0
        v_mov_b32 v15, 0
        buffer_store_dwordx4 v[12:15], v{vL16}, {S(SWS)}, s94 offen sc1
        s_mov_b64 exec, 0xff
        buffer_store_dwordx4 v[12:15], v{vL16}, {S(SWS)}, s94 offen offset:1024 sc1
        s_mov_b64 exec, -1""")
        P.cond_end(); P(f"{L}:")
        def mallpf():
            mode = self.opt.get("mall", 2)
            P("v_lshlrev_b32 v226, 7, v0")
            if mode & 1:
                P(f"s_lshl_b32 s86, s2, 2\ns_add_u32 s86, s86, s{sW}\ns_lshl_b32 s86, s86, 13\nbuffer_load_dword v227, v226, {S(SWSP)}, s86 offen")
            if mode & 2:
                def pf(srd, per, d):
                    return lambda: P(f"s_mul_i32 s86, s2, {per*128}\ns_mov_b64 exec, {(1<<per)-1 if per < 32 else -1}" + (f"\ns_mov_b32 exec_hi, {(1<<(per-32))-1:#x}" if per > 32 else "")
                                     + f"\nbuffer_load_dword v{d}, v226, {S(srd)}, s86 offen\ns_mov_b64 exec, -1")
                self.wave(1, pf(SWO, 16, 232)); self.wave(2, pf(SWIN, 56, 233)); self.wave(3, pf(SWOUT, 28, 234))
        for s in range(2, D): P.add(issue_stage(s))
        if self.opt.get("mallat", 15) == 0: mallpf()
        P(f"""
        v_lshrrev_b32 v12, 1, v{vI}
        v_xor_b32 v12, v12, v{vG}
        v_lshlrev_b32 v12, 4, v12
        v_lshl_add_u32 v{vA[0]}, v{vI}, 7, v12
        v_xor_b32 v{vA[1]}, 64, v{vA[0]}
        v_add_u32 v{vO[0]}, s91, v{vA[0]}
        v_add_u32 v{vO[1]}, s91, v{vA[1]}
        v_lshrrev_b32 v12, 2, v{vI}
        v_lshl_add_u32 v13, v{vG}, 3, v12
        v_and_b32 v14, 2, v12
        v_and_b32 v15, 1, v{vG}
        v_lshl_or_b32 v14, v15, 2, v14
        v_bfe_u32 v15, v0, 1, 1
        s_lshl_b32 s86, s{sW}, 1
        v_add_u32 v15, s86, v15
        v_xor_b32 v14, v14, v15
        v_lshlrev_b32 v14, 4, v14
        v_lshl_add_u32 v14, v13, 7, v14
        v_and_b32 v15, 1, v0
        v_lshl_add_u32 v{vB}, v15, 3, v14
        """)
        for k in range(4): P(f"v_mov_b32 v{ONES+k}, 0x3f803f80")
        cur = [0]
        def setbase(slot, regs):
            want = (slot // 2) * 49152; out = []
            if want != cur[0]:
                out = [f"v_add_u32 v{r}, {want - cur[0]}, v{r}" if want > cur[0] else f"v_subrev_u32 v{r}, {cur[0] - want}, v{r}" for r in regs]
                cur[0] = want
            return (slot % 2) * 24576, out
        def reads(ks, so):
            t = ks & 1; out = []
            for base, lo in ((BK, 8192), (BV, 16384)):
                for h in range(2): out.append(f"ds_read_b64_tr_b16 {vr(base+4*t+2*h,2)}, v{vB} offset:{so + lo + t*4096 + h*512}")
            for rf in range(4): out.append(f"ds_read_b128 {ar((ks*4+rf)*4,4)}, v{vA[t]} offset:{so + rf*2048}")
            out.append(f"ds_read_b128 {vr(OWN+4*t,4)}, v{vO[t]} offset:{so}")
            return out
        def mfmas(ks):
            t = ks & 1; m = []
            c = lambda r: vr(r, 4) if ks else "0"
            m.append(f"{MF} {vr(CSK,4)}, {vr(ONES,4)}, {vr(BK+4*t,4)}, {c(CSK)}")
            m.append(f"{MF} {vr(CSV,4)}, {vr(ONES,4)}, {vr(BV+4*t,4)}, {c(CSV)}")
            for rf in range(4):
                for base, acc in ((BK, ACK), (BV, ACV)):
                    m.append(f"{MF} {vr(acc+4*rf,4)}, {ar((ks*4+rf)*4,4)}, {vr(base+4*t,4)}, {c(acc+4*rf)}")
            m.append(f"{MF} {vr(DS,4)}, {vr(OWN+4*t,4)}, {vr(ONES,4)}, {c(DS)}")
            m.append(f"{MF} {vr(DQ,4)}, {vr(OWN+4*t,4)}, {vr(OWN+4*t,4)}, {c(DQ)}")
            return m
        for s in range(8):
            P.wait_tag(f"st{s}"); self.barrier()
            if s == 0: self.stamp(f"st{s}")
            if s == 2:
                P(f"v_readfirstlane_b32 s{sE}, v225\ns_add_u32 s{sE}, s{sE}, 1")
                L = P.lab("Lz")
                P(f"s_or_b32 s86, s{sA8}, s{sW}\ns_cmp_lg_u32 s86, 0\ns_cbranch_scc1 {L}"); P.cond_begin()
                P(f"v_mov_b32 v5, s{sE}\ns_mov_b64 exec, 1\nbuffer_store_dword v5, off, {S(SWS)}, s95 sc1\ns_mov_b64 exec, -1")
                P.cond_end(); P(f"{L}:")
            so, adj = setbase(s % 6, vA + vO + [vB])
            iss = issue_stage(s + D) if s + D <= 10 else []
            pre = [f"buffer_load_dword v230, off, {S(SWS)}, s95 sc1"] if s == 6 else []
            if self.opt.get("mallat", 15) == 10 + s: mallpf()
            P.add(adj)
            ex = self.opt.get("exp", 0)
            if ex == 1: P.add(iss)
            elif ex == 2: P.add(reads(2*s, so) + iss[:len(iss)//2] + reads(2*s + 1, so) + iss[len(iss)//2:])
            elif ex == 3:
                P.add(mix(mfmas(2*s - 1) if s else [], iss[:len(iss)//2])); P.add(mix(mfmas(2*s), iss[len(iss)//2:]))
            else:
                h = (len(iss) // 6) * 3
                def lay(m, r, d):
                    if not m: return r + d
                    d = [x for x in d if x != ("NOPIF",)]
                    g = []; cur_ = []
                    for x in d:
                        cur_.append(x)
                        if not isinstance(x, str): g.append(cur_); cur_ = []
                    g += [[]] * (3 - len(g))
                    return mix(m[:4], r[:5] + g[0]) + mix(m[4:7], r[5:]) + mix(m[7:9], g[1]) + m[9:10] + mix(m[10:], g[2])
                P.add(pre + lay(mfmas(2*s - 1) if s else [], reads(2*s, so), iss[:h]))
                P.wait_ds()
                P.add(lay(mfmas(2*s), reads(2*s + 1, so), iss[h:]))
        for s in range(8 + D, 11): P.add(issue_stage(s))
        P.add(mfmas(15))
        self.stamp("p1gemm")
        P(f"""v_and_b32 v12, 3, v0
        v_cmp_eq_u32 vcc, 1, v12
        v_cndmask_b32 v{DS}, v{DS}, v{DS+1}, vcc
        v_cndmask_b32 v{DQ}, v{DQ}, v{DQ+1}, vcc
        v_cmp_eq_u32 vcc, 2, v12
        v_cndmask_b32 v{DS}, v{DS}, v{DS+2}, vcc
        v_cndmask_b32 v{DQ}, v{DQ}, v{DQ+2}, vcc
        v_cmp_eq_u32 vcc, 3, v12
        v_cndmask_b32 v{DS}, v{DS}, v{DS+3}, vcc
        v_cndmask_b32 v{DQ}, v{DQ}, v{DQ+3}, vcc""")
        self.finstats([(DS, DQ)], 512, [DS+1], [DS+2])
        P(f"""s_lshl_b32 s86, s{sW}, 6
        s_add_u32 s86, s86, {SCR}
        v_lshl_add_u32 v12, v{vI}, 2, s86
        s_mov_b32 exec_lo, 0x00f0000f
        s_mov_b32 exec_hi, 0xf0000f00
        ds_write_b32 v12, v{DS+1}
        ds_write_b32 v12, v{DS+2} offset:256
        s_mov_b64 exec, -1""")
        P(f"v_lshlrev_b32 v12, 4, v{vG}\nv_add_u32 v12, {SCR}, v12\nv_lshlrev_b32 v13, 2, v{vI}\nv_add_u32 v13, {SCR}, v13")
        self.barrier()
        for rf in range(4):
            P(f"ds_read_b128 {vr(ST+8*rf,4)}, v12 offset:{rf*64}\nds_read_b128 {vr(ST+8*rf+4,4)}, v12 offset:{256+rf*64}")
        for rf in range(4):
            P(f"ds_read_b32 v{STQ+2*rf}, v13 offset:{rf*64}\nds_read_b32 v{STQ+2*rf+1}, v13 offset:{256+rf*64}")
        PK = 160; PV = 168; TT = 176
        for rf in range(4):
            ls = []
            for hp in range(2):
                x = ACK + 4*rf + 2*hp; t = TT + 2*hp
                ls.append(self.affine_pair(x, t, ST+8*rf+2*hp, ST+8*rf+4+2*hp, CSK, False) + self.phi_pair(x, t, PK + 2*rf + hp))
                x = ACV + 4*rf + 2*hp; t = TT + 4 + 2*hp
                ls.append(self.affine_pair(x, t, ST+8*rf+2*hp, ST+8*rf+4+2*hp, CSV, False) + [f"v_cvt_pk_bf16_f32 v{PV+2*rf+hp}, v{x}, v{x+1}"])
            P.add(self.zipped(ls))
        KVD = 184; ZD = 188
        P(f"""{MF} {vr(KVD,4)}, {vr(PK,4)}, {vr(PV,4)}, 0
        {MF} {vr(ZD,4)}, {vr(PK,4)}, {vr(ONES,4)}, 0
        {MF} {vr(KVD,4)}, {vr(PK+4,4)}, {vr(PV+4,4)}, {vr(KVD,4)}
        {MF} {vr(ZD,4)}, {vr(PK+4,4)}, {vr(ONES,4)}, {vr(ZD,4)}
        s_add_u32 s86, s91, {SCR + 1024}
        v_add_u32 v14, s86, v{vL16}
        v_lshl_add_u32 v15, v{vG}, 4, s86
        v_lshl_add_u32 v12, v0, 2, s86
        ds_write_b128 v14, {vr(KVD,4)}
        ds_write_b128 v15, {vr(ZD,4)} offset:1024""")
        P.wait_ds()
        for t in range(5): P(f"ds_read_b32 v{192+t}, v12 offset:{t*256}")
        self.check_retry(230, f"buffer_load_dword v230, off, {S(SWS)}, s95 sc1", f"v_cmp_ne_u32 vcc, s{sE}, v230")
        P("v_lshlrev_b32 v12, 2, v0")
        for t in range(4): P(f"buffer_atomic_add_f32 v{192+t}, v12, {S(SWS)}, s94 offen offset:{t*256} sc1", "atom")
        P(f"s_mov_b64 exec, 0xffff\nbuffer_atomic_add_f32 v196, v12, {S(SWS)}, s94 offen offset:1024 sc1\ns_mov_b64 exec, -1", "atom")
        if self.opt.get("mallat", 15) == 1: mallpf()
        self.p2_setup()
        self.stamp("atom")
        def qreads(ks):
            c = ks >> 1; t = ks & 1
            so, adj = setbase(2 + c // 3, [vB])
            return adj + [f"ds_read_b64_tr_b16 {vr(BK+4*(ks&3)+2*h,2)}, v{vB} offset:{so + (c%3)*8192 + t*4096 + h*512}" for h in range(2)]
        def qm(ks):
            b = vr(BK+4*(ks&3),4)
            out = [f"{MF} {vr(ACQ+4*rf,4)}, {b}, {ar((ks*4+rf)*4,4)}, {vr(ACQ+4*rf,4) if ks else '0'}" for rf in range(4)]
            return out + [f"{MF} {vr(CSQ,4)}, {b}, {vr(ONES,4)}, {vr(CSQ,4) if ks else '0'}"]
        P.wait_tag("st10"); self.barrier()
        P.add(qreads(0) + qreads(1))
        wo_e = self.wo_dma(0)
        for ks in range(16):
            P.add(mix(qm(ks), (qreads(ks + 2) if ks + 2 < 16 else []) + wo_e[3*ks:3*ks+3]))
        PQR = 160
        P.wait_tag("atom"); self.barrier()
        self.wave0(lambda: self.set_flag((1 << R1) - 1))
        self.stamp("F1a")
        wo_l = self.wo_dma(1) + self.xt_dma()
        P(f"""s_lshl_b32 s87, s{sA8}, 6
        s_add_u32 s87, s87, s93
        s_lshl_b32 s87, s87, 10
        s_add_u32 s87, s87, {PQ}
        s_add_u32 s92, s87, 32768""")
        for p in range(2):
            ls = []
            for rf in (2*p, 2*p+1):
                for hp in range(2):
                    x = ACQ + 4*rf + 2*hp; t = TT + 2*((2*rf+hp) % 4)
                    ls.append(self.affine_pair(x, t, STQ+2*rf, STQ+2*rf+1, CSQ+2*hp, True) + self.phi_pair(x, t, PQR + 2*rf + hp))
            P.add(self.zipped(ls))
            P(f"buffer_store_dwordx4 {vr(PQR+4*p,4)}, v{vL16}, {S(SWS)}, s{87 if p == 0 else 92} offen sc1", "pq")
        P.add(wo_l)
        P.wait_tag("pq")
        self.barrier()
        self.wave0(lambda: self.set_flag(1 << 27))
        self.stamp("F1")

    def p2_setup(self):
        P = self.P
        P(f"""
        s_lshr_b32 s88, s{sJ}, 2
        s_lshl_b32 s86, s{sX}, 3
        s_add_u32 s88, s88, s86
        s_and_b32 s89, s{sJ}, 3
        v_lshrrev_b32 v12, 3, v0
        v_and_b32 v13, 6, v12
        v_and_b32 v14, 7, v0
        v_xor_b32 v13, v13, v14
        v_lshlrev_b32 v{vSW}, 4, v13
        v_lshl_add_u32 v200, v12, 10, v{vSW}
        s_lshl_b32 s90, s{sW}, 17
        s_lshl_b32 s86, s89, 8
        s_add_u32 s90, s90, s86
        s_lshl_b32 s91, s{sW}, 14
        s_add_u32 s96, s91, 49152
        s_cmp_eq_u32 s{sW}, 3
        s_cselect_b32 s91, 122880, s91
        s_lshl_b32 s86, s{sW}, 3
        v_add_u32 v12, s86, v{vG}
        v_xor_b32 v13, v12, v{vI}
        v_and_b32 v13, 15, v13
        v_lshlrev_b32 v13, 4, v13
        v_lshl_add_u32 v201, v12, 10, v13
        v_xor_b32 v13, 64, v13
        v_lshl_add_u32 v202, v12, 10, v13
        v_add_u32 v202, 4096, v202
        v_lshrrev_b32 v12, 2, v{vI}
        v_lshl_add_u32 v12, v{vG}, 2, v12
        v_and_b32 v13, 6, v12
        v_bfe_u32 v14, v0, 1, 1
        v_xor_b32 v13, v13, v14
        v_and_b32 v14, 1, v0
        v_lshlrev_b32 v14, 3, v14
        v_lshl_add_u32 v14, v12, 7, v14
        v_lshl_add_u32 v{vT[0]}, v13, 4, v14
        v_xor_b32 v{vT[1]}, 32, v{vT[0]}
        v_xor_b32 v{vT[2]}, 64, v{vT[0]}
        v_xor_b32 v{vT[3]}, 96, v{vT[0]}
        s_and_b32 s86, s{sW}, 1
        s_lshl_b32 s86, s86, 6""")
        for p in range(4):
            P(f"s_add_u32 s87, s{sW}, {p}\ns_and_b32 s87, s87, 2\ns_lshl_b32 s87, s87, 12\ns_add_u32 s87, s87, s91")
            for cf in range(2):
                P(f"v_xor_b32 v{204+2*p+cf}, s86, v{vT[2*(p&1)+cf]}\nv_add_u32 v{204+2*p+cf}, s87, v{204+2*p+cf}")

    def wo_dma(self, half):
        out = []
        for i in range(8):
            for st in range(2):
                out += [f"s_add_u32 m0, s{96 if half else 91}, {st*8192 + i*1024}", f"s_add_u32 s60, s90, {(8*half+i)*8192 + st*128}", self.dmai(200, SWO, 60, f"wo{2*half + i//4}")]
        return out

    def xt_dma(self):
        XT = 155648
        return ["s_lshl_b32 s60, s88, 15", "s_lshl_b32 s86, s89, 8", "s_add_u32 s60, s60, s86", f"s_lshl_b32 s86, s{sW}, 11", f"s_add_u32 m0, s86, {XT}",
                self.dmai(201, SX, 60, "xt"), f"s_add_u32 m0, s86, {XT + 1024}", self.dmai(202, SX, 60, "xt")]

    def win_dma(self, half, v=12):
        out = [f"v_lshrrev_b32 v{v}, 3, v0", f"v_mul_u32_u24 v{v}, 3584, v{v}", f"v_add_u32 v{v}, v{v}, v{vSW}",
               f"s_min_u32 s70, s{sCBK}, 13", "s_lshl_b32 s70, s70, 7", f"s_mul_i32 s71, s{sW}, {128*3584}", "s_add_u32 s70, s70, s71", f"s_lshl_b32 s71, s{sW}, 14"]
        for i in range(16):
            out += [f"s_add_u32 m0, s71, {half*65536 + i*1024}", f"s_add_u32 s60, s70, {i*8*3584 + (1792 if half == 0 else 0)}", self.dmai(v, SWIN, 60, f"win{half}")]
        return out

    def phase2(self):
        P = self.P
        XT = 155648; EX = 65536
        P(f"""s_lshl_b32 s86, s{sW}, 3
        s_mul_i32 s92, s86, {KVS}
        s_add_u32 s92, s92, {KV}
        s_add_u32 s93, s92, {4*KVS}
        s_lshl_b32 s94, s88, 5
        s_add_u32 s94, s94, s86
        s_lshl_b32 s94, s94, 10
        s_add_u32 s94, s94, {PQ}
        s_add_u32 s95, s94, 4096
        v_and_b32 v12, 7, v0
        v_mul_u32_u24 v12, {KVS}, v12
        v_lshl_add_u32 v19, v{vG}, 4, v12""")
        EPSQ = 124
        for k in range(4): P(f"v_mov_b32 v{EPSQ+k}, s{sEPS6}")
        for kk in range(4):
            if kk == 2:
                P("s_sub_u32 s86, s96, s91")
                for r in range(204, 212): P(f"v_add_u32 v{r}, s86, v{r}")
            P.wait_tag(f"wo{kk}")
            for p in range(4):
                for cf in range(2):
                    for h in range(2):
                        P(f"ds_read_b64_tr_b16 {ar(((kk*4+p)*2+cf)*4+2*h,2)}, v{204+2*p+cf} offset:{(kk&1)*4096 + h*2048}")
        P.wait_tag("xt")
        self.stamp("wo")
        def pl():
            P(f"s_lshl_b32 s86, s{sX}, 10")
            self.poll(vL16, x4=True, soff="s86")
            P(f"s_lshr_b32 s86, s88, 1\ns_lshl_b32 s86, s86, 7\ns_add_u32 s86, s86, {F1B}\nv_and_b32 v16, 7, v0\nv_lshlrev_b32 v16, 2, v16")
            self.poll(16, soff="s86")
        self.wave0(pl)
        self.barrier()
        self.stamp("sync1")
        KR = 16; KP = 48; ZR = 64; ZC = 68; ZP = 70; PQR = 86; ACC = 128; OF = 192; ND = 212
        P(f"buffer_load_dwordx4 {vr(ZR,4)}, v19, {S(SWS)}, s92 offen offset:1024 sc1")
        for h in range(8):
            P(f"buffer_load_dwordx4 {vr(KR+4*h,4)}, v{vL16}, {S(SWS)}, s{92+h//4} offen offset:{(h%4)*KVS} sc1")
            P(f"buffer_load_dwordx4 {vr(PQR+4*h,4)}, v{vL16}, {S(SWS)}, s{94+h//4} offen offset:{(h%4)*1024} sc1")
        wd = self.win_dma(0, 123)
        P.add(wd[:8]); wd = wd[8:]
        for p in range(1, 4):
            P(f"s_add_u32 s86, s{sW}, {p}\ns_and_b32 s86, s86, 3\ns_mul_i32 s86, s86, 12288\ns_add_u32 s86, s86, {EX + (p-1)*4096}")
            P(f"v_add_u32 v{118+p}, s86, v{vL16}")
        P(f"""s_mul_i32 s86, s{sW}, 12288
        s_add_u32 s86, s86, {EX}
        v_add_u32 v118, s86, v{vL16}
        s_lshl_b32 s86, s{sW}, 2
        v_lshrrev_b32 v12, 1, v{vG}
        v_add_u32 v12, s86, v12
        v_xor_b32 v12, v12, v{vI}
        v_lshlrev_b32 v12, 4, v12
        v_lshl_add_u32 v12, v{vI}, 8, v12
        v_and_b32 v13, 1, v{vG}
        v_lshl_add_u32 v12, v13, 3, v12
        v_add_u32 v12, {XT}, v12
        v_xor_b32 v13, 32, v12""")
        XR = 244
        for a in range(2):
            for cf in range(2): P(f"ds_read_b64 {vr(XR+(a*2+cf)*2,2)}, v{12+cf} offset:{a*4096}")
        P(f"""s_lshl_b32 s96, s88, 5
        s_lshl_b32 s87, s89, 2
        s_add_u32 s96, s96, s87
        s_add_u32 s96, s96, s{sW}
        s_lshl_b32 s96, s96, 10
        s_add_u32 s96, s96, {H}
        s_add_u32 s97, s96, 16384
        s_lshl_b32 s61, s88, 12
        s_lshl_b32 s86, s89, 8
        s_add_u32 s61, s61, s86
        s_lshr_b32 s86, s{sW}, 1
        s_lshl_b32 s86, s86, 10
        s_add_u32 s61, s61, s86
        s_and_b32 s86, s{sW}, 1
        s_lshl_b32 s86, s86, 3
        s_add_u32 s61, s61, s86
        s_add_u32 s61, s61, {HST}
        v_lshlrev_b32 v122, 4, v{vI}
        v_lshl_add_u32 v122, v{vG}, 11, v122""")
        P(f"v_cvt_pk_bf16_f32 v{ZC}, v{ZR}, v{ZR+1}\nv_cvt_pk_bf16_f32 v{ZC+1}, v{ZR+2}, v{ZR+3}")
        for h in range(8):
            for k in range(2): P(f"v_mov_b32_dpp v{ZP+2*h+k}, v{ZC+k} row_newbcast:{h} row_mask:0xf bank_mask:0xf")
        def ostep(kk):
            c = []; m = []
            for hh in range(2):
                h = 2*kk + hh
                c += [f"v_cvt_pk_bf16_f32 v{KP+2*h}, v{KR+4*h}, v{KR+4*h+1}", f"v_cvt_pk_bf16_f32 v{KP+2*h+1}, v{KR+4*h+2}, v{KR+4*h+3}"]
            for hh in range(2):
                h = 2*kk + hh
                for a in range(2):
                    nd = ND + 8*(2*hh+a)
                    m.append(f"v_mfma_f32_16x16x16_bf16 {vr(nd+4,4)}, {vr(ZP+2*h,2)}, {vr(PQR+4*h+2*a,2)}, {vr(EPSQ,4)}")
            for hh in range(2):
                h = 2*kk + hh
                for a in range(2):
                    nd = ND + 8*(2*hh+a)
                    m.append(f"v_mfma_f32_16x16x16_bf16 {vr(nd,4)}, {vr(KP+2*h,2)}, {vr(PQR+4*h+2*a,2)}, 0")
            v = [f"v_rcp_f32 v{ND+8*q+4}, v{ND+8*q+4}" for q in range(4)]
            for hh in range(2):
                for a in range(2):
                    nd = ND + 8*(2*hh+a); o = OF + 8*(kk&1) + 4*a + 2*hh
                    v += [f"v_mul_f32 v{nd+k}, v{nd+k}, v{nd+4}" for k in range(4)]
                    v += [f"v_cvt_pk_bf16_f32 v{o}, v{nd}, v{nd+1}", f"v_cvt_pk_bf16_f32 v{o+1}, v{nd+2}, v{nd+3}"]
            return c, m, v
        def gstep(kk):
            m = []
            for p in range(4):
                for cf in range(2):
                    for a in range(2):
                        acc = vr(ACC + ((p*2+a)*2+cf)*4, 4)
                        m.append(f"{MF} {acc}, {ar(((kk*4+p)*2+cf)*4,4)}, {vr(OF+8*(kk&1)+4*a,4)}, {acc if kk else '0'}")
            return m
        c, m, v = ostep(0); P.add(c + m + v)
        if self.opt.get("fine"): self.stamp("p2o0")
        for kk in range(4):
            g = gstep(kk)
            if kk < 3:
                c, m, v = ostep(kk+1)
                P.add(c + mix(m, wd[12*kk:12*kk+6]) + mix(g, weave(v, wd[12*kk+6:12*kk+12]), 2))
            else:
                P.add(mix(g[4:] + g[:4], wd[36:]))
        self.stamp("p2mm")
        for p in range(1, 4):
            for q in range(4): P(f"ds_write_b128 v{118+p}, {vr(ACC+(p*4+q)*4,4)} offset:{q*1024}")
        XF = 80
        for q in range(4):
            for k in range(2):
                P(f"v_lshlrev_b32 v{XF+4*q+2*k}, 16, v{XR+2*q+k}\nv_and_b32 v{XF+4*q+2*k+1}, 0xffff0000, v{XR+2*q+k}")
            for k in range(2): P(f"v_pk_add_f32 {vr(ACC+4*q+2*k,2)}, {vr(ACC+4*q+2*k,2)}, {vr(XF+4*q+2*k,2)}")
        self.barrier()
        RB = 32; HO = 96
        for q in range(4):
            for p in range(3): P(f"ds_read_b128 {vr(RB+(p*4+q)*4,4)}, v118 offset:{(p*4+q)*1024}")
        for q in range(4):
            for p in range(3):
                for k in range(2): P(f"v_pk_add_f32 {vr(ACC+4*q+2*k,2)}, {vr(ACC+4*q+2*k,2)}, {vr(RB+(p*4+q)*4+2*k,2)}")
            for k in range(2): P(f"v_cvt_pk_bf16_f32 v{HO+2*q+k}, v{ACC+4*q+2*k}, v{ACC+4*q+2*k+1}")
            if q & 1: P(f"buffer_store_dwordx4 {vr(HO+4*(q>>1),4)}, v{vL16}, {S(SWS)}, s{96+(q>>1)} offen sc1")
        SS = 104
        ls = []
        for a in range(2):
            x = ACC + 8*a; s_ = SS + 4*a
            ls.append([f"v_pk_add_f32 {vr(s_,2)}, {vr(x,2)}, {vr(x+2,2)}", f"v_pk_mul_f32 {vr(s_+2,2)}, {vr(x,2)}, {vr(x,2)}",
                       f"v_pk_add_f32 {vr(s_,2)}, {vr(s_,2)}, {vr(x+4,2)}", f"v_pk_fma_f32 {vr(s_+2,2)}, {vr(x+2,2)}, {vr(x+2,2)}, {vr(s_+2,2)}",
                       f"v_pk_add_f32 {vr(s_,2)}, {vr(s_,2)}, {vr(x+6,2)}", f"v_pk_fma_f32 {vr(s_+2,2)}, {vr(x+4,2)}, {vr(x+4,2)}, {vr(s_+2,2)}",
                       f"v_add_f32 v{s_}, v{s_}, v{s_+1}", f"v_pk_fma_f32 {vr(s_+2,2)}, {vr(x+6,2)}, {vr(x+6,2)}, {vr(s_+2,2)}",
                       f"v_add_f32 v{s_+1}, v{s_+2}, v{s_+3}"])
        P.add(self.zipped(ls))
        self.xreduce([SS, SS+1, SS+4, SS+5], 112, ops=("v_permlane32_swap_b32",))
        P(f"""v_permlane16_swap_b32 v{SS}, v{SS+4}
        v_permlane16_swap_b32 v{SS+1}, v{SS+5}
        v_pk_add_f32 {vr(SS,2)}, {vr(SS,2)}, {vr(SS+4,2)}
        s_mov_b64 exec, 0xffffffff
        s_mov_b32 exec_hi, 0
        buffer_store_dwordx2 {vr(SS,2)}, v122, {S(SWS)}, s61 offen sc1
        s_mov_b64 exec, -1""")
        P("s_waitcnt vmcnt(0)")
        self.barrier()
        self.wave0(lambda: self.set_flag(1 << 16))
        self.stamp("F2")

    def wsp_setup(self):
        P = self.P
        P(f"""v_lshrrev_b32 v12, 3, v0
        v_and_b32 v13, 7, v0
        v_xor_b32 v13, v13, v{vG}
        v_lshlrev_b32 v13, 4, v13
        v_lshl_add_u32 v244, v12, 12, v13
        v_xor_b32 v245, 64, v244
        v_add_u32 v245, 32768, v245
        s_lshl_b32 s96, s{sA8}, 18
        s_lshl_b32 s86, s{sW}, 10
        s_add_u32 s96, s96, s86
        s_lshl_b32 s97, s{sW}, 14
        v_lshrrev_b32 v12, 1, v{vI}
        v_xor_b32 v12, v12, v{vG}
        v_lshlrev_b32 v12, 4, v12
        v_lshl_add_u32 v12, v{vI}, 7, v12
        v_xor_b32 v13, 64, v12""")
        for p in range(4):
            P(f"s_add_u32 s86, s{sW}, {p}\ns_and_b32 s86, s86, 3\ns_lshl_b32 s86, s86, 11\ns_add_u32 s86, s86, s97")
            P(f"v_add_u32 v{246+2*p}, s86, v12\nv_add_u32 v{247+2*p}, s86, v13")
    def wsp_issue(self, c):
        out = [Prog.WD(f"wr{c-2}")] if c >= 2 else []
        for i in range(8):
            out.append(f"s_add_u32 m0, s97, {(c&1)*8192 + i*1024}")
            out.append(f"s_add_u32 s60, s96, {(i>>1)*65536 + c*128}" if i % 2 == 0 else ("NOPIF",))
            out.append(self.dmai(244+(i&1), SWSP, 60, f"wsp{c}"))
        return out
    def wsp_read(self, c):
        return [Prog.WT(f"wsp{c}")] + [("T", f"ds_read_b128 {ar(((2*c+t)*4+p)*4,4)}, v{246+2*p+t} offset:{(c&1)*8192}", f"wr{c}") for t in range(2) for p in range(4)]
    WOUT_LATE = list(range(9)) + [20]
    def wout_setup(self, v):
        self.P(f"""v_lshrrev_b32 v{v}, 3, v0
        v_lshl_add_u32 v{v}, v{v}, 10, v{vSW}
        s_and_b32 s89, s{sJ}, 7
        s_lshl_b32 s68, s{sW}, 13
        s_lshl_b32 s86, s89, 7
        s_add_u32 s68, s68, s86
        s_lshl_b32 s69, s{sW}, 10
        s_add_u32 s69, s69, 49152""")
    def wout(self, k, v):
        return [f"s_add_u32 m0, s69, {k*4096}", f"s_add_u32 s61, s68, {k*4*8192}", self.dmai(v, SWOUT, 61, "wout")]

    def pf_addr(self, v):
        self.P(f"""v_bfe_u32 v{v}, v0, 2, 2
        v_lshlrev_b32 v{v}, 10, v{v}
        v_lshl_add_u32 v{v}, v{vG}, 12, v{v}
        v_and_b32 v5, 3, v0
        v_lshl_add_u32 v{v}, v5, 7, v{v}""")

    def p4_setup(self):
        self.P(f"""s_mul_i32 s90, s{sA4}, 7
        s_add_u32 s91, s90, 6
        s_lshr_b32 s90, s90, 2
        s_lshr_b32 s91, s91, 2
        s_lshl_b32 s92, s{sA4}, 6
        s_lshl_b32 s86, s{sW}, 4
        s_add_u32 s92, s92, s86
        s_mul_i32 s92, s92, 7168
        s_add_u32 s92, s92, {Z2}
        v_add_u32 v240, 4096, v{vL16}
        s_lshl_b32 s86, s90, 4
        s_lshl_b32 s87, s91, 4
        s_add_u32 s87, s87, 15
        v_add_u32 v16, s86, v0
        v_min_u32 v16, s87, v16
        v_lshlrev_b32 v16, 2, v16""")

    def phase3(self):
        P = self.P
        SCR = 131072
        HF = 16; BB = 144; A2 = 176; A1 = 208
        AON, AEX, ACS, ACS1 = 240, 244, 248, 236
        Lskip = "L_p3skip"; Ljoin = "L_p3join"
        P(f"s_cmp_ge_u32 s{sCBK}, 14\ns_cbranch_scc1 {Lskip}")
        P.add(self.win_dma(1))
        P(f"v_mov_b32 v12, 0x3f803f80")
        for k in range(4): P(f"v_accvgpr_write_b32 a{AON+k}, v12")
        P(f"s_lshl_b32 s86, s{sW}, 5\nv_xor_b32 v15, s86, v{vT[0]}")
        rd = [[f"ds_read_b64_tr_b16 {vr(HF+4*t+2*h,2)}, v15 offset:{t*4096 + h*2048}" for h in range(2)] for t in range(16)]
        P.add(rd[0] + rd[1] + rd[2])
        for t in range(16):
            P.add([f"{MF} {ar(ACS,4)}, {ar(AON,4)}, {vr(HF+4*t,4)}, {ar(ACS,4) if t else '0'}"] + (rd[t+3] if t + 3 < 16 else []))
        P(f"""s_lshl_b32 s86, s{sW}, 6
        s_add_u32 s86, s86, {SCR}
        v_lshl_add_u32 v14, v{vI}, 2, s86
        s_lshl_b32 s90, s{sRB}, 3
        s_lshl_b32 s86, s{sW}, 1
        s_add_u32 s90, s90, s86
        s_lshl_b32 s93, s90, 11
        s_add_u32 s93, s93, {HST}
        s_lshl_b32 s90, s90, 14
        s_add_u32 s90, s90, {H}
        s_lshl_b32 s91, s{sW}, 10
        s_add_u32 s91, s91, {SCR + 1024}
        ds_write_b32 v14, a{ACS}""")
        def pl():
            P(f"s_lshl_b32 s86, s{sRB}, 7\ns_add_u32 s86, s86, {F2}\nv_lshlrev_b32 v16, 2, v{vI}")
            self.poll(16, soff="s86")
        self.wave0(pl)
        self.barrier()
        self.stamp("sync2")
        HS = A1
        def hl(t):
            if t >= 16:
                a = t - 16
                return [f"buffer_load_dwordx4 {vr(HS+8*a+4*hf,4)}, v{vL16}, {S(SWS)}, s93 offen offset:{a*2048+hf*1024} sc1" for hf in range(2)] if a < 2 else []
            o = [f"s_add_u32 s60, s90, {t*1024}", f"s_add_u32 s61, s90, {16384 + t*1024}"] if t % 4 == 0 else []
            return o + [f"buffer_load_dwordx4 {vr(HF+(t*2+a)*4,4)}, v{vL16}, {S(SWS)}, s{60+a} offen offset:{(t%4)*1024} sc1" for a in range(2)]
        HD = self.opt.get("HD", 6)
        for t in range(HD): P.add(hl(t))
        CS2 = 244
        P(f"v_lshlrev_b32 v12, 2, v{vI}\nv_add_u32 v12, {SCR}, v12")
        for f in range(4): P(f"ds_read_b32 v{CS2+f}, v12 offset:{f*64}")
        P(f"v_lshl_add_u32 v13, v{vI}, 2, s91\nv_lshl_add_u32 v14, v{vG}, 4, s91")
        K1 = 254
        for k in range(2): P(f"v_mov_b32 v{K1+k}, {f2u(K1C):#x}")
        def breads(t):
            return [f"ds_read_b64_tr_b16 {vr(BB+16*(t&1)+4*f+2*h,2)}, v{vT[f]} offset:{t*4096 + h*2048}" for f in range(4) for h in range(2)]
        if self.opt.get("l2pf", 1):
            self.pf_addr(248)
            P(f"""s_mul_i32 s74, s{sRB}, 14
            s_add_u32 s74, s74, s{sCBK}
            s_mul_i32 s74, s74, 3
            s_add_u32 s74, s74, s{sW}
            s_lshl_b32 s74, s74, 14
            s_add_u32 s74, s74, 512
            s_cmp_eq_u32 s{sW}, 3
            s_cselect_b32 s74, 0x1000000, s74""")
        P.add(breads(0))
        for t in range(16):
            m = []
            for f in range(4):
                for a in range(2):
                    acc = vr(A2 + (a*4+f)*4, 4)
                    m.append(f"{MF} {acc}, {vr(HF+(t*2+a)*4,4)}, {vr(BB+16*(t&1)+4*f,4)}, {acc if t else '0'}")
            if self.opt.get("fine") and t in (1, 4, 8, 12): self.stamp(f"z2k{t}")
            hh = hl(t + HD)
            if t == 13 and self.opt.get("l2pf", 1): hh = [f"buffer_load_dword a235, v248, {S(SWSP)}, s74 offen"]
            P.add(mix(m, weave(breads(t+1) if t < 15 else [], hh, max(1, len(hh) - 1))))
        self.stamp("z2mm")
        for f in range(4): P(f"v_mov_b32 v{BB+24+f}, v{CS2+f}")
        CS2 = BB + 24
        self.wsp_setup()
        P(f"v_lshl_add_u32 v13, v{vI}, 2, s91")
        P.wait_tag("win1"); self.barrier()
        iss01 = self.wsp_issue(0) + self.wsp_issue(1)
        LA = [240, 242]; LB = [241, 243]
        for a in range(2):
            x = HS + 8*a
            P(f"v_pk_add_f32 {vr(x,2)}, {vr(x,2)}, {vr(x+2,2)}\nv_pk_add_f32 {vr(x+4,2)}, {vr(x+4,2)}, {vr(x+6,2)}")
        for a in range(2):
            x = HS + 8*a
            P(f"v_pk_add_f32 {vr(x,2)}, {vr(x,2)}, {vr(x+4,2)}")
        self.xreduce([HS, HS+1, HS+8, HS+9], BB)
        self.finstats([(HS, HS+1), (HS+8, HS+9)], 512, LA, LB)
        for a in range(2): P(f"ds_write_b32 v13, v{LA[a]} offset:{a*64}\nds_write_b32 v13, v{LB[a]} offset:{128+a*64}")
        P.wait_ds()
        RA = BB; RBb = BB + 8
        for a in range(2): P(f"ds_read_b128 {vr(RA+4*a,4)}, v14 offset:{a*64}\nds_read_b128 {vr(RBb+4*a,4)}, v14 offset:{128+a*64}")
        P(f"""v_bfe_u32 v12, v0, 3, 1
        v_lshlrev_b32 v12, 8, v12
        v_lshl_add_u32 v12, v{vG}, 6, v12
        v_bfe_u32 v15, v0, 2, 1
        v_lshl_add_u32 v12, v15, 5, v12
        v_and_b32 v15, 1, v0
        v_lshl_add_u32 v12, v15, 4, v12
        v_cmp_eq_u32 s[72:73], 1, v15
        s_lshl_b32 s92, s{sRB}, 15
        s_lshl_b32 s86, s{sW}, 9
        s_add_u32 s92, s92, s86
        s_add_u32 s92, s92, {STATS}
        s_lshl_b32 s61, s{sCBK}, 11
        s_add_u32 s61, s61, s92""")
        TT = BB + 16
        SM = A1; SQ2 = A1 + 8
        for f in range(4):
            ls = []
            for a in range(2):
                for hp in range(2):
                    x = A2 + (a*4+f)*4 + 2*hp; t = TT + 2*(2*a+hp); sm = SM + 4*a + 2*hp; sq = SQ2 + 4*a + 2*hp
                    l = self.affine_pair(x, t, RA+4*a+2*hp, RBb+4*a+2*hp, CS2+f, False) + self.gelu_pair(x, t, K1)
                    if f == 0: l += [f"v_pk_mul_f32 {vr(sq,2)}, {vr(x,2)}, {vr(x,2)}"]
                    else: l += [f"v_pk_fma_f32 {vr(sq,2)}, {vr(x,2)}, {vr(x,2)}, {vr(sq,2)}",
                                f"v_pk_add_f32 {vr(sm,2)}, {vr(sm if f > 1 else A2 + a*16 + 2*hp,2)}, {vr(x,2)}"]
                    ls.append(l)
            if self.opt.get("fine"): self.stamp(f"z2e{f}")
            P.add(spread(self.zipped(ls), iss01[24*f:24*f+24]))
        def val(a, r, st): return (SQ2 if st else SM) + 4*a + r
        L1 = A1 + 16; L2 = A1 + 24
        for a, bm in ((0, 0x3), (1, 0xc)):
            for r in range(4):
                for st in range(2): P(f"v_add_f32_dpp v{L1+2*r+st}, v{val(a,r,st)}, v{val(a,r,st)} row_ror:8 row_mask:0xf bank_mask:{bm:#x}")
        for rh, bm in ((0, 0x5), (1, 0xa)):
            for rl in range(2):
                for st in range(2):
                    s_ = L1 + 2*(2*rh+rl) + st
                    P(f"v_add_f32_dpp v{L2+2*rl+st}, v{s_}, v{s_} row_half_mirror row_mask:0xf bank_mask:{bm:#x}")
        for qp in ("[1,0,3,2]", "[2,3,0,1]"):
            for k in range(4): P(f"v_add_f32_dpp v{L2+k}, v{L2+k}, v{L2+k} quad_perm:{qp} row_mask:0xf bank_mask:0xf")
        P(f"""v_cndmask_b32 v{L2}, v{L2}, v{L2+2}, s[72:73]
        v_cndmask_b32 v{L2+1}, v{L2+1}, v{L2+3}, s[72:73]
        v_mov_b32 v{L2+2}, s{sE}
        v_mov_b32 v{L2+3}, s{sE}
        s_mov_b32 exec_lo, 0x33333333
        s_mov_b32 exec_hi, 0x33333333
        buffer_store_dwordx4 {vr(L2,4)}, v12, {S(SWS)}, s61 offen sc1
        s_mov_b64 exec, -1""")
        self.stamp("z2ep")
        P(f"s_lshl_b32 s86, s{sW}, 5\nv_xor_b32 v15, s86, v{vT[0]}\nv_add_u32 v15, 65536, v15")
        for f in range(4): P(f"v_add_u32 v{vT[f]}, 65536, v{vT[f]}")
        P.wait_tag("win1")
        def xreads(t): return [f"ds_read_b64_tr_b16 {ar(AEX+8*(t&1)+2*h,2)}, v15 offset:{t*4096 + h*2048}" for h in range(2)]
        P.add(breads(0) + xreads(0))
        i2, i3, i4, i5 = [self.wsp_issue(c) for c in range(2, 6)]
        r0, r1, r2, r3 = [self.wsp_read(c) for c in range(4)]
        ex = {0: r0, 1: r1, 2: i2[:7], 3: i2[7:13], 4: i2[13:19], 5: i2[19:], 6: i3[:7], 7: i3[7:13], 8: i3[13:19], 9: i3[19:]}
        for t in range(16):
            m = []
            for f in range(4):
                for a in range(2):
                    acc = vr(A1 + (a*4+f)*4, 4)
                    m.append(f"{MF} {acc}, {vr(BB+16*(t&1)+4*f,4)}, {vr(HF+(t*2+a)*4,4)}, {acc if t else '0'}")
            m.append(f"{MF} {ar(ACS1,4)}, {ar(AON,4)}, {ar(AEX+8*(t&1),4)}, {ar(ACS1,4) if t else '0'}")
            nxt = breads(t+1) + xreads(t+1) if t < 15 else []
            if self.opt.get("fine") and t in (0, 2, 4, 7, 10, 14): self.stamp(f"z1k{t}")
            P.add(mix(m, weave(nxt, ex.get(t, []))))
        GS = HF
        P(f"""v_lshrrev_b32 v12, 5, v0
        v_lshlrev_b32 v12, 11, v12
        v_and_b32 v13, 31, v0
        v_lshl_add_u32 v12, v13, 4, v12""")
        gl = "\n".join(f"s_add_u32 s60, s92, {m_*4096}\nbuffer_load_dwordx4 {vr(GS+4*m_,4)}, v12, {S(SWS)}, s60 offen sc1" for m_ in range(7))
        if self.opt.get("fine"): self.stamp("z1k16")
        P(gl)
        if self.opt.get("fine"): self.stamp("gl")
        P.add(r2 + r3)
        for f in range(4): P(f"v_subrev_u32 v{vT[f]}, 65536, v{vT[f]}")
        P(f"""s_lshl_b32 s86, s{sW}, 6
        s_add_u32 s86, s86, {SCR + 256}
        v_lshl_add_u32 v15, v{vI}, 2, s86
        ds_write_b32 v15, a{ACS1}""")
        self.stamp("z1mm")
        cmpc = "\n".join(f"v_xor_b32 v{GS+4*m_+2}, s{sE}, v{GS+4*m_+2}" for m_ in range(7))
        cmpc += f"\nv_or3_b32 v15, v{GS+2}, v{GS+6}, v{GS+10}\nv_or3_b32 v15, v15, v{GS+14}, v{GS+18}\nv_or3_b32 v15, v15, v{GS+22}, v{GS+26}\nv_cmp_ne_u32 vcc, 0, v15"
        self.check_retry(GS, gl, cmpc)
        if self.opt.get("fine"): self.stamp("gath")
        P(f"v_pk_add_f32 {vr(GS,2)}, {vr(GS,2)}, {vr(GS+4,2)}\nv_pk_add_f32 {vr(GS+8,2)}, {vr(GS+8,2)}, {vr(GS+12,2)}\nv_pk_add_f32 {vr(GS+16,2)}, {vr(GS+16,2)}, {vr(GS+20,2)}")
        P(f"v_pk_add_f32 {vr(GS,2)}, {vr(GS,2)}, {vr(GS+8,2)}\nv_pk_add_f32 {vr(GS+16,2)}, {vr(GS+16,2)}, {vr(GS+24,2)}\nv_pk_add_f32 {vr(GS,2)}, {vr(GS,2)}, {vr(GS+16,2)}")
        self.xreduce([GS, GS+1], GS+2, ops=("v_permlane32_swap_b32",))
        self.finstats([(GS, GS+1)], 896, [GS+4], [GS+5])
        P(f"""v_lshl_add_u32 v13, v13, 2, s91
        ds_write_b32 v13, v{GS+4} offset:256
        ds_write_b32 v13, v{GS+5} offset:384""")
        P.wait_ds()
        for a in range(2): P(f"ds_read_b128 {vr(RA+4*a,4)}, v14 offset:{256+a*64}\nds_read_b128 {vr(RBb+4*a,4)}, v14 offset:{384+a*64}")
        P(f"""v_bfe_u32 v12, v0, 4, 1
        v_bfe_u32 v13, v0, 5, 1
        v_lshl_add_u32 v12, v12, 1, v13
        v_lshl_add_u32 v12, v12, 4, v{vI}
        v_lshlrev_b32 v12, 4, v12
        s_lshl_b32 s93, s{sRB}, 2
        s_add_u32 s93, s93, s{sW}
        s_mul_i32 s93, s93, 7168
        s_add_u32 s93, s93, {Z2}""")
        ZO = HF + 64
        for f in range(4):
            P(f"""s_lshl_b32 s86, s{sCBK}, 2
            s_add_u32 s86, s86, {f}
            s_mul_i32 s87, s86, 37
            s_lshr_b32 s87, s87, 8
            s_mul_i32 s87, s87, {64*7 - 7}
            s_add_u32 s86, s86, s87
            s_lshl_b32 s86, s86, 10
            s_add_u32 s{64+f}, s86, s93""")
        for f in range(4):
            for a in range(2):
                for hp in range(2):
                    x = A2 + (a*4+f)*4 + 2*hp
                    P(f"v_pk_fma_f32 {vr(x,2)}, {vr(x,2)}, {vr(RA+4*a+2*hp,2)}, {vr(RBb+4*a+2*hp,2)}")
            for a in range(2):
                for hp in range(2):
                    x = A2 + (a*4+f)*4 + 2*hp
                    P(f"v_cvt_pk_bf16_f32 v{ZO+4*f+2*a+hp}, v{x}, v{x+1}")
            if f: P(f"buffer_store_dwordx4 {vr(ZO+4*(f-1),4)}, v12, {S(SWS)}, s{64+f-1} offen sc1", "z2n")
            for hp in range(2): P(f"v_permlane16_swap_b32 v{ZO+4*f+hp}, v{ZO+4*f+2+hp}")
        P(f"buffer_store_dwordx4 {vr(ZO+12,4)}, v12, {S(SWS)}, s67 offen sc1", "z2n")
        if self.opt.get("fine"): self.stamp("z2st")
        C1 = HF + 32; Z1O = HF + 48
        P(f"""v_lshlrev_b32 v12, 4, v{vG}
        v_add_u32 v12, {SCR+256}, v12
        v_lshlrev_b32 v13, 3, v0
        s_lshl_b32 s93, s{sRB}, 3
        s_lshl_b32 s86, s{sW}, 1
        s_add_u32 s93, s93, s86
        s_mul_i32 s93, s93, 56
        s_lshl_b32 s86, s{sCBK}, 2
        s_add_u32 s93, s93, s86
        s_lshl_b32 s93, s93, 9
        s_add_u32 s93, s93, {Z1}
        s_add_u32 s94, s93, {56*512}""")
        P.add(i4 + i5)
        P.wait_tag("z2n")
        self.barrier()
        self.wave0(lambda: self.set_flag(0xff << 17))
        self.stamp("F3")
        for f in range(4): P(f"ds_read_b128 {vr(C1+4*f,4)}, v12 offset:{f*64}")
        self.wout_setup(241 - 241 + 15)
        early = [k for k in range(28) if k not in self.WOUT_LATE]
        P.add(self.wsp_read(4) + self.wsp_read(5))
        dm = self.wsp_issue(6) + self.wsp_issue(7)
        for k in early: dm += self.wout(k, 15)
        ep = []
        for f in range(4):
            ls = []
            for a in range(2):
                for hp in range(2):
                    x = A1 + (a*4+f)*4 + 2*hp; t = TT + 2*(2*a+hp)
                    ls.append(self.affine_pair(x, t, LA[a], LB[a], C1+4*f+2*hp, True) + self.gelu_pair(x, t, K1)
                              + [f"v_cvt_pk_bf16_f32 v{Z1O+(a*4+f)*2+hp}, v{x}, v{x+1}"])
            ep += self.zipped(ls)
        P.add(spread(ep, dm))
        for f in range(4):
            for a in range(2): P(f"buffer_store_dwordx2 {vr(Z1O+(a*4+f)*2,2)}, v13, {S(SWS)}, s{93+a} offen offset:{f*512} sc1")
        P.add(self.wsp_read(6) + self.wsp_read(7))
        P(f"s_branch {Ljoin}")
        P(f"{Lskip}:")
        P.cond_begin()
        P("s_waitcnt vmcnt(0) lgkmcnt(0)")
        if self.opt.get("l2pf", 1):
            P(f"""s_lshl_b32 s86, s{sRB}, 1
            s_add_u32 s86, s86, s{sCBK}
            s_sub_u32 s86, s86, 14
            s_lshl_b32 s86, s86, 2
            s_add_u32 s86, s86, s{sW}
            s_lshl_b32 s60, s86, 16""")
            self.pf_addr(12)
            for k in range(4): P(f"buffer_load_dword v{16+k}, v12, {S(SWSP)}, s60 offen\ns_add_u32 s60, s60, 16384")
        self.wsp_setup()
        self.wout_setup(15)
        P.add(self.wsp_issue(0) + self.wsp_issue(1))
        for k in early: P.add(self.wout(k, 15))
        for c in range(0, 8, 2):
            P.add(self.wsp_read(c) + self.wsp_read(c + 1))
            if c < 6: P.add(self.wsp_issue(c + 2) + self.wsp_issue(c + 3))
        P("s_waitcnt vmcnt(0) lgkmcnt(0)")
        P.cond_end()
        P(f"{Ljoin}:")
        self.stamp("wsp")

    def phase4(self):
        P = self.P
        ACC = 16; BB = 128; WO = 49152
        self.p4_setup()
        def pl():
            P(f"s_lshl_b32 s86, s{sX}, 10\ns_add_u32 s86, s86, {F3}")
            self.poll(16, soff="s86")
        self.wave0(pl)
        P("s_waitcnt vmcnt(0)")
        self.barrier()
        self.stamp("sync3")
        def bload(ks):
            out = [f"s_add_u32 s60, s92, {ks*7168}"]
            for f in range(7):
                out.append(f"buffer_load_dwordx4 {vr(BB+28*(ks%3)+4*f,4)}, v{vL16 if f < 4 else 240}, {S(SWS)}, s60 offen offset:{(f%4)*1024} sc1")
            return out
        for ks in range(2): P.add(bload(ks))
        self.wave0(lambda: self.set_flag(1 << 25))
        P(f"""v_lshrrev_b32 v12, 3, v0
        v_lshl_add_u32 v241, v12, 10, v{vSW}
        s_lshl_b32 s95, s{sA8}, 2
        s_add_u32 s95, s95, s{sW}
        s_lshl_b32 s88, s{sTB5}, 2
        s_add_u32 s88, s88, s{sW}
        s_lshr_b32 s64, s{sA8}, 1
        s_lshl_b32 s64, s64, 7
        s_add_u32 s64, s64, {F3B}
        v_add_u32 v243, s90, v0
        v_min_u32 v243, s91, v243
        v_lshlrev_b32 v243, 2, v243
        s_mul_i32 s65, s95, 56
        s_mul_i32 s87, s{sA4}, 7
        s_add_u32 s65, s65, s87
        s_lshl_b32 s65, s65, 9
        s_add_u32 s65, s65, {Z1}
        v_lshlrev_b32 v242, 3, v0
        s_lshl_b32 s66, s95, 5
        v_lshlrev_b32 v252, 1, v{vI}
        s_lshl_b32 s67, s88, 4
        s_lshl_b32 s87, s89, 1
        s_add_u32 s67, s67, s87
        s_lshl_b32 s67, s67, 10
        s_add_u32 s67, s67, {H}
        s_mul_i32 s93, s95, 28
        s_mul_i32 s87, s{sA4}, 7
        s_lshr_b32 s87, s87, 1
        s_add_u32 s93, s93, s87
        s_lshl_b32 s93, s93, 10
        s_add_u32 s93, s93, {U}""")
        for p in range(1, 4):
            P(f"s_add_u32 s86, s{sW}, {p}\ns_and_b32 s86, s86, 3\ns_mul_i32 s86, s86, 21504\ns_add_u32 s86, s86, {(p-1)*7168}")
            P(f"v_add_u32 v{12+p}, s86, v{vL16}")
        P(f"s_mul_i32 s86, s{sW}, 21504\nv_add_u32 v253, s86, v{vL16}")
        Z1R = BB + 84; BS = BB + 98; HR = 244
        fl = f"buffer_load_dword v254, v243, {S(SWS)}, s64 offen sc1"
        for ks in range(16):
            m = []
            order = range(4) if ks < 15 else (1, 2, 3, 0)
            if ks < 15: fp = [(f, p) for f in range(7) for p in range(4)]
            else: fp = [(f, p) for p in (1, 2, 3, 0) for f in range(7)]
            for f, p in fp:
                acc = vr(ACC + (p*7+f)*4, 4)
                m.append(f"{MF} {acc}, {vr(BB+28*(ks%3)+4*f,4)}, {ar((ks*4+p)*4,4)}, {acc if ks else '0'}")
            if self.opt.get("fine") and ks in (1, 2, 4, 8, 12, 15): self.stamp(f"p4k{ks}")
            if ks <= 13:
                ld = bload(ks + 2) + ([fl] if ks == 11 else [])
                P.add(ld[:1] + interleave(m, ld[1:], 3, 1))
            elif ks == 14:
                self.check_retry(254, fl, f"v_cmp_ne_u32 vcc, s{sE}, v254")
                w = [f"buffer_load_dwordx2 {vr(Z1R+2*f,2)}, v242, {S(SWS)}, s65 offen offset:{f*512} sc1" for f in range(7)]
                w += [f"buffer_load_ushort v{BS}, v252, {S(SBSP)}, s66 offen",
                      f"buffer_load_dwordx4 {vr(HR,4)}, v{vL16}, {S(SWS)}, s67 offen sc1", f"buffer_load_dwordx4 {vr(HR+4,4)}, v{vL16}, {S(SWS)}, s67 offen offset:1024 sc1"]
                P.add(mix(m, w))
            elif ks == 15:
                xw = [f"ds_write_b128 v{12+p}, {vr(ACC+(p*7+f)*4,4)} offset:{f*1024}" for p in range(1, 4) for f in range(7)]
                P.add(m[:10] + mix(m[10:], xw[:16]) + xw[16:])
            else:
                P.add(m)
        self.stamp("p4mm")
        ZF = BB; UO = BB + 48
        P(f"v_lshlrev_b32 v{BS}, 16, v{BS}")
        for f in range(7):
            for k in range(2):
                P(f"v_lshlrev_b32 v{ZF+4*f+2*k}, 16, v{Z1R+2*f+k}\nv_and_b32 v{ZF+4*f+2*k+1}, 0xffff0000, v{Z1R+2*f+k}")
                P(f"v_pk_add_f32 {vr(ACC+4*f+2*k,2)}, {vr(ACC+4*f+2*k,2)}, {vr(BS,2)} op_sel_hi:[1,0]")
        self.barrier()
        RB = ACC + 28
        for f in range(7):
            for p in range(3): P(f"ds_read_b128 {vr(RB+(p*7+f)*4,4)}, v253 offset:{(p*7+f)*1024}")
        for f in range(7):
            for p in range(3):
                for k in range(2): P(f"v_pk_add_f32 {vr(ACC+4*f+2*k,2)}, {vr(ACC+4*f+2*k,2)}, {vr(RB+(p*7+f)*4+2*k,2)}")
            for k in range(2): P(f"v_pk_mul_f32 {vr(ACC+4*f+2*k,2)}, {vr(ACC+4*f+2*k,2)}, {vr(ZF+4*f+2*k,2)}")
            for k in range(2): P(f"v_cvt_pk_bf16_f32 v{UO+2*f+k}, v{ACC+4*f+2*k}, v{ACC+4*f+2*k+1}")
        Lo = P.lab("Lo"); Le = P.lab("Le")
        P(f"s_bitcmp1_b32 s{sA4}, 0\ns_cbranch_scc1 {Lo}")
        P.cond_begin()
        for k in range(3): P(f"buffer_store_dwordx4 {vr(UO+4*k,4)}, v{vL16}, {S(SWS)}, s93 offen offset:{k*1024} sc1")
        P(f"buffer_store_dwordx2 {vr(UO+12,2)}, v242, {S(SWS)}, s93 offen offset:3072 sc1\ns_branch {Le}")
        P.cond_end()
        P(f"{Lo}:")
        P.cond_begin()
        P(f"buffer_store_dwordx2 {vr(UO,2)}, v242, {S(SWS)}, s93 offen offset:512 sc1")
        for k in range(3): P(f"buffer_store_dwordx4 {vr(UO+2+4*k,4)}, v{vL16}, {S(SWS)}, s93 offen offset:{1024+k*1024} sc1")
        P.cond_end()
        P(f"{Le}:")
        P("s_waitcnt vmcnt(0)")
        self.barrier()
        self.wave0(lambda: self.set_flag(1 << 26))
        self.stamp("F4")
        for k in self.WOUT_LATE: P.add(self.wout(k, 241))

    def phase5(self):
        P = self.P
        UF = 16; ACC = 128; WO = 49152; HR = 244
        def breg(kk, f):
            if kk < 16: return ("a", kk*16 + 4*f)
            if kk < 22: return ("v", 144 + (kk-16)*16 + 4*f)
            return ("a", (kk-22)*16 + 4*f)
        def rn(k, r, n): return ar(r, n) if k == "a" else vr(r, n)
        cur = [0]
        def breads(kk):
            out = []
            want = WO if kk < 16 else WO + 65536
            if cur[0] != want:
                d = want - cur[0]
                out += [f"v_add_u32 v{vT[f]}, {d}, v{vT[f]}" if d > 0 else f"v_subrev_u32 v{vT[f]}, {-d}, v{vT[f]}" for f in range(4)]; cur[0] = want
            for f in range(4):
                k, r = breg(kk, f)
                for h in range(2): out.append(f"ds_read_b64_tr_b16 {rn(k, r+2*h, 2)}, v{vT[f]} offset:{(kk%16)*4096 + h*2048}")
            return out
        for kk in [16, 17, 18, 19, 21] + list(range(9, 16)): P.add(breads(kk))
        P(f"""s_mul_i32 s92, s88, {28*1024}
        s_add_u32 s92, s92, {U}
        v_bfe_u32 v240, v0, 4, 1
        v_bfe_u32 v13, v0, 5, 1
        v_lshl_add_u32 v240, v240, 1, v13
        v_lshlrev_b32 v240, 4, v240
        v_lshl_add_u32 v240, v{vI}, 10, v240
        s_lshl_b32 s93, s88, 14
        s_lshl_b32 s87, s89, 7
        s_add_u32 s93, s93, s87""")
        P.wait_tag("wout"); self.barrier()
        for kk in list(range(9)) + [20]: P.add(breads(kk))
        def pl():
            P(f"s_lshl_b32 s86, s{sTB5}, 7\ns_add_u32 s86, s86, {F4}\nv_and_b32 v16, 7, v0\nv_lshlrev_b32 v16, 2, v16")
            self.poll(16, soff="s86")
        self.wave0(pl)
        self.barrier()
        self.stamp("sync4")
        for kk in range(28):
            if kk % 4 == 0: P(f"s_add_u32 s60, s92, {kk*1024}")
            if kk % 7 == 3:
                for h in range(2): P(f"buffer_load_dwordx2 {vr(UF+4*kk+2*h,2)}, v242, {S(SWS)}, s60 offen offset:{(kk%4)*1024 + h*512} sc1")
            else:
                P(f"buffer_load_dwordx4 {vr(UF+4*kk,4)}, v{vL16}, {S(SWS)}, s60 offen offset:{(kk%4)*1024} sc1")
        for f in range(4):
            for k in range(2):
                P(f"v_lshlrev_b32 v{ACC+4*f+2*k}, 16, v{HR+2*f+k}\nv_and_b32 v{ACC+4*f+2*k+1}, 0xffff0000, v{HR+2*f+k}")
        for kk in range(28):
            m = []
            for f in range(4):
                k, r = breg(kk, f); acc = vr(ACC+4*f, 4)
                m.append(f"{MF} {acc}, {rn(k, r, 4)}, {vr(UF+4*kk,4)}, {acc}")
            P.add(mix(m, breads(22 + kk - 1) if 1 <= kk <= 6 else []))
        OO = 160
        for c in range(2):
            for f in (2*c, 2*c+1):
                for k in range(2): P(f"v_cvt_pk_bf16_f32 v{OO+2*f+k}, v{ACC+4*f+2*k}, v{ACC+4*f+2*k+1}")
        for c in range(2):
            for k in range(2): P(f"v_permlane16_swap_b32 v{OO+4*c+k}, v{OO+4*c+2+k}")
            P(f"buffer_store_dwordx4 {vr(OO+4*c,4)}, v240, {S(SOUT)}, s93 offen offset:{c*64}")
        L = P.lab("Lz")
        P(f"s_or_b32 s86, s2, s{sW}\ns_cmp_lg_u32 s86, 0\ns_cbranch_scc1 {L}\nv_mov_b32 v5, s{sE}\ns_mov_b32 s86, {EPOCH}\ns_mov_b64 exec, 1\nbuffer_store_dword v5, off, {S(SWS)}, s86 sc1\ns_mov_b64 exec, -1\n{L}:")
        self.stamp("end")

    def build(self):
        P = self.P
        self.prologue()
        for k, ph in enumerate([self.phase1, self.phase2, self.phase3, self.phase4, self.phase5]):
            if k < self.stop: ph()
        if self.stamps:
            P("s_memtime s[98:99]\nv_writelane_b32 v7, s98, 63")
            P(f"""s_lshl_b32 s86, s2, 10
            s_lshl_b32 s87, s{sW}, 8
            s_add_u32 s86, s86, s87
            s_add_u32 s86, s86, {STAMP}
            v_lshlrev_b32 v12, 2, v0
            buffer_store_dword v7, v12, {S(SWS)}, s86 offen""")
        P("L_end:\ns_endpgm")
        A = Asm()
        A.begin_kernel(NAME, 256, 256, 163840)
        A.lines += P.finalize()
        A.end_kernel(NAME, 256, 256)
        return A

HEADER = open("sequential_preLN__linear_attn_block__mixer_gmlp__prompt.s.ref").read().split("; Override")[0]
def generate(path, plain=False, **kw):
    g = G(**kw); A = g.build()
    t = A.text(HEADER)
    if plain: t = t.replace(f"; @launch kernel={NAME} grid", "; @launch grid")
    open(path, "w").write(t)
    return g.names
if __name__ == "__main__":
    import argparse
    ap = argparse.ArgumentParser(); ap.add_argument("out"); ap.add_argument("--stop", type=int, default=99); ap.add_argument("--stamps", action="store_true")
    a = ap.parse_args()
    generate(a.out, plain=True, stop=a.stop, stamps=a.stamps)
```

```python
import re

REG_RE = re.compile(r"^(-|\|)?(abs\()?([vas])(\d+|\[(\d+):(\d+)\])\)?\|?$")

def regs_of(tok):
    tok = tok.strip()
    if tok in ("vcc",): return [("s", "vcc_lo"), ("s", "vcc_hi")]
    if tok in ("vcc_lo", "vcc_hi", "m0", "exec_lo", "exec_hi"): return [("s", tok)]
    if tok == "exec": return [("s", "exec_lo"), ("s", "exec_hi")]
    m = REG_RE.match(tok)
    if not m: return []
    k = m.group(3)
    if m.group(5) is not None:
        return [(k, i) for i in range(int(m.group(5)), int(m.group(6)) + 1)]
    return [(k, int(m.group(4)))]

TRANS = ("v_exp_f32", "v_log_f32", "v_rcp_f32", "v_rsq_f32", "v_sqrt_f32", "v_sin_f32", "v_cos_f32")

class Ins:
    __slots__ = ("text", "op", "dst", "src", "kind", "tag", "mods", "stdata", "passes", "A", "B", "C")
    def __init__(self, text, tag=None):
        self.text = text; self.tag = tag
        t = text.split(";")[0].strip()
        parts = t.split(None, 1)
        self.op = op = parts[0]
        rest = parts[1] if len(parts) > 1 else ""
        ops = []; cur = ""; depth = 0
        for ch in rest:
            if ch in "[(": depth += 1
            if ch in "])": depth -= 1
            if ch == "," and depth == 0: ops.append(cur.strip()); cur = ""
            else: cur += ch
        if cur.strip(): ops.append(cur.strip())
        mods = ""
        if ops:
            sp = ops[-1].split(None, 1)
            ops[-1] = sp[0]
            if len(sp) > 1: mods = sp[1]
        self.mods = mods
        self.dst = []; self.src = []; self.stdata = []; self.passes = 0
        self.A = self.B = self.C = []
        R = regs_of
        if op.startswith("v_mfma"):
            self.kind = "mfma"
            self.dst = R(ops[0]); self.A = R(ops[1]); self.B = R(ops[2]); self.C = R(ops[3])
            self.src = self.A + self.B + self.C
            self.passes = 8 if "32x32" in op else 4
        elif op.startswith("ds_"):
            self.kind = "ds"
            if op.startswith("ds_read") or op.startswith("ds_bpermute") or op.startswith("ds_swizzle"):
                self.dst = R(ops[0])
                for o in ops[1:]: self.src += R(o)
            else:
                for o in ops: self.src += R(o)
        elif op.startswith("buffer_") or op.startswith("global_"):
            self.kind = "vmem"
            lds = " lds" in (" " + mods)
            if op.startswith("buffer_inv") or op.startswith("buffer_wbl2"):
                pass
            elif op.startswith("buffer_load"):
                if lds:
                    for o in ops: self.src += R(o)
                    self.src += [("s", "m0")]
                    self.kind = "dma"
                else:
                    self.dst = R(ops[0])
                    for o in ops[1:]: self.src += R(o)
            elif op.startswith("global_load"):
                self.dst = R(ops[0])
                for o in ops[1:]: self.src += R(o)
            elif op.startswith("buffer_store") or op.startswith("buffer_atomic"):
                for o in ops: self.src += R(o)
                self.stdata = R(ops[0])
                if "atomic" in op and "sc0" in mods: self.dst = R(ops[0])
            elif op.startswith("global_store") or op.startswith("global_atomic"):
                for o in ops: self.src += R(o)
                self.stdata = R(ops[1])
            else:
                raise ValueError(text)
        elif op.startswith("s_load") or op.startswith("s_memrealtime") or op.startswith("s_memtime"):
            self.kind = "smem"
            self.dst = R(ops[0])
            for o in ops[1:]: self.src += R(o)
        elif op.startswith("s_"):
            self.kind = "salu"
            if op.startswith(("s_cmp", "s_cbranch", "s_branch", "s_waitcnt", "s_barrier", "s_nop", "s_sleep", "s_endpgm", "s_setprio", "s_bitcmp")):
                for o in ops: self.src += R(o)
                if op.startswith("s_cbranch_vcc"): self.src += R("vcc")
            else:
                self.dst = R(ops[0])
                for o in ops[1:]: self.src += R(o)
                if "saveexec" in op: self.dst += R("exec")
        elif op.startswith("v_"):
            self.kind = "valu"
            if op.startswith("v_cmp"):
                self.dst = R(ops[0])
                for o in ops[1:]: self.src += R(o)
            elif op.startswith("v_permlane") and "swap" in op:
                self.dst = R(ops[0]) + R(ops[1]); self.src = list(self.dst)
            elif op.startswith(("v_add_co", "v_sub_co", "v_addc_co", "v_subb_co")):
                self.dst = R(ops[0]) + R(ops[1])
                for o in ops[2:]: self.src += R(o)
            else:
                self.dst = R(ops[0])
                for o in ops[1:]: self.src += R(o)
                if op.startswith(("v_fmac", "v_dot2c", "v_pk_fmac")) or "_dpp" in op or op.startswith("v_writelane"):
                    self.src += self.dst
                if op.startswith("v_cndmask") and len(ops) == 3: self.src += R("vcc")
        else:
            raise ValueError("unknown op: " + text)

class Prog:
    def __init__(self):
        self.items = []
        self.uid = 0
    def __call__(self, s, tag=None):
        for l in s.split("\n"):
            l = l.strip()
            if not l or l.startswith(";"): continue
            if l.endswith(":"): self.items.append(("label", l[:-1]))
            elif l.startswith("."): self.items.append(("raw", l))
            else: self.items.append(Ins(l, tag))
    def add(self, lst):
        for x in lst:
            if isinstance(x, str): self(x)
            elif isinstance(x, tuple) and x[0] == "T": self(x[1], x[2])
            else: self.items.append(x)
    def lab(self, base="L"):
        self.uid += 1; return f"{base}{self.uid}"
    def wait_tag(self, *tags): self.items.append(("wait_tag", tags))
    def wait_ds(self): self.items.append(("wait_ds",))
    @staticmethod
    def WT(*tags): return ("wait_tag", tags)
    @staticmethod
    def WD(*tags): return ("wait_dstag", tags)
    def cond_begin(self): self.items.append(("cond_begin",))
    def cond_end(self): self.items.append(("cond_end",))
    def alt_begin(self, sreg, fastmod=""):
        self.uid += 1; self.items.append(("alt_begin", sreg, self.uid, fastmod))
    def alt_end(self): self.items.append(("alt_end",))
    def comment(self, t): self.items.append(("raw", "; " + t))

    def finalize(self):
        out = []
        vm = []
        lg = []
        sm = []
        hist = []
        stack = []
        def age(n):
            nonlocal hist
            hist = [(a + n, i) for a, i in hist if a + n < 24]
        def emit_text(t, states=1):
            out.append("    " + t); age(states)
        def need_vm(pred):
            n = None
            for idx, e in enumerate(vm):
                if pred(e): n = sum(1 for y in vm[idx + 1:] if not y["opt"]); last = idx
            return (n, last) if n is not None else None
        def need_lg(pred):
            n = None
            for idx, e in enumerate(lg):
                if pred(e): n = sum(1 for y in lg[idx + 1:] if not y["opt"]); last = idx
            return (n, last) if n is not None else None
        def do_wait(v, l, smem=False):
            nonlocal vm, lg, sm
            parts = []
            if v is not None:
                v = (min(v[0], 63), v[1])
                parts.append(f"vmcnt({v[0]})"); vm = vm[v[1] + 1:]
            if smem:
                parts.append("lgkmcnt(0)"); lg = []; sm = []
            elif l is not None:
                n = l[0]
                if sm: n = 0
                if n > 15:
                    n = 15
                parts.append(f"lgkmcnt({n})")
                if n == 0: lg = []; sm = []
                else: lg = lg[max(l[1] + 1, len(lg) - n) if all(not y['opt'] for y in lg) else l[1] + 1:]
            if parts: emit_text("s_waitcnt " + " ".join(parts))
        def hazard(i):
            need = 0
            rs = set(i.src); ws = set(i.dst)
            for a, p in hist:
                pd = set(p.dst); req = 0
                if p.kind == "valu":
                    vd = {r for r in pd if r[0] in "va"}; sd = {r for r in pd if r[0] == "s"}
                    if i.kind == "mfma" and vd & rs: req = max(req, 2)
                    if i.kind == "valu":
                        if i.op.startswith(("v_readfirstlane", "v_readlane")) and vd & rs: req = max(req, 1)
                        if ("_dpp" in i.op or i.op.startswith("v_permlane")) and vd & rs: req = max(req, 2)
                        if sd & rs: req = max(req, 2)
                        if p.op.startswith(TRANS) and vd & rs: req = max(req, 1)
                        if p.op.startswith("v_dot2") and vd & (rs | ws):
                            if i.op == p.op:
                                ab = set(i.src[:2]) if not i.op.startswith("v_dot2c") else set(i.src[:2])
                                if vd & ab: req = max(req, 3)
                            else: req = max(req, 3)
                    if p.op.startswith("v_dot2") and i.kind in ("vmem", "ds", "dma", "mfma") and vd & rs: req = max(req, 3)
                    if i.kind in ("vmem", "dma") and sd & rs: req = max(req, 5)
                    if i.kind == "salu" and sd & rs: req = max(req, 1)
                if p.kind == "mfma":
                    n = {4: 8, 8: 12}[p.passes]
                    if i.kind == "mfma":
                        if pd & (set(i.A) | set(i.B)): req = max(req, n)
                        if pd & set(i.C) and not (i.C == p.dst and i.passes == p.passes): req = max(req, n - 2)
                        if pd & ws and not (i.C == p.dst): req = max(req, n - 2)
                    elif i.kind in ("valu", "vmem", "ds", "dma"):
                        if pd & (rs | ws): req = max(req, n)
                    if i.kind == "valu" and set(p.C) & ws: req = max(req, {4: 3, 8: 7}[p.passes])
                if p.kind == "salu" and ("s", "m0") in pd and i.kind == "dma": req = max(req, 1)
                if p.kind == "vmem" and len(p.stdata) >= 3 and set(p.stdata) & ws: req = max(req, 2)
                if req - a > need: need = req - a
            return need
        for it in self.items:
            if isinstance(it, tuple):
                k = it[0]
                if k == "label": out.append(it[1] + ":")
                elif k == "raw": out.append(it[1])
                elif k == "wait_tag":
                    tags = set(it[1])
                    do_wait(need_vm(lambda e: e["tag"] in tags), None)
                elif k == "wait_dstag":
                    tags = set(it[1])
                    do_wait(None, need_lg(lambda e: e["tag"] in tags))
                elif k == "NOPIF": pass
                elif k == "alt_begin":
                    emit_text(f"s_cmp_eq_u32 s{it[1]}, 0"); emit_text(f"s_cbranch_scc1 La{it[2]}")
                    alt = (len(out), it[2], it[3])
                elif k == "alt_end":
                    body = out[alt[0]:]
                    out[alt[0]:] = [l.replace(" @SC", alt[2]) for l in body] + [f"    s_branch Lb{alt[1]}", f"La{alt[1]}:"] + [l.replace(" @SC", " sc1") for l in body] + [f"Lb{alt[1]}:"]
                elif k == "wait_ds":
                    if lg or sm: do_wait(None, None, smem=True)
                elif k == "cond_begin":
                    stack.append(([dict(e) for e in vm], [dict(e) for e in lg], list(sm), list(hist)))
                    for e in vm: e["old"] = len(stack)
                    for e in lg: e["old"] = len(stack)
                elif k == "cond_end":
                    svm, slg, ssm, shist = stack.pop()
                    d = len(stack) + 1
                    newvm = [dict(e, opt=True) for e in vm if e.get("old", 99) > d or "old" not in e]
                    newlg = [dict(e, opt=True) for e in lg if e.get("old", 99) > d or "old" not in e]
                    vm = svm + newvm; lg = slg + newlg; sm = list(set(ssm) | set(sm))
                    hist = hist + shist
                elif k == "reset":
                    vm = []; lg = []; sm = []
                continue
            i = it
            touched = set(i.src) | set(i.dst)
            if i.op == "s_waitcnt":
                m = re.search(r"vmcnt\((\d+)\)", i.text)
                if m:
                    n = int(m.group(1))
                    if n == 0: vm = []
                    elif not any(e["opt"] for e in vm): vm = vm[max(0, len(vm) - n):]
                m = re.search(r"lgkmcnt\((\d+)\)", i.text)
                if m and int(m.group(1)) == 0: lg = []; sm = []
                emit_text(i.text); continue
            v = need_vm(lambda e: e["dst"] & touched)
            l = need_lg(lambda e: e["dst"] & touched)
            s = bool(set(sm) & touched)
            if v is not None or l is not None or s: do_wait(v, l, s)
            n = hazard(i)
            while n > 0:
                c = min(n, 16); emit_text(f"s_nop {c-1}", c); n -= c
            if i.op == "s_nop":
                emit_text(i.text, int(i.text.split()[1]) + 1); continue
            emit_text(i.text)
            hist.append((0, i))
            if i.kind in ("vmem", "dma"):
                vm.append(dict(dst=set(i.dst), tag=i.tag, opt=False))
                assert sum(1 for e in vm) <= 200
            elif i.kind == "ds": lg.append(dict(dst=set(i.dst), tag=i.tag, opt=False))
            elif i.kind == "smem": sm += i.dst
        return out

def interleave(main, fill, every=1, per=1, start=0):
    out = []; fi = 0
    for idx, m in enumerate(main):
        out.append(m)
        if idx >= start and (idx - start) % every == every - 1:
            for _ in range(per):
                if fi < len(fill): out.append(fill[fi]); fi += 1
    out += fill[fi:]
    return out

def spread(main, fill):
    out = []; n = len(main); m = len(fill); fi = 0
    for idx, x in enumerate(main):
        out.append(x)
        tgt = (idx + 1) * m // n
        while fi < tgt: out.append(fill[fi]); fi += 1
    return out
```

```python
import sys, struct
sys.path.insert(0, "gen")
from asmlib import Asm, vr, ar, sr
from emit import Prog, spread, interleave

NAME = "sequential_preLN__linear_attn_block__mixer_gmlp__prompt_kernel"
def f2u(x): return struct.unpack("<I", struct.pack("<f", x))[0]

F1, F2, F3, F3B, F4, F1B = 0x0, 0x2000, 0x2800, 0x4800, 0x5000, 0x6000
EPOCH = 0x9000; KZ = 0x9080; XID = 0x9100
KV = 0xA000; KVS = 1152
STAMP = 0x80000
HST = 0xC0000
PQ, H, Z2, Z1, U, STATS = 0x100000, 0x300000, 0x500000, 0x900000, 0xD00000, 0x1100000
WS_BYTES = 0x1200000
R1 = 8
SX, SWQKV, SWO, SWIN, SWSP, SBSP, SWOUT, SOUT, SWS = 8, 12, 16, 20, 24, 28, 32, 36, 40
def S(d): return f"s[{d}:{d+3}]"
sTB, sE, sFB, sM, sXCC = 3, 4, 5, 6, 7
sX, sJ, sW, sSPIN = 48, 49, 50, 51
sLOG2E, sEPS6, sK2, sONE = 52, 54, 56, 58
sA8, sA4 = 62, 63
sRB, sCBK = 100, 101
sT4, sF4 = 88, 89
vL16, vI, vG, vFLAG, vSW = 1, 2, 3, 4, 6
vT = [8, 9, 10, 11]
SPIN_MAX = 1 << 16
MF = "v_mfma_f32_16x16x32_bf16"
K1C = -2.302208198
WT, WD = Prog.WT, Prog.WD
NOPIF = ("NOPIF",)

def L(s): return [x.strip() for x in s.split("\n") if x.strip()]
def mix(m, f, lead=0):
    if not m: return list(f)
    return m[:lead] + spread(m[lead:], f)
def weave(a, b, g=3):
    groups = [b[i:i+g] for i in range(0, len(b), g)]
    if not groups: return list(a)
    out = []; n = len(groups); ai = 0
    for k, grp in enumerate(groups):
        tgt = (k * len(a) + len(a) // 2) // n if len(a) else 0
        out += a[ai:tgt]; ai = max(ai, tgt); out += grp
    return out + a[ai:]
def zipped(lists):
    out = []; n = max(len(l) for l in lists)
    for k in range(n):
        for l in lists:
            if k < len(l): out.append(l[k])
    return out

class G:
    def __init__(self, stop=99, stamps=False, opt=None):
        self.P = Prog(); self.stop = stop; self.stamps = stamps; self.nst = 0; self.names = []
        self.opt = opt or {}
        self.map84 = self.opt.get("map84", 1)
        self.T4 = sA8 if self.map84 else sTB; self.F4 = sA4 if self.map84 else sFB
    def stamp(self, name, fine=False):
        if self.stamps and (not fine or self.opt.get("fine")):
            k = self.nst; self.nst += 1; self.names.append(name)
            self.P(f"{'s_memtime' if self.opt.get('cyc') else 's_memrealtime'} s[98:99]\nv_writelane_b32 v7, s98, {k}")
    def dmai(self, voff, srd, soff, tag):
        nt = " nt" if (self.opt.get("nt", 0) >> {SX: 0, SWQKV: 1, SWO: 2, SWIN: 3, SWSP: 4, SWOUT: 5}[srd]) & 1 else ""
        return ("T", f"buffer_load_dwordx4 v{voff}, {S(srd)}, s{soff} offen{nt} lds", tag)
    def srds(self, lst):
        for d, p, n in lst:
            self.P(f"s_mov_b32 s{d}, s{p}\ns_and_b32 s{d+1}, s{p+1}, 0xffff\ns_mov_b32 s{d+2}, {n}\ns_mov_b32 s{d+3}, 0x20000")
    def set_flag(self, mask, local=False):
        P = self.P
        P(f"s_mov_b64 exec, {mask:#x}\nv_mov_b32 v5, s{sE}")
        if local: self.local([f"buffer_store_dword v5, v{vFLAG}, {S(SWS)}, 0 offen @SC"], flag=True)
        else: P(f"buffer_store_dword v5, v{vFLAG}, {S(SWS)}, 0 offen sc1")
        P("s_mov_b64 exec, -1")
    def local(self, items, tag=None, flag=False):
        P = self.P
        dm = self.opt.get("dmode", 0)
        if not flag and dm == 0:
            for x in items: P(x.replace(" @SC", " sc1"), tag)
            return
        P.alt_begin(sM, "" if flag or dm == 1 else {2: " nt", 3: " sc0"}[dm])
        for x in items: P(x, tag)
        P.alt_end()
    def local4(self, items, tag=None):
        if self.map84:
            for x in items: self.P(x.replace(" @SC", " sc1"), tag)
        else: self.local(items, tag)
    def wave(self, w, fn):
        P = self.P; Lb = P.lab("Lw")
        P(f"s_cmp_lg_u32 s{sW}, {w}\ns_cbranch_scc1 {Lb}")
        P.cond_begin(); fn(); P.cond_end()
        P(f"{Lb}:")
    def wave0(self, fn): self.wave(0, fn)
    def spin_tail(self, Lb, E):
        self.P(f"s_add_u32 s{sSPIN}, s{sSPIN}, 1\ns_cbranch_vccz {E}\ns_cmp_lt_u32 s{sSPIN}, {SPIN_MAX}\ns_cbranch_scc1 {Lb}")
    def poll(self, vaddr, x4=False, soff="0"):
        P = self.P; Lb = P.lab("Lp"); E = P.lab("Le")
        P(f"s_mov_b32 s{sSPIN}, 0\n{Lb}:")
        if x4:
            P(f"buffer_load_dwordx4 v[12:15], v{vaddr}, {S(SWS)}, {soff} offen sc1\ns_waitcnt vmcnt(0)")
            P("\n".join(f"v_xor_b32 v{r}, s{sE}, v{r}" for r in range(12, 16)) + "\nv_or3_b32 v12, v12, v13, v14\nv_or_b32 v12, v12, v15\nv_cmp_ne_u32 vcc, 0, v12")
        else:
            P(f"buffer_load_dword v12, v{vaddr}, {S(SWS)}, {soff} offen sc1\ns_waitcnt vmcnt(0)\nv_cmp_ne_u32 vcc, s{sE}, v12")
        self.spin_tail(Lb, E); P(f"{E}:")
    def check_retry(self, load, cmp):
        P = self.P; Lb = P.lab("Lk"); E = P.lab("Le")
        P(f"s_mov_b32 s{sSPIN}, 0\n{cmp}\ns_cbranch_vccz {E}")
        P.cond_begin()
        P(f"{Lb}:\n{load}\ns_waitcnt vmcnt(0)\n{cmp}")
        self.spin_tail(Lb, E)
        P.cond_end(); P(f"{E}:")
    def barrier(self):
        self.P.wait_ds(); self.P("s_barrier")
    def xreduce(self, regs, tmp, ops=("v_permlane32_swap_b32", "v_permlane16_swap_b32")):
        P = self.P
        for op in ops:
            for k, r in enumerate(regs): P(f"v_mov_b32 v{tmp+k}, v{r}")
            for k, r in enumerate(regs): P(f"{op} v{tmp+k}, v{r}")
            for k, r in enumerate(regs): P(f"v_add_f32 v{r}, v{r}, v{tmp+k}")
    def finstats(self, sums, n, outA, outB):
        ls = []
        for k, (s, q) in enumerate(sums):
            ls.append([f"v_mul_f32 v{s}, {f2u(-1.0/n):#x}, v{s}", f"v_mul_f32 v{q}, {f2u(1.0/n):#x}, v{q}",
                       f"v_fma_f32 v{q}, -v{s}, v{s}, v{q}", f"v_max_f32 v{q}, 0, v{q}", f"v_add_f32 v{q}, {f2u(1e-5):#x}, v{q}",
                       f"v_rsq_f32 v{outA[k]}, v{q}", f"v_mul_f32 v{outB[k]}, v{s}, v{outA[k]}"])
        self.P.add(zipped(ls))
    def phi_pair(self, x, t, out):
        return [f"v_pk_mul_f32 {vr(t,2)}, {vr(x,2)}, s[{sLOG2E}:{sLOG2E+1}]",
                f"v_max_f32 v{x}, 0, v{x}", f"v_max_f32 v{x+1}, 0, v{x+1}",
                f"v_min_f32 v{t}, 0, v{t}", f"v_min_f32 v{t+1}, 0, v{t+1}",
                f"v_exp_f32 v{t}, v{t}", f"v_exp_f32 v{t+1}, v{t+1}",
                f"v_pk_add_f32 {vr(x,2)}, {vr(x,2)}, s[{sEPS6}:{sEPS6+1}]",
                f"v_pk_add_f32 {vr(x,2)}, {vr(x,2)}, {vr(t,2)}",
                f"v_cvt_pk_bf16_f32 v{out}, v{x}, v{x+1}"]
    def gelu_pair(self, x, t, k1):
        return [f"v_pk_mul_f32 {vr(t,2)}, {vr(x,2)}, {vr(x,2)}",
                f"v_pk_fma_f32 {vr(t,2)}, {vr(t,2)}, s[{sK2}:{sK2+1}], {vr(k1,2)}",
                f"v_pk_mul_f32 {vr(t,2)}, {vr(t,2)}, {vr(x,2)}",
                f"v_exp_f32 v{t}, v{t}", f"v_exp_f32 v{t+1}, v{t+1}",
                f"v_pk_add_f32 {vr(t,2)}, {vr(t,2)}, s[{sONE}:{sONE+1}]",
                f"v_rcp_f32 v{t}, v{t}", f"v_rcp_f32 v{t+1}, v{t+1}",
                f"v_pk_mul_f32 {vr(x,2)}, {vr(x,2)}, {vr(t,2)}"]
    @staticmethod
    def bc(r): return vr(r & ~1, 2), r & 1
    def affine_pair(self, x, t, A, B, cs, a_bc):
        if a_bc:
            bn, bb = self.bc(B); an, ab = self.bc(A)
            return [f"v_pk_mul_f32 {vr(t,2)}, {vr(cs,2)}, {bn} op_sel:[0,{bb}] op_sel_hi:[1,{bb}]",
                    f"v_pk_fma_f32 {vr(x,2)}, {vr(x,2)}, {an}, {vr(t,2)} op_sel:[0,{ab},0] op_sel_hi:[1,{ab},1]"]
        cn, cb = self.bc(cs)
        return [f"v_pk_mul_f32 {vr(t,2)}, {vr(B,2)}, {cn} op_sel:[0,{cb}] op_sel_hi:[1,{cb}]",
                f"v_pk_fma_f32 {vr(x,2)}, {vr(x,2)}, {vr(A,2)}, {vr(t,2)}"]

    def prologue(self):
        P = self.P
        P(f"""
        s_cmp_ge_u32 s2, 256
        s_cbranch_scc1 L_end
        s_load_dwordx4 s[64:67], s[0:1], 0
        s_load_dwordx2 s[84:85], s[0:1], 80
        s_load_dwordx2 s[68:69], s[0:1], 16
        s_load_dwordx8 s[72:79], s[0:1], 32
        s_load_dwordx2 s[80:81], s[0:1], 64
        v_lshrrev_b32 v1, 6, v0
        v_and_b32 v0, 63, v0
        v_readfirstlane_b32 s{sW}, v1
        s_and_b32 s{sX}, s2, 7
        s_lshr_b32 s{sJ}, s2, 3
        v_lshrrev_b32 v{vG}, 4, v0
        s_lshr_b32 s{sA8}, s{sX}, 1
        s_lshl_b32 s{sA8}, s{sA8}, 3
        s_lshr_b32 s86, s{sJ}, 2
        s_add_u32 s{sA8}, s{sA8}, s86
        s_and_b32 s{sA4}, s{sX}, 1
        s_lshl_b32 s{sA4}, s{sA4}, 2
        {f's_xor_b32 s86, s86, s{sJ}' if self.opt.get('hx') else f's_mov_b32 s86, s{sJ}'}
        s_and_b32 s86, s86, 3
        s_add_u32 s{sA4}, s{sA4}, s86
        """)
        if self.stamps: P("v_mov_b32 v7, 0\ns_memtime s[98:99]\nv_writelane_b32 v7, s98, 62")
        self.stamp("start")

    def late_setup(self):
        P = self.P
        self.srds([(SWS, 84, WS_BYTES)])
        P(f"s_mov_b32 s86, {EPOCH}\nbuffer_load_dword v225, off, {S(SWS)}, s86 sc1")
        self.srds([(SWO, 68, 524288), (SWIN, 72, 1835008), (SWSP, 74, 8388608), (SBSP, 76, 4096), (SWOUT, 78, 917504), (SOUT, 80, 2097152)])
        P(f"""
        v_lshlrev_b32 v{vL16}, 4, v0
        v_and_b32 v{vI}, 15, v0
        s_getreg_b32 s{sXCC}, hwreg(HW_REG_XCC_ID, 0, 4)
        s_lshr_b32 s{sRB}, s{sJ}, 4
        s_lshl_b32 s86, s{sX}, 1
        s_add_u32 s{sRB}, s{sRB}, s86
        s_and_b32 s{sCBK}, s{sJ}, 15
        s_lshr_b32 s{sTB}, s{sJ}, 3
        s_lshl_b32 s86, s{sX}, 2
        s_add_u32 s{sTB}, s{sTB}, s86
        s_and_b32 s{sFB}, s{sJ}, 7
        s_lshl_b32 s86, s2, 2
        v_lshl_add_u32 v{vFLAG}, v0, 10, s86
        s_lshl_b32 s86, s{sCBK}, 4
        s_add_u32 s86, s86, s{sRB}
        s_lshl_b32 s86, s86, 2
        s_add_u32 s86, s86, {(F3 - 17*1024) & 0xffffffff}
        v_lshl_add_u32 v5, v0, 10, s86
        v_cmp_lt_u32 vcc, 16, v0
        v_cndmask_b32 v{vFLAG}, v{vFLAG}, v5, vcc
        s_lshl_b32 s86, s{sRB}, 7
        s_lshl_b32 s87, s{sCBK}, 2
        s_add_u32 s86, s86, s87
        s_add_u32 s87, s86, {F2}
        v_writelane_b32 v{vFLAG}, s87, 16
        s_add_u32 s87, s86, {F3B}
        v_writelane_b32 v{vFLAG}, s87, 25
        s_lshl_b32 s86, s{sA8 if self.map84 else sTB}, 7
        s_lshl_b32 s87, s{sA4 if self.map84 else sFB}, 2
        s_add_u32 s86, s86, s87
        s_add_u32 s87, s86, {F4}
        v_writelane_b32 v{vFLAG}, s87, 26
        s_lshl_b32 s86, s{sA8}, 7
        s_lshl_b32 s87, s{sA4}, 2
        s_add_u32 s86, s86, s87
        s_add_u32 s87, s86, {F1B}
        v_writelane_b32 v{vFLAG}, s87, 27
        s_mov_b32 s{sLOG2E}, {f2u(1.4426950408889634):#x}
        s_mov_b32 s{sLOG2E+1}, {f2u(1.4426950408889634):#x}
        s_mov_b32 s{sEPS6}, {f2u(1e-6):#x}
        s_mov_b32 s{sEPS6+1}, {f2u(1e-6):#x}
        s_mov_b32 s{sK2}, {f2u(K1C*0.044715):#x}
        s_mov_b32 s{sK2+1}, {f2u(K1C*0.044715):#x}
        s_mov_b32 s{sONE}, 1.0
        s_mov_b32 s{sONE+1}, 1.0
        """)

    def phase1(self):
        P = self.P
        SCR = 147456
        vX = [216, 217]; vWd = [218, 219]; vA = [220, 221]; vO = [222, 223]; vB = 224
        OWN = 16; BK = 24; BV = 32; ONES = 40; ACK = 48; ACV = 64; CSK = 80; CSV = 84; DS = 88; DQ = 92
        ACQ = 96; CSQ = 112; ST = 120; STQ = 152
        P(f"""
        s_lshl_b32 s88, s{sA8}, 16
        s_lshl_b32 s87, s{sW}, 14
        s_add_u32 s88, s88, s87
        s_lshl_b32 s90, s{sA4}, 7
        s_mul_i32 s87, s{sW}, {16*3072}
        s_add_u32 s90, s90, s87
        s_lshl_b32 s91, s{sW}, 11
        v_lshrrev_b32 v5, 3, v0
        v_and_b32 v6, 7, v0
        v_xor_b32 v12, v6, v{vG}
        v_lshlrev_b32 v12, 4, v12
        v_lshl_add_u32 v{vX[0]}, v5, 10, v12
        v_xor_b32 v{vX[1]}, 64, v{vX[0]}
        v_add_u32 v{vX[1]}, 8192, v{vX[1]}
        v_and_b32 v12, 2, v5
        v_xor_b32 v12, v6, v12
        v_lshlrev_b32 v12, 4, v12
        v_mul_u32_u24 v13, 3072, v5
        v_add_u32 v{vWd[0]}, v13, v12
        v_xor_b32 v{vWd[1]}, 64, v{vWd[0]}
        v_add_u32 v{vWd[1]}, {8*3072}, v{vWd[1]}
        s_waitcnt lgkmcnt(0)
        """)
        self.srds([(SX, 64, 2097152), (SWQKV, 66, 1572864)])
        def issue_stage(s):
            slot = (s % 6) * 24576; out = []
            if s < 8:
                parts = [(0, SX, vX, 88, s * 128), (8192, SWQKV, vWd, 90, s * 64 * 3072 + 1024), (16384, SWQKV, vWd, 90, s * 64 * 3072 + 2048)]
            else:
                parts = [(8192 * k, SWQKV, vWd, 90, c * 64 * 3072) for k, c in enumerate(range(3 * (s - 8), min(8, 3 * (s - 8) + 3)))]
            for lo, srd, vo, sb, so in parts:
                out.append([f"s_add_u32 m0, s91, {slot + lo}", f"s_add_u32 s60, s{sb}, {so}", self.dmai(vo[0], srd, 60, f"st{s}")])
                out.append([f"s_add_u32 m0, s91, {slot + lo + 1024}", self.dmai(vo[1], srd, 60, f"st{s}")])
            return out
        if self.opt.get("rot1", 0):
            P(f"s_lshr_b32 s92, s{sJ}, 2" if self.opt["rot1"] == 1 else f"s_lshr_b32 s92, s{sJ}, 2\ns_and_b32 s92, s92, 6")
            def issue_stage(s):
                slot = (s % 6) * 24576; out = []
                def two(lo, srd, vo, pre):
                    out.append([f"s_add_u32 m0, s91, {slot + lo}"] + pre + [self.dmai(vo[0], srd, 60, f"st{s}")])
                    out.append([f"s_add_u32 m0, s91, {slot + lo + 1024}", self.dmai(vo[1], srd, 60, f"st{s}")])
                if s < 8:
                    two(0, SX, vX, [f"s_add_u32 s61, s92, {s}", "s_and_b32 s61, s61, 7", "s_lshl_b32 s60, s61, 7", "s_add_u32 s60, s60, s88"])
                    two(8192, SWQKV, vWd, [f"s_mul_i32 s61, s61, {64*3072}", "s_add_u32 s61, s61, s90", "s_add_u32 s60, s61, 1024"])
                    two(16384, SWQKV, vWd, ["s_add_u32 s60, s61, 2048"])
                else:
                    for k, c in enumerate(range(3 * (s - 8), min(8, 3 * (s - 8) + 3))):
                        two(8192 * k, SWQKV, vWd, [f"s_add_u32 s61, s92, {c}", "s_and_b32 s61, s61, 7", f"s_mul_i32 s61, s61, {64*3072}", "s_add_u32 s60, s61, s90"])
                return out
        flat = lambda g: [x for y in g for x in y]
        D = self.opt.get("D", 3)
        for s in range(2): P.add(flat(issue_stage(s)))
        if self.opt.get("coop", 2) == 2:
            P("v_lshlrev_b32 v12, 7, v0")
            self.wave(1, lambda: P(f"s_lshl_b32 s86, s2, 13\ns_mov_b32 exec_lo, 0xfcfcfcfc\ns_mov_b32 exec_hi, 0xfcfcfcfc\nbuffer_load_dword v235, v12, {S(SX)}, s86 offen\ns_mov_b64 exec, -1"))
            self.wave(2, lambda: P(f"s_mul_i32 s86, s2, {36*128}\ns_add_u32 s86, s86, {3072*128}\ns_mov_b32 exec_hi, 15\nbuffer_load_dword v236, v12, {S(SWQKV)}, s86 offen\ns_mov_b64 exec, -1"))
        def w0():
            P(f"""s_getpc_b64 s[86:87]
            L_pc:
            s_and_b32 s93, s{sJ}, 7
            s_lshl_b32 s93, s93, 13
            v_lshl_add_u32 v231, v0, 7, s93
            v_min_u32 v231, L_end-L_pc, v231
            global_load_dword v239, v231, s[86:87]""")
        self.wave(0, w0)
        self.late_setup()
        P(f"""s_lshl_b32 s93, s{sA4}, 2
        s_add_u32 s93, s93, s{sW}
        s_mul_i32 s94, s93, {KVS}
        s_add_u32 s94, s94, {KV}
        s_lshl_b32 s95, s{sA4}, 2
        s_add_u32 s95, s95, {KZ}""")
        Lb = P.lab("Lz")
        P(f"s_cmp_lg_u32 s{sA8}, 0\ns_cbranch_scc1 {Lb}"); P.cond_begin()
        P(f"""v_mov_b32 v12, 0
        v_mov_b32 v13, 0
        v_mov_b32 v14, 0
        v_mov_b32 v15, 0
        buffer_store_dwordx4 v[12:15], v{vL16}, {S(SWS)}, s94 offen sc1
        s_mov_b64 exec, 0xff
        buffer_store_dwordx4 v[12:15], v{vL16}, {S(SWS)}, s94 offen offset:1024 sc1
        s_mov_b64 exec, -1""")
        P.cond_end(); P(f"{Lb}:")
        self.wave(3, lambda: P(f"""s_lshl_b32 s86, s{sX}, 7
            s_lshl_b32 s87, s{sJ}, 2
            s_add_u32 s86, s86, s87
            s_add_u32 s86, s86, {XID}
            v_mov_b32 v5, s{sXCC}
            s_mov_b64 exec, 1
            buffer_store_dword v5, off, {S(SWS)}, s86 sc1
            s_mov_b64 exec, -1"""))
        def mallpf():
            P("v_lshlrev_b32 v226, 7, v0")
            def pf(srd, per, d):
                return lambda: P(f"s_mul_i32 s86, s2, {per*128}\ns_mov_b64 exec, {(1<<per)-1 if per < 32 else -1}" + (f"\ns_mov_b32 exec_hi, {(1<<(per-32))-1:#x}" if per > 32 else "")
                                 + f"\nbuffer_load_dword v{d}, v226, {S(srd)}, s86 offen\ns_mov_b64 exec, -1")
            self.wave(1, pf(SWO, 16, 232)); self.wave(2, pf(SWIN, 56, 233)); self.wave(3, pf(SWOUT, 28, 234))
        for s in range(2, D): P.add(flat(issue_stage(s)))
        P(f"""
        v_lshrrev_b32 v12, 1, v{vI}
        v_xor_b32 v12, v12, v{vG}
        v_lshlrev_b32 v12, 4, v12
        v_lshl_add_u32 v{vA[0]}, v{vI}, 7, v12
        v_xor_b32 v{vA[1]}, 64, v{vA[0]}
        v_add_u32 v{vO[0]}, s91, v{vA[0]}
        v_add_u32 v{vO[1]}, s91, v{vA[1]}
        v_lshrrev_b32 v12, 2, v{vI}
        v_lshl_add_u32 v13, v{vG}, 3, v12
        v_and_b32 v14, 2, v12
        v_and_b32 v15, 1, v{vG}
        v_lshl_or_b32 v14, v15, 2, v14
        v_bfe_u32 v15, v0, 1, 1
        s_lshl_b32 s86, s{sW}, 1
        v_add_u32 v15, s86, v15
        v_xor_b32 v14, v14, v15
        v_lshlrev_b32 v14, 4, v14
        v_lshl_add_u32 v14, v13, 7, v14
        v_and_b32 v15, 1, v0
        v_lshl_add_u32 v{vB}, v15, 3, v14
        """)
        for k in range(4): P(f"v_mov_b32 v{ONES+k}, 0x3f803f80")
        P(f"""s_lshl_b32 s86, s{sW}, 6
        s_add_u32 s86, s86, {SCR}
        v_lshl_add_u32 v212, v{vI}, 2, s86
        v_lshlrev_b32 v213, 4, v{vG}
        v_add_u32 v213, {SCR}, v213
        v_lshlrev_b32 v214, 2, v{vI}
        v_add_u32 v214, {SCR}, v214
        s_add_u32 s86, s91, {SCR + 1024}
        v_add_u32 v227, s86, v{vL16}
        v_lshl_add_u32 v228, v{vG}, 4, s86
        v_lshl_add_u32 v229, v0, 2, s86
        v_lshlrev_b32 v215, 2, v0
        v_and_b32 v12, 3, v0
        v_cmp_eq_u32 s[44:45], 1, v12
        v_cmp_eq_u32 s[46:47], 2, v12
        v_cmp_eq_u32 s[82:83], 3, v12""")
        cur = [0]
        def setbase(slot, regs):
            want = (slot // 2) * 49152; out = []
            if want != cur[0]:
                out = [f"v_add_u32 v{r}, {want - cur[0]}, v{r}" if want > cur[0] else f"v_subrev_u32 v{r}, {cur[0] - want}, v{r}" for r in regs]
                cur[0] = want
            return (slot % 2) * 24576, out
        def reads(ks, so):
            t = ks & 1; out = []
            for base, lo in ((BK, 8192), (BV, 16384)):
                for h in range(2): out.append(f"ds_read_b64_tr_b16 {vr(base+4*t+2*h,2)}, v{vB} offset:{so + lo + t*4096 + h*512}")
            for rf in range(4): out.append(f"ds_read_b128 {ar((ks*4+rf)*4,4)}, v{vA[t]} offset:{so + rf*2048}")
            out.append(f"ds_read_b128 {vr(OWN+4*t,4)}, v{vO[t]} offset:{so}")
            return out
        def mfmas(ks):
            t = ks & 1; m = []
            c = lambda r: vr(r, 4) if ks else "0"
            m.append(f"{MF} {vr(DS,4)}, {vr(OWN+4*t,4)}, {vr(ONES,4)}, {c(DS)}")
            m.append(f"{MF} {vr(DQ,4)}, {vr(OWN+4*t,4)}, {vr(OWN+4*t,4)}, {c(DQ)}")
            m.append(f"{MF} {vr(CSK,4)}, {vr(ONES,4)}, {vr(BK+4*t,4)}, {c(CSK)}")
            m.append(f"{MF} {vr(CSV,4)}, {vr(ONES,4)}, {vr(BV+4*t,4)}, {c(CSV)}")
            for rf in range(4):
                for base, acc in ((BK, ACK), (BV, ACV)):
                    m.append(f"{MF} {vr(acc+4*rf,4)}, {ar((ks*4+rf)*4,4)}, {vr(base+4*t,4)}, {c(acc+4*rf)}")
            return m
        def lay(m, r, g):
            if not m: return r + flat(g)
            g = g + [[]] * (3 - len(g))
            return mix(m[:4], r[:5] + g[0]) + mix(m[4:7], r[5:]) + mix(m[7:9], g[1]) + m[9:10] + mix(m[10:], g[2])
        for s in range(8):
            P.wait_tag(f"st{s}"); self.barrier()
            if s == 0: self.stamp("st0")
            if s == 2:
                P(f"v_readfirstlane_b32 s{sE}, v225\ns_add_u32 s{sE}, s{sE}, 1")
                Lb = P.lab("Lz")
                P(f"s_or_b32 s86, s{sA8}, s{sW}\ns_cmp_lg_u32 s86, 0\ns_cbranch_scc1 {Lb}"); P.cond_begin()
                P(f"v_mov_b32 v5, s{sE}\ns_mov_b64 exec, 1\nbuffer_store_dword v5, off, {S(SWS)}, s95 sc1\ns_mov_b64 exec, -1")
                P.cond_end(); P(f"{Lb}:")
            so, adj = setbase(s % 6, vA + vO + [vB])
            iss = issue_stage(s + D) if s + D <= 10 else []
            if s == 6: P(f"buffer_load_dword v230, off, {S(SWS)}, s95 sc1")
            if s == 5 and self.opt.get("mall", 1): mallpf()
            h = len(iss) // 2
            P.add(adj + lay(mfmas(2*s - 1) if s else [], reads(2*s, so), iss[:h]))
            P.wait_ds()
            P.add(lay(mfmas(2*s), reads(2*s + 1, so), iss[h:]))
        for s in range(8 + D, 11): P.add(flat(issue_stage(s)))
        m = mfmas(15)
        sel = []
        for k, sm in ((1, 44), (2, 46), (3, 82)):
            sel += [f"v_cndmask_b32 v{DS}, v{DS}, v{DS+k}, s[{sm}:{sm+1}]", f"v_cndmask_b32 v{DQ}, v{DQ}, v{DQ+k}, s[{sm}:{sm+1}]"]
        fin = [f"v_mul_f32 v{DS}, {f2u(-1.0/512):#x}, v{DS}", f"v_mul_f32 v{DQ}, {f2u(1.0/512):#x}, v{DQ}", f"v_fma_f32 v{DQ}, -v{DS}, v{DS}, v{DQ}",
               f"v_max_f32 v{DQ}, 0, v{DQ}", f"v_add_f32 v{DQ}, {f2u(1e-5):#x}, v{DQ}", f"v_rsq_f32 v{DS+1}, v{DQ}"]
        P.add(m[:6] + mix(m[6:], sel + fin))
        P(f"""v_mul_f32 v{DS+2}, v{DS}, v{DS+1}
        s_mov_b32 exec_lo, 0x00f0000f
        s_mov_b32 exec_hi, 0xf0000f00
        ds_write_b32 v212, v{DS+1}
        ds_write_b32 v212, v{DS+2} offset:256
        s_mov_b64 exec, -1""")
        self.stamp("p1gemm")
        self.barrier()
        for rf in range(4):
            P(f"ds_read_b128 {vr(ST+8*rf,4)}, v213 offset:{rf*64}\nds_read_b128 {vr(ST+8*rf+4,4)}, v213 offset:{256+rf*64}")
        for rf in range(4):
            P(f"ds_read_b32 v{STQ+2*rf}, v214 offset:{rf*64}\nds_read_b32 v{STQ+2*rf+1}, v214 offset:{256+rf*64}")
        PK = 160; PV = 168; TT = 176; KVD = 184; ZD = 188
        for rf in range(4):
            ls = []
            for hp in range(2):
                x = ACK + 4*rf + 2*hp; t = TT + 2*hp
                ls.append(self.affine_pair(x, t, ST+8*rf+2*hp, ST+8*rf+4+2*hp, CSK, False) + self.phi_pair(x, t, PK + 2*rf + hp))
                x = ACV + 4*rf + 2*hp; t = TT + 4 + 2*hp
                ls.append(self.affine_pair(x, t, ST+8*rf+2*hp, ST+8*rf+4+2*hp, CSV, False) + [f"v_cvt_pk_bf16_f32 v{PV+2*rf+hp}, v{x}, v{x+1}"])
            P.add(zipped(ls))
        p2a, p2b = self.p2_setup()
        P(f"""{MF} {vr(KVD,4)}, {vr(PK,4)}, {vr(PV,4)}, 0
        {MF} {vr(ZD,4)}, {vr(PK,4)}, {vr(ONES,4)}, 0
        {MF} {vr(KVD,4)}, {vr(PK+4,4)}, {vr(PV+4,4)}, {vr(KVD,4)}
        {MF} {vr(ZD,4)}, {vr(PK+4,4)}, {vr(ONES,4)}, {vr(ZD,4)}""")
        P.add(p2a[:8])
        P(f"ds_write_b128 v227, {vr(KVD,4)}\nds_write_b128 v228, {vr(ZD,4)} offset:1024")
        P.add(p2a[8:])
        P.wait_ds()
        for t in range(5): P(f"ds_read_b32 v{192+t}, v229 offset:{t*256}")
        self.check_retry(f"buffer_load_dword v230, off, {S(SWS)}, s95 sc1", f"v_cmp_ne_u32 vcc, s{sE}, v230")
        for t in range(4): P(f"buffer_atomic_add_f32 v{192+t}, v215, {S(SWS)}, s94 offen offset:{t*256} sc1", "atom")
        P(f"s_mov_b64 exec, 0xffff\nbuffer_atomic_add_f32 v196, v215, {S(SWS)}, s94 offen offset:1024 sc1\ns_mov_b64 exec, -1", "atom")
        self.stamp("atom")
        def qreads(ks):
            c = ks >> 1; t = ks & 1
            so, adj = setbase(2 + c // 3, [vB])
            return adj + [f"ds_read_b64_tr_b16 {vr(BK+4*(ks&3)+2*h,2)}, v{vB} offset:{so + (c%3)*8192 + t*4096 + h*512}" for h in range(2)]
        def qm(ks):
            b = vr(BK+4*(ks&3),4)
            out = [f"{MF} {vr(ACQ+4*rf,4)}, {b}, {ar((ks*4+rf)*4,4)}, {vr(ACQ+4*rf,4) if ks else '0'}" for rf in range(4)]
            return out + [f"{MF} {vr(CSQ,4)}, {b}, {vr(ONES,4)}, {vr(CSQ,4) if ks else '0'}"]
        P.wait_tag("st10"); self.barrier()
        P.add(qreads(0) + qreads(1))
        wo_e = self.wo_dma(0)
        p2b = p2b + L(f"""s_lshl_b32 s87, s{sA8}, 6
        s_add_u32 s87, s87, s93
        s_lshl_b32 s87, s87, 10
        s_add_u32 s64, s87, {PQ}
        s_add_u32 s65, s64, 32768""")
        n = (len(p2b) + 15) // 16
        for ks in range(16):
            P.add(mix(qm(ks), (qreads(ks + 2) if ks + 2 < 16 else []) + wo_e[3*ks:3*ks+3] + p2b[n*ks:n*ks+n]))
        PQR = 160
        P.wait_tag("atom"); self.barrier()
        self.wave0(lambda: self.set_flag((1 << R1) - 1))
        self.stamp("F1a")
        wo_l = self.wo_dma(1)
        for p in range(2):
            ls = []
            for rf in (2*p, 2*p+1):
                for hp in range(2):
                    x = ACQ + 4*rf + 2*hp; t = TT + 2*((2*rf+hp) % 4)
                    ls.append(self.affine_pair(x, t, STQ+2*rf, STQ+2*rf+1, CSQ+2*hp, True) + self.phi_pair(x, t, PQR + 2*rf + hp))
            P.add(zipped(ls))
            P(f"buffer_store_dwordx4 {vr(PQR+4*p,4)}, v{vL16}, {S(SWS)}, s{64+p} offen sc1", "pq")
        nw = self.opt.get("nw", 8)
        P.add(wo_l[:3*nw])
        P.wait_tag("pq")
        P("s_barrier")
        self.wave0(lambda: self.set_flag(1 << 27))
        self.stamp("F1")
        P.add(wo_l[3*nw:])

    def p2_setup(self):
        a = L(f"""
        s_lshr_b32 s88, s{sJ}, 2
        s_lshl_b32 s86, s{sX}, 3
        s_add_u32 s88, s88, s86
        s_and_b32 s89, s{sJ}, 3
        v_lshrrev_b32 v12, 3, v0
        v_and_b32 v13, 6, v12
        v_and_b32 v14, 7, v0
        v_xor_b32 v13, v13, v14
        v_lshlrev_b32 v{vSW}, 4, v13
        v_lshl_add_u32 v200, v12, 10, v{vSW}
        s_lshl_b32 s90, s{sW}, 17
        s_lshl_b32 s86, s89, 8
        s_add_u32 s90, s90, s86
        s_lshl_b32 s91, s{sW}, 14
        s_add_u32 s96, s91, 65536
        s_cmp_eq_u32 s{sW}, 3
        s_cselect_b32 s91, 131072, s91""")
        b = L(f"""
        v_lshrrev_b32 v12, 2, v{vI}
        v_lshl_add_u32 v12, v{vG}, 2, v12
        v_and_b32 v13, 6, v12
        v_bfe_u32 v14, v0, 1, 1
        v_xor_b32 v13, v13, v14
        v_and_b32 v14, 1, v0
        v_lshlrev_b32 v14, 3, v14
        v_lshl_add_u32 v14, v12, 7, v14
        v_lshl_add_u32 v{vT[0]}, v13, 4, v14
        v_xor_b32 v{vT[1]}, 32, v{vT[0]}
        v_xor_b32 v{vT[2]}, 64, v{vT[0]}
        v_xor_b32 v{vT[3]}, 96, v{vT[0]}
        s_and_b32 s86, s{sW}, 1
        s_lshl_b32 s86, s86, 6""")
        for p in range(4):
            b += L(f"s_add_u32 s87, s{sW}, {p}\ns_and_b32 s87, s87, 2\ns_lshl_b32 s87, s87, 12\ns_add_u32 s87, s87, s91")
            for cf in range(2):
                b += [f"v_xor_b32 v{204+2*p+cf}, s86, v{vT[2*(p&1)+cf]}", f"v_add_u32 v{204+2*p+cf}, s87, v{204+2*p+cf}"]
        return a, b
    def wo_dma(self, half):
        out = []
        for i in range(8):
            for st in range(2):
                out += [f"s_add_u32 m0, s{96 if half else 91}, {st*8192 + i*1024}", f"s_add_u32 s60, s90, {(8*half+i)*8192 + st*128}", self.dmai(200, SWO, 60, f"wo{2*half + i//4}")]
        return out
    def win_setup(self, v):
        return L(f"""v_lshrrev_b32 v{v}, 3, v0
        v_mul_u32_u24 v{v}, 3584, v{v}
        v_add_u32 v{v}, v{v}, v{vSW}
        s_min_u32 s70, s{sCBK}, 13
        s_lshl_b32 s70, s70, 7
        s_mul_i32 s71, s{sW}, {8*3584}
        s_add_u32 s70, s70, s71
        s_lshl_b32 s71, s{sW}, 10""")
    def win_dma(self, half, t, v):
        return [f"s_add_u32 m0, s71, {half*65536 + t*4096}", f"s_add_u32 s60, s70, {t*32*3584 + (1792 if half == 0 else 0)}", self.dmai(v, SWIN, 60, f"win{half}")]

    def win0_dma(self, v):
        out = L(f"s_min_u32 s72, s{sCBK}, 13\ns_lshl_b32 s72, s72, 7\ns_mul_i32 s73, s{sW}, {128*3584}\ns_add_u32 s72, s72, s73\ns_lshl_b32 s73, s{sW}, 14")
        for i in range(16):
            out += [f"s_add_u32 m0, s73, {i*1024}", f"s_add_u32 s60, s72, {i*8*3584 + 1792}", self.dmai(v, SWIN, 60, "win0")]
        return out

    def phase2(self):
        P = self.P
        EX = 114688
        XR = 244; EPSQ = 124
        P(f"""s_lshl_b32 s86, s88, 15
        s_lshl_b32 s87, s89, 8
        s_add_u32 s86, s86, s87
        s_lshl_b32 s87, s{sW}, 6
        s_add_u32 s86, s86, s87
        s_add_u32 s87, s86, 16384
        v_lshlrev_b32 v12, 3, v{vG}
        v_lshl_add_u32 v12, v{vI}, 10, v12""")
        for a in range(2):
            for cf in range(2): P(f"buffer_load_dwordx2 {vr(XR+(a*2+cf)*2,2)}, v12, {S(SX)}, s{86+a} offen offset:{cf*32}")
        P(f"""s_lshl_b32 s86, s{sW}, 3
        s_mul_i32 s92, s86, {KVS}
        s_add_u32 s92, s92, {KV}
        s_add_u32 s93, s92, {4*KVS}
        s_lshl_b32 s94, s88, 5
        s_add_u32 s94, s94, s86
        s_lshl_b32 s94, s94, 10
        s_add_u32 s94, s94, {PQ}
        s_add_u32 s95, s94, 4096
        v_and_b32 v12, 7, v0
        v_mul_u32_u24 v12, {KVS}, v12
        v_lshl_add_u32 v19, v{vG}, 4, v12
        v_and_b32 v18, 31, v0
        v_lshlrev_b32 v18, 2, v18
        s_lshl_b32 s66, s{sX}, 7
        s_add_u32 s66, s66, {XID}""")
        for k in range(4): P(f"v_mov_b32 v{EPSQ+k}, s{sEPS6}")
        P.add(self.win_setup(123))
        for p in range(1, 4):
            P(f"s_add_u32 s86, s{sW}, {p}\ns_and_b32 s86, s86, 3\ns_mul_i32 s86, s86, 12288\ns_add_u32 s86, s86, {EX + (p-1)*4096}")
            P(f"v_add_u32 v{118+p}, s86, v{vL16}")
        P(f"""s_mul_i32 s86, s{sW}, 12288
        s_add_u32 s86, s86, {EX}
        v_add_u32 v118, s86, v{vL16}
        s_lshl_b32 s64, s88, 5
        s_lshl_b32 s87, s89, 2
        s_add_u32 s64, s64, s87
        s_add_u32 s64, s64, s{sW}
        s_lshl_b32 s64, s64, 10
        s_add_u32 s64, s64, {H}
        s_add_u32 s65, s64, 16384
        s_lshl_b32 s61, s88, 12
        s_lshl_b32 s86, s89, 8
        s_add_u32 s61, s61, s86
        s_lshr_b32 s86, s{sW}, 1
        s_lshl_b32 s86, s86, 10
        s_add_u32 s61, s61, s86
        s_and_b32 s86, s{sW}, 1
        s_lshl_b32 s86, s86, 3
        s_add_u32 s61, s61, s86
        s_add_u32 s61, s61, {HST}
        v_lshlrev_b32 v122, 4, v{vI}
        v_lshl_add_u32 v122, v{vG}, 11, v122""")
        for kk in range(4):
            if kk == 2:
                if self.opt.get("w0early", 0): P.wait_ds(); P.add(self.win0_dma(123))
                P("s_sub_u32 s86, s96, s91")
                for r in range(204, 212): P(f"v_add_u32 v{r}, s86, v{r}")
            P.wait_tag(f"wo{kk}")
            for p in range(4):
                for cf in range(2):
                    for h in range(2):
                        P(f"ds_read_b64_tr_b16 {ar(((kk*4+p)*2+cf)*4+2*h,2)}, v{204+2*p+cf} offset:{(kk&1)*4096 + h*2048}")
        self.stamp("wo")
        def pl():
            P(f"s_lshl_b32 s86, s{sX}, 10")
            self.poll(vL16, x4=True, soff="s86")
            P(f"s_lshr_b32 s86, s88, 1\ns_lshl_b32 s86, s86, 7\ns_add_u32 s86, s86, {F1B}\nv_and_b32 v16, 7, v0\nv_lshlrev_b32 v16, 2, v16")
            self.poll(16, soff="s86")
        self.wave0(pl)
        self.barrier()
        self.stamp("sync1")
        KR = 16; KP = 48; ZR = 64; ZC = 68; ZP = 70; PQR = 86; ACC = 128; OF = 192; ND = 212
        P(f"buffer_load_dwordx4 {vr(ZR,4)}, v19, {S(SWS)}, s92 offen offset:1024 sc1")
        P(f"buffer_load_dword v252, v18, {S(SWS)}, s66 offen sc1")
        for h in range(8):
            P(f"buffer_load_dwordx4 {vr(KR+4*h,4)}, v{vL16}, {S(SWS)}, s{92+h//4} offen offset:{(h%4)*KVS} sc1")
            P(f"buffer_load_dwordx4 {vr(PQR+4*h,4)}, v{vL16}, {S(SWS)}, s{94+h//4} offen offset:{(h%4)*1024} sc1")
        wd = []
        if not self.opt.get("w0early", 0):
            for t in range(16): wd += self.win_dma(0, t, 123)
        NW1 = self.opt.get('nw1', 6)
        for t in range(NW1): wd += self.win_dma(1, t, 123)
        P(f"v_cvt_pk_bf16_f32 v{ZC}, v{ZR}, v{ZR+1}\nv_cvt_pk_bf16_f32 v{ZC+1}, v{ZR+2}, v{ZR+3}")
        P(f"v_cmp_ne_u32 vcc, s{sXCC}, v252")
        for h in range(8):
            for k in range(2): P(f"v_mov_b32_dpp v{ZP+2*h+k}, v{ZC+k} row_newbcast:{h} row_mask:0xf bank_mask:0xf")
        P(f"s_cmp_eq_u64 vcc, 0\ns_cselect_b32 s{sM}, {self.opt.get('fast', 1)}, 0")
        def ostep(kk):
            c = []; m = []
            for hh in range(2):
                h = 2*kk + hh
                c += [f"v_cvt_pk_bf16_f32 v{KP+2*h}, v{KR+4*h}, v{KR+4*h+1}", f"v_cvt_pk_bf16_f32 v{KP+2*h+1}, v{KR+4*h+2}, v{KR+4*h+3}"]
            for hh in range(2):
                h = 2*kk + hh
                for a in range(2):
                    m.append(f"v_mfma_f32_16x16x16_bf16 {vr(ND+8*(2*hh+a)+4,4)}, {vr(ZP+2*h,2)}, {vr(PQR+4*h+2*a,2)}, {vr(EPSQ,4)}")
            for hh in range(2):
                h = 2*kk + hh
                for a in range(2):
                    m.append(f"v_mfma_f32_16x16x16_bf16 {vr(ND+8*(2*hh+a),4)}, {vr(KP+2*h,2)}, {vr(PQR+4*h+2*a,2)}, 0")
            v = [f"v_rcp_f32 v{ND+8*q+4}, v{ND+8*q+4}" for q in range(4)]
            for hh in range(2):
                for a in range(2):
                    nd = ND + 8*(2*hh+a); o = OF + 8*(kk&1) + 4*a + 2*hh
                    v += [f"v_mul_f32 v{nd+k}, v{nd+k}, v{nd+4}" for k in range(4)]
                    v += [f"v_cvt_pk_bf16_f32 v{o}, v{nd}, v{nd+1}", f"v_cvt_pk_bf16_f32 v{o+1}, v{nd+2}, v{nd+3}"]
            return c, m, v
        def gstep(kk):
            m = []
            for p in range(4):
                for cf in range(2):
                    for a in range(2):
                        acc = vr(ACC + ((p*2+a)*2+cf)*4, 4)
                        m.append(f"{MF} {acc}, {ar(((kk*4+p)*2+cf)*4,4)}, {vr(OF+8*(kk&1)+4*a,4)}, {acc if kk else '0'}")
            return m
        c, m, v = ostep(0); P.add(c[:2] + mix(m[:4], c[2:]) + m[4:] + v)
        self.stamp("p2o0", True)
        XF = 80
        xun = []
        for q in range(4):
            for k in range(2): xun += [f"v_lshlrev_b32 v{XF+4*q+2*k}, 16, v{XR+2*q+k}", f"v_and_b32 v{XF+4*q+2*k+1}, 0xffff0000, v{XR+2*q+k}"]
        xw = [f"ds_write_b128 v{118+p}, {vr(ACC+(p*4+q)*4,4)} offset:{q*1024}" for p in range(1, 4) for q in range(4)]
        for kk in range(4):
            g = gstep(kk)
            if kk < 3:
                c, m, v = ostep(kk+1)
                q_ = 15 if len(wd) > 40 else 9
                P.add(mix(m[:4], c) + mix(m[4:], wd[q_*kk:q_*kk+3]) + mix(g, weave(v, wd[q_*kk+3:q_*kk+q_]), 1))
            else:
                g = g[4:] + g[:4]
                P.add(mix(g[:9], wd[3*q_:3*q_+9]) + mix(g[9:], xw[:7]) + xw[7:])
        self.stamp("p2mm")
        P.add(weave(xun, wd[3*q_+9:]))
        P.wait_tag("win0")
        for q in range(4):
            for k in range(2): P(f"v_pk_add_f32 {vr(ACC+4*q+2*k,2)}, {vr(ACC+4*q+2*k,2)}, {vr(XF+4*q+2*k,2)}")
        self.barrier()
        RB = 32; HO = 96
        for q in range(4):
            for p in range(3): P(f"ds_read_b128 {vr(RB+(p*4+q)*4,4)}, v118 offset:{(p*4+q)*1024}")
        for q in range(4):
            for p in range(3):
                for k in range(2): P(f"v_pk_add_f32 {vr(ACC+4*q+2*k,2)}, {vr(ACC+4*q+2*k,2)}, {vr(RB+(p*4+q)*4+2*k,2)}")
            for k in range(2): P(f"v_cvt_pk_bf16_f32 v{HO+2*q+k}, v{ACC+4*q+2*k}, v{ACC+4*q+2*k+1}")
        self.local([f"buffer_store_dwordx4 {vr(HO+4*a,4)}, v{vL16}, {S(SWS)}, s{64+a} offen @SC" for a in range(2)])
        SS = 104
        ls = []
        for a in range(2):
            x = ACC + 8*a; s_ = SS + 4*a
            ls.append([f"v_pk_add_f32 {vr(s_,2)}, {vr(x,2)}, {vr(x+2,2)}", f"v_pk_mul_f32 {vr(s_+2,2)}, {vr(x,2)}, {vr(x,2)}",
                       f"v_pk_add_f32 {vr(s_,2)}, {vr(s_,2)}, {vr(x+4,2)}", f"v_pk_fma_f32 {vr(s_+2,2)}, {vr(x+2,2)}, {vr(x+2,2)}, {vr(s_+2,2)}",
                       f"v_pk_add_f32 {vr(s_,2)}, {vr(s_,2)}, {vr(x+6,2)}", f"v_pk_fma_f32 {vr(s_+2,2)}, {vr(x+4,2)}, {vr(x+4,2)}, {vr(s_+2,2)}",
                       f"v_add_f32 v{s_}, v{s_}, v{s_+1}", f"v_pk_fma_f32 {vr(s_+2,2)}, {vr(x+6,2)}, {vr(x+6,2)}, {vr(s_+2,2)}",
                       f"v_add_f32 v{s_+1}, v{s_+2}, v{s_+3}"])
        P.add(zipped(ls))
        self.xreduce([SS, SS+1, SS+4, SS+5], 112, ops=("v_permlane32_swap_b32",))
        P(f"""v_permlane16_swap_b32 v{SS}, v{SS+4}
        v_permlane16_swap_b32 v{SS+1}, v{SS+5}
        v_pk_add_f32 {vr(SS,2)}, {vr(SS,2)}, {vr(SS+4,2)}
        s_mov_b32 exec_hi, 0""")
        self.local([f"buffer_store_dwordx2 {vr(SS,2)}, v122, {S(SWS)}, s61 offen @SC"])
        P("s_mov_b64 exec, -1")
        self.p3_setup()
        o, tl = self.colsum(0, 16, 110592); P.add(o + tl)
        P("s_waitcnt vmcnt(0)")
        self.barrier()
        self.wave0(lambda: self.set_flag(1 << 16, True))
        self.stamp("F2")

    def wsp_setup(self):
        o = L(f"""v_lshrrev_b32 v12, 3, v0
        v_and_b32 v13, 7, v0
        v_xor_b32 v13, v13, v{vG}
        v_lshlrev_b32 v13, 4, v13
        v_lshl_add_u32 v244, v12, 12, v13
        v_xor_b32 v245, 64, v244
        v_add_u32 v245, 32768, v245
        s_lshl_b32 s96, s{self.T4}, 18
        s_lshl_b32 s86, s{sW}, 10
        s_add_u32 s96, s96, s86
        s_lshl_b32 s97, s{sW}, 14
        v_lshrrev_b32 v12, 1, v{vI}
        v_xor_b32 v12, v12, v{vG}
        v_lshlrev_b32 v12, 4, v12
        v_lshl_add_u32 v12, v{vI}, 7, v12
        v_xor_b32 v13, 64, v12""")
        for p in range(4):
            o += L(f"s_add_u32 s86, s{sW}, {p}\ns_and_b32 s86, s86, 3\ns_lshl_b32 s86, s86, 11\ns_add_u32 s86, s86, s97\nv_add_u32 v{246+2*p}, s86, v12\nv_add_u32 v{247+2*p}, s86, v13")
        return o
    def wsp_issue(self, c, hi=False):
        out = [WD(f"wr{c-2}")] if c >= 2 and not hi else []
        for i in range(8):
            out.append(f"s_add_u32 m0, s97, {(c&1)*8192 + i*1024 + (65536 if hi else 0)}")
            out.append(f"s_add_u32 s60, s96, {(i>>1)*65536 + c*128}" if i % 2 == 0 else NOPIF)
            out.append(self.dmai(244+(i&1), SWSP, 60, f"wsp{c}"))
        return out
    def wsp_read(self, c):
        return [WT(f"wsp{c}")] + [("T", f"ds_read_b128 {ar(((2*c+t)*4+p)*4,4)}, v{246+2*p+t} offset:{(c&1)*8192}", f"wr{c}") for t in range(2) for p in range(4)]
    def wsp_tohi(self): return [f"v_xor_b32 v{r}, 0x10000, v{r}" for r in range(246, 254)]
    KE = list(range(21, 28)); KT = list(range(9, 21)); KL = list(range(9))
    def wout_setup(self, v):
        return L(f"""v_lshrrev_b32 v{v}, 3, v0
        v_lshl_add_u32 v{v}, v{v}, 10, v{vSW}
        s_lshl_b32 s68, s{sW}, 13
        s_lshl_b32 s86, s{sFB}, 7
        s_add_u32 s68, s68, s86
        s_lshl_b32 s69, s{sW}, 10
        s_add_u32 s69, s69, 49152""")
    def wout(self, k, v, tag="wout"):
        return [f"s_add_u32 m0, s69, {k*4096}", f"s_add_u32 s61, s68, {k*4*8192}", self.dmai(v, SWOUT, 61, tag)]
    def pf_addr(self, v):
        return L(f"""v_bfe_u32 v{v}, v0, 2, 2
        v_lshlrev_b32 v{v}, 10, v{v}
        v_lshl_add_u32 v{v}, v{vG}, 12, v{v}
        v_and_b32 v5, 3, v0
        v_lshl_add_u32 v{v}, v5, 7, v{v}""")
    SCR3 = 131072
    def p3_setup(self):
        SCR = self.SCR3
        self.P(f"""s_lshl_b32 s90, s{sRB}, 3
        s_lshl_b32 s86, s{sW}, 1
        s_add_u32 s90, s90, s86
        s_lshl_b32 s93, s90, 11
        s_add_u32 s93, s93, {HST}
        s_lshl_b32 s90, s90, 14
        s_add_u32 s90, s90, {H}
        s_lshl_b32 s91, s{sW}, 10
        s_add_u32 s91, s91, {SCR + 1024}
        s_lshl_b32 s67, s{sRB}, 7
        s_add_u32 s67, s67, {F2}
        v_lshlrev_b32 v240, 2, v{vI}
        v_mov_b32 v12, 0x3f803f80
        v_accvgpr_write_b32 a240, v12
        v_accvgpr_write_b32 a241, v12
        v_accvgpr_write_b32 a242, v12
        v_accvgpr_write_b32 a243, v12
        s_lshl_b32 s86, s{sW}, 5
        v_xor_b32 v15, s86, v{vT[0]}
        s_mul_i32 s74, s{sRB}, 14
        s_add_u32 s74, s74, s{sCBK}
        s_mul_i32 s74, s74, 3
        s_add_u32 s74, s74, s{sW}
        s_lshl_b32 s74, s74, 14
        s_add_u32 s74, s74, 512
        s_cmp_eq_u32 s{sW}, 3
        s_cselect_b32 s74, 0x1000000, s74""")

    def colsum(self, base, tmp, dst_off):
        rd = [[f"ds_read_b64_tr_b16 {vr(tmp+4*t+2*h,2)}, v15 offset:{t*4096 + h*2048}" for h in range(2)] for t in range(16)]
        out = rd[0] + rd[1] + rd[2]
        for t in range(16):
            out.append(f"{MF} {ar(236,4)}, {ar(240,4)}, {vr(tmp+4*t,4)}, {ar(236,4) if t else '0'}")
            if t + 3 < 16: out += rd[t+3]
        tail = L(f"s_lshl_b32 s86, s{sW}, 6\ns_add_u32 s86, s86, {dst_off}\nv_lshl_add_u32 v5, v{vI}, 2, s86\nds_write_b32 v5, a236")
        return out, tail

    def phase3(self):
        P = self.P
        SCR = self.SCR3
        HF = 16; BB = 144; A2 = 176; A1 = 208
        AON, AEX, ACS = 240, 244, 236
        Lskip = "L_p3skip"; Ljoin = "L_p3join"
        P(f"s_cmp_ge_u32 s{sCBK}, 14\ns_cbranch_scc1 {Lskip}")
        def breads(t):
            return [f"ds_read_b64_tr_b16 {vr(BB+16*(t&1)+4*f+2*h,2)}, v{vT[f]} offset:{t*4096 + h*2048}" for f in range(4) for h in range(2)]
        P.add(breads(0))
        self.wave0(lambda: self.poll(240, soff="s67"))
        P("s_barrier")
        self.stamp("sync2")
        HS = A1; CS2 = 224; K1 = 254
        def hl(t):
            if t >= 16:
                a = t - 16
                return [f"buffer_load_dwordx4 {vr(HS+8*a+4*hf,4)}, v{vL16}, {S(SWS)}, s93 offen offset:{a*2048+hf*1024} sc1" for hf in range(2)] if a < 2 else []
            o = [f"s_add_u32 s64, s90, {t*1024}", f"s_add_u32 s65, s90, {16384 + t*1024}"] if t % 4 == 0 else []
            return o + [f"buffer_load_dwordx4 {vr(HF+(t*2+a)*4,4)}, v{vL16}, {S(SWS)}, s{64+a} offen offset:{(t%4)*1024} sc1" for a in range(2)]
        HD = self.opt.get("HD", 5)
        for t in range(HD): P.add(hl(t))
        P("v_add_u32 v5, 110592, v240")
        for f in range(4): P(f"ds_read_b32 v{CS2+f}, v5 offset:{f*64}")
        late = []
        for t in range(self.opt.get('nw1', 6), 16): late += self.win_dma(1, t, 241)
        misc = [f"v_lshrrev_b32 v241, 3, v0", "v_mul_u32_u24 v241, 3584, v241", f"v_add_u32 v241, v241, v{vSW}"] + self.pf_addr(242)
        P.add(misc)
        misc = self.wsp_setup() + L(f"""v_mov_b32 v{K1}, {f2u(K1C):#x}
        v_mov_b32 v{K1+1}, {f2u(K1C):#x}
        v_lshl_add_u32 v13, v{vI}, 2, s91
        v_lshl_add_u32 v14, v{vG}, 4, s91
        v_bfe_u32 v12, v0, 3, 1
        v_lshlrev_b32 v12, 8, v12
        v_lshl_add_u32 v12, v{vG}, 6, v12
        v_bfe_u32 v5, v0, 2, 1
        v_lshl_add_u32 v12, v5, 5, v12
        v_and_b32 v5, 1, v0
        v_lshl_add_u32 v12, v5, 4, v12
        v_cmp_eq_u32 s[72:73], 1, v5
        s_lshl_b32 s92, s{sRB}, 15
        s_lshl_b32 s86, s{sW}, 9
        s_add_u32 s92, s92, s86
        s_add_u32 s92, s92, {STATS}
        s_lshl_b32 s66, s{sCBK}, 11
        s_add_u32 s66, s66, s92""")
        nm = (len(misc) + 11) // 12
        for t in range(16):
            m = []
            for f in range(4):
                for a in range(2):
                    acc = vr(A2 + (a*4+f)*4, 4)
                    m.append(f"{MF} {acc}, {vr(HF+(t*2+a)*4,4)}, {vr(BB+16*(t&1)+4*f,4)}, {acc if t else '0'}")
            if t in (1, 4, 8, 12): self.stamp(f"z2k{t}", True)
            hh = hl(t + HD); g = max(1, len(hh) - 1)
            if t + HD >= 18:
                k = t + HD - 18
                hh = late[:6]; late = late[6:]; g = 3
            P.add(mix(m, weave((breads(t+1) if t < 15 else []) + misc[nm*t:nm*t+nm], hh, g)))
        self.stamp("z2mm")
        P.add(late)
        if self.opt.get("l2pf", 1): P(f"buffer_load_dword a235, v242, {S(SWSP)}, s74 offen")
        LA = [240, 242]; LB = [241, 243]
        for a in range(2):
            x = HS + 8*a
            P(f"v_pk_add_f32 {vr(x,2)}, {vr(x,2)}, {vr(x+2,2)}\nv_pk_add_f32 {vr(x+4,2)}, {vr(x+4,2)}, {vr(x+6,2)}")
        for a in range(2):
            x = HS + 8*a
            P(f"v_pk_add_f32 {vr(x,2)}, {vr(x,2)}, {vr(x+4,2)}")
        self.barrier()
        self.xreduce([HS, HS+1, HS+8, HS+9], BB)
        self.finstats([(HS, HS+1), (HS+8, HS+9)], 512, LA, LB)
        for a in range(2): P(f"ds_write_b32 v13, v{LA[a]} offset:{a*64}\nds_write_b32 v13, v{LB[a]} offset:{128+a*64}")
        iss01 = self.wsp_issue(0) + self.wsp_issue(1)
        P.add(iss01[:6]); iss01 = iss01[6:]
        P.wait_ds()
        RA = BB; RBb = BB + 8
        for a in range(2): P(f"ds_read_b128 {vr(RA+4*a,4)}, v14 offset:{a*64}\nds_read_b128 {vr(RBb+4*a,4)}, v14 offset:{128+a*64}")
        P.add(iss01[:6]); iss01 = iss01[6:]
        TT = BB + 16; SM = A1; SQ2 = A1 + 8
        for f in range(4):
            ls = []
            for a in range(2):
                for hp in range(2):
                    x = A2 + (a*4+f)*4 + 2*hp; t = TT + 2*(2*a+hp); sm = SM + 4*a + 2*hp; sq = SQ2 + 4*a + 2*hp
                    l = self.affine_pair(x, t, RA+4*a+2*hp, RBb+4*a+2*hp, CS2+f, False) + self.gelu_pair(x, t, K1)
                    if f == 0: l += [f"v_pk_mul_f32 {vr(sq,2)}, {vr(x,2)}, {vr(x,2)}"]
                    else: l += [f"v_pk_fma_f32 {vr(sq,2)}, {vr(x,2)}, {vr(x,2)}, {vr(sq,2)}",
                                f"v_pk_add_f32 {vr(sm,2)}, {vr(sm if f > 1 else A2 + a*16 + 2*hp,2)}, {vr(x,2)}"]
                    ls.append(l)
            self.stamp(f"z2e{f}", True)
            P.add(weave(zipped(ls), iss01[18*f:18*f+18]))
        def val(a, r, st): return (SQ2 if st else SM) + 4*a + r
        L1 = A1 + 16; L2 = A1 + 24
        z1pre = [f"v_add_u32 v{r}, 65536, v{r}" for r in vT + [15]]
        for a, bm in ((0, 0x3), (1, 0xc)):
            for r in range(4):
                for st in range(2): P(f"v_add_f32_dpp v{L1+2*r+st}, v{val(a,r,st)}, v{val(a,r,st)} row_ror:8 row_mask:0xf bank_mask:{bm:#x}")
        P.add(z1pre)
        P.wait_tag("win1")
        for rh, bm in ((0, 0x5), (1, 0xa)):
            for rl in range(2):
                for st in range(2):
                    s_ = L1 + 2*(2*rh+rl) + st
                    P(f"v_add_f32_dpp v{L2+2*rl+st}, v{s_}, v{s_} row_half_mirror row_mask:0xf bank_mask:{bm:#x}")
        P("s_barrier")
        for qp in ("[1,0,3,2]", "[2,3,0,1]"):
            for k in range(4): P(f"v_add_f32_dpp v{L2+k}, v{L2+k}, v{L2+k} quad_perm:{qp} row_mask:0xf bank_mask:0xf")
        P.add(breads(0))
        P(f"""v_cndmask_b32 v{L2}, v{L2}, v{L2+2}, s[72:73]
        v_cndmask_b32 v{L2+1}, v{L2+1}, v{L2+3}, s[72:73]
        v_mov_b32 v{L2+2}, s{sE}
        v_mov_b32 v{L2+3}, s{sE}
        s_mov_b32 exec_lo, 0x33333333
        s_mov_b32 exec_hi, 0x33333333""")
        self.local([f"buffer_store_dwordx4 {vr(L2,4)}, v12, {S(SWS)}, s66 offen @SC"])
        P("s_mov_b64 exec, -1")
        self.stamp("z2ep")
        i2, i3, i4, i5 = [self.wsp_issue(c) for c in range(2, 6)]
        r0, r1, r2, r3 = [self.wsp_read(c) for c in range(4)]
        GS = HF
        misc = L(f"""v_lshrrev_b32 v12, 5, v0
        v_lshlrev_b32 v12, 11, v12
        v_and_b32 v13, 31, v0
        v_lshl_add_u32 v12, v13, 4, v12
        v_lshl_add_u32 v13, v13, 2, s91
        s_lshl_b32 s93, s{sRB}, 2
        s_add_u32 s93, s93, s{sW}
        s_mul_i32 s93, s93, 7168
        s_add_u32 s93, s93, {Z2}""")
        for f in range(4):
            misc += L(f"""s_lshl_b32 s86, s{sCBK}, 2
            s_add_u32 s86, s86, {f}
            s_mul_i32 s87, s86, 37
            s_lshr_b32 s87, s87, 8
            s_mul_i32 s87, s87, {64*7 - 7}
            s_add_u32 s86, s86, s87
            s_lshl_b32 s86, s86, 10
            s_add_u32 s{64+f}, s86, s93""")
        misc += L(f"""s_lshl_b32 s93, s{sRB}, 3
        s_lshl_b32 s86, s{sW}, 1
        s_add_u32 s93, s93, s86
        s_mul_i32 s93, s93, 56
        s_lshl_b32 s86, s{sCBK}, 2
        s_add_u32 s93, s93, s86
        s_lshl_b32 s93, s93, 9
        s_add_u32 s93, s93, {Z1}
        s_add_u32 s94, s93, {56*512}""")
        ex = {0: r0[:5], 1: r0[5:] + r1[:3], 2: r1[3:], 3: i2[:7], 4: i2[7:13], 5: i2[13:19], 6: i2[19:], 7: i3[:7], 8: i3[7:13], 9: i3[13:19], 10: i3[19:],
              11: misc[:8], 12: misc[8:16], 13: misc[16:24], 14: misc[24:32], 15: misc[32:]}
        for t in range(16):
            m = []
            for f in range(4):
                for a in range(2):
                    acc = vr(A1 + (a*4+f)*4, 4)
                    m.append(f"{MF} {acc}, {vr(BB+16*(t&1)+4*f,4)}, {vr(HF+(t*2+a)*4,4)}, {acc if t else '0'}")
            nxt = breads(t+1) if t < 15 else []
            if t in (0, 2, 4, 7, 10, 14): self.stamp(f"z1k{t}", True)
            P.add(mix(m, weave(nxt, ex.get(t, []))))
        gl = "\n".join(f"s_add_u32 s60, s92, {m_*4096}\nbuffer_load_dwordx4 {vr(GS+4*m_,4)}, v12, {S(SWS)}, s60 offen sc1" for m_ in range(7))
        P(gl)
        for f in range(4): P(f"v_subrev_u32 v{vT[f]}, 65536, v{vT[f]}")
        P.add(r2 + r3)
        self.stamp("z1mm")
        cmpc = "\n".join(f"v_xor_b32 v{GS+4*m_+2}, s{sE}, v{GS+4*m_+2}" for m_ in range(7))
        cmpc += f"\nv_or3_b32 v5, v{GS+2}, v{GS+6}, v{GS+10}\nv_or3_b32 v5, v5, v{GS+14}, v{GS+18}\nv_or3_b32 v5, v5, v{GS+22}, v{GS+26}\nv_cmp_ne_u32 vcc, 0, v5"
        self.check_retry(gl, cmpc)
        self.stamp("gath", True)
        P(f"v_pk_add_f32 {vr(GS,2)}, {vr(GS,2)}, {vr(GS+4,2)}\nv_pk_add_f32 {vr(GS+8,2)}, {vr(GS+8,2)}, {vr(GS+12,2)}\nv_pk_add_f32 {vr(GS+16,2)}, {vr(GS+16,2)}, {vr(GS+20,2)}")
        P(f"v_pk_add_f32 {vr(GS,2)}, {vr(GS,2)}, {vr(GS+8,2)}\nv_pk_add_f32 {vr(GS+16,2)}, {vr(GS+16,2)}, {vr(GS+24,2)}\nv_pk_add_f32 {vr(GS,2)}, {vr(GS,2)}, {vr(GS+16,2)}")
        self.xreduce([GS, GS+1], GS+2, ops=("v_permlane32_swap_b32",))
        self.finstats([(GS, GS+1)], 896, [GS+4], [GS+5])
        P(f"""ds_write_b32 v13, v{GS+4} offset:256
        ds_write_b32 v13, v{GS+5} offset:384
        v_bfe_u32 v12, v0, 4, 1
        v_bfe_u32 v13, v0, 5, 1
        v_lshl_add_u32 v12, v12, 1, v13
        v_lshl_add_u32 v12, v12, 4, v{vI}
        v_lshlrev_b32 v12, 4, v12""")
        P.wait_ds()
        for a in range(2): P(f"ds_read_b128 {vr(RA+4*a,4)}, v14 offset:{256+a*64}\nds_read_b128 {vr(RBb+4*a,4)}, v14 offset:{384+a*64}")
        ZO = HF + 64
        for f in range(4):
            for a in range(2):
                for hp in range(2):
                    x = A2 + (a*4+f)*4 + 2*hp
                    P(f"v_pk_fma_f32 {vr(x,2)}, {vr(x,2)}, {vr(RA+4*a+2*hp,2)}, {vr(RBb+4*a+2*hp,2)}")
            for a in range(2):
                for hp in range(2):
                    x = A2 + (a*4+f)*4 + 2*hp
                    P(f"v_cvt_pk_bf16_f32 v{ZO+4*f+2*a+hp}, v{x}, v{x+1}")
            if f: P(f"buffer_store_dwordx4 {vr(ZO+4*(f-1),4)}, v12, {S(SWS)}, s{64+f-1} offen sc1", "z2n")
            for hp in range(2): P(f"v_permlane16_swap_b32 v{ZO+4*f+hp}, v{ZO+4*f+2+hp}")
        P(f"buffer_store_dwordx4 {vr(ZO+12,4)}, v12, {S(SWS)}, s67 offen sc1", "z2n")
        self.stamp("z2st", True)
        C1 = HF + 32; Z1O = HF + 48
        P(f"v_lshlrev_b32 v12, 4, v{vG}\nv_add_u32 v12, {SCR+256}, v12\nv_lshlrev_b32 v13, 3, v0")
        o, tl = self.colsum(65536, 96, SCR + 256)
        P.add(weave(o, i4 + i5) + tl)
        P.add(self.wout_setup(15))
        P.wait_tag("z2n")
        self.barrier()
        self.wave0(lambda: self.set_flag(0xff << 17))
        self.stamp("F3")
        for f in range(4): P(f"ds_read_b128 {vr(C1+4*f,4)}, v12 offset:{f*64}")
        dm = self.wsp_issue(6, True) + self.wsp_issue(7, True)
        for k in self.KE: dm += self.wout(k, 15, "woutE")
        ep = []
        for f in range(4):
            ls = []
            for a in range(2):
                for hp in range(2):
                    x = A1 + (a*4+f)*4 + 2*hp; t = TT + 2*(2*a+hp)
                    ls.append(self.affine_pair(x, t, LA[a], LB[a], C1+4*f+2*hp, True) + self.gelu_pair(x, t, K1)
                              + [f"v_cvt_pk_bf16_f32 v{Z1O+(a*4+f)*2+hp}, v{x}, v{x+1}"])
            ep += zipped(ls)
        P.add(weave(ep, dm))
        self.local4([f"buffer_store_dwordx2 {vr(Z1O+(a*4+f)*2,2)}, v13, {S(SWS)}, s{93+a} offen offset:{f*512} @SC" for f in range(4) for a in range(2)])
        P.add(self.wsp_read(4) + self.wsp_read(5) + self.wsp_tohi() + self.wsp_read(6) + self.wsp_read(7))
        P(f"s_branch {Ljoin}")
        P(f"{Lskip}:")
        P.cond_begin()
        P("s_waitcnt vmcnt(0) lgkmcnt(0)")
        if self.opt.get("l2pf", 1):
            P(f"""s_lshl_b32 s86, s{sRB}, 1
            s_add_u32 s86, s86, s{sCBK}
            s_sub_u32 s86, s86, 14
            s_lshl_b32 s86, s86, 2
            s_add_u32 s86, s86, s{sW}
            s_lshl_b32 s60, s86, 16""")
            P.add(self.pf_addr(12))
            for k in range(4): P(f"buffer_load_dword v{16+k}, v12, {S(SWSP)}, s60 offen\ns_add_u32 s60, s60, 16384")
        P.add(self.wsp_setup() + self.wout_setup(15))
        P.add(self.wsp_issue(0) + self.wsp_issue(1))
        for k in self.KE: P.add(self.wout(k, 15, "woutE"))
        for c in range(0, 8, 2):
            P.add(self.wsp_read(c) + self.wsp_read(c + 1))
            if c < 6: P.add(self.wsp_issue(c + 2) + self.wsp_issue(c + 3))
        P("s_waitcnt vmcnt(0) lgkmcnt(0)")
        P.cond_end()
        P(f"{Ljoin}:")
        self.stamp("wsp")

    def p5_breg(self, kk, f):
        if kk >= 21: return ("a", (kk - 21) * 16 + 4*f)
        i = self.order5.index(kk) - 7
        return ("a", 112 + (i % 9) * 16 + 4*f)
    def p5_reads(self, kk):
        out = []
        want = 49152 if kk < 16 else 49152 + 65536
        if self.cur5 != want:
            d = want - self.cur5
            out += [f"v_add_u32 v{vT[f]}, {d}, v{vT[f]}" if d > 0 else f"v_subrev_u32 v{vT[f]}, {-d}, v{vT[f]}" for f in range(4)]; self.cur5 = want
        for f in range(4):
            k, r = self.p5_breg(kk, f)
            for h in range(2): out.append(f"ds_read_b64_tr_b16 {ar(r+2*h,2)}, v{vT[f]} offset:{(kk%16)*4096 + h*2048}")
        return out

    def phase4(self):
        P = self.P
        ACC = 16; BB = 128
        self.order5 = self.KE + list(range(16, 21)) + list(range(9, 16)) + self.KL
        self.cur5 = 0
        P(f"""s_mul_i32 s90, s{self.F4}, 7
        s_add_u32 s91, s90, 6
        s_lshr_b32 s90, s90, 2
        s_lshr_b32 s91, s91, 2
        s_lshl_b32 s92, s{self.F4}, 6
        s_lshl_b32 s86, s{sW}, 4
        s_add_u32 s92, s92, s86
        s_mul_i32 s92, s92, 7168
        s_add_u32 s92, s92, {Z2}
        v_add_u32 v240, 4096, v{vL16}""")
        def pl():
            P(f"""s_lshl_b32 s86, s90, 4
            s_lshl_b32 s87, s91, 4
            s_add_u32 s87, s87, 15
            v_add_u32 v16, s86, v0
            v_min_u32 v16, s87, v16
            v_lshlrev_b32 v16, 2, v16
            s_lshl_b32 s86, s{sX}, 10
            s_add_u32 s86, s86, {F3}""")
            self.poll(16, soff="s86")
        self.wave0(pl)
        P("s_waitcnt vmcnt(0)")
        self.barrier()
        self.stamp("sync3")
        def bload(ks):
            out = [f"s_add_u32 s60, s92, {ks*7168}"]
            for f in range(7):
                out.append(f"buffer_load_dwordx4 {vr(BB+28*(ks%3)+4*f,4)}, v{vL16 if f < 4 else 240}, {S(SWS)}, s60 offen offset:{(f%4)*1024} sc1")
            return out
        for ks in range(2): P.add(bload(ks))
        self.wave0(lambda: self.set_flag(1 << 25, not self.map84))
        P(f"""v_lshrrev_b32 v12, 3, v0
        v_lshl_add_u32 v241, v12, 10, v{vSW}
        s_lshl_b32 s95, s{self.T4}, 2
        s_add_u32 s95, s95, s{sW}
        s_lshl_b32 s88, s{sTB}, 2
        s_add_u32 s88, s88, s{sW}
        s_lshr_b32 s64, s{self.T4}, 1
        s_lshl_b32 s64, s64, 7
        s_add_u32 s64, s64, {F3B}
        v_add_u32 v243, s90, v0
        v_min_u32 v243, s91, v243
        v_lshlrev_b32 v243, 2, v243
        s_mul_i32 s65, s95, 56
        s_mul_i32 s87, s{self.F4}, 7
        s_add_u32 s65, s65, s87
        s_lshl_b32 s65, s65, 9
        s_add_u32 s65, s65, {Z1}
        v_lshlrev_b32 v242, 3, v0
        s_lshl_b32 s66, s95, 5
        v_lshlrev_b32 v252, 1, v{vI}
        s_lshl_b32 s67, s88, 4
        s_lshl_b32 s87, s{sFB}, 1
        s_add_u32 s67, s67, s87
        s_lshl_b32 s67, s67, 10
        s_add_u32 s67, s67, {H}
        s_mul_i32 s93, s88, {28*1024}
        s_add_u32 s93, s93, {U}
        s_mul_i32 s94, s95, 28
        s_mul_i32 s87, s{self.F4}, 7
        s_lshr_b32 s87, s87, 1
        s_add_u32 s94, s94, s87
        s_lshl_b32 s94, s94, 10
        s_add_u32 s94, s94, {U}""")
        for p in range(1, 4):
            P(f"s_add_u32 s86, s{sW}, {p}\ns_and_b32 s86, s86, 3\ns_mul_i32 s86, s86, 21504\ns_add_u32 s86, s86, {(p-1)*7168}")
            P(f"v_add_u32 v{12+p}, s86, v{vL16}")
        P(f"s_mul_i32 s86, s{sW}, 21504\nv_add_u32 v253, s86, v{vL16}")
        Z1R = BB + 84; BS = BB + 98; HR = 244
        fl = f"buffer_load_dword v254, v243, {S(SWS)}, s64 offen sc1"
        wt = []
        for k in self.KT: wt += self.wout(k, 241, "woutT")
        for ks in range(16):
            m = []
            if ks < 15: fp = [(f, p) for f in range(7) for p in range(4)]
            else: fp = [(f, p) for p in (1, 2, 3, 0) for f in range(7)]
            for f, p in fp:
                acc = vr(ACC + (p*7+f)*4, 4)
                m.append(f"{MF} {acc}, {vr(BB+28*(ks%3)+4*f,4)}, {ar((ks*4+p)*4,4)}, {acc if ks else '0'}")
            if ks in (1, 2, 4, 8, 12, 15): self.stamp(f"p4k{ks}", True)
            if ks <= 13:
                ld = bload(ks + 2) + ([fl] if ks == 11 else [])
                body = ld[:1] + interleave(m[:21], ld[1:], 3, 1)
                pre = self.p5_reads(self.KE[ks - 1]) if 1 <= ks <= 7 else []
                P.add(body + mix(m[21:], pre))
            elif ks == 14:
                self.check_retry(fl, f"v_cmp_ne_u32 vcc, s{sE}, v254")
                w = [f"buffer_load_dwordx2 {vr(Z1R+2*f,2)}, v242, {S(SWS)}, s65 offen offset:{f*512} sc1" for f in range(7)]
                w += [f"buffer_load_ushort v{BS}, v252, {S(SBSP)}, s66 offen"]
                P.add(mix(m, w))
            else:
                xw = [f"ds_write_b128 v{12+p}, {vr(ACC+(p*7+f)*4,4)} offset:{f*1024}" for p in range(1, 4) for f in range(7)]
                P.add(mix(m[:10], wt[:9]) + mix(m[10:], weave(xw[:16], wt[9:18])) + xw[16:])
        self.stamp("p4mm")
        ZF = BB; UO = BB + 48
        v = [f"v_lshlrev_b32 v{BS}, 16, v{BS}"]
        for f in range(7):
            for k in range(2):
                v += [f"v_lshlrev_b32 v{ZF+4*f+2*k}, 16, v{Z1R+2*f+k}", f"v_and_b32 v{ZF+4*f+2*k+1}, 0xffff0000, v{Z1R+2*f+k}",
                      f"v_pk_add_f32 {vr(ACC+4*f+2*k,2)}, {vr(ACC+4*f+2*k,2)}, {vr(BS,2)} op_sel_hi:[1,0]"]
        P.add(weave(v, wt[18:30]))
        self.barrier()
        RB = ACC + 28
        for f in range(7):
            for p in range(3): P(f"ds_read_b128 {vr(RB+(p*7+f)*4,4)}, v253 offset:{(p*7+f)*1024}")
        P.add(wt[30:])
        P(f"buffer_load_dwordx4 {vr(HR,4)}, v{vL16}, {S(SWS)}, s67 offen sc1\nbuffer_load_dwordx4 {vr(HR+4,4)}, v{vL16}, {S(SWS)}, s67 offen offset:1024 sc1")
        for f in range(7):
            for p in range(3):
                for k in range(2): P(f"v_pk_add_f32 {vr(ACC+4*f+2*k,2)}, {vr(ACC+4*f+2*k,2)}, {vr(RB+(p*7+f)*4+2*k,2)}")
            for k in range(2): P(f"v_pk_mul_f32 {vr(ACC+4*f+2*k,2)}, {vr(ACC+4*f+2*k,2)}, {vr(ZF+4*f+2*k,2)}")
            for k in range(2): P(f"v_cvt_pk_bf16_f32 v{UO+2*f+k}, v{ACC+4*f+2*k}, v{ACC+4*f+2*k+1}")
        Lo = P.lab("Lo"); Le = P.lab("Le")
        P(f"s_bitcmp1_b32 s{self.F4}, 0\ns_cbranch_scc1 {Lo}")
        P.cond_begin()
        self.local4([f"buffer_store_dwordx4 {vr(UO+4*k,4)}, v{vL16}, {S(SWS)}, s94 offen offset:{k*1024} @SC" for k in range(3)]
                   + [f"buffer_store_dwordx2 {vr(UO+12,2)}, v242, {S(SWS)}, s94 offen offset:3072 @SC"])
        P(f"s_branch {Le}")
        P.cond_end()
        P(f"{Lo}:")
        P.cond_begin()
        self.local4([f"buffer_store_dwordx2 {vr(UO,2)}, v242, {S(SWS)}, s94 offen offset:512 @SC"]
                   + [f"buffer_store_dwordx4 {vr(UO+2+4*k,4)}, v{vL16}, {S(SWS)}, s94 offen offset:{1024+k*1024} @SC" for k in range(3)])
        P.cond_end()
        P(f"{Le}:")
        P(f"""v_bfe_u32 v240, v0, 4, 1
        v_bfe_u32 v13, v0, 5, 1
        v_lshl_add_u32 v240, v240, 1, v13
        v_lshlrev_b32 v240, 4, v240
        v_lshl_add_u32 v240, v{vI}, 10, v240
        s_lshl_b32 s92, s88, 14
        s_lshl_b32 s87, s{sFB}, 7
        s_add_u32 s92, s92, s87
        s_lshl_b32 s66, s{sTB}, 7
        s_add_u32 s66, s66, {F4}
        v_and_b32 v243, 7, v0
        v_lshlrev_b32 v243, 2, v243""")
        P("s_waitcnt vmcnt(0)")
        self.barrier()
        self.wave0(lambda: self.set_flag(1 << 26, not self.map84))
        self.stamp("F4")

    def phase5(self):
        P = self.P
        UF = 16; ACC = 128; HR = 244
        order = self.order5
        late = []
        for k in self.KL: late += self.wout(k, 241, "woutL")
        lm = self.opt.get("late", 0)
        if lm == 0: P.add(late)
        for kk in order[7:16]: P.add(self.p5_reads(kk))
        for f in range(4):
            for k in range(2):
                P(f"v_lshlrev_b32 v{ACC+4*f+2*k}, 16, v{HR+2*f+k}\nv_and_b32 v{ACC+4*f+2*k+1}, 0xffff0000, v{HR+2*f+k}")
        self.wave0(lambda: self.poll(243, soff="s66"))
        P("s_barrier")
        self.stamp("sync4")
        def ul(kk):
            o = [f"s_add_u32 s60, s93, {(kk//4)*4096}"]
            if kk % 7 == 3: return o + [f"buffer_load_dwordx2 {vr(UF+4*kk+2*h,2)}, v242, {S(SWS)}, s60 offen offset:{(kk%4)*1024 + h*512} sc1" for h in range(2)]
            return o + [f"buffer_load_dwordx4 {vr(UF+4*kk,4)}, v{vL16}, {S(SWS)}, s60 offen offset:{(kk%4)*1024} sc1"]
        UD = self.opt.get("UD", 10)
        for i in range(UD): P.add(ul(order[i]))
        if lm == 1: P.add(late)
        for i, kk in enumerate(order):
            m = []
            for f in range(4):
                k, r = self.p5_breg(kk, f); acc = vr(ACC+4*f, 4)
                m.append(f"{MF} {acc}, {ar(r,4)}, {vr(UF+4*kk,4)}, {acc}")
            fl = ul(order[i + UD]) if i + UD < 28 else []
            j = i + 8
            if j == 19: P.wait_tag("woutL"); P("s_barrier")
            if 16 <= j < 28: fl = fl + self.p5_reads(order[j])
            P.add(mix(m, fl))
        OO = 160
        for c in range(2):
            for f in (2*c, 2*c+1):
                for k in range(2): P(f"v_cvt_pk_bf16_f32 v{OO+2*f+k}, v{ACC+4*f+2*k}, v{ACC+4*f+2*k+1}")
        for c in range(2):
            for k in range(2): P(f"v_permlane16_swap_b32 v{OO+4*c+k}, v{OO+4*c+2+k}")
            P(f"buffer_store_dwordx4 {vr(OO+4*c,4)}, v240, {S(SOUT)}, s92 offen offset:{c*64}")
        Lb = P.lab("Lz")
        P(f"s_or_b32 s86, s2, s{sW}\ns_cmp_lg_u32 s86, 0\ns_cbranch_scc1 {Lb}\nv_mov_b32 v5, s{sE}\ns_mov_b32 s86, {EPOCH}\ns_mov_b64 exec, 1\nbuffer_store_dword v5, off, {S(SWS)}, s86 sc1\ns_mov_b64 exec, -1\n{Lb}:")
        self.stamp("end")

    def build(self):
        P = self.P
        self.prologue()
        for k, ph in enumerate([self.phase1, self.phase2, self.phase3, self.phase4, self.phase5]):
            if k < self.stop: ph()
        if self.stamps:
            P("s_memtime s[98:99]\nv_writelane_b32 v7, s98, 63")
            P(f"""v_writelane_b32 v7, s{sM}, 61
            s_lshl_b32 s86, s2, 10
            s_lshl_b32 s87, s{sW}, 8
            s_add_u32 s86, s86, s87
            s_add_u32 s86, s86, {STAMP}
            v_lshlrev_b32 v12, 2, v0
            buffer_store_dword v7, v12, {S(SWS)}, s86 offen""")
        P("L_end:\ns_endpgm")
        A = Asm()
        A.begin_kernel(NAME, 256, 256, 163840)
        A.lines += P.finalize()
        A.end_kernel(NAME, 256, 256)
        return A

HEADER = open("sequential_preLN__linear_attn_block__mixer_gmlp__prompt.s.ref").read().split("; Override")[0]
def generate(path, plain=False, **kw):
    g = G(**kw); A = g.build()
    t = A.text(HEADER)
    if plain: t = t.replace(f"; @launch kernel={NAME} grid", "; @launch grid")
    open(path, "w").write(t)
    return g.names
if __name__ == "__main__":
    import argparse
    ap = argparse.ArgumentParser(); ap.add_argument("out"); ap.add_argument("--stop", type=int, default=99); ap.add_argument("--stamps", action="store_true"); ap.add_argument("--opt", default="{}")
    a = ap.parse_args()
    generate(a.out, plain=True, stop=a.stop, stamps=a.stamps, opt=eval(a.opt))
```

```python
import sys, struct
sys.path.insert(0, "gen")
from asmlib import Asm, vr, ar, sr
from emit import Prog, spread, interleave

NAME = "sequential_preLN__linear_attn_block__mixer_gmlp__prompt_kernel"
def f2u(x): return struct.unpack("<I", struct.pack("<f", x))[0]

F1, F2, F3, F3B, F4, F1B = 0x0, 0x2000, 0x2800, 0x4800, 0x5000, 0x6000
EPOCH = 0x9000; KZ = 0x9080; XID = 0x9100
KV = 0xA000; KVS = 1152
STAMP = 0x80000
HST = 0xC0000
PQ, H, Z2, Z1, U, STATS = 0x100000, 0x300000, 0x500000, 0x900000, 0xD00000, 0x1100000
WS_BYTES = 0x1200000
R1 = 8
SX, SWQKV, SWO, SWIN, SWSP, SBSP, SWOUT, SOUT, SWS = 8, 12, 16, 20, 24, 28, 32, 36, 40
def S(d): return f"s[{d}:{d+3}]"
sTB, sE, sFB, sM, sXCC = 3, 4, 5, 6, 7
sX, sJ, sW, sSPIN = 48, 49, 50, 51
sLOG2E, sEPS6, sK2, sONE = 52, 54, 56, 58
sA8, sA4 = 62, 63
sRB, sCBK = 100, 101
sT4, sF4 = 88, 89
vL16, vI, vG, vFLAG, vSW = 1, 2, 3, 4, 6
vT = [8, 9, 10, 11]
SPIN_MAX = 1 << 16
MF = "v_mfma_f32_16x16x32_bf16"
K1C = -2.302208198
WT, WD = Prog.WT, Prog.WD
NOPIF = ("NOPIF",)

def L(s): return [x.strip() for x in s.split("\n") if x.strip()]
def mix(m, f, lead=0):
    if not m: return list(f)
    return m[:lead] + spread(m[lead:], f)
def weave(a, b, g=3):
    groups = [b[i:i+g] for i in range(0, len(b), g)]
    if not groups: return list(a)
    out = []; n = len(groups); ai = 0
    for k, grp in enumerate(groups):
        tgt = (k * len(a) + len(a) // 2) // n if len(a) else 0
        out += a[ai:tgt]; ai = max(ai, tgt); out += grp
    return out + a[ai:]
def zipped(lists):
    out = []; n = max(len(l) for l in lists)
    for k in range(n):
        for l in lists:
            if k < len(l): out.append(l[k])
    return out

class G:
    def __init__(self, stop=99, stamps=False, opt=None):
        self.P = Prog(); self.stop = stop; self.stamps = stamps; self.nst = 0; self.names = []
        self.opt = opt or {}
        self.map84 = self.opt.get("map84", 1)
        self.T4 = sA8 if self.map84 else sTB; self.F4 = sA4 if self.map84 else sFB
    def stamp(self, name, fine=False):
        if self.stamps and (not fine or self.opt.get("fine")):
            k = self.nst; self.nst += 1; self.names.append(name)
            self.P(f"{'s_memtime' if self.opt.get('cyc') else 's_memrealtime'} s[98:99]\nv_writelane_b32 v7, s98, {k}")
    def dmai(self, voff, srd, soff, tag):
        nt = " nt" if (self.opt.get("nt", 0) >> {SX: 0, SWQKV: 1, SWO: 2, SWIN: 3, SWSP: 4, SWOUT: 5}[srd]) & 1 else ""
        return ("T", f"buffer_load_dwordx4 v{voff}, {S(srd)}, s{soff} offen{nt} lds", tag)
    def srds(self, lst):
        for d, p, n in lst:
            self.P(f"s_mov_b32 s{d}, s{p}\ns_and_b32 s{d+1}, s{p+1}, 0xffff\ns_mov_b32 s{d+2}, {n}\ns_mov_b32 s{d+3}, 0x20000")
    def set_flag(self, mask, local=False):
        P = self.P
        P(f"s_mov_b64 exec, {mask:#x}\nv_mov_b32 v5, s{sE}")
        if local: self.local([f"buffer_store_dword v5, v{vFLAG}, {S(SWS)}, 0 offen @SC"], flag=True)
        else: P(f"buffer_store_dword v5, v{vFLAG}, {S(SWS)}, 0 offen sc1")
        P("s_mov_b64 exec, -1")
    def local(self, items, tag=None, flag=False):
        P = self.P
        dm = self.opt.get("dmode", 0)
        if not flag and dm == 0:
            for x in items: P(x.replace(" @SC", " sc1"), tag)
            return
        P.alt_begin(sM, "" if flag or dm == 1 else {2: " nt", 3: " sc0"}[dm])
        for x in items: P(x, tag)
        P.alt_end()
    def local4(self, items, tag=None):
        if self.map84:
            for x in items: self.P(x.replace(" @SC", " sc1"), tag)
        else: self.local(items, tag)
    def wave(self, w, fn):
        P = self.P; Lb = P.lab("Lw")
        P(f"s_cmp_lg_u32 s{sW}, {w}\ns_cbranch_scc1 {Lb}")
        P.cond_begin(); fn(); P.cond_end()
        P(f"{Lb}:")
    def wave0(self, fn): self.wave(0, fn)
    def spin_tail(self, Lb, E):
        self.P(f"s_add_u32 s{sSPIN}, s{sSPIN}, 1\ns_cbranch_vccz {E}\ns_cmp_lt_u32 s{sSPIN}, {SPIN_MAX}\ns_cbranch_scc1 {Lb}")
    def poll(self, vaddr, x4=False, soff="0"):
        P = self.P; Lb = P.lab("Lp"); E = P.lab("Le")
        P(f"s_mov_b32 s{sSPIN}, 0\n{Lb}:")
        if x4:
            P(f"buffer_load_dwordx4 v[12:15], v{vaddr}, {S(SWS)}, {soff} offen sc1\ns_waitcnt vmcnt(0)")
            P("\n".join(f"v_xor_b32 v{r}, s{sE}, v{r}" for r in range(12, 16)) + "\nv_or3_b32 v12, v12, v13, v14\nv_or_b32 v12, v12, v15\nv_cmp_ne_u32 vcc, 0, v12")
        else:
            P(f"buffer_load_dword v12, v{vaddr}, {S(SWS)}, {soff} offen sc1\ns_waitcnt vmcnt(0)\nv_cmp_ne_u32 vcc, s{sE}, v12")
        self.spin_tail(Lb, E); P(f"{E}:")
    def check_retry(self, load, cmp):
        P = self.P; Lb = P.lab("Lk"); E = P.lab("Le")
        P(f"s_mov_b32 s{sSPIN}, 0\n{cmp}\ns_cbranch_vccz {E}")
        P.cond_begin()
        P(f"{Lb}:\n{load}\ns_waitcnt vmcnt(0)\n{cmp}")
        self.spin_tail(Lb, E)
        P.cond_end(); P(f"{E}:")
    def barrier(self):
        self.P.wait_ds(); self.P("s_barrier")
    def xreduce(self, regs, tmp, ops=("v_permlane32_swap_b32", "v_permlane16_swap_b32")):
        P = self.P
        for op in ops:
            for k, r in enumerate(regs): P(f"v_mov_b32 v{tmp+k}, v{r}")
            for k, r in enumerate(regs): P(f"{op} v{tmp+k}, v{r}")
            for k, r in enumerate(regs): P(f"v_add_f32 v{r}, v{r}, v{tmp+k}")
    def finstats(self, sums, n, outA, outB):
        ls = []
        for k, (s, q) in enumerate(sums):
            ls.append([f"v_mul_f32 v{s}, {f2u(-1.0/n):#x}, v{s}", f"v_mul_f32 v{q}, {f2u(1.0/n):#x}, v{q}",
                       f"v_fma_f32 v{q}, -v{s}, v{s}, v{q}", f"v_max_f32 v{q}, 0, v{q}", f"v_add_f32 v{q}, {f2u(1e-5):#x}, v{q}",
                       f"v_rsq_f32 v{outA[k]}, v{q}", f"v_mul_f32 v{outB[k]}, v{s}, v{outA[k]}"])
        self.P.add(zipped(ls))
    def phi_pair(self, x, t, out):
        return [f"v_pk_mul_f32 {vr(t,2)}, {vr(x,2)}, s[{sLOG2E}:{sLOG2E+1}]",
                f"v_max_f32 v{x}, 0, v{x}", f"v_max_f32 v{x+1}, 0, v{x+1}",
                f"v_min_f32 v{t}, 0, v{t}", f"v_min_f32 v{t+1}, 0, v{t+1}",
                f"v_exp_f32 v{t}, v{t}", f"v_exp_f32 v{t+1}, v{t+1}",
                f"v_pk_add_f32 {vr(x,2)}, {vr(x,2)}, s[{sEPS6}:{sEPS6+1}]",
                f"v_pk_add_f32 {vr(x,2)}, {vr(x,2)}, {vr(t,2)}",
                f"v_cvt_pk_bf16_f32 v{out}, v{x}, v{x+1}"]
    def gelu_pair(self, x, t, k1):
        return [f"v_pk_mul_f32 {vr(t,2)}, {vr(x,2)}, {vr(x,2)}",
                f"v_pk_fma_f32 {vr(t,2)}, {vr(t,2)}, s[{sK2}:{sK2+1}], {vr(k1,2)}",
                f"v_pk_mul_f32 {vr(t,2)}, {vr(t,2)}, {vr(x,2)}",
                f"v_exp_f32 v{t}, v{t}", f"v_exp_f32 v{t+1}, v{t+1}",
                f"v_pk_add_f32 {vr(t,2)}, {vr(t,2)}, s[{sONE}:{sONE+1}]",
                f"v_rcp_f32 v{t}, v{t}", f"v_rcp_f32 v{t+1}, v{t+1}",
                f"v_pk_mul_f32 {vr(x,2)}, {vr(x,2)}, {vr(t,2)}"]
    @staticmethod
    def bc(r): return vr(r & ~1, 2), r & 1
    def affine_pair(self, x, t, A, B, cs, a_bc):
        if a_bc:
            bn, bb = self.bc(B); an, ab = self.bc(A)
            return [f"v_pk_mul_f32 {vr(t,2)}, {vr(cs,2)}, {bn} op_sel:[0,{bb}] op_sel_hi:[1,{bb}]",
                    f"v_pk_fma_f32 {vr(x,2)}, {vr(x,2)}, {an}, {vr(t,2)} op_sel:[0,{ab},0] op_sel_hi:[1,{ab},1]"]
        cn, cb = self.bc(cs)
        return [f"v_pk_mul_f32 {vr(t,2)}, {vr(B,2)}, {cn} op_sel:[0,{cb}] op_sel_hi:[1,{cb}]",
                f"v_pk_fma_f32 {vr(x,2)}, {vr(x,2)}, {vr(A,2)}, {vr(t,2)}"]

    def prologue(self):
        P = self.P
        P(f"""
        s_cmp_ge_u32 s2, 256
        s_cbranch_scc1 L_end
        s_load_dwordx4 s[64:67], s[0:1], 0
        s_load_dwordx2 s[84:85], s[0:1], 80
        s_load_dwordx2 s[68:69], s[0:1], 16
        s_load_dwordx8 s[72:79], s[0:1], 32
        s_load_dwordx2 s[80:81], s[0:1], 64
        v_lshrrev_b32 v1, 6, v0
        v_and_b32 v0, 63, v0
        v_readfirstlane_b32 s{sW}, v1
        s_and_b32 s{sX}, s2, 7
        s_lshr_b32 s{sJ}, s2, 3
        v_lshrrev_b32 v{vG}, 4, v0
        s_lshr_b32 s{sA8}, s{sX}, 1
        s_lshl_b32 s{sA8}, s{sA8}, 3
        s_lshr_b32 s86, s{sJ}, 2
        s_add_u32 s{sA8}, s{sA8}, s86
        s_and_b32 s{sA4}, s{sX}, 1
        s_lshl_b32 s{sA4}, s{sA4}, 2
        {f's_xor_b32 s86, s86, s{sJ}' if self.opt.get('hx') else f's_mov_b32 s86, s{sJ}'}
        s_and_b32 s86, s86, 3
        s_add_u32 s{sA4}, s{sA4}, s86
        """)
        if self.stamps: P("v_mov_b32 v7, 0\ns_memtime s[98:99]\nv_writelane_b32 v7, s98, 62")
        self.stamp("start")

    def late_setup(self):
        P = self.P
        self.srds([(SWS, 84, WS_BYTES)])
        P(f"s_mov_b32 s86, {EPOCH}\nbuffer_load_dword v225, off, {S(SWS)}, s86 sc1")
        self.srds([(SWO, 68, 524288), (SWIN, 72, 1835008), (SWSP, 74, 8388608), (SBSP, 76, 4096), (SWOUT, 78, 917504), (SOUT, 80, 2097152)])
        P(f"""
        v_lshlrev_b32 v{vL16}, 4, v0
        v_and_b32 v{vI}, 15, v0
        s_getreg_b32 s{sXCC}, hwreg(HW_REG_XCC_ID, 0, 4)
        s_lshr_b32 s{sRB}, s{sJ}, 4
        s_lshl_b32 s86, s{sX}, 1
        s_add_u32 s{sRB}, s{sRB}, s86
        s_and_b32 s{sCBK}, s{sJ}, 15
        s_lshr_b32 s{sTB}, s{sJ}, 3
        s_lshl_b32 s86, s{sX}, 2
        s_add_u32 s{sTB}, s{sTB}, s86
        s_and_b32 s{sFB}, s{sJ}, 7
        s_lshl_b32 s86, s2, 2
        v_lshl_add_u32 v{vFLAG}, v0, 10, s86
        s_lshl_b32 s86, s{sCBK}, 4
        s_add_u32 s86, s86, s{sRB}
        s_lshl_b32 s86, s86, 2
        s_add_u32 s86, s86, {(F3 - 17*1024) & 0xffffffff}
        v_lshl_add_u32 v5, v0, 10, s86
        v_cmp_lt_u32 vcc, 16, v0
        v_cndmask_b32 v{vFLAG}, v{vFLAG}, v5, vcc
        s_lshl_b32 s86, s{sRB}, 7
        s_lshl_b32 s87, s{sCBK}, 2
        s_add_u32 s86, s86, s87
        s_add_u32 s87, s86, {F2}
        v_writelane_b32 v{vFLAG}, s87, 16
        s_add_u32 s87, s86, {F3B}
        v_writelane_b32 v{vFLAG}, s87, 25
        s_lshl_b32 s86, s{sA8 if self.map84 else sTB}, 7
        s_lshl_b32 s87, s{sA4 if self.map84 else sFB}, 2
        s_add_u32 s86, s86, s87
        s_add_u32 s87, s86, {F4}
        v_writelane_b32 v{vFLAG}, s87, 26
        s_lshl_b32 s86, s{sA8}, 7
        s_lshl_b32 s87, s{sA4}, 2
        s_add_u32 s86, s86, s87
        s_add_u32 s87, s86, {F1B}
        v_writelane_b32 v{vFLAG}, s87, 27
        s_mov_b32 s{sLOG2E}, {f2u(1.4426950408889634):#x}
        s_mov_b32 s{sLOG2E+1}, {f2u(1.4426950408889634):#x}
        s_mov_b32 s{sEPS6}, {f2u(1e-6):#x}
        s_mov_b32 s{sEPS6+1}, {f2u(1e-6):#x}
        s_mov_b32 s{sK2}, {f2u(K1C*0.044715):#x}
        s_mov_b32 s{sK2+1}, {f2u(K1C*0.044715):#x}
        s_mov_b32 s{sONE}, 1.0
        s_mov_b32 s{sONE+1}, 1.0
        """)

    def phase1(self):
        P = self.P
        SCR = 147456
        vX = [216, 217]; vWd = [218, 219]; vA = [220, 221]; vO = [222, 223]; vB = 224
        OWN = 16; BK = 24; BV = 32; ONES = 40; ACK = 48; ACV = 64; CSK = 80; CSV = 84; DS = 88; DQ = 92
        ACQ = 96; CSQ = 112; ST = 120; STQ = 152
        P(f"""
        s_lshl_b32 s88, s{sA8}, 16
        s_lshl_b32 s87, s{sW}, 14
        s_add_u32 s88, s88, s87
        s_lshl_b32 s90, s{sA4}, 7
        s_mul_i32 s87, s{sW}, {16*3072}
        s_add_u32 s90, s90, s87
        s_lshl_b32 s91, s{sW}, 11
        v_lshrrev_b32 v5, 3, v0
        v_and_b32 v6, 7, v0
        v_xor_b32 v12, v6, v{vG}
        v_lshlrev_b32 v12, 4, v12
        v_lshl_add_u32 v{vX[0]}, v5, 10, v12
        v_xor_b32 v{vX[1]}, 64, v{vX[0]}
        v_add_u32 v{vX[1]}, 8192, v{vX[1]}
        v_and_b32 v12, 2, v5
        v_xor_b32 v12, v6, v12
        v_lshlrev_b32 v12, 4, v12
        v_mul_u32_u24 v13, 3072, v5
        v_add_u32 v{vWd[0]}, v13, v12
        v_xor_b32 v{vWd[1]}, 64, v{vWd[0]}
        v_add_u32 v{vWd[1]}, {8*3072}, v{vWd[1]}
        s_waitcnt lgkmcnt(0)
        """)
        self.srds([(SX, 64, 2097152), (SWQKV, 66, 1572864)])
        def issue_stage(s):
            slot = (s % 6) * 24576; out = []
            if s < 8:
                parts = [(0, SX, vX, 88, s * 128), (8192, SWQKV, vWd, 90, s * 64 * 3072 + 1024), (16384, SWQKV, vWd, 90, s * 64 * 3072 + 2048)]
            else:
                parts = [(8192 * k, SWQKV, vWd, 90, c * 64 * 3072) for k, c in enumerate(range(3 * (s - 8), min(8, 3 * (s - 8) + 3)))]
            for lo, srd, vo, sb, so in parts:
                out.append([f"s_add_u32 m0, s91, {slot + lo}", f"s_add_u32 s60, s{sb}, {so}", self.dmai(vo[0], srd, 60, f"st{s}")])
                out.append([f"s_add_u32 m0, s91, {slot + lo + 1024}", self.dmai(vo[1], srd, 60, f"st{s}")])
            return out
        if self.opt.get("rot1", 0):
            P(f"s_lshr_b32 s92, s{sJ}, 2" if self.opt["rot1"] == 1 else f"s_lshr_b32 s92, s{sJ}, 2\ns_and_b32 s92, s92, 6")
            def issue_stage(s):
                slot = (s % 6) * 24576; out = []
                def two(lo, srd, vo, pre):
                    out.append([f"s_add_u32 m0, s91, {slot + lo}"] + pre + [self.dmai(vo[0], srd, 60, f"st{s}")])
                    out.append([f"s_add_u32 m0, s91, {slot + lo + 1024}", self.dmai(vo[1], srd, 60, f"st{s}")])
                if s < 8:
                    two(0, SX, vX, [f"s_add_u32 s61, s92, {s}", "s_and_b32 s61, s61, 7", "s_lshl_b32 s60, s61, 7", "s_add_u32 s60, s60, s88"])
                    two(8192, SWQKV, vWd, [f"s_mul_i32 s61, s61, {64*3072}", "s_add_u32 s61, s61, s90", "s_add_u32 s60, s61, 1024"])
                    two(16384, SWQKV, vWd, ["s_add_u32 s60, s61, 2048"])
                else:
                    for k, c in enumerate(range(3 * (s - 8), min(8, 3 * (s - 8) + 3))):
                        two(8192 * k, SWQKV, vWd, [f"s_add_u32 s61, s92, {c}", "s_and_b32 s61, s61, 7", f"s_mul_i32 s61, s61, {64*3072}", "s_add_u32 s60, s61, s90"])
                return out
        flat = lambda g: [x for y in g for x in y]
        D = self.opt.get("D", 3)
        for s in range(2): P.add(flat(issue_stage(s)))
        if self.opt.get("coop", 2) == 2:
            P("v_lshlrev_b32 v12, 7, v0")
            self.wave(1, lambda: P(f"s_lshl_b32 s86, s2, 13\ns_mov_b32 exec_lo, 0xfcfcfcfc\ns_mov_b32 exec_hi, 0xfcfcfcfc\nbuffer_load_dword v235, v12, {S(SX)}, s86 offen\ns_mov_b64 exec, -1"))
            self.wave(2, lambda: P(f"s_mul_i32 s86, s2, {36*128}\ns_add_u32 s86, s86, {3072*128}\ns_mov_b32 exec_hi, 15\nbuffer_load_dword v236, v12, {S(SWQKV)}, s86 offen\ns_mov_b64 exec, -1"))
        def w0():
            P(f"""s_getpc_b64 s[86:87]
            L_pc:
            s_and_b32 s93, s{sJ}, 7
            s_lshl_b32 s93, s93, 13
            v_lshl_add_u32 v231, v0, 7, s93
            v_min_u32 v231, L_end-L_pc, v231
            global_load_dword v239, v231, s[86:87]""")
        self.wave(0, w0)
        self.late_setup()
        P(f"""s_lshl_b32 s93, s{sA4}, 2
        s_add_u32 s93, s93, s{sW}
        s_mul_i32 s94, s93, {KVS}
        s_add_u32 s94, s94, {KV}
        s_lshl_b32 s95, s{sA4}, 2
        s_add_u32 s95, s95, {KZ}""")
        Lb = P.lab("Lz")
        P(f"s_cmp_lg_u32 s{sA8}, 0\ns_cbranch_scc1 {Lb}"); P.cond_begin()
        P(f"""v_mov_b32 v12, 0
        v_mov_b32 v13, 0
        v_mov_b32 v14, 0
        v_mov_b32 v15, 0
        buffer_store_dwordx4 v[12:15], v{vL16}, {S(SWS)}, s94 offen sc1
        s_mov_b64 exec, 0xff
        buffer_store_dwordx4 v[12:15], v{vL16}, {S(SWS)}, s94 offen offset:1024 sc1
        s_mov_b64 exec, -1""")
        P.cond_end(); P(f"{Lb}:")
        self.wave(3, lambda: P(f"""s_lshl_b32 s86, s{sX}, 7
            s_lshl_b32 s87, s{sJ}, 2
            s_add_u32 s86, s86, s87
            s_add_u32 s86, s86, {XID}
            v_mov_b32 v5, s{sXCC}
            s_mov_b64 exec, 1
            buffer_store_dword v5, off, {S(SWS)}, s86 sc1
            s_mov_b64 exec, -1"""))
        def mallpf():
            P("v_lshlrev_b32 v226, 7, v0")
            def pf(srd, per, d):
                return lambda: P(f"s_mul_i32 s86, s2, {per*128}\ns_mov_b64 exec, {(1<<per)-1 if per < 32 else -1}" + (f"\ns_mov_b32 exec_hi, {(1<<(per-32))-1:#x}" if per > 32 else "")
                                 + f"\nbuffer_load_dword v{d}, v226, {S(srd)}, s86 offen\ns_mov_b64 exec, -1")
            self.wave(1, pf(SWO, 16, 232)); self.wave(2, pf(SWIN, 56, 233)); self.wave(3, pf(SWOUT, 28, 234))
        for s in range(2, D): P.add(flat(issue_stage(s)))
        P(f"""
        v_lshrrev_b32 v12, 1, v{vI}
        v_xor_b32 v12, v12, v{vG}
        v_lshlrev_b32 v12, 4, v12
        v_lshl_add_u32 v{vA[0]}, v{vI}, 7, v12
        v_xor_b32 v{vA[1]}, 64, v{vA[0]}
        v_add_u32 v{vO[0]}, s91, v{vA[0]}
        v_add_u32 v{vO[1]}, s91, v{vA[1]}
        v_lshrrev_b32 v12, 2, v{vI}
        v_lshl_add_u32 v13, v{vG}, 3, v12
        v_and_b32 v14, 2, v12
        v_and_b32 v15, 1, v{vG}
        v_lshl_or_b32 v14, v15, 2, v14
        v_bfe_u32 v15, v0, 1, 1
        s_lshl_b32 s86, s{sW}, 1
        v_add_u32 v15, s86, v15
        v_xor_b32 v14, v14, v15
        v_lshlrev_b32 v14, 4, v14
        v_lshl_add_u32 v14, v13, 7, v14
        v_and_b32 v15, 1, v0
        v_lshl_add_u32 v{vB}, v15, 3, v14
        """)
        for k in range(4): P(f"v_mov_b32 v{ONES+k}, 0x3f803f80")
        P(f"""s_lshl_b32 s86, s{sW}, 6
        s_add_u32 s86, s86, {SCR}
        v_lshl_add_u32 v212, v{vI}, 2, s86
        v_lshlrev_b32 v213, 4, v{vG}
        v_add_u32 v213, {SCR}, v213
        v_lshlrev_b32 v214, 2, v{vI}
        v_add_u32 v214, {SCR}, v214
        s_add_u32 s86, s91, {SCR + 1024}
        v_add_u32 v227, s86, v{vL16}
        v_lshl_add_u32 v228, v{vG}, 4, s86
        v_lshl_add_u32 v229, v0, 2, s86
        v_lshlrev_b32 v215, 2, v0
        v_and_b32 v12, 3, v0
        v_cmp_eq_u32 s[44:45], 1, v12
        v_cmp_eq_u32 s[46:47], 2, v12
        v_cmp_eq_u32 s[82:83], 3, v12""")
        cur = [0]
        def setbase(slot, regs):
            want = (slot // 2) * 49152; out = []
            if want != cur[0]:
                out = [f"v_add_u32 v{r}, {want - cur[0]}, v{r}" if want > cur[0] else f"v_subrev_u32 v{r}, {cur[0] - want}, v{r}" for r in regs]
                cur[0] = want
            return (slot % 2) * 24576, out
        def reads(ks, so):
            t = ks & 1; out = []
            for base, lo in ((BK, 8192), (BV, 16384)):
                for h in range(2): out.append(f"ds_read_b64_tr_b16 {vr(base+4*t+2*h,2)}, v{vB} offset:{so + lo + t*4096 + h*512}")
            for rf in range(4): out.append(f"ds_read_b128 {ar((ks*4+rf)*4,4)}, v{vA[t]} offset:{so + rf*2048}")
            out.append(f"ds_read_b128 {vr(OWN+4*t,4)}, v{vO[t]} offset:{so}")
            return out
        def mfmas(ks):
            t = ks & 1; m = []
            c = lambda r: vr(r, 4) if ks else "0"
            m.append(f"{MF} {vr(DS,4)}, {vr(OWN+4*t,4)}, {vr(ONES,4)}, {c(DS)}")
            m.append(f"{MF} {vr(DQ,4)}, {vr(OWN+4*t,4)}, {vr(OWN+4*t,4)}, {c(DQ)}")
            m.append(f"{MF} {vr(CSK,4)}, {vr(ONES,4)}, {vr(BK+4*t,4)}, {c(CSK)}")
            m.append(f"{MF} {vr(CSV,4)}, {vr(ONES,4)}, {vr(BV+4*t,4)}, {c(CSV)}")
            for rf in range(4):
                for base, acc in ((BK, ACK), (BV, ACV)):
                    m.append(f"{MF} {vr(acc+4*rf,4)}, {ar((ks*4+rf)*4,4)}, {vr(base+4*t,4)}, {c(acc+4*rf)}")
            return m
        def lay(m, r, g):
            if not m: return r + flat(g)
            g = g + [[]] * (3 - len(g))
            return mix(m[:4], r[:5] + g[0]) + mix(m[4:7], r[5:]) + mix(m[7:9], g[1]) + m[9:10] + mix(m[10:], g[2])
        for s in range(8):
            P.wait_tag(f"st{s}"); self.barrier()
            if s == 0: self.stamp("st0")
            if s == 2:
                P(f"v_readfirstlane_b32 s{sE}, v225\ns_add_u32 s{sE}, s{sE}, 1")
                Lb = P.lab("Lz")
                P(f"s_or_b32 s86, s{sA8}, s{sW}\ns_cmp_lg_u32 s86, 0\ns_cbranch_scc1 {Lb}"); P.cond_begin()
                P(f"v_mov_b32 v5, s{sE}\ns_mov_b64 exec, 1\nbuffer_store_dword v5, off, {S(SWS)}, s95 sc1\ns_mov_b64 exec, -1")
                P.cond_end(); P(f"{Lb}:")
            so, adj = setbase(s % 6, vA + vO + [vB])
            iss = issue_stage(s + D) if s + D <= 10 else []
            if s == 6: P(f"buffer_load_dword v230, off, {S(SWS)}, s95 sc1")
            if s == 5 and self.opt.get("mall", 1): mallpf()
            h = len(iss) // 2
            P.add(adj + lay(mfmas(2*s - 1) if s else [], reads(2*s, so), iss[:h]))
            P.wait_ds()
            P.add(lay(mfmas(2*s), reads(2*s + 1, so), iss[h:]))
        for s in range(8 + D, 11): P.add(flat(issue_stage(s)))
        m = mfmas(15)
        sel = []
        for k, sm in ((1, 44), (2, 46), (3, 82)):
            sel += [f"v_cndmask_b32 v{DS}, v{DS}, v{DS+k}, s[{sm}:{sm+1}]", f"v_cndmask_b32 v{DQ}, v{DQ}, v{DQ+k}, s[{sm}:{sm+1}]"]
        fin = [f"v_mul_f32 v{DS}, {f2u(-1.0/512):#x}, v{DS}", f"v_mul_f32 v{DQ}, {f2u(1.0/512):#x}, v{DQ}", f"v_fma_f32 v{DQ}, -v{DS}, v{DS}, v{DQ}",
               f"v_max_f32 v{DQ}, 0, v{DQ}", f"v_add_f32 v{DQ}, {f2u(1e-5):#x}, v{DQ}", f"v_rsq_f32 v{DS+1}, v{DQ}"]
        P.add(m[:6] + mix(m[6:], sel + fin))
        P(f"""v_mul_f32 v{DS+2}, v{DS}, v{DS+1}
        s_mov_b32 exec_lo, 0x00f0000f
        s_mov_b32 exec_hi, 0xf0000f00
        ds_write_b32 v212, v{DS+1}
        ds_write_b32 v212, v{DS+2} offset:256
        s_mov_b64 exec, -1""")
        self.stamp("p1gemm")
        self.barrier()
        for rf in range(4):
            P(f"ds_read_b128 {vr(ST+8*rf,4)}, v213 offset:{rf*64}\nds_read_b128 {vr(ST+8*rf+4,4)}, v213 offset:{256+rf*64}")
        for rf in range(4):
            P(f"ds_read_b32 v{STQ+2*rf}, v214 offset:{rf*64}\nds_read_b32 v{STQ+2*rf+1}, v214 offset:{256+rf*64}")
        PK = 160; PV = 168; TT = 176; KVD = 184; ZD = 188
        for rf in range(4):
            ls = []
            for hp in range(2):
                x = ACK + 4*rf + 2*hp; t = TT + 2*hp
                ls.append(self.affine_pair(x, t, ST+8*rf+2*hp, ST+8*rf+4+2*hp, CSK, False) + self.phi_pair(x, t, PK + 2*rf + hp))
                x = ACV + 4*rf + 2*hp; t = TT + 4 + 2*hp
                ls.append(self.affine_pair(x, t, ST+8*rf+2*hp, ST+8*rf+4+2*hp, CSV, False) + [f"v_cvt_pk_bf16_f32 v{PV+2*rf+hp}, v{x}, v{x+1}"])
            P.add(zipped(ls))
        p2a, p2b = self.p2_setup()
        P(f"""{MF} {vr(KVD,4)}, {vr(PK,4)}, {vr(PV,4)}, 0
        {MF} {vr(ZD,4)}, {vr(PK,4)}, {vr(ONES,4)}, 0
        {MF} {vr(KVD,4)}, {vr(PK+4,4)}, {vr(PV+4,4)}, {vr(KVD,4)}
        {MF} {vr(ZD,4)}, {vr(PK+4,4)}, {vr(ONES,4)}, {vr(ZD,4)}""")
        P.add(p2a[:8])
        P(f"ds_write_b128 v227, {vr(KVD,4)}\nds_write_b128 v228, {vr(ZD,4)} offset:1024")
        P.add(p2a[8:])
        P.wait_ds()
        for t in range(5): P(f"ds_read_b32 v{192+t}, v229 offset:{t*256}")
        self.check_retry(f"buffer_load_dword v230, off, {S(SWS)}, s95 sc1", f"v_cmp_ne_u32 vcc, s{sE}, v230")
        for t in range(4): P(f"buffer_atomic_add_f32 v{192+t}, v215, {S(SWS)}, s94 offen offset:{t*256} sc1", "atom")
        P(f"s_mov_b64 exec, 0xffff\nbuffer_atomic_add_f32 v196, v215, {S(SWS)}, s94 offen offset:1024 sc1\ns_mov_b64 exec, -1", "atom")
        self.stamp("atom")
        def qreads(ks):
            c = ks >> 1; t = ks & 1
            so, adj = setbase(2 + c // 3, [vB])
            return adj + [f"ds_read_b64_tr_b16 {vr(BK+4*(ks&3)+2*h,2)}, v{vB} offset:{so + (c%3)*8192 + t*4096 + h*512}" for h in range(2)]
        def qm(ks):
            b = vr(BK+4*(ks&3),4)
            out = [f"{MF} {vr(ACQ+4*rf,4)}, {b}, {ar((ks*4+rf)*4,4)}, {vr(ACQ+4*rf,4) if ks else '0'}" for rf in range(4)]
            return out + [f"{MF} {vr(CSQ,4)}, {b}, {vr(ONES,4)}, {vr(CSQ,4) if ks else '0'}"]
        P.wait_tag("st10"); self.barrier()
        P.add(qreads(0) + qreads(1))
        wo_e = self.wo_dma(0)
        p2b = p2b + L(f"""s_lshl_b32 s87, s{sA8}, 6
        s_add_u32 s87, s87, s93
        s_lshl_b32 s87, s87, 10
        s_add_u32 s64, s87, {PQ}
        s_add_u32 s65, s64, 32768""")
        n = (len(p2b) + 15) // 16
        for ks in range(16):
            P.add(mix(qm(ks), (qreads(ks + 2) if ks + 2 < 16 else []) + wo_e[3*ks:3*ks+3] + p2b[n*ks:n*ks+n]))
        PQR = 160
        P.wait_tag("atom"); self.barrier()
        self.wave0(lambda: self.set_flag((1 << R1) - 1))
        self.stamp("F1a")
        wo_l = self.wo_dma(1)
        for p in range(2):
            ls = []
            for rf in (2*p, 2*p+1):
                for hp in range(2):
                    x = ACQ + 4*rf + 2*hp; t = TT + 2*((2*rf+hp) % 4)
                    ls.append(self.affine_pair(x, t, STQ+2*rf, STQ+2*rf+1, CSQ+2*hp, True) + self.phi_pair(x, t, PQR + 2*rf + hp))
            P.add(zipped(ls))
            P(f"buffer_store_dwordx4 {vr(PQR+4*p,4)}, v{vL16}, {S(SWS)}, s{64+p} offen sc1", "pq")
        nw = self.opt.get("nw", 8)
        P.add(wo_l[:3*nw])
        P.wait_tag("pq")
        P("s_barrier")
        self.wave0(lambda: self.set_flag(1 << 27))
        self.stamp("F1")
        P.add(wo_l[3*nw:])

    def p2_setup(self):
        a = L(f"""
        s_lshr_b32 s88, s{sJ}, 2
        s_lshl_b32 s86, s{sX}, 3
        s_add_u32 s88, s88, s86
        s_and_b32 s89, s{sJ}, 3
        v_lshrrev_b32 v12, 3, v0
        v_and_b32 v13, 6, v12
        v_and_b32 v14, 7, v0
        v_xor_b32 v13, v13, v14
        v_lshlrev_b32 v{vSW}, 4, v13
        v_lshl_add_u32 v200, v12, 10, v{vSW}
        s_lshl_b32 s90, s{sW}, 17
        s_lshl_b32 s86, s89, 8
        s_add_u32 s90, s90, s86
        s_lshl_b32 s91, s{sW}, 14
        s_add_u32 s96, s91, 65536
        s_cmp_eq_u32 s{sW}, 3
        s_cselect_b32 s91, 131072, s91""")
        b = L(f"""
        v_lshrrev_b32 v12, 2, v{vI}
        v_lshl_add_u32 v12, v{vG}, 2, v12
        v_and_b32 v13, 6, v12
        v_bfe_u32 v14, v0, 1, 1
        v_xor_b32 v13, v13, v14
        v_and_b32 v14, 1, v0
        v_lshlrev_b32 v14, 3, v14
        v_lshl_add_u32 v14, v12, 7, v14
        v_lshl_add_u32 v{vT[0]}, v13, 4, v14
        v_xor_b32 v{vT[1]}, 32, v{vT[0]}
        v_xor_b32 v{vT[2]}, 64, v{vT[0]}
        v_xor_b32 v{vT[3]}, 96, v{vT[0]}
        s_and_b32 s86, s{sW}, 1
        s_lshl_b32 s86, s86, 6""")
        for p in range(4):
            b += L(f"s_add_u32 s87, s{sW}, {p}\ns_and_b32 s87, s87, 2\ns_lshl_b32 s87, s87, 12\ns_add_u32 s87, s87, s91")
            for cf in range(2):
                b += [f"v_xor_b32 v{204+2*p+cf}, s86, v{vT[2*(p&1)+cf]}", f"v_add_u32 v{204+2*p+cf}, s87, v{204+2*p+cf}"]
        return a, b
    def wo_dma(self, half):
        out = []
        for i in range(8):
            for st in range(2):
                out += [f"s_add_u32 m0, s{96 if half else 91}, {st*8192 + i*1024}", f"s_add_u32 s60, s90, {(8*half+i)*8192 + st*128}", self.dmai(200, SWO, 60, f"wo{2*half + i//4}")]
        return out
    def win_setup(self, v):
        return L(f"""v_lshrrev_b32 v{v}, 3, v0
        v_mul_u32_u24 v{v}, 3584, v{v}
        v_add_u32 v{v}, v{v}, v{vSW}
        s_min_u32 s70, s{sCBK}, 13
        s_lshl_b32 s70, s70, 7
        s_mul_i32 s71, s{sW}, {8*3584}
        s_add_u32 s70, s70, s71
        s_lshl_b32 s71, s{sW}, 10""")
    def win_dma(self, half, t, v):
        return [f"s_add_u32 m0, s71, {half*65536 + t*4096}", f"s_add_u32 s60, s70, {t*32*3584 + (1792 if half == 0 else 0)}", self.dmai(v, SWIN, 60, f"win{half}")]

    def win0_dma(self, v):
        out = L(f"s_min_u32 s72, s{sCBK}, 13\ns_lshl_b32 s72, s72, 7\ns_mul_i32 s73, s{sW}, {128*3584}\ns_add_u32 s72, s72, s73\ns_lshl_b32 s73, s{sW}, 14")
        for i in range(16):
            out += [f"s_add_u32 m0, s73, {i*1024}", f"s_add_u32 s60, s72, {i*8*3584 + 1792}", self.dmai(v, SWIN, 60, "win0")]
        return out

    def phase2(self):
        P = self.P
        EX = 114688
        XR = 244; EPSQ = 124
        P(f"""s_lshl_b32 s86, s88, 15
        s_lshl_b32 s87, s89, 8
        s_add_u32 s86, s86, s87
        s_lshl_b32 s87, s{sW}, 6
        s_add_u32 s86, s86, s87
        s_add_u32 s87, s86, 16384
        v_lshlrev_b32 v12, 3, v{vG}
        v_lshl_add_u32 v12, v{vI}, 10, v12""")
        for a in range(2):
            for cf in range(2): P(f"buffer_load_dwordx2 {vr(XR+(a*2+cf)*2,2)}, v12, {S(SX)}, s{86+a} offen offset:{cf*32}")
        P(f"""s_lshl_b32 s86, s{sW}, 3
        s_mul_i32 s92, s86, {KVS}
        s_add_u32 s92, s92, {KV}
        s_add_u32 s93, s92, {4*KVS}
        s_lshl_b32 s94, s88, 5
        s_add_u32 s94, s94, s86
        s_lshl_b32 s94, s94, 10
        s_add_u32 s94, s94, {PQ}
        s_add_u32 s95, s94, 4096
        v_and_b32 v12, 7, v0
        v_mul_u32_u24 v12, {KVS}, v12
        v_lshl_add_u32 v19, v{vG}, 4, v12
        v_and_b32 v18, 31, v0
        v_lshlrev_b32 v18, 2, v18
        s_lshl_b32 s66, s{sX}, 7
        s_add_u32 s66, s66, {XID}""")
        for k in range(4): P(f"v_mov_b32 v{EPSQ+k}, s{sEPS6}")
        P.add(self.win_setup(123))
        for p in range(1, 4):
            P(f"s_add_u32 s86, s{sW}, {p}\ns_and_b32 s86, s86, 3\ns_mul_i32 s86, s86, 12288\ns_add_u32 s86, s86, {EX + (p-1)*4096}")
            P(f"v_add_u32 v{118+p}, s86, v{vL16}")
        P(f"""s_mul_i32 s86, s{sW}, 12288
        s_add_u32 s86, s86, {EX}
        v_add_u32 v118, s86, v{vL16}
        s_lshl_b32 s64, s88, 5
        s_lshl_b32 s87, s89, 2
        s_add_u32 s64, s64, s87
        s_add_u32 s64, s64, s{sW}
        s_lshl_b32 s64, s64, 10
        s_add_u32 s64, s64, {H}
        s_add_u32 s65, s64, 16384
        s_lshl_b32 s61, s88, 12
        s_lshl_b32 s86, s89, 8
        s_add_u32 s61, s61, s86
        s_lshr_b32 s86, s{sW}, 1
        s_lshl_b32 s86, s86, 10
        s_add_u32 s61, s61, s86
        s_and_b32 s86, s{sW}, 1
        s_lshl_b32 s86, s86, 3
        s_add_u32 s61, s61, s86
        s_add_u32 s61, s61, {HST}
        v_lshlrev_b32 v122, 4, v{vI}
        v_lshl_add_u32 v122, v{vG}, 11, v122""")
        for kk in range(4):
            if kk == 2:
                if self.opt.get("w0early", 0): P.wait_ds(); P.add(self.win0_dma(123))
                P("s_sub_u32 s86, s96, s91")
                for r in range(204, 212): P(f"v_add_u32 v{r}, s86, v{r}")
            P.wait_tag(f"wo{kk}")
            for p in range(4):
                for cf in range(2):
                    for h in range(2):
                        P(f"ds_read_b64_tr_b16 {ar(((kk*4+p)*2+cf)*4+2*h,2)}, v{204+2*p+cf} offset:{(kk&1)*4096 + h*2048}")
        self.stamp("wo")
        def pl():
            P(f"s_lshl_b32 s86, s{sX}, 10")
            self.poll(vL16, x4=True, soff="s86")
            P(f"s_lshr_b32 s86, s88, 1\ns_lshl_b32 s86, s86, 7\ns_add_u32 s86, s86, {F1B}\nv_and_b32 v16, 7, v0\nv_lshlrev_b32 v16, 2, v16")
            self.poll(16, soff="s86")
        self.wave0(pl)
        self.barrier()
        self.stamp("sync1")
        KR = 16; KP = 48; ZR = 64; ZC = 68; ZP = 70; PQR = 86; ACC = 128; OF = 192; ND = 212
        P(f"buffer_load_dwordx4 {vr(ZR,4)}, v19, {S(SWS)}, s92 offen offset:1024 sc1")
        P(f"buffer_load_dword v252, v18, {S(SWS)}, s66 offen sc1")
        for h in range(8):
            P(f"buffer_load_dwordx4 {vr(KR+4*h,4)}, v{vL16}, {S(SWS)}, s{92+h//4} offen offset:{(h%4)*KVS} sc1")
            P(f"buffer_load_dwordx4 {vr(PQR+4*h,4)}, v{vL16}, {S(SWS)}, s{94+h//4} offen offset:{(h%4)*1024} sc1")
        wd = []
        if not self.opt.get("w0early", 0):
            for t in range(16): wd += self.win_dma(0, t, 123)
        NW1 = self.opt.get('nw1', 6)
        for t in range(NW1): wd += self.win_dma(1, t, 123)
        P(f"v_cvt_pk_bf16_f32 v{ZC}, v{ZR}, v{ZR+1}\nv_cvt_pk_bf16_f32 v{ZC+1}, v{ZR+2}, v{ZR+3}")
        P(f"v_cmp_ne_u32 vcc, s{sXCC}, v252")
        for h in range(8):
            for k in range(2): P(f"v_mov_b32_dpp v{ZP+2*h+k}, v{ZC+k} row_newbcast:{h} row_mask:0xf bank_mask:0xf")
        P(f"s_cmp_eq_u64 vcc, 0\ns_cselect_b32 s{sM}, {self.opt.get('fast', 1)}, 0")
        def ostep(kk):
            c = []; m = []
            for hh in range(2):
                h = 2*kk + hh
                c += [f"v_cvt_pk_bf16_f32 v{KP+2*h}, v{KR+4*h}, v{KR+4*h+1}", f"v_cvt_pk_bf16_f32 v{KP+2*h+1}, v{KR+4*h+2}, v{KR+4*h+3}"]
            for hh in range(2):
                h = 2*kk + hh
                for a in range(2):
                    m.append(f"v_mfma_f32_16x16x16_bf16 {vr(ND+8*(2*hh+a)+4,4)}, {vr(ZP+2*h,2)}, {vr(PQR+4*h+2*a,2)}, {vr(EPSQ,4)}")
            for hh in range(2):
                h = 2*kk + hh
                for a in range(2):
                    m.append(f"v_mfma_f32_16x16x16_bf16 {vr(ND+8*(2*hh+a),4)}, {vr(KP+2*h,2)}, {vr(PQR+4*h+2*a,2)}, 0")
            v = [f"v_rcp_f32 v{ND+8*q+4}, v{ND+8*q+4}" for q in range(4)]
            for hh in range(2):
                for a in range(2):
                    nd = ND + 8*(2*hh+a); o = OF + 8*(kk&1) + 4*a + 2*hh
                    v += [f"v_mul_f32 v{nd+k}, v{nd+k}, v{nd+4}" for k in range(4)]
                    v += [f"v_cvt_pk_bf16_f32 v{o}, v{nd}, v{nd+1}", f"v_cvt_pk_bf16_f32 v{o+1}, v{nd+2}, v{nd+3}"]
            return c, m, v
        def gstep(kk):
            m = []
            for p in range(4):
                for cf in range(2):
                    for a in range(2):
                        acc = vr(ACC + ((p*2+a)*2+cf)*4, 4)
                        m.append(f"{MF} {acc}, {ar(((kk*4+p)*2+cf)*4,4)}, {vr(OF+8*(kk&1)+4*a,4)}, {acc if kk else '0'}")
            return m
        c, m, v = ostep(0); P.add(c[:2] + mix(m[:4], c[2:]) + m[4:] + v)
        self.stamp("p2o0", True)
        XF = 80
        xun = []
        for q in range(4):
            for k in range(2): xun += [f"v_lshlrev_b32 v{XF+4*q+2*k}, 16, v{XR+2*q+k}", f"v_and_b32 v{XF+4*q+2*k+1}, 0xffff0000, v{XR+2*q+k}"]
        xw = [f"ds_write_b128 v{118+p}, {vr(ACC+(p*4+q)*4,4)} offset:{q*1024}" for p in range(1, 4) for q in range(4)]
        for kk in range(4):
            g = gstep(kk)
            if kk < 3:
                c, m, v = ostep(kk+1)
                q_ = 15 if len(wd) > 40 else 9
                P.add(mix(m[:4], c) + mix(m[4:], wd[q_*kk:q_*kk+3]) + mix(g, weave(v, wd[q_*kk+3:q_*kk+q_]), 1))
            else:
                g = g[4:] + g[:4]
                P.add(mix(g[:9], wd[3*q_:3*q_+9]) + mix(g[9:], xw[:7]) + xw[7:])
        self.stamp("p2mm")
        P.add(weave(xun, wd[3*q_+9:]))
        P.wait_tag("win0")
        for q in range(4):
            for k in range(2): P(f"v_pk_add_f32 {vr(ACC+4*q+2*k,2)}, {vr(ACC+4*q+2*k,2)}, {vr(XF+4*q+2*k,2)}")
        self.barrier()
        RB = 32; HO = 96
        for q in range(4):
            for p in range(3): P(f"ds_read_b128 {vr(RB+(p*4+q)*4,4)}, v118 offset:{(p*4+q)*1024}")
        for q in range(4):
            for p in range(3):
                for k in range(2): P(f"v_pk_add_f32 {vr(ACC+4*q+2*k,2)}, {vr(ACC+4*q+2*k,2)}, {vr(RB+(p*4+q)*4+2*k,2)}")
            for k in range(2): P(f"v_cvt_pk_bf16_f32 v{HO+2*q+k}, v{ACC+4*q+2*k}, v{ACC+4*q+2*k+1}")
        self.local([f"buffer_store_dwordx4 {vr(HO+4*a,4)}, v{vL16}, {S(SWS)}, s{64+a} offen @SC" for a in range(2)])
        SS = 104
        ls = []
        for a in range(2):
            x = ACC + 8*a; s_ = SS + 4*a
            ls.append([f"v_pk_add_f32 {vr(s_,2)}, {vr(x,2)}, {vr(x+2,2)}", f"v_pk_mul_f32 {vr(s_+2,2)}, {vr(x,2)}, {vr(x,2)}",
                       f"v_pk_add_f32 {vr(s_,2)}, {vr(s_,2)}, {vr(x+4,2)}", f"v_pk_fma_f32 {vr(s_+2,2)}, {vr(x+2,2)}, {vr(x+2,2)}, {vr(s_+2,2)}",
                       f"v_pk_add_f32 {vr(s_,2)}, {vr(s_,2)}, {vr(x+6,2)}", f"v_pk_fma_f32 {vr(s_+2,2)}, {vr(x+4,2)}, {vr(x+4,2)}, {vr(s_+2,2)}",
                       f"v_add_f32 v{s_}, v{s_}, v{s_+1}", f"v_pk_fma_f32 {vr(s_+2,2)}, {vr(x+6,2)}, {vr(x+6,2)}, {vr(s_+2,2)}",
                       f"v_add_f32 v{s_+1}, v{s_+2}, v{s_+3}"])
        P.add(zipped(ls))
        self.xreduce([SS, SS+1, SS+4, SS+5], 112, ops=("v_permlane32_swap_b32",))
        P(f"""v_permlane16_swap_b32 v{SS}, v{SS+4}
        v_permlane16_swap_b32 v{SS+1}, v{SS+5}
        v_pk_add_f32 {vr(SS,2)}, {vr(SS,2)}, {vr(SS+4,2)}
        s_mov_b32 exec_hi, 0""")
        self.local([f"buffer_store_dwordx2 {vr(SS,2)}, v122, {S(SWS)}, s61 offen @SC"])
        P("s_mov_b64 exec, -1")
        self.p3_setup()
        o, tl = self.colsum(0, 16, 110592); P.add(o + tl)
        P("s_waitcnt vmcnt(0)")
        self.barrier()
        self.wave0(lambda: self.set_flag(1 << 16, True))
        self.stamp("F2")

    def wsp_setup(self):
        o = L(f"""v_lshrrev_b32 v12, 3, v0
        v_and_b32 v13, 7, v0
        v_xor_b32 v13, v13, v{vG}
        v_lshlrev_b32 v13, 4, v13
        v_lshl_add_u32 v244, v12, 12, v13
        v_xor_b32 v245, 64, v244
        v_add_u32 v245, 32768, v245
        s_lshl_b32 s96, s{self.T4}, 18
        s_lshl_b32 s86, s{sW}, 10
        s_add_u32 s96, s96, s86
        s_lshl_b32 s97, s{sW}, 14
        v_lshrrev_b32 v12, 1, v{vI}
        v_xor_b32 v12, v12, v{vG}
        v_lshlrev_b32 v12, 4, v12
        v_lshl_add_u32 v12, v{vI}, 7, v12
        v_xor_b32 v13, 64, v12""")
        for p in range(4):
            o += L(f"s_add_u32 s86, s{sW}, {p}\ns_and_b32 s86, s86, 3\ns_lshl_b32 s86, s86, 11\ns_add_u32 s86, s86, s97\nv_add_u32 v{246+2*p}, s86, v12\nv_add_u32 v{247+2*p}, s86, v13")
        return o
    def wsp_issue(self, c, hi=False):
        out = [WD(f"wr{c-2}")] if c >= 2 and not hi else []
        for i in range(8):
            out.append(f"s_add_u32 m0, s97, {(c&1)*8192 + i*1024 + (65536 if hi else 0)}")
            out.append(f"s_add_u32 s60, s96, {(i>>1)*65536 + c*128}" if i % 2 == 0 else NOPIF)
            out.append(self.dmai(244+(i&1), SWSP, 60, f"wsp{c}"))
        return out
    def wsp_read(self, c):
        return [WT(f"wsp{c}")] + [("T", f"ds_read_b128 {ar(((2*c+t)*4+p)*4,4)}, v{246+2*p+t} offset:{(c&1)*8192}", f"wr{c}") for t in range(2) for p in range(4)]
    def wsp_tohi(self): return [f"v_xor_b32 v{r}, 0x10000, v{r}" for r in range(246, 254)]
    KE = list(range(21, 28)); KT = list(range(9, 21)); KL = list(range(9))
    def wout_setup(self, v):
        return L(f"""v_lshrrev_b32 v{v}, 3, v0
        v_lshl_add_u32 v{v}, v{v}, 10, v{vSW}
        s_lshl_b32 s68, s{sW}, 13
        s_lshl_b32 s86, s{sFB}, 7
        s_add_u32 s68, s68, s86
        s_lshl_b32 s69, s{sW}, 10
        s_add_u32 s69, s69, 49152""")
    def wout(self, k, v, tag="wout"):
        return [f"s_add_u32 m0, s69, {k*4096}", f"s_add_u32 s61, s68, {k*4*8192}", self.dmai(v, SWOUT, 61, tag)]
    def pf_addr(self, v):
        return L(f"""v_bfe_u32 v{v}, v0, 2, 2
        v_lshlrev_b32 v{v}, 10, v{v}
        v_lshl_add_u32 v{v}, v{vG}, 12, v{v}
        v_and_b32 v5, 3, v0
        v_lshl_add_u32 v{v}, v5, 7, v{v}""")
    SCR3 = 131072
    def p3_setup(self):
        SCR = self.SCR3
        self.P(f"""s_lshl_b32 s90, s{sRB}, 3
        s_lshl_b32 s86, s{sW}, 1
        s_add_u32 s90, s90, s86
        s_lshl_b32 s93, s90, 11
        s_add_u32 s93, s93, {HST}
        s_lshl_b32 s90, s90, 14
        s_add_u32 s90, s90, {H}
        s_lshl_b32 s91, s{sW}, 10
        s_add_u32 s91, s91, {SCR + 1024}
        s_lshl_b32 s67, s{sRB}, 7
        s_add_u32 s67, s67, {F2}
        v_lshlrev_b32 v240, 2, v{vI}
        v_mov_b32 v12, 0x3f803f80
        v_accvgpr_write_b32 a240, v12
        v_accvgpr_write_b32 a241, v12
        v_accvgpr_write_b32 a242, v12
        v_accvgpr_write_b32 a243, v12
        s_lshl_b32 s86, s{sW}, 5
        v_xor_b32 v15, s86, v{vT[0]}
        s_mul_i32 s74, s{sRB}, 14
        s_add_u32 s74, s74, s{sCBK}
        s_mul_i32 s74, s74, 3
        s_add_u32 s74, s74, s{sW}
        s_lshl_b32 s74, s74, 14
        s_add_u32 s74, s74, 512
        s_cmp_eq_u32 s{sW}, 3
        s_cselect_b32 s74, 0x1000000, s74""")

    def colsum(self, base, tmp, dst_off):
        rd = [[f"ds_read_b64_tr_b16 {vr(tmp+4*t+2*h,2)}, v15 offset:{t*4096 + h*2048}" for h in range(2)] for t in range(16)]
        out = rd[0] + rd[1] + rd[2]
        for t in range(16):
            out.append(f"{MF} {ar(236,4)}, {ar(240,4)}, {vr(tmp+4*t,4)}, {ar(236,4) if t else '0'}")
            if t + 3 < 16: out += rd[t+3]
        tail = L(f"s_lshl_b32 s86, s{sW}, 6\ns_add_u32 s86, s86, {dst_off}\nv_lshl_add_u32 v5, v{vI}, 2, s86\nds_write_b32 v5, a236")
        return out, tail

    def phase3(self):
        P = self.P
        SCR = self.SCR3
        HF = 16; BB = 144; A2 = 176; A1 = 208
        AON, AEX, ACS = 240, 244, 236
        Lskip = "L_p3skip"; Ljoin = "L_p3join"
        P(f"s_cmp_ge_u32 s{sCBK}, 14\ns_cbranch_scc1 {Lskip}")
        def breads(t):
            return [f"ds_read_b64_tr_b16 {vr(BB+16*(t&1)+4*f+2*h,2)}, v{vT[f]} offset:{t*4096 + h*2048}" for f in range(4) for h in range(2)]
        P.add(breads(0))
        self.wave0(lambda: self.poll(240, soff="s67"))
        P("s_barrier")
        self.stamp("sync2")
        HS = A1; CS2 = 224; K1 = 254
        def hl(t):
            if t >= 16:
                a = t - 16
                return [f"buffer_load_dwordx4 {vr(HS+8*a+4*hf,4)}, v{vL16}, {S(SWS)}, s93 offen offset:{a*2048+hf*1024} sc1" for hf in range(2)] if a < 2 else []
            o = [f"s_add_u32 s64, s90, {t*1024}", f"s_add_u32 s65, s90, {16384 + t*1024}"] if t % 4 == 0 else []
            return o + [f"buffer_load_dwordx4 {vr(HF+(t*2+a)*4,4)}, v{vL16}, {S(SWS)}, s{64+a} offen offset:{(t%4)*1024} sc1" for a in range(2)]
        HD = self.opt.get("HD", 5)
        for t in range(HD): P.add(hl(t))
        P("v_add_u32 v5, 110592, v240")
        for f in range(4): P(f"ds_read_b32 v{CS2+f}, v5 offset:{f*64}")
        late = []
        for t in range(self.opt.get('nw1', 6), 16): late += self.win_dma(1, t, 241)
        misc = [f"v_lshrrev_b32 v241, 3, v0", "v_mul_u32_u24 v241, 3584, v241", f"v_add_u32 v241, v241, v{vSW}"] + self.pf_addr(242)
        P.add(misc)
        misc = self.wsp_setup() + L(f"""v_mov_b32 v{K1}, {f2u(K1C):#x}
        v_mov_b32 v{K1+1}, {f2u(K1C):#x}
        v_lshl_add_u32 v13, v{vI}, 2, s91
        v_lshl_add_u32 v14, v{vG}, 4, s91
        v_bfe_u32 v12, v0, 3, 1
        v_lshlrev_b32 v12, 8, v12
        v_lshl_add_u32 v12, v{vG}, 6, v12
        v_bfe_u32 v5, v0, 2, 1
        v_lshl_add_u32 v12, v5, 5, v12
        v_and_b32 v5, 1, v0
        v_lshl_add_u32 v12, v5, 4, v12
        v_cmp_eq_u32 s[72:73], 1, v5
        s_lshl_b32 s92, s{sRB}, 15
        s_lshl_b32 s86, s{sW}, 9
        s_add_u32 s92, s92, s86
        s_add_u32 s92, s92, {STATS}
        s_lshl_b32 s66, s{sCBK}, 11
        s_add_u32 s66, s66, s92""")
        nm = (len(misc) + 11) // 12
        for t in range(16):
            m = []
            for f in range(4):
                for a in range(2):
                    acc = vr(A2 + (a*4+f)*4, 4)
                    m.append(f"{MF} {acc}, {vr(HF+(t*2+a)*4,4)}, {vr(BB+16*(t&1)+4*f,4)}, {acc if t else '0'}")
            if t in (1, 4, 8, 12): self.stamp(f"z2k{t}", True)
            hh = hl(t + HD); g = max(1, len(hh) - 1)
            if t + HD >= 18:
                k = t + HD - 18
                hh = late[:6]; late = late[6:]; g = 3
            P.add(mix(m, weave((breads(t+1) if t < 15 else []) + misc[nm*t:nm*t+nm], hh, g)))
        self.stamp("z2mm")
        P.add(late)
        if self.opt.get("l2pf", 1): P(f"buffer_load_dword a235, v242, {S(SWSP)}, s74 offen")
        LA = [240, 242]; LB = [241, 243]
        for a in range(2):
            x = HS + 8*a
            P(f"v_pk_add_f32 {vr(x,2)}, {vr(x,2)}, {vr(x+2,2)}\nv_pk_add_f32 {vr(x+4,2)}, {vr(x+4,2)}, {vr(x+6,2)}")
        for a in range(2):
            x = HS + 8*a
            P(f"v_pk_add_f32 {vr(x,2)}, {vr(x,2)}, {vr(x+4,2)}")
        self.barrier()
        self.xreduce([HS, HS+1, HS+8, HS+9], BB)
        self.finstats([(HS, HS+1), (HS+8, HS+9)], 512, LA, LB)
        for a in range(2): P(f"ds_write_b32 v13, v{LA[a]} offset:{a*64}\nds_write_b32 v13, v{LB[a]} offset:{128+a*64}")
        iss01 = self.wsp_issue(0) + self.wsp_issue(1)
        P.add(iss01[:6]); iss01 = iss01[6:]
        P.wait_ds()
        RA = BB; RBb = BB + 8
        for a in range(2): P(f"ds_read_b128 {vr(RA+4*a,4)}, v14 offset:{a*64}\nds_read_b128 {vr(RBb+4*a,4)}, v14 offset:{128+a*64}")
        P.add(iss01[:6]); iss01 = iss01[6:]
        TT = BB + 16; SM = A1; SQ2 = A1 + 8
        for f in range(4):
            ls = []
            for a in range(2):
                for hp in range(2):
                    x = A2 + (a*4+f)*4 + 2*hp; t = TT + 2*(2*a+hp); sm = SM + 4*a + 2*hp; sq = SQ2 + 4*a + 2*hp
                    l = self.affine_pair(x, t, RA+4*a+2*hp, RBb+4*a+2*hp, CS2+f, False) + self.gelu_pair(x, t, K1)
                    if f == 0: l += [f"v_pk_mul_f32 {vr(sq,2)}, {vr(x,2)}, {vr(x,2)}"]
                    else: l += [f"v_pk_fma_f32 {vr(sq,2)}, {vr(x,2)}, {vr(x,2)}, {vr(sq,2)}",
                                f"v_pk_add_f32 {vr(sm,2)}, {vr(sm if f > 1 else A2 + a*16 + 2*hp,2)}, {vr(x,2)}"]
                    ls.append(l)
            self.stamp(f"z2e{f}", True)
            P.add(weave(zipped(ls), iss01[18*f:18*f+18]))
        def val(a, r, st): return (SQ2 if st else SM) + 4*a + r
        L1 = A1 + 16; L2 = A1 + 24
        z1pre = [f"v_add_u32 v{r}, 65536, v{r}" for r in vT + [15]]
        for a, bm in ((0, 0x3), (1, 0xc)):
            for r in range(4):
                for st in range(2): P(f"v_add_f32_dpp v{L1+2*r+st}, v{val(a,r,st)}, v{val(a,r,st)} row_ror:8 row_mask:0xf bank_mask:{bm:#x}")
        P.add(z1pre)
        P.wait_tag("win1")
        for rh, bm in ((0, 0x5), (1, 0xa)):
            for rl in range(2):
                for st in range(2):
                    s_ = L1 + 2*(2*rh+rl) + st
                    P(f"v_add_f32_dpp v{L2+2*rl+st}, v{s_}, v{s_} row_half_mirror row_mask:0xf bank_mask:{bm:#x}")
        P("s_barrier")
        for qp in ("[1,0,3,2]", "[2,3,0,1]"):
            for k in range(4): P(f"v_add_f32_dpp v{L2+k}, v{L2+k}, v{L2+k} quad_perm:{qp} row_mask:0xf bank_mask:0xf")
        P.add(breads(0))
        P(f"""v_cndmask_b32 v{L2}, v{L2}, v{L2+2}, s[72:73]
        v_cndmask_b32 v{L2+1}, v{L2+1}, v{L2+3}, s[72:73]
        v_mov_b32 v{L2+2}, s{sE}
        v_mov_b32 v{L2+3}, s{sE}
        s_mov_b32 exec_lo, 0x33333333
        s_mov_b32 exec_hi, 0x33333333""")
        self.local([f"buffer_store_dwordx4 {vr(L2,4)}, v12, {S(SWS)}, s66 offen @SC"])
        P("s_mov_b64 exec, -1")
        self.stamp("z2ep")
        i2, i3, i4, i5 = [self.wsp_issue(c) for c in range(2, 6)]
        r0, r1, r2, r3 = [self.wsp_read(c) for c in range(4)]
        GS = HF
        misc = L(f"""v_lshrrev_b32 v12, 5, v0
        v_lshlrev_b32 v12, 11, v12
        v_and_b32 v13, 31, v0
        v_lshl_add_u32 v12, v13, 4, v12
        v_lshl_add_u32 v13, v13, 2, s91
        s_lshl_b32 s93, s{sRB}, 2
        s_add_u32 s93, s93, s{sW}
        s_mul_i32 s93, s93, 7168
        s_add_u32 s93, s93, {Z2}""")
        for f in range(4):
            misc += L(f"""s_lshl_b32 s86, s{sCBK}, 2
            s_add_u32 s86, s86, {f}
            s_mul_i32 s87, s86, 37
            s_lshr_b32 s87, s87, 8
            s_mul_i32 s87, s87, {64*7 - 7}
            s_add_u32 s86, s86, s87
            s_lshl_b32 s86, s86, 10
            s_add_u32 s{64+f}, s86, s93""")
        misc += L(f"""s_lshl_b32 s93, s{sRB}, 3
        s_lshl_b32 s86, s{sW}, 1
        s_add_u32 s93, s93, s86
        s_mul_i32 s93, s93, 56
        s_lshl_b32 s86, s{sCBK}, 2
        s_add_u32 s93, s93, s86
        s_lshl_b32 s93, s93, 9
        s_add_u32 s93, s93, {Z1}
        s_add_u32 s94, s93, {56*512}""")
        ex = {0: r0[:5], 1: r0[5:] + r1[:3], 2: r1[3:], 3: i2[:7], 4: i2[7:13], 5: i2[13:19], 6: i2[19:], 7: i3[:7], 8: i3[7:13], 9: i3[13:19], 10: i3[19:],
              11: misc[:8], 12: misc[8:16], 13: misc[16:24], 14: misc[24:32], 15: misc[32:]}
        for t in range(16):
            m = []
            for f in range(4):
                for a in range(2):
                    acc = vr(A1 + (a*4+f)*4, 4)
                    m.append(f"{MF} {acc}, {vr(BB+16*(t&1)+4*f,4)}, {vr(HF+(t*2+a)*4,4)}, {acc if t else '0'}")
            nxt = breads(t+1) if t < 15 else []
            if t in (0, 2, 4, 7, 10, 14): self.stamp(f"z1k{t}", True)
            P.add(mix(m, weave(nxt, ex.get(t, []))))
        gl = "\n".join(f"s_add_u32 s60, s92, {m_*4096}\nbuffer_load_dwordx4 {vr(GS+4*m_,4)}, v12, {S(SWS)}, s60 offen sc1" for m_ in range(7))
        P(gl)
        for f in range(4): P(f"v_subrev_u32 v{vT[f]}, 65536, v{vT[f]}")
        P.add(r2 + r3)
        self.stamp("z1mm")
        cmpc = "\n".join(f"v_xor_b32 v{GS+4*m_+2}, s{sE}, v{GS+4*m_+2}" for m_ in range(7))
        cmpc += f"\nv_or3_b32 v5, v{GS+2}, v{GS+6}, v{GS+10}\nv_or3_b32 v5, v5, v{GS+14}, v{GS+18}\nv_or3_b32 v5, v5, v{GS+22}, v{GS+26}\nv_cmp_ne_u32 vcc, 0, v5"
        self.check_retry(gl, cmpc)
        self.stamp("gath", True)
        P(f"v_pk_add_f32 {vr(GS,2)}, {vr(GS,2)}, {vr(GS+4,2)}\nv_pk_add_f32 {vr(GS+8,2)}, {vr(GS+8,2)}, {vr(GS+12,2)}\nv_pk_add_f32 {vr(GS+16,2)}, {vr(GS+16,2)}, {vr(GS+20,2)}")
        P(f"v_pk_add_f32 {vr(GS,2)}, {vr(GS,2)}, {vr(GS+8,2)}\nv_pk_add_f32 {vr(GS+16,2)}, {vr(GS+16,2)}, {vr(GS+24,2)}\nv_pk_add_f32 {vr(GS,2)}, {vr(GS,2)}, {vr(GS+16,2)}")
        self.xreduce([GS, GS+1], GS+2, ops=("v_permlane32_swap_b32",))
        self.finstats([(GS, GS+1)], 896, [GS+4], [GS+5])
        P(f"""ds_write_b32 v13, v{GS+4} offset:256
        ds_write_b32 v13, v{GS+5} offset:384
        v_bfe_u32 v12, v0, 4, 1
        v_bfe_u32 v13, v0, 5, 1
        v_lshl_add_u32 v12, v12, 1, v13
        v_lshl_add_u32 v12, v12, 4, v{vI}
        v_lshlrev_b32 v12, 4, v12""")
        P.wait_ds()
        for a in range(2): P(f"ds_read_b128 {vr(RA+4*a,4)}, v14 offset:{256+a*64}\nds_read_b128 {vr(RBb+4*a,4)}, v14 offset:{384+a*64}")
        ZO = HF + 64
        for f in range(4):
            for a in range(2):
                for hp in range(2):
                    x = A2 + (a*4+f)*4 + 2*hp
                    P(f"v_pk_fma_f32 {vr(x,2)}, {vr(x,2)}, {vr(RA+4*a+2*hp,2)}, {vr(RBb+4*a+2*hp,2)}")
            for a in range(2):
                for hp in range(2):
                    x = A2 + (a*4+f)*4 + 2*hp
                    P(f"v_cvt_pk_bf16_f32 v{ZO+4*f+2*a+hp}, v{x}, v{x+1}")
            if f: P(f"buffer_store_dwordx4 {vr(ZO+4*(f-1),4)}, v12, {S(SWS)}, s{64+f-1} offen sc1", "z2n")
            for hp in range(2): P(f"v_permlane16_swap_b32 v{ZO+4*f+hp}, v{ZO+4*f+2+hp}")
        P(f"buffer_store_dwordx4 {vr(ZO+12,4)}, v12, {S(SWS)}, s67 offen sc1", "z2n")
        self.stamp("z2st", True)
        C1 = HF + 32; Z1O = HF + 48
        P(f"v_lshlrev_b32 v12, 4, v{vG}\nv_add_u32 v12, {SCR+256}, v12\nv_lshlrev_b32 v13, 3, v0")
        o, tl = self.colsum(65536, 96, SCR + 256)
        P.add(weave(o, i4 + i5) + tl)
        P.add(self.wout_setup(15))
        P.wait_tag("z2n")
        self.barrier()
        self.wave0(lambda: self.set_flag(0xff << 17))
        self.stamp("F3")
        for f in range(4): P(f"ds_read_b128 {vr(C1+4*f,4)}, v12 offset:{f*64}")
        dm = self.wsp_issue(6, True) + self.wsp_issue(7, True)
        for k in self.KE: dm += self.wout(k, 15, "woutE")
        ep = []
        for f in range(4):
            ls = []
            for a in range(2):
                for hp in range(2):
                    x = A1 + (a*4+f)*4 + 2*hp; t = TT + 2*(2*a+hp)
                    ls.append(self.affine_pair(x, t, LA[a], LB[a], C1+4*f+2*hp, True) + self.gelu_pair(x, t, K1)
                              + [f"v_cvt_pk_bf16_f32 v{Z1O+(a*4+f)*2+hp}, v{x}, v{x+1}"])
            ep += zipped(ls)
        P.add(weave(ep, dm))
        self.local4([f"buffer_store_dwordx2 {vr(Z1O+(a*4+f)*2,2)}, v13, {S(SWS)}, s{93+a} offen offset:{f*512} @SC" for f in range(4) for a in range(2)])
        P.add(self.wsp_read(4) + self.wsp_read(5) + self.wsp_tohi() + self.wsp_read(6) + self.wsp_read(7))
        P(f"s_branch {Ljoin}")
        P(f"{Lskip}:")
        P.cond_begin()
        P("s_waitcnt vmcnt(0) lgkmcnt(0)")
        if self.opt.get("l2pf", 1):
            P(f"""s_lshl_b32 s86, s{sRB}, 1
            s_add_u32 s86, s86, s{sCBK}
            s_sub_u32 s86, s86, 14
            s_lshl_b32 s86, s86, 2
            s_add_u32 s86, s86, s{sW}
            s_lshl_b32 s60, s86, 16""")
            P.add(self.pf_addr(12))
            for k in range(4): P(f"buffer_load_dword v{16+k}, v12, {S(SWSP)}, s60 offen\ns_add_u32 s60, s60, 16384")
        P.add(self.wsp_setup() + self.wout_setup(15))
        P.add(self.wsp_issue(0) + self.wsp_issue(1))
        for k in self.KE: P.add(self.wout(k, 15, "woutE"))
        for c in range(0, 8, 2):
            P.add(self.wsp_read(c) + self.wsp_read(c + 1))
            if c < 6: P.add(self.wsp_issue(c + 2) + self.wsp_issue(c + 3))
        P("s_waitcnt vmcnt(0) lgkmcnt(0)")
        P.cond_end()
        P(f"{Ljoin}:")
        self.stamp("wsp")

    def p5_breg(self, kk, f):
        if kk >= 21: return ("a", (kk - 21) * 16 + 4*f)
        i = self.order5.index(kk) - 7
        return ("a", 112 + (i % 9) * 16 + 4*f)
    def p5_reads(self, kk):
        out = []
        want = 49152 if kk < 16 else 49152 + 65536
        if self.cur5 != want:
            d = want - self.cur5
            out += [f"v_add_u32 v{vT[f]}, {d}, v{vT[f]}" if d > 0 else f"v_subrev_u32 v{vT[f]}, {-d}, v{vT[f]}" for f in range(4)]; self.cur5 = want
        for f in range(4):
            k, r = self.p5_breg(kk, f)
            for h in range(2): out.append(f"ds_read_b64_tr_b16 {ar(r+2*h,2)}, v{vT[f]} offset:{(kk%16)*4096 + h*2048}")
        return out

    def phase4(self):
        P = self.P
        ACC = 16; BB = 128
        self.order5 = self.KE + list(range(16, 21)) + list(range(9, 16)) + self.KL
        self.cur5 = 0
        P(f"""s_mul_i32 s90, s{self.F4}, 7
        s_add_u32 s91, s90, 6
        s_lshr_b32 s90, s90, 2
        s_lshr_b32 s91, s91, 2
        s_lshl_b32 s92, s{self.F4}, 6
        s_lshl_b32 s86, s{sW}, 4
        s_add_u32 s92, s92, s86
        s_mul_i32 s92, s92, 7168
        s_add_u32 s92, s92, {Z2}
        v_add_u32 v240, 4096, v{vL16}""")
        def pl():
            P(f"""s_lshl_b32 s86, s90, 4
            s_lshl_b32 s87, s91, 4
            s_add_u32 s87, s87, 15
            v_add_u32 v16, s86, v0
            v_min_u32 v16, s87, v16
            v_lshlrev_b32 v16, 2, v16
            s_lshl_b32 s86, s{sX}, 10
            s_add_u32 s86, s86, {F3}""")
            self.poll(16, soff="s86")
        self.wave0(pl)
        P("s_waitcnt vmcnt(0)")
        self.barrier()
        self.stamp("sync3")
        def bload(ks):
            out = [f"s_add_u32 s60, s92, {ks*7168}"]
            for f in range(7):
                out.append(f"buffer_load_dwordx4 {vr(BB+28*(ks%3)+4*f,4)}, v{vL16 if f < 4 else 240}, {S(SWS)}, s60 offen offset:{(f%4)*1024} sc1")
            return out
        for ks in range(2): P.add(bload(ks))
        self.wave0(lambda: self.set_flag(1 << 25, not self.map84))
        P(f"""v_lshrrev_b32 v12, 3, v0
        v_lshl_add_u32 v241, v12, 10, v{vSW}
        s_lshl_b32 s95, s{self.T4}, 2
        s_add_u32 s95, s95, s{sW}
        s_lshl_b32 s88, s{sTB}, 2
        s_add_u32 s88, s88, s{sW}
        s_lshr_b32 s64, s{self.T4}, 1
        s_lshl_b32 s64, s64, 7
        s_add_u32 s64, s64, {F3B}
        v_add_u32 v243, s90, v0
        v_min_u32 v243, s91, v243
        v_lshlrev_b32 v243, 2, v243
        s_mul_i32 s65, s95, 56
        s_mul_i32 s87, s{self.F4}, 7
        s_add_u32 s65, s65, s87
        s_lshl_b32 s65, s65, 9
        s_add_u32 s65, s65, {Z1}
        v_lshlrev_b32 v242, 3, v0
        s_lshl_b32 s66, s95, 5
        v_lshlrev_b32 v252, 1, v{vI}
        s_lshl_b32 s67, s88, 4
        s_lshl_b32 s87, s{sFB}, 1
        s_add_u32 s67, s67, s87
        s_lshl_b32 s67, s67, 10
        s_add_u32 s67, s67, {H}
        s_mul_i32 s93, s88, {28*1024}
        s_add_u32 s93, s93, {U}
        s_mul_i32 s94, s95, 28
        s_mul_i32 s87, s{self.F4}, 7
        s_lshr_b32 s87, s87, 1
        s_add_u32 s94, s94, s87
        s_lshl_b32 s94, s94, 10
        s_add_u32 s94, s94, {U}""")
        for p in range(1, 4):
            P(f"s_add_u32 s86, s{sW}, {p}\ns_and_b32 s86, s86, 3\ns_mul_i32 s86, s86, 21504\ns_add_u32 s86, s86, {(p-1)*7168}")
            P(f"v_add_u32 v{12+p}, s86, v{vL16}")
        P(f"s_mul_i32 s86, s{sW}, 21504\nv_add_u32 v253, s86, v{vL16}")
        Z1R = BB + 84; BS = BB + 98; HR = 244
        fl = f"buffer_load_dword v254, v243, {S(SWS)}, s64 offen sc1"
        wt = []
        for k in self.KT: wt += self.wout(k, 241, "woutT")
        for ks in range(16):
            m = []
            if ks < 15: fp = [(f, p) for f in range(7) for p in range(4)]
            else: fp = [(f, p) for p in (1, 2, 3, 0) for f in range(7)]
            for f, p in fp:
                acc = vr(ACC + (p*7+f)*4, 4)
                m.append(f"{MF} {acc}, {vr(BB+28*(ks%3)+4*f,4)}, {ar((ks*4+p)*4,4)}, {acc if ks else '0'}")
            if ks in (1, 2, 4, 8, 12, 15): self.stamp(f"p4k{ks}", True)
            if ks <= 13:
                ld = bload(ks + 2) + ([fl] if ks == 11 else [])
                body = ld[:1] + interleave(m[:21], ld[1:], 3, 1)
                pre = self.p5_reads(self.KE[ks - 1]) if 1 <= ks <= 7 else []
                P.add(body + mix(m[21:], pre))
            elif ks == 14:
                self.check_retry(fl, f"v_cmp_ne_u32 vcc, s{sE}, v254")
                w = [f"buffer_load_dwordx2 {vr(Z1R+2*f,2)}, v242, {S(SWS)}, s65 offen offset:{f*512} sc1" for f in range(7)]
                w += [f"buffer_load_ushort v{BS}, v252, {S(SBSP)}, s66 offen"]
                P.add(mix(m, w))
            else:
                xw = [f"ds_write_b128 v{12+p}, {vr(ACC+(p*7+f)*4,4)} offset:{f*1024}" for p in range(1, 4) for f in range(7)]
                P.add(mix(m[:10], wt[:9]) + mix(m[10:], weave(xw[:16], wt[9:18])) + xw[16:])
        self.stamp("p4mm")
        ZF = BB; UO = BB + 48
        v = [f"v_lshlrev_b32 v{BS}, 16, v{BS}"]
        for f in range(7):
            for k in range(2):
                v += [f"v_lshlrev_b32 v{ZF+4*f+2*k}, 16, v{Z1R+2*f+k}", f"v_and_b32 v{ZF+4*f+2*k+1}, 0xffff0000, v{Z1R+2*f+k}",
                      f"v_pk_add_f32 {vr(ACC+4*f+2*k,2)}, {vr(ACC+4*f+2*k,2)}, {vr(BS,2)} op_sel_hi:[1,0]"]
        P.add(weave(v, wt[18:30]))
        self.barrier()
        RB = ACC + 28
        for f in range(7):
            for p in range(3): P(f"ds_read_b128 {vr(RB+(p*7+f)*4,4)}, v253 offset:{(p*7+f)*1024}")
        P.add(wt[30:])
        P(f"buffer_load_dwordx4 {vr(HR,4)}, v{vL16}, {S(SWS)}, s67 offen sc1\nbuffer_load_dwordx4 {vr(HR+4,4)}, v{vL16}, {S(SWS)}, s67 offen offset:1024 sc1")
        for f in range(7):
            for p in range(3):
                for k in range(2): P(f"v_pk_add_f32 {vr(ACC+4*f+2*k,2)}, {vr(ACC+4*f+2*k,2)}, {vr(RB+(p*7+f)*4+2*k,2)}")
            for k in range(2): P(f"v_pk_mul_f32 {vr(ACC+4*f+2*k,2)}, {vr(ACC+4*f+2*k,2)}, {vr(ZF+4*f+2*k,2)}")
            for k in range(2): P(f"v_cvt_pk_bf16_f32 v{UO+2*f+k}, v{ACC+4*f+2*k}, v{ACC+4*f+2*k+1}")
        Lo = P.lab("Lo"); Le = P.lab("Le")
        P(f"s_bitcmp1_b32 s{self.F4}, 0\ns_cbranch_scc1 {Lo}")
        P.cond_begin()
        self.local4([f"buffer_store_dwordx4 {vr(UO+4*k,4)}, v{vL16}, {S(SWS)}, s94 offen offset:{k*1024} @SC" for k in range(3)]
                   + [f"buffer_store_dwordx2 {vr(UO+12,2)}, v242, {S(SWS)}, s94 offen offset:3072 @SC"])
        P(f"s_branch {Le}")
        P.cond_end()
        P(f"{Lo}:")
        P.cond_begin()
        self.local4([f"buffer_store_dwordx2 {vr(UO,2)}, v242, {S(SWS)}, s94 offen offset:512 @SC"]
                   + [f"buffer_store_dwordx4 {vr(UO+2+4*k,4)}, v{vL16}, {S(SWS)}, s94 offen offset:{1024+k*1024} @SC" for k in range(3)])
        P.cond_end()
        P(f"{Le}:")
        P(f"""v_bfe_u32 v240, v0, 4, 1
        v_bfe_u32 v13, v0, 5, 1
        v_lshl_add_u32 v240, v240, 1, v13
        v_lshlrev_b32 v240, 4, v240
        v_lshl_add_u32 v240, v{vI}, 10, v240
        s_lshl_b32 s92, s88, 14
        s_lshl_b32 s87, s{sFB}, 7
        s_add_u32 s92, s92, s87
        s_lshl_b32 s66, s{sTB}, 7
        s_add_u32 s66, s66, {F4}
        v_and_b32 v243, 7, v0
        v_lshlrev_b32 v243, 2, v243""")
        P("s_waitcnt vmcnt(0)")
        self.barrier()
        self.wave0(lambda: self.set_flag(1 << 26, not self.map84))
        self.stamp("F4")

    def phase5(self):
        P = self.P
        UF = 16; ACC = 128; HR = 244
        order = self.order5
        late = []
        for k in self.KL: late += self.wout(k, 241, "woutL")
        lm = self.opt.get("late", 0)
        if lm == 0: P.add(late)
        for kk in order[7:16]: P.add(self.p5_reads(kk))
        for f in range(4):
            for k in range(2):
                P(f"v_lshlrev_b32 v{ACC+4*f+2*k}, 16, v{HR+2*f+k}\nv_and_b32 v{ACC+4*f+2*k+1}, 0xffff0000, v{HR+2*f+k}")
        self.wave0(lambda: self.poll(243, soff="s66"))
        P("s_barrier")
        self.stamp("sync4")
        def ul(kk):
            o = [f"s_add_u32 s60, s93, {(kk//4)*4096}"]
            if kk % 7 == 3: return o + [f"buffer_load_dwordx2 {vr(UF+4*kk+2*h,2)}, v242, {S(SWS)}, s60 offen offset:{(kk%4)*1024 + h*512} sc1" for h in range(2)]
            return o + [f"buffer_load_dwordx4 {vr(UF+4*kk,4)}, v{vL16}, {S(SWS)}, s60 offen offset:{(kk%4)*1024} sc1"]
        UD = self.opt.get("UD", 10)
        for i in range(UD): P.add(ul(order[i]))
        if lm == 1: P.add(late)
        for i, kk in enumerate(order):
            m = []
            for f in range(4):
                k, r = self.p5_breg(kk, f); acc = vr(ACC+4*f, 4)
                m.append(f"{MF} {acc}, {ar(r,4)}, {vr(UF+4*kk,4)}, {acc}")
            fl = ul(order[i + UD]) if i + UD < 28 else []
            j = i + 8
            if j == 19: P.wait_tag("woutL"); P("s_barrier")
            if 16 <= j < 28: fl = fl + self.p5_reads(order[j])
            P.add(mix(m, fl))
        OO = 160
        for c in range(2):
            for f in (2*c, 2*c+1):
                for k in range(2): P(f"v_cvt_pk_bf16_f32 v{OO+2*f+k}, v{ACC+4*f+2*k}, v{ACC+4*f+2*k+1}")
        for c in range(2):
            for k in range(2): P(f"v_permlane16_swap_b32 v{OO+4*c+k}, v{OO+4*c+2+k}")
            P(f"buffer_store_dwordx4 {vr(OO+4*c,4)}, v240, {S(SOUT)}, s92 offen offset:{c*64}")
        Lb = P.lab("Lz")
        P(f"s_or_b32 s86, s2, s{sW}\ns_cmp_lg_u32 s86, 0\ns_cbranch_scc1 {Lb}\nv_mov_b32 v5, s{sE}\ns_mov_b32 s86, {EPOCH}\ns_mov_b64 exec, 1\nbuffer_store_dword v5, off, {S(SWS)}, s86 sc1\ns_mov_b64 exec, -1\n{Lb}:")
        self.stamp("end")

    def build(self):
        P = self.P
        self.prologue()
        for k, ph in enumerate([self.phase1, self.phase2, self.phase3, self.phase4, self.phase5]):
            if k < self.stop: ph()
        if self.stamps:
            P("s_memtime s[98:99]\nv_writelane_b32 v7, s98, 63")
            P(f"""v_writelane_b32 v7, s{sM}, 61
            s_lshl_b32 s86, s2, 10
            s_lshl_b32 s87, s{sW}, 8
            s_add_u32 s86, s86, s87
            s_add_u32 s86, s86, {STAMP}
            v_lshlrev_b32 v12, 2, v0
            buffer_store_dword v7, v12, {S(SWS)}, s86 offen""")
        if self.opt.get("dbg"):
            sel = [self.names.index(n) for n in self.opt["dbg"]]
            P("s_load_dwordx2 s[64:65], s[0:1], 72\nv_not_b32 v12, v7\nv_readlane_b32 s86, v12, 0\nv_writelane_b32 v13, s86, 0")
            for k, i in enumerate(sel): P(f"v_readlane_b32 s86, v7, {i}\ns_nop 3\nv_writelane_b32 v13, s86, {k+1}")
            P(f"v_lshlrev_b32 v12, 2, v0\ns_mov_b64 exec, {(1 << (len(sel)+1)) - 1}\ns_cmp_lg_u32 s{sW}, 0\ns_cbranch_scc1 L_end\nglobal_atomic_umax v12, v13, s[64:65] sc1")
        P("L_end:\ns_endpgm")
        A = Asm()
        A.begin_kernel(NAME, 256, 256, 163840)
        A.lines += P.finalize()
        A.end_kernel(NAME, 256, 256)
        return A

HEADER = open("sequential_preLN__linear_attn_block__mixer_gmlp__prompt.s.ref").read().split("; Override")[0]
def generate(path, plain=False, **kw):
    g = G(**kw); A = g.build()
    t = A.text(HEADER)
    if plain: t = t.replace(f"; @launch kernel={NAME} grid", "; @launch grid")
    open(path, "w").write(t)
    return g.names
if __name__ == "__main__":
    import argparse
    ap = argparse.ArgumentParser(); ap.add_argument("out"); ap.add_argument("--stop", type=int, default=99); ap.add_argument("--stamps", action="store_true"); ap.add_argument("--opt", default="{}")
    a = ap.parse_args()
    generate(a.out, plain=True, stop=a.stop, stamps=a.stamps, opt=eval(a.opt))
```

```python
import re

REG_RE = re.compile(r"^(-|\|)?(abs\()?([vas])(\d+|\[(\d+):(\d+)\])\)?\|?$")

def regs_of(tok):
    tok = tok.strip()
    if tok in ("vcc",): return [("s", "vcc_lo"), ("s", "vcc_hi")]
    if tok in ("vcc_lo", "vcc_hi", "m0", "exec_lo", "exec_hi"): return [("s", tok)]
    if tok == "exec": return [("s", "exec_lo"), ("s", "exec_hi")]
    m = REG_RE.match(tok)
    if not m: return []
    k = m.group(3)
    if m.group(5) is not None:
        return [(k, i) for i in range(int(m.group(5)), int(m.group(6)) + 1)]
    return [(k, int(m.group(4)))]

TRANS = ("v_exp_f32", "v_log_f32", "v_rcp_f32", "v_rsq_f32", "v_sqrt_f32", "v_sin_f32", "v_cos_f32")

class Ins:
    __slots__ = ("text", "op", "dst", "src", "kind", "tag", "mods", "stdata", "passes", "A", "B", "C")
    def __init__(self, text, tag=None):
        self.text = text; self.tag = tag
        t = text.split(";")[0].strip()
        parts = t.split(None, 1)
        self.op = op = parts[0]
        rest = parts[1] if len(parts) > 1 else ""
        ops = []; cur = ""; depth = 0
        for ch in rest:
            if ch in "[(": depth += 1
            if ch in "])": depth -= 1
            if ch == "," and depth == 0: ops.append(cur.strip()); cur = ""
            else: cur += ch
        if cur.strip(): ops.append(cur.strip())
        mods = ""
        if ops:
            sp = ops[-1].split(None, 1)
            ops[-1] = sp[0]
            if len(sp) > 1: mods = sp[1]
        self.mods = mods
        self.dst = []; self.src = []; self.stdata = []; self.passes = 0
        self.A = self.B = self.C = []
        R = regs_of
        if op.startswith("v_mfma"):
            self.kind = "mfma"
            self.dst = R(ops[0]); self.A = R(ops[1]); self.B = R(ops[2]); self.C = R(ops[3])
            self.src = self.A + self.B + self.C
            self.passes = 8 if "32x32" in op else 4
        elif op.startswith("ds_"):
            self.kind = "ds"
            if op.startswith("ds_read") or op.startswith("ds_bpermute") or op.startswith("ds_swizzle"):
                self.dst = R(ops[0])
                for o in ops[1:]: self.src += R(o)
            else:
                for o in ops: self.src += R(o)
        elif op.startswith("buffer_") or op.startswith("global_"):
            self.kind = "vmem"
            lds = " lds" in (" " + mods)
            if op.startswith("buffer_inv") or op.startswith("buffer_wbl2"):
                pass
            elif op.startswith("buffer_load"):
                if lds:
                    for o in ops: self.src += R(o)
                    self.src += [("s", "m0")]
                    self.kind = "dma"
                else:
                    self.dst = R(ops[0])
                    for o in ops[1:]: self.src += R(o)
            elif op.startswith("global_load"):
                self.dst = R(ops[0])
                for o in ops[1:]: self.src += R(o)
            elif op.startswith("buffer_store") or op.startswith("buffer_atomic"):
                for o in ops: self.src += R(o)
                self.stdata = R(ops[0])
                if "atomic" in op and "sc0" in mods: self.dst = R(ops[0])
            elif op.startswith("global_store") or op.startswith("global_atomic"):
                for o in ops: self.src += R(o)
                self.stdata = R(ops[1])
            else:
                raise ValueError(text)
        elif op.startswith("s_load") or op.startswith("s_memrealtime") or op.startswith("s_memtime"):
            self.kind = "smem"
            self.dst = R(ops[0])
            for o in ops[1:]: self.src += R(o)
        elif op.startswith("s_"):
            self.kind = "salu"
            if op.startswith(("s_cmp", "s_cbranch", "s_branch", "s_waitcnt", "s_barrier", "s_nop", "s_sleep", "s_endpgm", "s_setprio", "s_bitcmp")):
                for o in ops: self.src += R(o)
                if op.startswith("s_cbranch_vcc"): self.src += R("vcc")
            else:
                self.dst = R(ops[0])
                for o in ops[1:]: self.src += R(o)
                if "saveexec" in op: self.dst += R("exec")
        elif op.startswith("v_"):
            self.kind = "valu"
            if op.startswith("v_cmp"):
                self.dst = R(ops[0])
                for o in ops[1:]: self.src += R(o)
            elif op.startswith("v_permlane") and "swap" in op:
                self.dst = R(ops[0]) + R(ops[1]); self.src = list(self.dst)
            elif op.startswith(("v_add_co", "v_sub_co", "v_addc_co", "v_subb_co")):
                self.dst = R(ops[0]) + R(ops[1])
                for o in ops[2:]: self.src += R(o)
            else:
                self.dst = R(ops[0])
                for o in ops[1:]: self.src += R(o)
                if op.startswith(("v_fmac", "v_dot2c", "v_pk_fmac")) or "_dpp" in op or op.startswith("v_writelane"):
                    self.src += self.dst
                if op.startswith("v_cndmask") and len(ops) == 3: self.src += R("vcc")
        else:
            raise ValueError("unknown op: " + text)

class Prog:
    def __init__(self):
        self.items = []
        self.uid = 0
    def __call__(self, s, tag=None):
        for l in s.split("\n"):
            l = l.strip()
            if not l or l.startswith(";"): continue
            if l.endswith(":"): self.items.append(("label", l[:-1]))
            elif l.startswith("."): self.items.append(("raw", l))
            else: self.items.append(Ins(l, tag))
    def add(self, lst):
        for x in lst:
            if isinstance(x, str): self(x)
            elif isinstance(x, tuple) and x[0] == "T": self(x[1], x[2])
            else: self.items.append(x)
    def lab(self, base="L"):
        self.uid += 1; return f"{base}{self.uid}"
    def wait_tag(self, *tags): self.items.append(("wait_tag", tags))
    def wait_ds(self): self.items.append(("wait_ds",))
    @staticmethod
    def WT(*tags): return ("wait_tag", tags)
    @staticmethod
    def WD(*tags): return ("wait_dstag", tags)
    def cond_begin(self): self.items.append(("cond_begin",))
    def cond_end(self): self.items.append(("cond_end",))
    def alt_begin(self, sreg, fastmod=""):
        self.uid += 1; self.items.append(("alt_begin", sreg, self.uid, fastmod))
    def alt_end(self): self.items.append(("alt_end",))
    def comment(self, t): self.items.append(("raw", "; " + t))

    def finalize(self):
        out = []
        vm = []
        lg = []
        sm = []
        hist = []
        stack = []
        def age(n):
            nonlocal hist
            hist = [(a + n, i) for a, i in hist if a + n < 24]
        def emit_text(t, states=1):
            out.append("    " + t); age(states)
        def need_vm(pred):
            n = None
            for idx, e in enumerate(vm):
                if pred(e):
                    n = sum(1 for y in vm[idx + 1:] if not y["opt"]); last = idx
                    if e["opt"]:
                        for y in vm[idx + 1:]:
                            if y.get("shadow"): n -= 1; break
                            if not y["opt"]: break
            return (n, last) if n is not None else None
        def need_lg(pred):
            n = None
            for idx, e in enumerate(lg):
                if pred(e): n = sum(1 for y in lg[idx + 1:] if not y["opt"]); last = idx
            return (n, last) if n is not None else None
        def do_wait(v, l, smem=False):
            nonlocal vm, lg, sm
            parts = []
            if v is not None:
                v = (min(v[0], 63), v[1])
                parts.append(f"vmcnt({v[0]})"); vm = vm[v[1] + 1:]
            if smem:
                parts.append("lgkmcnt(0)"); lg = []; sm = []
            elif l is not None:
                n = l[0]
                if sm: n = 0
                if n > 15:
                    n = 15
                parts.append(f"lgkmcnt({n})")
                if n == 0: lg = []; sm = []
                else: lg = lg[max(l[1] + 1, len(lg) - n) if all(not y['opt'] for y in lg) else l[1] + 1:]
            if parts: emit_text("s_waitcnt " + " ".join(parts))
        def hazard(i):
            need = 0
            rs = set(i.src); ws = set(i.dst)
            for a, p in hist:
                pd = set(p.dst); req = 0
                if p.kind == "valu":
                    vd = {r for r in pd if r[0] in "va"}; sd = {r for r in pd if r[0] == "s"}
                    if i.kind == "mfma" and vd & rs: req = max(req, 2)
                    if i.kind == "valu":
                        if i.op.startswith(("v_readfirstlane", "v_readlane")) and vd & rs: req = max(req, 1)
                        if ("_dpp" in i.op or i.op.startswith("v_permlane")) and vd & rs: req = max(req, 2)
                        if sd & rs: req = max(req, 2)
                        if p.op.startswith(TRANS) and vd & rs: req = max(req, 1)
                        if p.op.startswith("v_dot2") and vd & (rs | ws):
                            if i.op == p.op:
                                ab = set(i.src[:2]) if not i.op.startswith("v_dot2c") else set(i.src[:2])
                                if vd & ab: req = max(req, 3)
                            else: req = max(req, 3)
                    if p.op.startswith("v_dot2") and i.kind in ("vmem", "ds", "dma", "mfma") and vd & rs: req = max(req, 3)
                    if i.kind in ("vmem", "dma") and sd & rs: req = max(req, 5)
                    if i.kind == "salu" and sd & rs: req = max(req, 1)
                if p.kind == "mfma":
                    n = {4: 8, 8: 12}[p.passes]
                    if i.kind == "mfma":
                        if pd & (set(i.A) | set(i.B)): req = max(req, n)
                        if pd & set(i.C) and not (i.C == p.dst and i.passes == p.passes): req = max(req, n - 2)
                        if pd & ws and not (i.C == p.dst): req = max(req, n - 2)
                    elif i.kind in ("valu", "vmem", "ds", "dma"):
                        if pd & (rs | ws): req = max(req, n)
                    if i.kind == "valu" and set(p.C) & ws: req = max(req, {4: 3, 8: 7}[p.passes])
                if p.kind == "salu" and ("s", "m0") in pd and i.kind == "dma": req = max(req, 1)
                if p.kind == "vmem" and len(p.stdata) >= 3 and set(p.stdata) & ws: req = max(req, 2)
                if req - a > need: need = req - a
            return need
        for it in self.items:
            if isinstance(it, tuple):
                k = it[0]
                if k == "label": out.append(it[1] + ":")
                elif k == "raw": out.append(it[1])
                elif k == "wait_tag":
                    tags = set(it[1])
                    do_wait(need_vm(lambda e: e["tag"] in tags), None)
                elif k == "wait_dstag":
                    tags = set(it[1])
                    do_wait(None, need_lg(lambda e: e["tag"] in tags))
                elif k == "NOPIF": pass
                elif k == "count1":
                    vm.append(dict(dst=set(), tag=None, opt=False, shadow=True))
                elif k == "alt_begin":
                    emit_text(f"s_cmp_eq_u32 s{it[1]}, 0"); emit_text(f"s_cbranch_scc1 La{it[2]}")
                    alt = (len(out), it[2], it[3])
                elif k == "alt_end":
                    body = out[alt[0]:]
                    out[alt[0]:] = [l.replace(" @SC", alt[2]) for l in body] + [f"    s_branch Lb{alt[1]}", f"La{alt[1]}:"] + [l.replace(" @SC", " sc1") for l in body] + [f"Lb{alt[1]}:"]
                elif k == "wait_ds":
                    if lg or sm: do_wait(None, None, smem=True)
                elif k == "cond_begin":
                    stack.append(([dict(e) for e in vm], [dict(e) for e in lg], list(sm), list(hist)))
                    for e in vm: e["old"] = len(stack)
                    for e in lg: e["old"] = len(stack)
                elif k == "cond_end":
                    svm, slg, ssm, shist = stack.pop()
                    d = len(stack) + 1
                    newvm = [dict(e, opt=True) for e in vm if e.get("old", 99) > d or "old" not in e]
                    newlg = [dict(e, opt=True) for e in lg if e.get("old", 99) > d or "old" not in e]
                    vm = svm + newvm; lg = slg + newlg; sm = list(set(ssm) | set(sm))
                    hist = hist + shist
                elif k == "reset":
                    vm = []; lg = []; sm = []
                continue
            i = it
            touched = set(i.src) | set(i.dst)
            if i.op == "s_waitcnt":
                m = re.search(r"vmcnt\((\d+)\)", i.text)
                if m:
                    n = int(m.group(1))
                    if n == 0: vm = []
                    elif not any(e["opt"] for e in vm): vm = vm[max(0, len(vm) - n):]
                m = re.search(r"lgkmcnt\((\d+)\)", i.text)
                if m and int(m.group(1)) == 0: lg = []; sm = []
                emit_text(i.text); continue
            v = need_vm(lambda e: e["dst"] & touched)
            l = need_lg(lambda e: e["dst"] & touched)
            s = bool(set(sm) & touched)
            if v is not None or l is not None or s: do_wait(v, l, s)
            n = hazard(i)
            while n > 0:
                c = min(n, 16); emit_text(f"s_nop {c-1}", c); n -= c
            if i.op == "s_nop":
                emit_text(i.text, int(i.text.split()[1]) + 1); continue
            emit_text(i.text)
            hist.append((0, i))
            if i.kind in ("vmem", "dma"):
                vm.append(dict(dst=set(i.dst), tag=i.tag, opt=False))
                assert sum(1 for e in vm) <= 200
            elif i.kind == "ds": lg.append(dict(dst=set(i.dst), tag=i.tag, opt=False))
            elif i.kind == "smem": sm += i.dst
        return out

def interleave(main, fill, every=1, per=1, start=0):
    out = []; fi = 0
    for idx, m in enumerate(main):
        out.append(m)
        if idx >= start and (idx - start) % every == every - 1:
            for _ in range(per):
                if fi < len(fill): out.append(fill[fi]); fi += 1
    out += fill[fi:]
    return out

def spread(main, fill):
    out = []; n = len(main); m = len(fill); fi = 0
    for idx, x in enumerate(main):
        out.append(x)
        tgt = (idx + 1) * m // n
        while fi < tgt: out.append(fill[fi]); fi += 1
    return out
```

```python
import sys, struct
sys.path.insert(0, "gen")
from asmlib import Asm, vr, ar, sr
from emit import Prog, spread, interleave

NAME = "sequential_preLN__linear_attn_block__mixer_gmlp__prompt_kernel"
def f2u(x): return struct.unpack("<I", struct.pack("<f", x))[0]

F1, F2, F3, F3B, F4, F1B = 0x0, 0x2000, 0x2800, 0x4800, 0x5000, 0x6000
EPOCH = 0x9000; KZ = 0x9080; XID = 0x9100
KV = 0xA000; KVS = 1152
STAMP = 0x80000
HST = 0xC0000
PQ, H, Z2, Z1, U, STATS = 0x100000, 0x300000, 0x500000, 0x900000, 0xD00000, 0x1100000
WS_BYTES = 0x1200000
R1 = 8
SX, SWQKV, SWO, SWIN, SWSP, SBSP, SWOUT, SOUT, SWS = 8, 12, 16, 20, 24, 28, 32, 36, 40
def S(d): return f"s[{d}:{d+3}]"
sTB, sE, sFB, sM, sXCC = 3, 4, 5, 6, 7
sX, sJ, sW, sSPIN = 48, 49, 50, 51
sLOG2E, sEPS6, sK2, sONE = 52, 54, 56, 58
sA8, sA4 = 62, 63
sRB, sCBK = 100, 101
sT4, sF4 = 88, 89
vL16, vI, vG, vFLAG, vSW = 1, 2, 3, 4, 6
vT = [8, 9, 10, 11]
SPIN_MAX = 1 << 16
MF = "v_mfma_f32_16x16x32_bf16"
K1C = -2.302208198
WT, WD = Prog.WT, Prog.WD
NOPIF = ("NOPIF",)

def L(s): return [x.strip() for x in s.split("\n") if x.strip()]
def mix(m, f, lead=0):
    if not m: return list(f)
    return m[:lead] + spread(m[lead:], f)
def weave(a, b, g=3):
    groups = [b[i:i+g] for i in range(0, len(b), g)]
    if not groups: return list(a)
    out = []; n = len(groups); ai = 0
    for k, grp in enumerate(groups):
        tgt = (k * len(a) + len(a) // 2) // n if len(a) else 0
        out += a[ai:tgt]; ai = max(ai, tgt); out += grp
    return out + a[ai:]
def zipped(lists):
    out = []; n = max(len(l) for l in lists)
    for k in range(n):
        for l in lists:
            if k < len(l): out.append(l[k])
    return out

class G:
    def __init__(self, stop=99, stamps=False, opt=None):
        self.P = Prog(); self.stop = stop; self.stamps = stamps; self.nst = 0; self.names = []
        self.opt = opt or {}
        self.map84 = self.opt.get("map84", 1)
        self.T4 = sA8 if self.map84 else sTB; self.F4 = sA4 if self.map84 else sFB
    def stamp(self, name, fine=False):
        if self.stamps and (not fine or self.opt.get("fine")):
            k = self.nst; self.nst += 1; self.names.append(name)
            self.P(f"{'s_memtime' if self.opt.get('cyc') else 's_memrealtime'} s[98:99]\nv_writelane_b32 v7, s98, {k}")
    def dmai(self, voff, srd, soff, tag):
        nt = " nt" if (self.opt.get("nt", 0) >> {SX: 0, SWQKV: 1, SWO: 2, SWIN: 3, SWSP: 4, SWOUT: 5}[srd]) & 1 else ""
        return ("T", f"buffer_load_dwordx4 v{voff}, {S(srd)}, s{soff} offen{nt} lds", tag)
    def srds(self, lst):
        for d, p, n in lst:
            self.P(f"s_mov_b32 s{d}, s{p}\ns_and_b32 s{d+1}, s{p+1}, 0xffff\ns_mov_b32 s{d+2}, {n}\ns_mov_b32 s{d+3}, 0x20000")
    def set_flag(self, mask, local=False):
        P = self.P
        P(f"s_mov_b64 exec, {mask:#x}\nv_mov_b32 v5, s{sE}")
        if local: self.local([f"buffer_store_dword v5, v{vFLAG}, {S(SWS)}, 0 offen @SC"], flag=True)
        else: P(f"buffer_store_dword v5, v{vFLAG}, {S(SWS)}, 0 offen sc1")
        P("s_mov_b64 exec, -1")
    def local(self, items, tag=None, flag=False):
        P = self.P
        dm = self.opt.get("dmode", 1)
        if not flag and dm == 0:
            for x in items: P(x.replace(" @SC", " sc1"), tag)
            return
        P.alt_begin(sM, "" if flag or dm == 1 else {2: " nt", 3: " sc0"}[dm])
        for x in items: P(x, tag)
        P.alt_end()
    def local4(self, items, tag=None):
        if self.map84:
            for x in items: self.P(x.replace(" @SC", " sc1"), tag)
        else: self.local(items, tag)
    def thru(self, items, tag=None):
        for x in items: self.P(x.replace(" @SC", " sc1"), tag)
    def wave(self, w, fn):
        P = self.P; Lb = P.lab("Lw")
        P(f"s_cmp_lg_u32 s{sW}, {w}\ns_cbranch_scc1 {Lb}")
        P.cond_begin(); fn(); P.cond_end()
        P(f"{Lb}:")
    def wave0(self, fn): self.wave(0, fn)
    def spin_tail(self, Lb, E):
        self.P(f"s_add_u32 s{sSPIN}, s{sSPIN}, 1\ns_cbranch_vccz {E}\ns_cmp_lt_u32 s{sSPIN}, {SPIN_MAX}\ns_cbranch_scc1 {Lb}")
    def poll(self, vaddr, x4=False, soff="0"):
        P = self.P; Lb = P.lab("Lp"); E = P.lab("Le")
        P(f"s_mov_b32 s{sSPIN}, 0\n{Lb}:")
        if x4:
            P(f"buffer_load_dwordx4 v[12:15], v{vaddr}, {S(SWS)}, {soff} offen sc1\ns_waitcnt vmcnt(0)")
            P("\n".join(f"v_xor_b32 v{r}, s{sE}, v{r}" for r in range(12, 16)) + "\nv_or3_b32 v12, v12, v13, v14\nv_or_b32 v12, v12, v15\nv_cmp_ne_u32 vcc, 0, v12")
        else:
            P(f"buffer_load_dword v12, v{vaddr}, {S(SWS)}, {soff} offen sc1\ns_waitcnt vmcnt(0)\nv_cmp_ne_u32 vcc, s{sE}, v12")
        self.spin_tail(Lb, E); P(f"{E}:")
    def check_retry(self, load, cmp):
        P = self.P; Lb = P.lab("Lk"); E = P.lab("Le")
        P(f"s_mov_b32 s{sSPIN}, 0\n{cmp}\ns_cbranch_vccz {E}")
        P.cond_begin()
        P(f"{Lb}:\n{load}\ns_waitcnt vmcnt(0)\n{cmp}")
        self.spin_tail(Lb, E)
        P.cond_end(); P(f"{E}:")
    def barrier(self):
        self.P.wait_ds(); self.P("s_barrier")
    def xreduce(self, regs, tmp, ops=("v_permlane32_swap_b32", "v_permlane16_swap_b32")):
        P = self.P
        for op in ops:
            for k, r in enumerate(regs): P(f"v_mov_b32 v{tmp+k}, v{r}")
            for k, r in enumerate(regs): P(f"{op} v{tmp+k}, v{r}")
            for k, r in enumerate(regs): P(f"v_add_f32 v{r}, v{r}, v{tmp+k}")
    def finstats(self, sums, n, outA, outB):
        ls = []
        for k, (s, q) in enumerate(sums):
            ls.append([f"v_mul_f32 v{s}, {f2u(-1.0/n):#x}, v{s}", f"v_mul_f32 v{q}, {f2u(1.0/n):#x}, v{q}",
                       f"v_fma_f32 v{q}, -v{s}, v{s}, v{q}", f"v_max_f32 v{q}, 0, v{q}", f"v_add_f32 v{q}, {f2u(1e-5):#x}, v{q}",
                       f"v_rsq_f32 v{outA[k]}, v{q}", f"v_mul_f32 v{outB[k]}, v{s}, v{outA[k]}"])
        self.P.add(zipped(ls))
    def phi_pair(self, x, t, out):
        return [f"v_pk_mul_f32 {vr(t,2)}, {vr(x,2)}, s[{sLOG2E}:{sLOG2E+1}]",
                f"v_max_f32 v{x}, 0, v{x}", f"v_max_f32 v{x+1}, 0, v{x+1}",
                f"v_min_f32 v{t}, 0, v{t}", f"v_min_f32 v{t+1}, 0, v{t+1}",
                f"v_exp_f32 v{t}, v{t}", f"v_exp_f32 v{t+1}, v{t+1}",
                f"v_pk_add_f32 {vr(x,2)}, {vr(x,2)}, s[{sEPS6}:{sEPS6+1}]",
                f"v_pk_add_f32 {vr(x,2)}, {vr(x,2)}, {vr(t,2)}",
                f"v_cvt_pk_bf16_f32 v{out}, v{x}, v{x+1}"]
    def gelu_pair(self, x, t, k1):
        return [f"v_pk_mul_f32 {vr(t,2)}, {vr(x,2)}, {vr(x,2)}",
                f"v_pk_fma_f32 {vr(t,2)}, {vr(t,2)}, s[{sK2}:{sK2+1}], {vr(k1,2)}",
                f"v_pk_mul_f32 {vr(t,2)}, {vr(t,2)}, {vr(x,2)}",
                f"v_exp_f32 v{t}, v{t}", f"v_exp_f32 v{t+1}, v{t+1}",
                f"v_pk_add_f32 {vr(t,2)}, {vr(t,2)}, s[{sONE}:{sONE+1}]",
                f"v_rcp_f32 v{t}, v{t}", f"v_rcp_f32 v{t+1}, v{t+1}",
                f"v_pk_mul_f32 {vr(x,2)}, {vr(x,2)}, {vr(t,2)}"]
    @staticmethod
    def bc(r): return vr(r & ~1, 2), r & 1
    def affine_pair(self, x, t, A, B, cs, a_bc):
        if a_bc:
            bn, bb = self.bc(B); an, ab = self.bc(A)
            return [f"v_pk_mul_f32 {vr(t,2)}, {vr(cs,2)}, {bn} op_sel:[0,{bb}] op_sel_hi:[1,{bb}]",
                    f"v_pk_fma_f32 {vr(x,2)}, {vr(x,2)}, {an}, {vr(t,2)} op_sel:[0,{ab},0] op_sel_hi:[1,{ab},1]"]
        cn, cb = self.bc(cs)
        return [f"v_pk_mul_f32 {vr(t,2)}, {vr(B,2)}, {cn} op_sel:[0,{cb}] op_sel_hi:[1,{cb}]",
                f"v_pk_fma_f32 {vr(x,2)}, {vr(x,2)}, {vr(A,2)}, {vr(t,2)}"]

    def prologue(self):
        P = self.P
        P(f"""
        s_cmp_ge_u32 s2, 256
        s_cbranch_scc1 L_end
        s_load_dwordx4 s[64:67], s[0:1], 0
        s_load_dwordx2 s[84:85], s[0:1], 80
        s_load_dwordx2 s[68:69], s[0:1], 16
        s_load_dwordx8 s[72:79], s[0:1], 32
        s_load_dwordx2 s[80:81], s[0:1], 64
        v_lshrrev_b32 v1, 6, v0
        v_and_b32 v0, 63, v0
        v_readfirstlane_b32 s{sW}, v1
        s_and_b32 s{sX}, s2, 7
        s_lshr_b32 s{sJ}, s2, 3
        v_lshrrev_b32 v{vG}, 4, v0
        s_lshr_b32 s{sA8}, s{sX}, 1
        s_lshl_b32 s{sA8}, s{sA8}, 3
        s_lshr_b32 s86, s{sJ}, 2
        s_add_u32 s{sA8}, s{sA8}, s86
        s_and_b32 s{sA4}, s{sX}, 1
        s_lshl_b32 s{sA4}, s{sA4}, 2
        {f's_xor_b32 s86, s86, s{sJ}' if self.opt.get('hx') else f's_mov_b32 s86, s{sJ}'}
        s_and_b32 s86, s86, 3
        s_add_u32 s{sA4}, s{sA4}, s86
        """)
        if self.stamps: P("v_mov_b32 v7, 0\ns_memtime s[98:99]\nv_writelane_b32 v7, s98, 62")
        self.stamp("start")

    def late_setup(self):
        P = self.P
        self.srds([(SWS, 84, WS_BYTES)])
        P(f"s_mov_b32 s86, {EPOCH}\nbuffer_load_dword v225, off, {S(SWS)}, s86 sc1")
        self.srds([(SWO, 68, 524288), (SWIN, 72, 1835008), (SWSP, 74, 8388608), (SBSP, 76, 4096), (SWOUT, 78, 917504), (SOUT, 80, 2097152)])
        P(f"""
        v_lshlrev_b32 v{vL16}, 4, v0
        v_and_b32 v{vI}, 15, v0
        s_getreg_b32 s{sXCC}, hwreg(HW_REG_XCC_ID, 0, 4)
        s_lshr_b32 s{sRB}, s{sJ}, 4
        s_lshl_b32 s86, s{sX}, 1
        s_add_u32 s{sRB}, s{sRB}, s86
        s_and_b32 s{sCBK}, s{sJ}, 15
        s_lshr_b32 s{sTB}, s{sJ}, 3
        s_lshl_b32 s86, s{sX}, 2
        s_add_u32 s{sTB}, s{sTB}, s86
        s_and_b32 s{sFB}, s{sJ}, 7
        s_lshl_b32 s86, s2, 2
        v_lshl_add_u32 v{vFLAG}, v0, 10, s86
        s_lshl_b32 s86, s{sCBK}, 4
        s_add_u32 s86, s86, s{sRB}
        s_lshl_b32 s86, s86, 2
        s_add_u32 s86, s86, {(F3 - 17*1024) & 0xffffffff}
        v_lshl_add_u32 v5, v0, 10, s86
        v_cmp_lt_u32 vcc, 16, v0
        v_cndmask_b32 v{vFLAG}, v{vFLAG}, v5, vcc
        s_lshl_b32 s86, s{sRB}, 7
        s_lshl_b32 s87, s{sCBK}, 2
        s_add_u32 s86, s86, s87
        s_add_u32 s87, s86, {F2}
        v_writelane_b32 v{vFLAG}, s87, 16
        s_add_u32 s87, s86, {F3B}
        v_writelane_b32 v{vFLAG}, s87, 25
        s_lshl_b32 s86, s{sA8 if self.map84 else sTB}, 7
        s_lshl_b32 s87, s{sA4 if self.map84 else sFB}, 2
        s_add_u32 s86, s86, s87
        s_add_u32 s87, s86, {F4}
        v_writelane_b32 v{vFLAG}, s87, 26
        s_lshl_b32 s86, s{sA8}, 7
        s_lshl_b32 s87, s{sA4}, 2
        s_add_u32 s86, s86, s87
        s_add_u32 s87, s86, {F1B}
        v_writelane_b32 v{vFLAG}, s87, 27
        s_mov_b32 s{sLOG2E}, {f2u(1.4426950408889634):#x}
        s_mov_b32 s{sLOG2E+1}, {f2u(1.4426950408889634):#x}
        s_mov_b32 s{sEPS6}, {f2u(1e-6):#x}
        s_mov_b32 s{sEPS6+1}, {f2u(1e-6):#x}
        s_mov_b32 s{sK2}, {f2u(K1C*0.044715):#x}
        s_mov_b32 s{sK2+1}, {f2u(K1C*0.044715):#x}
        s_mov_b32 s{sONE}, 1.0
        s_mov_b32 s{sONE+1}, 1.0
        """)

    def phase1(self):
        P = self.P
        SCR = 147456
        vX = [216, 217]; vWd = [218, 219]; vA = [220, 221]; vO = [222, 223]; vB = 224
        OWN = 16; BK = 24; BV = 32; ONES = 40; ACK = 48; ACV = 64; CSK = 80; CSV = 84; DS = 88; DQ = 92
        ACQ = 96; CSQ = 112; ST = 120; STQ = 152
        P(f"""
        s_lshl_b32 s88, s{sA8}, 16
        s_lshl_b32 s87, s{sW}, 14
        s_add_u32 s88, s88, s87
        s_lshl_b32 s90, s{sA4}, 7
        s_mul_i32 s87, s{sW}, {16*3072}
        s_add_u32 s90, s90, s87
        s_lshl_b32 s91, s{sW}, 11
        v_lshrrev_b32 v5, 3, v0
        v_and_b32 v6, 7, v0
        v_xor_b32 v12, v6, v{vG}
        v_lshlrev_b32 v12, 4, v12
        v_lshl_add_u32 v{vX[0]}, v5, 10, v12
        v_xor_b32 v{vX[1]}, 64, v{vX[0]}
        v_add_u32 v{vX[1]}, 8192, v{vX[1]}
        v_and_b32 v12, 2, v5
        v_xor_b32 v12, v6, v12
        v_lshlrev_b32 v12, 4, v12
        v_mul_u32_u24 v13, 3072, v5
        v_add_u32 v{vWd[0]}, v13, v12
        v_xor_b32 v{vWd[1]}, 64, v{vWd[0]}
        v_add_u32 v{vWd[1]}, {8*3072}, v{vWd[1]}
        s_waitcnt lgkmcnt(0)
        """)
        self.srds([(SX, 64, 2097152), (SWQKV, 66, 1572864)])
        def issue_stage(s):
            slot = (s % 6) * 24576; out = []
            if s < 8:
                parts = [(0, SX, vX, 88, s * 128), (8192, SWQKV, vWd, 90, s * 64 * 3072 + 1024), (16384, SWQKV, vWd, 90, s * 64 * 3072 + 2048)]
            else:
                parts = [(8192 * k, SWQKV, vWd, 90, c * 64 * 3072) for k, c in enumerate(range(3 * (s - 8), min(8, 3 * (s - 8) + 3)))]
            for lo, srd, vo, sb, so in parts:
                out.append([f"s_add_u32 m0, s91, {slot + lo}", f"s_add_u32 s60, s{sb}, {so}", self.dmai(vo[0], srd, 60, f"st{s}")])
                out.append([f"s_add_u32 m0, s91, {slot + lo + 1024}", self.dmai(vo[1], srd, 60, f"st{s}")])
            return out
        if self.opt.get("rot1", 2):
            P(f"s_lshr_b32 s92, s{sJ}, 2" if self.opt.get("rot1", 2) == 1 else f"s_lshr_b32 s92, s{sJ}, 2\ns_and_b32 s92, s92, 6")
            def issue_stage(s):
                slot = (s % 6) * 24576; out = []
                def two(lo, srd, vo, pre):
                    out.append([f"s_add_u32 m0, s91, {slot + lo}"] + pre + [self.dmai(vo[0], srd, 60, f"st{s}")])
                    out.append([f"s_add_u32 m0, s91, {slot + lo + 1024}", self.dmai(vo[1], srd, 60, f"st{s}")])
                if s < 8:
                    two(0, SX, vX, [f"s_add_u32 s61, s92, {s}", "s_and_b32 s61, s61, 7", "s_lshl_b32 s60, s61, 7", "s_add_u32 s60, s60, s88"])
                    two(8192, SWQKV, vWd, [f"s_mul_i32 s61, s61, {64*3072}", "s_add_u32 s61, s61, s90", "s_add_u32 s60, s61, 1024"])
                    two(16384, SWQKV, vWd, ["s_add_u32 s60, s61, 2048"])
                else:
                    for k, c in enumerate(range(3 * (s - 8), min(8, 3 * (s - 8) + 3))):
                        two(8192 * k, SWQKV, vWd, [f"s_add_u32 s61, s92, {c}", "s_and_b32 s61, s61, 7", f"s_mul_i32 s61, s61, {64*3072}", "s_add_u32 s60, s61, s90"])
                return out
        flat = lambda g: [x for y in g for x in y]
        D = self.opt.get("D", 3)
        self.stamp("pre", True)
        for s in range(2): P.add(flat(issue_stage(s)))
        self.stamp("iss01", True)
        self.late_setup()
        P(f"""s_lshl_b32 s93, s{sA4}, 2
        s_add_u32 s93, s93, s{sW}
        s_mul_i32 s94, s93, {KVS}
        s_add_u32 s94, s94, {KV}
        s_lshl_b32 s95, s{sA4}, 2
        s_add_u32 s95, s95, {KZ}
        v_lshlrev_b32 v226, 7, v0""")
        Lb = P.lab("Lz")
        P(f"s_cmp_lg_u32 s{sA8}, 0\ns_cbranch_scc1 {Lb}"); P.cond_begin()
        P(f"""v_mov_b32 v12, 0
        v_mov_b32 v13, 0
        v_mov_b32 v14, 0
        v_mov_b32 v15, 0
        buffer_store_dwordx4 v[12:15], v{vL16}, {S(SWS)}, s94 offen sc1
        s_mov_b64 exec, 0xff
        buffer_store_dwordx4 v[12:15], v{vL16}, {S(SWS)}, s94 offen offset:1024 sc1
        s_mov_b64 exec, -1""")
        P.cond_end(); P(f"{Lb}:")
        def w0():
            P(f"""s_getpc_b64 s[86:87]
            L_pc:
            s_and_b32 s61, s{sJ}, 7
            s_lshl_b32 s61, s61, 13
            v_add_u32 v231, s61, v226
            v_min_u32 v231, L_end-L_pc, v231
            global_load_dword v239, v231, s[86:87]""")
        self.wave(0, w0)
        self.wave(1, lambda: P(f"s_lshl_b32 s86, s2, 13\ns_mov_b32 exec_lo, 0xfcfcfcfc\ns_mov_b32 exec_hi, 0xfcfcfcfc\nbuffer_load_dword v235, v226, {S(SX)}, s86 offen\ns_mov_b64 exec, -1"))
        self.wave(2, lambda: P(f"s_mul_i32 s86, s2, {36*128}\ns_add_u32 s86, s86, {3072*128}\ns_mov_b32 exec_hi, 15\nbuffer_load_dword v236, v226, {S(SWQKV)}, s86 offen\ns_mov_b64 exec, -1"))
        self.wave(3, lambda: P(f"""s_lshl_b32 s86, s{sX}, 7
            s_lshl_b32 s87, s{sJ}, 2
            s_add_u32 s86, s86, s87
            s_add_u32 s86, s86, {XID}
            v_mov_b32 v5, s{sXCC}
            s_mov_b64 exec, 1
            buffer_store_dword v5, off, {S(SWS)}, s86 sc1
            s_mov_b64 exec, -1"""))
        P.items.append(("count1",))
        def pf1(srd, per, d):
            P(f"s_lshl_b32 s86, s2, 2\ns_add_u32 s86, s86, s{sW}\ns_mul_i32 s86, s86, {per*128}\ns_mov_b64 exec, {(1<<per)-1}\nbuffer_load_dword v{d}, v226, {S(srd)}, s86 offen\ns_mov_b64 exec, -1")
        def hook(pt):
            if self.opt.get("pwo", 7) == pt: pf1(SWO, 4, 232)
            if self.opt.get("pwin", 7) == pt: pf1(SWIN, 14, 233)
            if self.opt.get("pwout", 7) == pt: pf1(SWOUT, 7, 234)
        for s in range(2, D): P.add(flat(issue_stage(s)))
        P(f"""
        v_lshrrev_b32 v12, 1, v{vI}
        v_xor_b32 v12, v12, v{vG}
        v_lshlrev_b32 v12, 4, v12
        v_lshl_add_u32 v{vA[0]}, v{vI}, 7, v12
        v_xor_b32 v{vA[1]}, 64, v{vA[0]}
        v_add_u32 v{vO[0]}, s91, v{vA[0]}
        v_add_u32 v{vO[1]}, s91, v{vA[1]}
        v_lshrrev_b32 v12, 2, v{vI}
        v_lshl_add_u32 v13, v{vG}, 3, v12
        v_and_b32 v14, 2, v12
        v_and_b32 v15, 1, v{vG}
        v_lshl_or_b32 v14, v15, 2, v14
        v_bfe_u32 v15, v0, 1, 1
        s_lshl_b32 s86, s{sW}, 1
        v_add_u32 v15, s86, v15
        v_xor_b32 v14, v14, v15
        v_lshlrev_b32 v14, 4, v14
        v_lshl_add_u32 v14, v13, 7, v14
        v_and_b32 v15, 1, v0
        v_lshl_add_u32 v{vB}, v15, 3, v14
        """)
        for k in range(4): P(f"v_mov_b32 v{ONES+k}, 0x3f803f80")
        P(f"""s_lshl_b32 s86, s{sW}, 6
        s_add_u32 s86, s86, {SCR}
        v_lshl_add_u32 v212, v{vI}, 2, s86
        v_lshlrev_b32 v213, 4, v{vG}
        v_add_u32 v213, {SCR}, v213
        v_lshlrev_b32 v214, 2, v{vI}
        v_add_u32 v214, {SCR}, v214
        s_add_u32 s86, s91, {SCR + 1024}
        v_add_u32 v227, s86, v{vL16}
        v_lshl_add_u32 v228, v{vG}, 4, s86
        v_lshl_add_u32 v229, v0, 2, s86
        v_lshlrev_b32 v215, 2, v0
        v_and_b32 v12, 3, v0
        v_cmp_eq_u32 s[44:45], 1, v12
        v_cmp_eq_u32 s[46:47], 2, v12
        v_cmp_eq_u32 s[82:83], 3, v12""")
        cur = [0]
        def setbase(slot, regs):
            want = (slot // 2) * 49152; out = []
            if want != cur[0]:
                out = [f"v_add_u32 v{r}, {want - cur[0]}, v{r}" if want > cur[0] else f"v_subrev_u32 v{r}, {cur[0] - want}, v{r}" for r in regs]
                cur[0] = want
            return (slot % 2) * 24576, out
        def reads(ks, so):
            t = ks & 1; out = []
            for base, lo in ((BK, 8192), (BV, 16384)):
                for h in range(2): out.append(f"ds_read_b64_tr_b16 {vr(base+4*t+2*h,2)}, v{vB} offset:{so + lo + t*4096 + h*512}")
            for rf in range(4): out.append(f"ds_read_b128 {ar((ks*4+rf)*4,4)}, v{vA[t]} offset:{so + rf*2048}")
            out.append(f"ds_read_b128 {vr(OWN+4*t,4)}, v{vO[t]} offset:{so}")
            return out
        def mfmas(ks):
            t = ks & 1; m = []
            c = lambda r: vr(r, 4) if ks else "0"
            m.append(f"{MF} {vr(DS,4)}, {vr(OWN+4*t,4)}, {vr(ONES,4)}, {c(DS)}")
            m.append(f"{MF} {vr(DQ,4)}, {vr(OWN+4*t,4)}, {vr(OWN+4*t,4)}, {c(DQ)}")
            m.append(f"{MF} {vr(CSK,4)}, {vr(ONES,4)}, {vr(BK+4*t,4)}, {c(CSK)}")
            m.append(f"{MF} {vr(CSV,4)}, {vr(ONES,4)}, {vr(BV+4*t,4)}, {c(CSV)}")
            for rf in range(4):
                for base, acc in ((BK, ACK), (BV, ACV)):
                    m.append(f"{MF} {vr(acc+4*rf,4)}, {ar((ks*4+rf)*4,4)}, {vr(base+4*t,4)}, {c(acc+4*rf)}")
            return m
        def lay(m, r, g):
            if not m: return r + flat(g)
            g = g + [[]] * (3 - len(g))
            return mix(m[:4], r[:5] + g[0]) + mix(m[4:7], r[5:]) + mix(m[7:9], g[1]) + m[9:10] + mix(m[10:], g[2])
        for s in range(8):
            P.wait_tag(f"st{s}"); self.barrier()
            if s == 0: self.stamp("st0")
            else: self.stamp(f"st{s}", True)
            if s == 2:
                P(f"v_readfirstlane_b32 s{sE}, v225\ns_add_u32 s{sE}, s{sE}, 1")
                Lb = P.lab("Lz")
                P(f"s_or_b32 s86, s{sA8}, s{sW}\ns_cmp_lg_u32 s86, 0\ns_cbranch_scc1 {Lb}"); P.cond_begin()
                P(f"v_mov_b32 v5, s{sE}\ns_mov_b64 exec, 1\nbuffer_store_dword v5, off, {S(SWS)}, s95 sc1\ns_mov_b64 exec, -1")
                P.cond_end(); P(f"{Lb}:")
            so, adj = setbase(s % 6, vA + vO + [vB])
            iss = issue_stage(s + D) if s + D <= 10 else []
            if s == 6: P(f"buffer_load_dword v230, off, {S(SWS)}, s95 sc1")
            hook(s)
            h = len(iss) // 2
            P.add(adj + lay(mfmas(2*s - 1) if s else [], reads(2*s, so), iss[:h]))
            P.wait_ds()
            P.add(lay(mfmas(2*s), reads(2*s + 1, so), iss[h:]))
        for s in range(8 + D, 11): P.add(flat(issue_stage(s)))
        m = mfmas(15)
        sel = []
        for k, sm in ((1, 44), (2, 46), (3, 82)):
            sel += [f"v_cndmask_b32 v{DS}, v{DS}, v{DS+k}, s[{sm}:{sm+1}]", f"v_cndmask_b32 v{DQ}, v{DQ}, v{DQ+k}, s[{sm}:{sm+1}]"]
        fin = [f"v_mul_f32 v{DS}, {f2u(-1.0/512):#x}, v{DS}", f"v_mul_f32 v{DQ}, {f2u(1.0/512):#x}, v{DQ}", f"v_fma_f32 v{DQ}, -v{DS}, v{DS}, v{DQ}",
               f"v_max_f32 v{DQ}, 0, v{DQ}", f"v_add_f32 v{DQ}, {f2u(1e-5):#x}, v{DQ}", f"v_rsq_f32 v{DS+1}, v{DQ}"]
        P.add(m[:6] + mix(m[6:], sel + fin))
        P(f"""v_mul_f32 v{DS+2}, v{DS}, v{DS+1}
        s_mov_b32 exec_lo, 0x00f0000f
        s_mov_b32 exec_hi, 0xf0000f00
        ds_write_b32 v212, v{DS+1}
        ds_write_b32 v212, v{DS+2} offset:256
        s_mov_b64 exec, -1""")
        self.stamp("p1gemm")
        self.barrier()
        for rf in range(4):
            P(f"ds_read_b128 {vr(ST+8*rf,4)}, v213 offset:{rf*64}\nds_read_b128 {vr(ST+8*rf+4,4)}, v213 offset:{256+rf*64}")
        for rf in range(4):
            P(f"ds_read_b32 v{STQ+2*rf}, v214 offset:{rf*64}\nds_read_b32 v{STQ+2*rf+1}, v214 offset:{256+rf*64}")
        PK = 160; PV = 168; TT = 176; KVD = 184; ZD = 188
        for rf in range(4):
            ls = []
            for hp in range(2):
                x = ACK + 4*rf + 2*hp; t = TT + 2*hp
                ls.append(self.affine_pair(x, t, ST+8*rf+2*hp, ST+8*rf+4+2*hp, CSK, False) + self.phi_pair(x, t, PK + 2*rf + hp))
                x = ACV + 4*rf + 2*hp; t = TT + 4 + 2*hp
                ls.append(self.affine_pair(x, t, ST+8*rf+2*hp, ST+8*rf+4+2*hp, CSV, False) + [f"v_cvt_pk_bf16_f32 v{PV+2*rf+hp}, v{x}, v{x+1}"])
            P.add(zipped(ls))
        p2a, p2b = self.p2_setup()
        P(f"""{MF} {vr(KVD,4)}, {vr(PK,4)}, {vr(PV,4)}, 0
        {MF} {vr(ZD,4)}, {vr(PK,4)}, {vr(ONES,4)}, 0
        {MF} {vr(KVD,4)}, {vr(PK+4,4)}, {vr(PV+4,4)}, {vr(KVD,4)}
        {MF} {vr(ZD,4)}, {vr(PK+4,4)}, {vr(ONES,4)}, {vr(ZD,4)}""")
        P.add(p2a[:8])
        P(f"ds_write_b128 v227, {vr(KVD,4)}\nds_write_b128 v228, {vr(ZD,4)} offset:1024")
        P.add(p2a[8:])
        P.wait_ds()
        for t in range(5): P(f"ds_read_b32 v{192+t}, v229 offset:{t*256}")
        self.check_retry(f"buffer_load_dword v230, off, {S(SWS)}, s95 sc1", f"v_cmp_ne_u32 vcc, s{sE}, v230")
        for t in range(4): P(f"buffer_atomic_add_f32 v{192+t}, v215, {S(SWS)}, s94 offen offset:{t*256} sc1", "atom")
        P(f"s_mov_b64 exec, 0xffff\nbuffer_atomic_add_f32 v196, v215, {S(SWS)}, s94 offen offset:1024 sc1\ns_mov_b64 exec, -1", "atom")
        self.stamp("atom")
        hook(8)
        def qreads(ks):
            c = ks >> 1; t = ks & 1
            so, adj = setbase(2 + c // 3, [vB])
            return adj + [f"ds_read_b64_tr_b16 {vr(BK+4*(ks&3)+2*h,2)}, v{vB} offset:{so + (c%3)*8192 + t*4096 + h*512}" for h in range(2)]
        def qm(ks):
            b = vr(BK+4*(ks&3),4)
            out = [f"{MF} {vr(ACQ+4*rf,4)}, {b}, {ar((ks*4+rf)*4,4)}, {vr(ACQ+4*rf,4) if ks else '0'}" for rf in range(4)]
            return out + [f"{MF} {vr(CSQ,4)}, {b}, {vr(ONES,4)}, {vr(CSQ,4) if ks else '0'}"]
        P.wait_tag("st10"); self.barrier()
        P.add(qreads(0) + qreads(1))
        wo_e = self.wo_dma(0)
        p2b = p2b + L(f"""s_lshl_b32 s87, s{sA8}, 6
        s_add_u32 s87, s87, s93
        s_lshl_b32 s87, s87, 10
        s_add_u32 s64, s87, {PQ}
        s_add_u32 s65, s64, 32768""")
        n = (len(p2b) + 15) // 16
        for ks in range(16):
            P.add(mix(qm(ks), (qreads(ks + 2) if ks + 2 < 16 else []) + wo_e[len(wo_e)*ks//16:len(wo_e)*(ks+1)//16] + p2b[n*ks:n*ks+n]))
        PQR = 160
        P.wait_tag("atom"); self.barrier()
        self.wave0(lambda: self.set_flag((1 << R1) - 1))
        self.stamp("F1a")
        hook(9)
        wo_l = self.wo_dma(1)
        for p in range(2):
            ls = []
            for rf in (2*p, 2*p+1):
                for hp in range(2):
                    x = ACQ + 4*rf + 2*hp; t = TT + 2*((2*rf+hp) % 4)
                    ls.append(self.affine_pair(x, t, STQ+2*rf, STQ+2*rf+1, CSQ+2*hp, True) + self.phi_pair(x, t, PQR + 2*rf + hp))
            P.add(zipped(ls))
            P(f"buffer_store_dwordx4 {vr(PQR+4*p,4)}, v{vL16}, {S(SWS)}, s{64+p} offen sc1", "pq")
        nw = self.opt.get("nw", 8)
        nw = len(wo_l) * nw // 48
        P.add(wo_l[:3*nw])
        P.wait_tag("pq")
        P("s_barrier")
        self.wave0(lambda: self.set_flag(1 << 27))
        self.stamp("F1")
        hook(10)
        P.add(wo_l[3*nw:])

    def p2_setup(self):
        a = L(f"""
        s_lshr_b32 s88, s{sJ}, 2
        s_lshl_b32 s86, s{sX}, 3
        s_add_u32 s88, s88, s86
        s_and_b32 s89, s{sJ}, 3
        v_lshrrev_b32 v12, 3, v0
        v_and_b32 v13, 6, v12
        v_and_b32 v14, 7, v0
        v_xor_b32 v13, v13, v14
        v_lshlrev_b32 v{vSW}, 4, v13
        v_lshl_add_u32 v200, v12, 10, v{vSW}
        s_lshl_b32 s90, s{sW}, 17
        s_lshl_b32 s86, s89, 8
        s_add_u32 s90, s90, s86
        s_lshl_b32 s91, s{sW}, 14
        s_add_u32 s96, s91, 65536
        s_cmp_eq_u32 s{sW}, 3
        s_cselect_b32 s91, 131072, s91""")
        b = L(f"""
        v_lshrrev_b32 v12, 2, v{vI}
        v_lshl_add_u32 v12, v{vG}, 2, v12
        v_and_b32 v13, 6, v12
        v_bfe_u32 v14, v0, 1, 1
        v_xor_b32 v13, v13, v14
        v_and_b32 v14, 1, v0
        v_lshlrev_b32 v14, 3, v14
        v_lshl_add_u32 v14, v12, 7, v14
        v_lshl_add_u32 v{vT[0]}, v13, 4, v14
        v_xor_b32 v{vT[1]}, 32, v{vT[0]}
        v_xor_b32 v{vT[2]}, 64, v{vT[0]}
        v_xor_b32 v{vT[3]}, 96, v{vT[0]}
        s_and_b32 s86, s{sW}, 1
        s_lshl_b32 s86, s86, 6""")
        for p in range(4):
            b += L(f"s_add_u32 s87, s{sW}, {p}\ns_and_b32 s87, s87, 2\ns_lshl_b32 s87, s87, 12\ns_add_u32 s87, s87, s91")
            for cf in range(2):
                b += [f"v_xor_b32 v{204+2*p+cf}, s86, v{vT[2*(p&1)+cf]}", f"v_add_u32 v{204+2*p+cf}, s87, v{204+2*p+cf}"]
        return a, b
    def wo_dma(self, half):
        out = []
        for i in range(8):
            for st in range(2):
                if self.opt.get('rotwo', 0):
                    if st == 0:
                        out += [f"s_add_u32 s61, s88, {i}", "s_and_b32 s61, s61, 7", "s_lshl_b32 s66, s61, 10", f"s_add_u32 s66, s66, s{96 if half else 91}", "s_mov_b32 m0, s66",
                                "s_lshl_b32 s61, s61, 13", "s_add_u32 s61, s61, s90", f"s_add_u32 s60, s61, {8*half*8192}", self.dmai(200, SWO, 60, f"wo{2*half}")]
                    else:
                        out += ["s_add_u32 m0, s66, 8192", "s_add_u32 s60, s60, 128", self.dmai(200, SWO, 60, f"wo{2*half}")]
                else:
                    out += [f"s_add_u32 m0, s{96 if half else 91}, {st*8192 + i*1024}", f"s_add_u32 s60, s90, {(8*half+i)*8192 + st*128}", self.dmai(200, SWO, 60, f"wo{2*half + i//4}")]
        return out
    def win_setup(self, v):
        return L(f"""v_lshrrev_b32 v{v}, 3, v0
        v_mul_u32_u24 v{v}, 3584, v{v}
        v_add_u32 v{v}, v{v}, v{vSW}
        s_min_u32 s70, s{sCBK}, 13
        s_lshl_b32 s70, s70, 7
        s_mul_i32 s71, s{sW}, {8*3584}
        s_add_u32 s70, s70, s71
        s_lshl_b32 s71, s{sW}, 10
        s_and_b32 s86, s{sRB}, 1
        s_mul_i32 s78, s86, {8*4096}
        s_mul_i32 s79, s86, {8*32*3584}
        s_mul_i32 s80, s86, {self.opt.get('nw1', 10)//2*4096}
        s_mul_i32 s81, s86, {self.opt.get('nw1', 10)//2*32*3584}""")
    def win_dma(self, half, t, v):
        n = 16 if half == 0 else self.opt.get('nw1', 10)
        if self.opt.get('rotw', 0) and t < n and n % 2 == 0:
            sg = "s_add_u32" if t < n // 2 else "s_sub_u32"
            r = 78 if half == 0 else 80
            return [f"s_add_u32 m0, s71, {half*65536 + t*4096}", f"{sg} m0, m0, s{r}", f"s_add_u32 s60, s70, {t*32*3584 + (1792 if half == 0 else 0)}", f"{sg} s60, s60, s{r+1}", self.dmai(v, SWIN, 60, f"win{half}")]
        return [f"s_add_u32 m0, s71, {half*65536 + t*4096}", NOPIF, f"s_add_u32 s60, s70, {t*32*3584 + (1792 if half == 0 else 0)}", NOPIF, self.dmai(v, SWIN, 60, f"win{half}")]

    def win0_dma(self, v):
        out = L(f"s_min_u32 s72, s{sCBK}, 13\ns_lshl_b32 s72, s72, 7\ns_mul_i32 s73, s{sW}, {128*3584}\ns_add_u32 s72, s72, s73\ns_lshl_b32 s73, s{sW}, 14")
        for i in range(16):
            out += [f"s_add_u32 m0, s73, {i*1024}", f"s_add_u32 s60, s72, {i*8*3584 + 1792}", self.dmai(v, SWIN, 60, "win0")]
        return out

    def phase2(self):
        P = self.P
        EX = 114688
        XR = 244; EPSQ = 124
        P(f"""s_lshl_b32 s86, s88, 15
        s_lshl_b32 s87, s89, 8
        s_add_u32 s86, s86, s87
        s_lshl_b32 s87, s{sW}, 6
        s_add_u32 s86, s86, s87
        s_add_u32 s87, s86, 16384
        v_lshlrev_b32 v12, 3, v{vG}
        v_lshl_add_u32 v12, v{vI}, 10, v12""")
        for a in range(2):
            for cf in range(2): P(f"buffer_load_dwordx2 {vr(XR+(a*2+cf)*2,2)}, v12, {S(SX)}, s{86+a} offen offset:{cf*32}")
        P(f"""s_lshl_b32 s86, s{sW}, 3
        s_mul_i32 s92, s86, {KVS}
        s_add_u32 s92, s92, {KV}
        s_add_u32 s93, s92, {4*KVS}
        s_lshl_b32 s94, s88, 5
        s_add_u32 s94, s94, s86
        s_lshl_b32 s94, s94, 10
        s_add_u32 s94, s94, {PQ}
        s_add_u32 s95, s94, 4096
        v_and_b32 v12, 7, v0
        v_mul_u32_u24 v12, {KVS}, v12
        v_lshl_add_u32 v19, v{vG}, 4, v12
        v_and_b32 v18, 31, v0
        v_lshlrev_b32 v18, 2, v18
        s_lshl_b32 s66, s{sX}, 7
        s_add_u32 s66, s66, {XID}
        s_lshl_b32 s67, s{sX}, 10
        s_lshr_b32 s97, s88, 1
        s_lshl_b32 s97, s97, 7
        s_add_u32 s97, s97, {F1B}
        v_and_b32 v16, 7, v0
        v_lshlrev_b32 v16, 2, v16""")
        for k in range(4): P(f"v_mov_b32 v{EPSQ+k}, s{sEPS6}")
        P.add(self.win_setup(123))
        for p in range(1, 4):
            P(f"s_add_u32 s86, s{sW}, {p}\ns_and_b32 s86, s86, 3\ns_mul_i32 s86, s86, 12288\ns_add_u32 s86, s86, {EX + (p-1)*4096}")
            P(f"v_add_u32 v{118+p}, s86, v{vL16}")
        P(f"""s_mul_i32 s86, s{sW}, 12288
        s_add_u32 s86, s86, {EX}
        v_add_u32 v118, s86, v{vL16}
        s_lshl_b32 s64, s88, 5
        s_lshl_b32 s87, s89, 2
        s_add_u32 s64, s64, s87
        s_add_u32 s64, s64, s{sW}
        s_lshl_b32 s64, s64, 10
        s_add_u32 s64, s64, {H}
        s_add_u32 s65, s64, 16384
        s_lshl_b32 s61, s88, 12
        s_lshl_b32 s86, s89, 8
        s_add_u32 s61, s61, s86
        s_lshr_b32 s86, s{sW}, 1
        s_lshl_b32 s86, s86, 10
        s_add_u32 s61, s61, s86
        s_and_b32 s86, s{sW}, 1
        s_lshl_b32 s86, s86, 3
        s_add_u32 s61, s61, s86
        s_add_u32 s61, s61, {HST}
        v_lshlrev_b32 v122, 4, v{vI}
        v_lshl_add_u32 v122, v{vG}, 11, v122""")
        if self.opt.get("touch", 1):
            P(f"""v_and_b32 v12, 7, v0
            v_lshlrev_b32 v12, 7, v12
            v_bfe_u32 v13, v0, 3, 1
            v_lshl_add_u32 v12, v13, 14, v12
            s_mov_b64 exec, 0xffff
            buffer_load_dword v253, v12, {S(SWS)}, s64 offen
            v_and_b32 v12, 1, v0
            v_lshlrev_b32 v12, 7, v12
            v_bfe_u32 v13, v0, 1, 1
            v_lshl_add_u32 v12, v13, 11, v12
            s_mov_b64 exec, 0xf
            buffer_load_dword v254, v12, {S(SWS)}, s61 offen
            s_mov_b64 exec, -1""")
        for kk in range(4):
            if kk == 2:
                if self.opt.get("w0early", 0): P.wait_ds(); P.add(self.win0_dma(123))
                P("s_sub_u32 s86, s96, s91")
                for r in range(204, 212): P(f"v_add_u32 v{r}, s86, v{r}")
            P.wait_tag(f"wo{kk}")
            for p in range(4):
                for cf in range(2):
                    for h in range(2):
                        P(f"ds_read_b64_tr_b16 {ar(((kk*4+p)*2+cf)*4+2*h,2)}, v{204+2*p+cf} offset:{(kk&1)*4096 + h*2048}")
        self.stamp("wo")
        def pl():
            Lb = P.lab("Lp"); E = P.lab("Le")
            P(f"""s_mov_b32 s{sSPIN}, 0
            {Lb}:
            buffer_load_dwordx4 v[12:15], v{vL16}, {S(SWS)}, s67 offen sc1
            buffer_load_dword v17, v16, {S(SWS)}, s97 offen sc1
            s_waitcnt vmcnt(0)
            v_xor_b32 v12, s{sE}, v12
            v_xor_b32 v13, s{sE}, v13
            v_xor_b32 v14, s{sE}, v14
            v_xor_b32 v15, s{sE}, v15
            v_xor_b32 v17, s{sE}, v17
            v_or3_b32 v12, v12, v13, v14
            v_or3_b32 v12, v12, v15, v17
            v_cmp_ne_u32 vcc, 0, v12""")
            self.spin_tail(Lb, E); P(f"{E}:")
        self.wave0(pl)
        self.barrier()
        self.stamp("sync1")
        KR = 16; KP = 48; ZR = 64; ZC = 68; ZP = 70; PQR = 86; ACC = 128; OF = 192; ND = 212
        P(f"buffer_load_dwordx4 {vr(ZR,4)}, v19, {S(SWS)}, s92 offen offset:1024 sc1")
        P(f"buffer_load_dword v252, v18, {S(SWS)}, s66 offen sc1")
        for h in range(8):
            P(f"buffer_load_dwordx4 {vr(KR+4*h,4)}, v{vL16}, {S(SWS)}, s{92+h//4} offen offset:{(h%4)*KVS} sc1")
            P(f"buffer_load_dwordx4 {vr(PQR+4*h,4)}, v{vL16}, {S(SWS)}, s{94+h//4} offen offset:{(h%4)*1024} sc1")
        wd = []
        if not self.opt.get("w0early", 0):
            for t in range(16): wd += self.win_dma(0, t, 123)
        NW1 = self.opt.get('nw1', 10)
        for t in range(NW1): wd += self.win_dma(1, t, 123)
        P(f"v_cvt_pk_bf16_f32 v{ZC}, v{ZR}, v{ZR+1}\nv_cvt_pk_bf16_f32 v{ZC+1}, v{ZR+2}, v{ZR+3}")
        P(f"v_cmp_ne_u32 vcc, s{sXCC}, v252")
        for h in range(8):
            for k in range(2): P(f"v_mov_b32_dpp v{ZP+2*h+k}, v{ZC+k} row_newbcast:{h} row_mask:0xf bank_mask:0xf")
        P(f"s_cmp_eq_u64 vcc, 0\ns_cselect_b32 s{sM}, {self.opt.get('fast', 1)}, 0")
        def ostep(kk):
            c = []; m = []
            for hh in range(2):
                h = 2*kk + hh
                c += [f"v_cvt_pk_bf16_f32 v{KP+2*h}, v{KR+4*h}, v{KR+4*h+1}", f"v_cvt_pk_bf16_f32 v{KP+2*h+1}, v{KR+4*h+2}, v{KR+4*h+3}"]
            for hh in range(2):
                h = 2*kk + hh
                for a in range(2):
                    m.append(f"v_mfma_f32_16x16x16_bf16 {vr(ND+8*(2*hh+a)+4,4)}, {vr(ZP+2*h,2)}, {vr(PQR+4*h+2*a,2)}, {vr(EPSQ,4)}")
            for hh in range(2):
                h = 2*kk + hh
                for a in range(2):
                    m.append(f"v_mfma_f32_16x16x16_bf16 {vr(ND+8*(2*hh+a),4)}, {vr(KP+2*h,2)}, {vr(PQR+4*h+2*a,2)}, 0")
            v = [f"v_rcp_f32 v{ND+8*q+4}, v{ND+8*q+4}" for q in range(4)]
            for hh in range(2):
                for a in range(2):
                    nd = ND + 8*(2*hh+a); o = OF + 8*(kk&1) + 4*a + 2*hh
                    v += [f"v_mul_f32 v{nd+k}, v{nd+k}, v{nd+4}" for k in range(4)]
                    v += [f"v_cvt_pk_bf16_f32 v{o}, v{nd}, v{nd+1}", f"v_cvt_pk_bf16_f32 v{o+1}, v{nd+2}, v{nd+3}"]
            return c, m, v
        def gstep(kk):
            m = []
            for p in range(4):
                for cf in range(2):
                    for a in range(2):
                        acc = vr(ACC + ((p*2+a)*2+cf)*4, 4)
                        m.append(f"{MF} {acc}, {ar(((kk*4+p)*2+cf)*4,4)}, {vr(OF+8*(kk&1)+4*a,4)}, {acc if kk else '0'}")
            return m
        c, m, v = ostep(0); P.add(c[:2] + mix(m[:4], c[2:]) + m[4:] + v)
        self.stamp("p2o0", True)
        XF = 80
        xun = []
        for q in range(4):
            for k in range(2): xun += [f"v_lshlrev_b32 v{XF+4*q+2*k}, 16, v{XR+2*q+k}", f"v_and_b32 v{XF+4*q+2*k+1}, 0xffff0000, v{XR+2*q+k}"]
        xw = [f"ds_write_b128 v{118+p}, {vr(ACC+(p*4+q)*4,4)} offset:{q*1024}" for p in range(1, 4) for q in range(4)]
        for kk in range(4):
            g = gstep(kk)
            if kk < 3:
                c, m, v = ostep(kk+1)
                q_ = 25
                P.add(mix(m[:4], c) + mix(m[4:], wd[q_*kk:q_*kk+10]) + mix(g, weave(v, wd[q_*kk+10:q_*kk+q_], 5), 1))
            else:
                g = g[4:] + g[:4]
                P.add(mix(g[:9], wd[3*q_:3*q_+15]) + mix(g[9:], xw[:7]) + xw[7:])
        self.stamp("p2mm")
        P.add(weave(xun, wd[3*q_+15:], 5))
        P.wait_tag("win0")
        for q in range(4):
            for k in range(2): P(f"v_pk_add_f32 {vr(ACC+4*q+2*k,2)}, {vr(ACC+4*q+2*k,2)}, {vr(XF+4*q+2*k,2)}")
        self.barrier()
        RB = 32; HO = 96
        for q in range(4):
            for p in range(3): P(f"ds_read_b128 {vr(RB+(p*4+q)*4,4)}, v118 offset:{(p*4+q)*1024}")
        for q in range(4):
            for p in range(3):
                for k in range(2): P(f"v_pk_add_f32 {vr(ACC+4*q+2*k,2)}, {vr(ACC+4*q+2*k,2)}, {vr(RB+(p*4+q)*4+2*k,2)}")
            for k in range(2): P(f"v_cvt_pk_bf16_f32 v{HO+2*q+k}, v{ACC+4*q+2*k}, v{ACC+4*q+2*k+1}")
        self.local([f"buffer_store_dwordx4 {vr(HO+4*a,4)}, v{vL16}, {S(SWS)}, s{64+a} offen @SC" for a in range(2)])
        SS = 104
        ls = []
        for a in range(2):
            x = ACC + 8*a; s_ = SS + 4*a
            ls.append([f"v_pk_add_f32 {vr(s_,2)}, {vr(x,2)}, {vr(x+2,2)}", f"v_pk_mul_f32 {vr(s_+2,2)}, {vr(x,2)}, {vr(x,2)}",
                       f"v_pk_add_f32 {vr(s_,2)}, {vr(s_,2)}, {vr(x+4,2)}", f"v_pk_fma_f32 {vr(s_+2,2)}, {vr(x+2,2)}, {vr(x+2,2)}, {vr(s_+2,2)}",
                       f"v_pk_add_f32 {vr(s_,2)}, {vr(s_,2)}, {vr(x+6,2)}", f"v_pk_fma_f32 {vr(s_+2,2)}, {vr(x+4,2)}, {vr(x+4,2)}, {vr(s_+2,2)}",
                       f"v_add_f32 v{s_}, v{s_}, v{s_+1}", f"v_pk_fma_f32 {vr(s_+2,2)}, {vr(x+6,2)}, {vr(x+6,2)}, {vr(s_+2,2)}",
                       f"v_add_f32 v{s_+1}, v{s_+2}, v{s_+3}"])
        P.add(zipped(ls))
        self.xreduce([SS, SS+1, SS+4, SS+5], 112, ops=("v_permlane32_swap_b32",))
        P(f"""v_permlane16_swap_b32 v{SS}, v{SS+4}
        v_permlane16_swap_b32 v{SS+1}, v{SS+5}
        v_pk_add_f32 {vr(SS,2)}, {vr(SS,2)}, {vr(SS+4,2)}
        s_mov_b32 exec_hi, 0""")
        self.local([f"buffer_store_dwordx2 {vr(SS,2)}, v122, {S(SWS)}, s61 offen @SC"])
        P("s_mov_b64 exec, -1")
        self.p3_setup()
        o, tl = self.colsum(0, 16, 110592); P.add(o + tl)
        P("s_waitcnt vmcnt(0)")
        self.barrier()
        self.wave0(lambda: self.set_flag(1 << 16, True))
        self.stamp("F2")

    def wsp_setup(self):
        o = L(f"""v_lshrrev_b32 v12, 3, v0
        v_and_b32 v13, 7, v0
        v_xor_b32 v13, v13, v{vG}
        v_lshlrev_b32 v13, 4, v13
        v_lshl_add_u32 v244, v12, 12, v13
        v_xor_b32 v245, 64, v244
        v_add_u32 v245, 32768, v245
        s_lshl_b32 s96, s{self.T4}, 18
        s_lshl_b32 s86, s{sW}, 10
        s_add_u32 s96, s96, s86
        s_lshl_b32 s97, s{sW}, 14
        s_and_b32 s76, s{sJ}, {(3 if self.map84 else 7) if self.opt.get('rot4', 0) else 0}
        s_lshl_b32 s76, s76, {1 if self.map84 else 0}
        v_lshrrev_b32 v12, 1, v{vI}
        v_xor_b32 v12, v12, v{vG}
        v_lshlrev_b32 v12, 4, v12
        v_lshl_add_u32 v12, v{vI}, 7, v12
        v_xor_b32 v13, 64, v12""")
        for p in range(4):
            o += L(f"s_add_u32 s86, s{sW}, {p}\ns_and_b32 s86, s86, 3\ns_lshl_b32 s86, s86, 11\ns_add_u32 s86, s86, s97\nv_add_u32 v{246+2*p}, s86, v12\nv_add_u32 v{247+2*p}, s86, v13")
        return o
    def wsp_issue(self, c, hi=False):
        out = [WD(f"wr{c-2}")] if c >= 2 and hi is False else []
        out += [f"s_add_u32 s77, s76, {c}", "s_and_b32 s77, s77, 7", "s_lshl_b32 s77, s77, 7", "s_add_u32 s77, s77, s96", NOPIF, NOPIF]
        for i in range(8):
            out.append(f"s_add_u32 m0, s97, {(c&1)*8192 + i*1024 + (65536 if hi else 0)}")
            out.append(f"s_add_u32 s60, s77, {(i>>1)*65536}" if i % 2 == 0 else NOPIF)
            out.append(self.dmai(244+(i&1), SWSP, 60, f"wsp{c}"))
        return out
    def wsp_read(self, c):
        return [WT(f"wsp{c}")] + [("T", f"ds_read_b128 {ar(((2*c+t)*4+p)*4,4)}, v{246+2*p+t} offset:{(c&1)*8192}", f"wr{c}") for t in range(2) for p in range(4)]
    def wsp_tohi(self): return [f"v_xor_b32 v{r}, 0x10000, v{r}" for r in range(246, 254)]
    KE = list(range(21, 28)); KT = list(range(9, 21)); KL = list(range(9))
    def wout_setup(self, v):
        return L(f"""v_lshrrev_b32 v{v}, 3, v0
        v_lshl_add_u32 v{v}, v{v}, 10, v{vSW}
        s_lshl_b32 s68, s{sW}, 13
        s_lshl_b32 s86, s{sFB}, 7
        s_add_u32 s68, s68, s86
        s_lshl_b32 s69, s{sW}, 10
        s_add_u32 s69, s69, 49152""")
    def wout(self, k, v, tag="wout"):
        return [f"s_add_u32 m0, s69, {k*4096}", f"s_add_u32 s61, s68, {k*4*8192}", self.dmai(v, SWOUT, 61, tag)]
    def wout_pf(self):
        if not self.opt.get("pfwo", 0): return []
        return L(f"""s_lshr_b32 s86, s{sJ}, 3
        s_lshl_b32 s86, s86, 2
        s_add_u32 s86, s86, s{sW}
        s_mul_i32 s86, s86, {42*1024}
        s_lshl_b32 s87, s{sFB}, 7
        s_add_u32 s86, s86, s87
        v_lshlrev_b32 v5, 10, v0
        s_mov_b32 exec_hi, 0x3ff
        buffer_load_dword v19, v5, {S(SWOUT)}, s86 offen
        s_mov_b64 exec, -1""")
    def pf_addr(self, v):
        return L(f"""v_bfe_u32 v{v}, v0, 2, 2
        v_lshlrev_b32 v{v}, 10, v{v}
        v_lshl_add_u32 v{v}, v{vG}, 12, v{v}
        v_and_b32 v5, 3, v0
        v_lshl_add_u32 v{v}, v5, 7, v{v}""")
    SCR3 = 131072
    def p3_setup(self):
        SCR = self.SCR3
        self.P(f"""s_lshl_b32 s90, s{sRB}, 3
        s_lshl_b32 s86, s{sW}, 1
        s_add_u32 s90, s90, s86
        s_lshl_b32 s93, s90, 11
        s_add_u32 s93, s93, {HST}
        s_lshl_b32 s90, s90, 14
        s_add_u32 s90, s90, {H}
        s_lshl_b32 s91, s{sW}, 10
        s_add_u32 s91, s91, {SCR + 1024}
        s_lshl_b32 s67, s{sRB}, 7
        s_add_u32 s67, s67, {F2}
        v_lshlrev_b32 v240, 2, v{vI}
        v_mov_b32 v12, 0x3f803f80
        v_accvgpr_write_b32 a240, v12
        v_accvgpr_write_b32 a241, v12
        v_accvgpr_write_b32 a242, v12
        v_accvgpr_write_b32 a243, v12
        s_lshl_b32 s86, s{sW}, 5
        v_xor_b32 v15, s86, v{vT[0]}
        s_mul_i32 s74, s{sRB}, 14
        s_add_u32 s74, s74, s{sCBK}
        s_mul_i32 s74, s74, 3
        s_add_u32 s74, s74, s{sW}
        s_lshl_b32 s74, s74, 14
        s_add_u32 s74, s74, 512
        s_cmp_eq_u32 s{sW}, 3
        s_cselect_b32 s74, 0x1000000, s74""")

    def colsum(self, base, tmp, dst_off):
        rd = [[f"ds_read_b64_tr_b16 {vr(tmp+4*t+2*h,2)}, v15 offset:{t*4096 + h*2048}" for h in range(2)] for t in range(16)]
        out = rd[0] + rd[1] + rd[2]
        for t in range(16):
            out.append(f"{MF} {ar(236,4)}, {ar(240,4)}, {vr(tmp+4*t,4)}, {ar(236,4) if t else '0'}")
            if t + 3 < 16: out += rd[t+3]
        tail = L(f"s_lshl_b32 s86, s{sW}, 6\ns_add_u32 s86, s86, {dst_off}\nv_lshl_add_u32 v5, v{vI}, 2, s86\nds_write_b32 v5, a236")
        return out, tail

    def phase3(self):
        P = self.P
        SCR = self.SCR3
        HF = 16; BB = 144; A2 = 176; A1 = 208
        AON, AEX, ACS = 240, 244, 236
        Lskip = "L_p3skip"; Ljoin = "L_p3join"
        P(f"s_cmp_ge_u32 s{sCBK}, 14\ns_cbranch_scc1 {Lskip}")
        def breads(t):
            return [f"ds_read_b64_tr_b16 {vr(BB+16*(t&1)+4*f+2*h,2)}, v{vT[f]} offset:{t*4096 + h*2048}" for f in range(4) for h in range(2)]
        P.add(breads(0))
        self.wave0(lambda: self.poll(240, soff="s67"))
        P("s_barrier")
        self.stamp("sync2")
        HS = A1; CS2 = 224; K1 = 254
        def hl(t):
            if t >= 16:
                a = t - 16
                return [f"buffer_load_dwordx4 {vr(HS+8*a+4*hf,4)}, v{vL16}, {S(SWS)}, s93 offen offset:{a*2048+hf*1024} sc1" for hf in range(2)] if a < 2 else []
            o = [f"s_add_u32 s64, s90, {t*1024}", f"s_add_u32 s65, s90, {16384 + t*1024}"] if t % 4 == 0 else []
            return o + [f"buffer_load_dwordx4 {vr(HF+(t*2+a)*4,4)}, v{vL16}, {S(SWS)}, s{64+a} offen offset:{(t%4)*1024} sc1" for a in range(2)]
        HD = self.opt.get("HD", 7)
        for t in range(HD): P.add(hl(t))
        P("v_add_u32 v5, 110592, v240")
        for f in range(4): P(f"ds_read_b32 v{CS2+f}, v5 offset:{f*64}")
        late = []
        for t in range(self.opt.get('nw1', 10), 16): late += self.win_dma(1, t, 241)
        misc = [f"v_lshrrev_b32 v241, 3, v0", "v_mul_u32_u24 v241, 3584, v241", f"v_add_u32 v241, v241, v{vSW}"] + self.pf_addr(242)
        P.add(misc)
        misc = self.wsp_setup() + L(f"""v_mov_b32 v{K1}, {f2u(K1C):#x}
        v_mov_b32 v{K1+1}, {f2u(K1C):#x}
        v_lshl_add_u32 v13, v{vI}, 2, s91
        v_lshl_add_u32 v14, v{vG}, 4, s91
        v_bfe_u32 v12, v0, 3, 1
        v_lshlrev_b32 v12, 8, v12
        v_lshl_add_u32 v12, v{vG}, 6, v12
        v_bfe_u32 v5, v0, 2, 1
        v_lshl_add_u32 v12, v5, 5, v12
        v_and_b32 v5, 1, v0
        v_lshl_add_u32 v12, v5, 4, v12
        v_cmp_eq_u32 s[72:73], 1, v5
        s_lshl_b32 s92, s{sRB}, 15
        s_lshl_b32 s86, s{sW}, 9
        s_add_u32 s92, s92, s86
        s_add_u32 s92, s92, {STATS}
        s_lshl_b32 s66, s{sCBK}, 11
        s_add_u32 s66, s66, s92""")
        nm = (len(misc) + 11) // 12
        for t in range(16):
            m = []
            for f in range(4):
                for a in range(2):
                    acc = vr(A2 + (a*4+f)*4, 4)
                    m.append(f"{MF} {acc}, {vr(HF+(t*2+a)*4,4)}, {vr(BB+16*(t&1)+4*f,4)}, {acc if t else '0'}")
            if t in (1, 4, 8, 12): self.stamp(f"z2k{t}", True)
            hh = hl(t + HD); g = max(1, len(hh) - 1)
            if t + HD >= 18:
                k = t + HD - 18
                hh = late[:10]; late = late[10:]; g = 5
            P.add(mix(m, weave((breads(t+1) if t < 15 else []) + misc[nm*t:nm*t+nm], hh, g)))
        self.stamp("z2mm")
        P.add(late)
        if self.opt.get("touch", 1): P(f"v_lshlrev_b32 v5, 7, v0\ns_mov_b64 exec, 0xf\nbuffer_load_dword a234, v5, {S(SWS)}, s66 offen\ns_mov_b64 exec, -1")
        if self.opt.get("l2pf", 2) == 1: P(f"buffer_load_dword a235, v242, {S(SWSP)}, s74 offen")
        LA = [240, 242]; LB = [241, 243]
        for a in range(2):
            x = HS + 8*a
            P(f"v_pk_add_f32 {vr(x,2)}, {vr(x,2)}, {vr(x+2,2)}\nv_pk_add_f32 {vr(x+4,2)}, {vr(x+4,2)}, {vr(x+6,2)}")
        for a in range(2):
            x = HS + 8*a
            P(f"v_pk_add_f32 {vr(x,2)}, {vr(x,2)}, {vr(x+4,2)}")
        self.barrier()
        self.xreduce([HS, HS+1, HS+8, HS+9], BB)
        self.finstats([(HS, HS+1), (HS+8, HS+9)], 512, LA, LB)
        for a in range(2): P(f"ds_write_b32 v13, v{LA[a]} offset:{a*64}\nds_write_b32 v13, v{LB[a]} offset:{128+a*64}")
        iss01 = self.wsp_issue(0) + self.wsp_issue(1)
        P.add(iss01[:12]); iss01 = iss01[12:]
        P.wait_ds()
        RA = BB; RBb = BB + 8
        for a in range(2): P(f"ds_read_b128 {vr(RA+4*a,4)}, v14 offset:{a*64}\nds_read_b128 {vr(RBb+4*a,4)}, v14 offset:{128+a*64}")
        P.add(iss01[:6]); iss01 = iss01[6:]
        TT = BB + 16; SM = A1; SQ2 = A1 + 8
        for f in range(4):
            ls = []
            for a in range(2):
                for hp in range(2):
                    x = A2 + (a*4+f)*4 + 2*hp; t = TT + 2*(2*a+hp); sm = SM + 4*a + 2*hp; sq = SQ2 + 4*a + 2*hp
                    l = self.affine_pair(x, t, RA+4*a+2*hp, RBb+4*a+2*hp, CS2+f, False) + self.gelu_pair(x, t, K1)
                    if f == 0: l += [f"v_pk_mul_f32 {vr(sq,2)}, {vr(x,2)}, {vr(x,2)}"]
                    else: l += [f"v_pk_fma_f32 {vr(sq,2)}, {vr(x,2)}, {vr(x,2)}, {vr(sq,2)}",
                                f"v_pk_add_f32 {vr(sm,2)}, {vr(sm if f > 1 else A2 + a*16 + 2*hp,2)}, {vr(x,2)}"]
                    ls.append(l)
            self.stamp(f"z2e{f}", True)
            P.add(weave(zipped(ls), iss01[21*f:21*f+21]))
        def val(a, r, st): return (SQ2 if st else SM) + 4*a + r
        L1 = A1 + 16; L2 = A1 + 24
        z1pre = [f"v_add_u32 v{r}, 65536, v{r}" for r in vT + [15]]
        for a, bm in ((0, 0x3), (1, 0xc)):
            for r in range(4):
                for st in range(2): P(f"v_add_f32_dpp v{L1+2*r+st}, v{val(a,r,st)}, v{val(a,r,st)} row_ror:8 row_mask:0xf bank_mask:{bm:#x}")
        P.add(z1pre)
        P.wait_tag("win1")
        for rh, bm in ((0, 0x5), (1, 0xa)):
            for rl in range(2):
                for st in range(2):
                    s_ = L1 + 2*(2*rh+rl) + st
                    P(f"v_add_f32_dpp v{L2+2*rl+st}, v{s_}, v{s_} row_half_mirror row_mask:0xf bank_mask:{bm:#x}")
        P("s_barrier")
        for qp in ("[1,0,3,2]", "[2,3,0,1]"):
            for k in range(4): P(f"v_add_f32_dpp v{L2+k}, v{L2+k}, v{L2+k} quad_perm:{qp} row_mask:0xf bank_mask:0xf")
        P.add(breads(0))
        P(f"""v_cndmask_b32 v{L2}, v{L2}, v{L2+2}, s[72:73]
        v_cndmask_b32 v{L2+1}, v{L2+1}, v{L2+3}, s[72:73]
        v_mov_b32 v{L2+2}, s{sE}
        v_mov_b32 v{L2+3}, s{sE}
        s_mov_b32 exec_lo, 0x33333333
        s_mov_b32 exec_hi, 0x33333333""")
        self.local([f"buffer_store_dwordx4 {vr(L2,4)}, v12, {S(SWS)}, s66 offen @SC"])
        P("s_mov_b64 exec, -1")
        self.stamp("z2ep")
        i2, i3, i4, i5 = [self.wsp_issue(c) for c in range(2, 6)]
        r0, r1, r2, r3 = [self.wsp_read(c) for c in range(4)]
        GS = HF
        misc = L(f"""v_lshrrev_b32 v12, 5, v0
        v_lshlrev_b32 v12, 11, v12
        v_and_b32 v13, 31, v0
        v_lshl_add_u32 v12, v13, 4, v12
        v_lshl_add_u32 v13, v13, 2, s91
        s_lshl_b32 s93, s{sRB}, 2
        s_add_u32 s93, s93, s{sW}
        s_mul_i32 s93, s93, 7168
        s_add_u32 s93, s93, {Z2}""")
        for f in range(4):
            misc += L(f"""s_lshl_b32 s86, s{sCBK}, 2
            s_add_u32 s86, s86, {f}
            s_mul_i32 s87, s86, 37
            s_lshr_b32 s87, s87, 8
            s_mul_i32 s87, s87, {64*7 - 7}
            s_add_u32 s86, s86, s87
            s_lshl_b32 s86, s86, 10
            s_add_u32 s{64+f}, s86, s93""")
        misc += L(f"""s_lshl_b32 s93, s{sRB}, 3
        s_lshl_b32 s86, s{sW}, 1
        s_add_u32 s93, s93, s86
        s_mul_i32 s93, s93, 56
        s_lshl_b32 s86, s{sCBK}, 2
        s_add_u32 s93, s93, s86
        s_lshl_b32 s93, s93, 9
        s_add_u32 s93, s93, {Z1}
        s_add_u32 s94, s93, {56*512}""")
        T1 = self.opt.get("T1", 7); TG = self.opt.get("TG", 5); TF = self.opt.get("TF", 12)
        gll = []
        for m_ in range(7): gll += [f"s_add_u32 s60, s92, {m_*4096}", f"buffer_load_dwordx4 {vr(GS+4*m_,4)}, v12, {S(SWS)}, s60 offen sc1"]
        gl = "\n".join(gll)
        misc = misc + L(f"""v_bfe_u32 v5, v0, 4, 1
        v_bfe_u32 v241 , v0, 5, 1""") if False else misc
        def z1k(t, extra):
            m = []
            for f in range(4):
                for a in range(2):
                    acc = vr(A1 + (a*4+f)*4, 4)
                    m.append(f"{MF} {acc}, {vr(BB+16*(t&1)+4*f,4)}, {vr(HF+(t*2+a)*4,4)}, {acc if t else '0'}")
            nxt = breads(t+1) if t < 15 else []
            self.stamp(f"z1k{t}", True) if t in (0, 2, 4, T1, 10, 14) else None
            P.add(mix(m, weave(nxt, extra)))
        ex = {0: misc[:8], 1: r0, 2: r1, 3: misc[8:17], 4: misc[17:25]}
        ex[TG] = gll
        rest = misc[25:]
        for t in range(T1):
            e = ex.get(t)
            if e is None: e = rest[:8]; rest = rest[8:]
            z1k(t, e)
        P.add(rest)
        self.stamp("z1a")
        RA2 = HF + 28; RB2 = HF + 36; ZO = HF
        cmpc = "\n".join(f"v_xor_b32 v{GS+4*m_+2}, s{sE}, v{GS+4*m_+2}" for m_ in range(7))
        cmpc += f"\nv_or3_b32 v5, v{GS+2}, v{GS+6}, v{GS+10}\nv_or3_b32 v5, v5, v{GS+14}, v{GS+18}\nv_or3_b32 v5, v5, v{GS+22}, v{GS+26}\nv_cmp_ne_u32 vcc, 0, v5"
        self.check_retry(gl, cmpc)
        self.stamp("gath", True)
        P(f"v_pk_add_f32 {vr(GS,2)}, {vr(GS,2)}, {vr(GS+4,2)}\nv_pk_add_f32 {vr(GS+8,2)}, {vr(GS+8,2)}, {vr(GS+12,2)}\nv_pk_add_f32 {vr(GS+16,2)}, {vr(GS+16,2)}, {vr(GS+20,2)}")
        P(f"v_pk_add_f32 {vr(GS,2)}, {vr(GS,2)}, {vr(GS+8,2)}\nv_pk_add_f32 {vr(GS+16,2)}, {vr(GS+16,2)}, {vr(GS+24,2)}\nv_pk_add_f32 {vr(GS,2)}, {vr(GS,2)}, {vr(GS+16,2)}")
        self.xreduce([GS, GS+1], GS+2, ops=("v_permlane32_swap_b32",))
        self.finstats([(GS, GS+1)], 896, [GS+4], [GS+5])
        P(f"""ds_write_b32 v13, v{GS+4} offset:256
        ds_write_b32 v13, v{GS+5} offset:384
        v_bfe_u32 v12, v0, 4, 1
        v_bfe_u32 v13, v0, 5, 1
        v_lshl_add_u32 v12, v12, 1, v13
        v_lshl_add_u32 v12, v12, 4, v{vI}
        v_lshlrev_b32 v12, 4, v12""")
        P.wait_ds()
        for a in range(2): P(f"ds_read_b128 {vr(RA2+4*a,4)}, v14 offset:{256+a*64}\nds_read_b128 {vr(RB2+4*a,4)}, v14 offset:{384+a*64}")
        for f in range(4):
            for a in range(2):
                for hp in range(2):
                    x = A2 + (a*4+f)*4 + 2*hp
                    P(f"v_pk_fma_f32 {vr(x,2)}, {vr(x,2)}, {vr(RA2+4*a+2*hp,2)}, {vr(RB2+4*a+2*hp,2)}")
            for a in range(2):
                for hp in range(2):
                    x = A2 + (a*4+f)*4 + 2*hp
                    P(f"v_cvt_pk_bf16_f32 v{ZO+4*f+2*a+hp}, v{x}, v{x+1}")
            if f: P(f"buffer_store_dwordx4 {vr(ZO+4*(f-1),4)}, v12, {S(SWS)}, s{64+f-1} offen sc1", "z2n")
            for hp in range(2): P(f"v_permlane16_swap_b32 v{ZO+4*f+hp}, v{ZO+4*f+2+hp}")
        P(f"buffer_store_dwordx4 {vr(ZO+12,4)}, v12, {S(SWS)}, s67 offen sc1", "z2n")
        self.stamp("z2st", True)
        dm = i2 + i3
        per = -(-len(dm) // (16 - T1) // 3) * 3
        for t in range(T1, 16):
            if t == TF:
                P.wait_tag("z2n"); P("s_barrier")
                self.wave0(lambda: self.set_flag(0xff << 17))
                self.stamp("F3")
            z1k(t, dm[:per + (1 if t == T1 else 0)]); dm = dm[per + (1 if t == T1 else 0):]
        P.add(dm)
        C1 = A2; Z1O = A2 + 16
        o, tl = self.colsum(65536, 32, SCR + 256)
        P.add(weave(o, [f"v_subrev_u32 v{vT[f]}, 65536, v{vT[f]}" for f in range(4)] + L(f"v_lshlrev_b32 v12, 4, v{vG}\nv_add_u32 v12, {SCR+256}, v12\nv_lshlrev_b32 v13, 3, v0"), 1) + tl)
        P.add(self.wout_setup(15))
        self.barrier()
        self.stamp("z1mm")
        for f in range(4): P(f"ds_read_b128 {vr(C1+4*f,4)}, v12 offset:{f*64}")
        ep = []
        for f in range(4):
            ls = []
            for a in range(2):
                for hp in range(2):
                    x = A1 + (a*4+f)*4 + 2*hp; t = TT + 2*(2*a+hp)
                    ls.append(self.affine_pair(x, t, LA[a], LB[a], C1+4*f+2*hp, True) + self.gelu_pair(x, t, K1)
                              + [f"v_cvt_pk_bf16_f32 v{Z1O+(a*4+f)*2+hp}, v{x}, v{x+1}"])
            ep.append(zipped(ls))
        c45 = self.wsp_issue(4, True) + self.wsp_issue(5, True)
        d67 = [WD("wr2", "wr3")] + self.wsp_issue(6, None) + self.wsp_issue(7, None)
        ke = []
        for k in self.KE: ke += self.wout(k, 15, "woutE")
        P.add(weave(ep[0] + ep[1][:24], c45) + r2 + r3 + self.p4_setup())
        self.wave0(lambda: P(self.f3load))
        P.add(ep[1][24:] + d67[:1] + weave(ep[2] + ep[3], d67[1:]))
        self.thru([f"buffer_store_dwordx2 {vr(Z1O+(a*4+f)*2,2)}, v13, {S(SWS)}, s{93+a} offen offset:{f*512} @SC" for f in range(4) for a in range(2)], "z1st")
        P.add(self.wout_pf() + ke)
        P(f"s_branch {Ljoin}")
        P(f"{Lskip}:")
        P.cond_begin()
        P("s_waitcnt vmcnt(0) lgkmcnt(0)")
        if self.opt.get("l2pf", 2):
            P(f"""s_lshl_b32 s86, s{sRB}, 1
            s_add_u32 s86, s86, s{sCBK}
            s_sub_u32 s86, s86, 14
            s_lshl_b32 s86, s86, 2
            s_add_u32 s86, s86, s{sW}
            s_lshl_b32 s60, s86, 16""")
            P.add(self.pf_addr(12))
            for k in range(4): P(f"buffer_load_dword v{16+k}, v12, {S(SWSP)}, s60 offen\ns_add_u32 s60, s60, 16384")
            if self.opt.get("l2pf", 2) == 3:
                P(f"""s_sub_u32 s60, s60, 65024
                v_lshrrev_b32 v13, 3, v0
                v_lshlrev_b32 v13, 12, v13
                v_bfe_u32 v5, v0, 1, 2
                v_lshl_add_u32 v13, v5, 10, v13
                v_and_b32 v5, 1, v0
                v_lshl_add_u32 v13, v5, 7, v13
                buffer_load_dword v20, v13, {S(SWSP)}, s60 offen
                s_add_u32 s60, s60, 32768
                buffer_load_dword v21, v13, {S(SWSP)}, s60 offen""")
            if self.opt.get("l2pf", 2) == 4:
                P("s_sub_u32 s64, s60, 65024")
            if self.opt.get("l2pf", 2) == 2:
                P("s_sub_u32 s60, s60, 65024")
                for k in range(4): P(f"buffer_load_dword v{20+k}, v12, {S(SWSP)}, s60 offen\ns_add_u32 s60, s60, 16384")
        if self.opt.get("pwout", 7) == -1:
            P(f"""s_lshl_b32 s86, s{sRB}, 1
            s_add_u32 s86, s86, s{sCBK}
            s_sub_u32 s86, s86, 14
            s_lshl_b32 s86, s86, 2
            s_add_u32 s86, s86, s{sW}
            s_mul_i32 s86, s86, {56*128}
            v_lshlrev_b32 v5, 7, v0
            s_mov_b32 exec_hi, 0xffffff
            buffer_load_dword v24, v5, {S(SWOUT)}, s86 offen
            s_mov_b64 exec, -1""")
        P.add(self.wsp_setup() + self.wout_setup(15))
        P.add(self.wsp_issue(0) + self.wsp_issue(1))
        P.add(self.wout_pf())
        for k in self.KE: P.add(self.wout(k, 15, "woutE"))
        if self.opt.get("l2pf", 2) == 4:
            P.add(self.pf_addr(14))
            for k in range(4): P(f"buffer_load_dword v{20+k}, v14, {S(SWSP)}, s64 offen\ns_add_u32 s64, s64, 16384")
        P.add(self.wsp_issue(4, True) + self.wsp_issue(5, True))
        P.add(self.wsp_read(0) + self.wsp_read(1) + self.wsp_issue(2) + self.wsp_issue(3) + self.wsp_read(2) + self.wsp_read(3))
        P.add([WD("wr2", "wr3")] + self.wsp_issue(6, None) + self.wsp_issue(7, None) + self.p4_setup())
        P(self.f3load)
        P("s_waitcnt vmcnt(0) lgkmcnt(0)")
        P.cond_end()
        P(f"{Ljoin}:")
        self.stamp("wsp")

    def p5_breg(self, kk, f):
        if kk >= 21: return ("a", (kk - 21) * 16 + 4*f)
        i = self.order5.index(kk) - 7
        return ("a", 112 + (i % 9) * 16 + 4*f)
    def p5_reads(self, kk):
        out = []
        want = 49152 if kk < 16 else 49152 + 65536
        if self.cur5 != want:
            d = want - self.cur5
            out += [f"v_add_u32 v{vT[f]}, {d}, v{vT[f]}" if d > 0 else f"v_subrev_u32 v{vT[f]}, {-d}, v{vT[f]}" for f in range(4)]; self.cur5 = want
        for f in range(4):
            k, r = self.p5_breg(kk, f)
            for h in range(2): out.append(f"ds_read_b64_tr_b16 {ar(r+2*h,2)}, v{vT[f]} offset:{(kk%16)*4096 + h*2048}")
        return out

    f3load = f"buffer_load_dword v17, v16, {S(SWS)}, s75 offen sc1"
    def p4_setup(self):
        return L(f"""s_mul_i32 s90, s{self.F4}, 7
        s_add_u32 s91, s90, 6
        s_lshr_b32 s90, s90, 2
        s_lshr_b32 s91, s91, 2
        s_lshl_b32 s92, s{self.F4}, 6
        s_lshl_b32 s86, s{sW}, 4
        s_add_u32 s92, s92, s86
        s_mul_i32 s92, s92, 7168
        s_add_u32 s92, s92, {Z2}
        v_add_u32 v18, 4096, v{vL16}
        s_lshl_b32 s86, s90, 4
        s_lshl_b32 s87, s91, 4
        s_add_u32 s87, s87, 15
        v_add_u32 v16, s86, v0
        v_min_u32 v16, s87, v16
        v_lshlrev_b32 v16, 2, v16
        s_lshl_b32 s75, s{sX}, 10
        s_add_u32 s75, s75, {F3}""") + ([] if self.map84 else L(f"""s_lshl_b32 s86, s{self.T4}, 2
        s_add_u32 s86, s86, s{sW}
        s_mul_i32 s86, s86, {28*1024}
        s_mul_i32 s87, s{self.F4}, 3584
        s_add_u32 s86, s86, s87
        s_add_u32 s86, s86, {U}
        v_lshlrev_b32 v5, 7, v0
        s_mov_b64 exec, 0xfffffff
        buffer_load_dword v20, v5, {S(SWS)}, s86 offen
        s_mov_b64 exec, -1"""))

    def phase4(self):
        P = self.P
        ACC = 16; BB = 128
        self.order5 = self.KE + list(range(16, 21)) + list(range(9, 16)) + self.KL
        self.cur5 = 0
        self.wave0(lambda: self.check_retry(self.f3load, f"v_cmp_ne_u32 vcc, s{sE}, v17"))
        P("s_barrier")
        self.stamp("sync3")
        def bload(ks):
            out = [f"s_lshl_b32 s60, s76, 1", f"s_add_u32 s60, s60, {ks}", "s_and_b32 s60, s60, 15", "s_mul_i32 s60, s60, 7168", "s_add_u32 s60, s60, s92"]
            for f in range(7):
                out.append(f"buffer_load_dwordx4 {vr(BB+28*(ks%3)+4*f,4)}, v{vL16 if f < 4 else 240}, {S(SWS)}, s60 offen offset:{(f%4)*1024} sc1")
            return out
        P("v_mov_b32 v240, v18")
        for ks in range(2): P.add(bload(ks))
        P(f"""v_lshrrev_b32 v12, 3, v0
        v_lshl_add_u32 v241, v12, 10, v{vSW}
        s_lshl_b32 s95, s{self.T4}, 2
        s_add_u32 s95, s95, s{sW}
        s_lshl_b32 s88, s{sTB}, 2
        s_add_u32 s88, s88, s{sW}
        s_lshr_b32 s64, s{self.T4}, 1
        s_lshl_b32 s64, s64, 7
        s_add_u32 s64, s64, {F3B}
        v_add_u32 v243, s90, v0
        v_min_u32 v243, s91, v243
        v_lshlrev_b32 v243, 2, v243
        s_mul_i32 s65, s95, 56
        s_mul_i32 s87, s{self.F4}, 7
        s_add_u32 s65, s65, s87
        s_lshl_b32 s65, s65, 9
        s_add_u32 s65, s65, {Z1}
        v_lshlrev_b32 v242, 3, v0
        s_lshl_b32 s66, s95, 5
        v_lshlrev_b32 v244, 1, v{vI}
        s_lshl_b32 s67, s88, 4
        s_lshl_b32 s87, s{sFB}, 1
        s_add_u32 s67, s67, s87
        s_lshl_b32 s67, s67, 10
        s_add_u32 s67, s67, {H}
        s_mul_i32 s93, s88, {28*1024}
        s_add_u32 s93, s93, {U}
        s_mul_i32 s94, s95, 28
        s_mul_i32 s87, s{self.F4}, 7
        s_lshr_b32 s87, s87, 1
        s_add_u32 s94, s94, s87
        s_lshl_b32 s94, s94, 10
        s_add_u32 s94, s94, {U}""")
        for p in range(1, 4):
            P(f"s_add_u32 s86, s{sW}, {p}\ns_and_b32 s86, s86, 3\ns_mul_i32 s86, s86, 21504\ns_add_u32 s86, s86, {(p-1)*7168}")
            P(f"v_add_u32 v{12+p}, s86, v{vL16}")
        P(f"s_mul_i32 s86, s{sW}, 21504\nv_add_u32 v255, s86, v{vL16}")
        Z1R = BB + 84; BS = BB + 98; HR = 244
        fl = f"buffer_load_dword v254, v243, {S(SWS)}, s64 offen sc1"
        wt = []
        for k in self.KT: wt += self.wout(k, 241, "woutT")
        for ks in range(16):
            m = []
            if ks < 15: fp = [(f, p) for f in range(7) for p in range(4)]
            else: fp = [(f, p) for p in (1, 2, 3, 0) for f in range(7)]
            for f, p in fp:
                acc = vr(ACC + (p*7+f)*4, 4)
                m.append(f"{MF} {acc}, {vr(BB+28*(ks%3)+4*f,4)}, {ar((ks*4+p)*4,4)}, {acc if ks else '0'}")
            if ks in (1, 2, 4, 8, 12, 15): self.stamp(f"p4k{ks}", True)
            if ks <= 13:
                ld = bload(ks + 2) + ([fl] if ks == 11 else [])
                body = mix(m[:3], ld[:6]) + interleave(m[3:21], ld[6:], 3, 1)
                pre = {1: self.wsp_tohi() + self.wsp_read(4), 2: self.wsp_read(5) + self.wsp_tohi(), 3: self.wsp_read(6), 4: self.wsp_read(7)}.get(ks, [])
                if 6 <= ks <= 12: pre = self.p5_reads(self.KE[ks - 6])
                if ks == 5:
                    P.wait_tag("z1st", "woutE"); P("s_barrier")
                    self.wave0(lambda: self.set_flag(1 << 25, not self.map84))
                P.add(weave(body, pre[:len(pre)//2], 1) + mix(m[21:], pre[len(pre)//2:]))
            elif ks == 14:
                self.check_retry(fl, f"v_cmp_ne_u32 vcc, s{sE}, v254")
                w = [f"buffer_load_dwordx2 {vr(Z1R+2*f,2)}, v242, {S(SWS)}, s65 offen offset:{f*512} sc1" for f in range(7)]
                w += [f"buffer_load_ushort v{BS}, v244, {S(SBSP)}, s66 offen"]
                P.add(mix(m, w))
            else:
                xw = [f"ds_write_b128 v{12+p}, {vr(ACC+(p*7+f)*4,4)} offset:{f*1024}" for p in range(1, 4) for f in range(7)]
                P.add(mix(m[:10], wt[:9]) + mix(m[10:], weave(xw[:16], wt[9:18])) + xw[16:])
        self.stamp("p4mm")
        ZF = BB; UO = BB + 48
        v = [f"v_lshlrev_b32 v{BS}, 16, v{BS}"]
        for f in range(7):
            for k in range(2):
                v += [f"v_lshlrev_b32 v{ZF+4*f+2*k}, 16, v{Z1R+2*f+k}", f"v_and_b32 v{ZF+4*f+2*k+1}, 0xffff0000, v{Z1R+2*f+k}",
                      f"v_pk_add_f32 {vr(ACC+4*f+2*k,2)}, {vr(ACC+4*f+2*k,2)}, {vr(BS,2)} op_sel_hi:[1,0]"]
        P.add(weave(v, wt[18:30]))
        self.barrier()
        RB = ACC + 28
        for f in range(7):
            for p in range(3): P(f"ds_read_b128 {vr(RB+(p*7+f)*4,4)}, v255 offset:{(p*7+f)*1024}")
        P.add(wt[30:])
        P(f"buffer_load_dwordx4 {vr(HR,4)}, v{vL16}, {S(SWS)}, s67 offen sc1\nbuffer_load_dwordx4 {vr(HR+4,4)}, v{vL16}, {S(SWS)}, s67 offen offset:1024 sc1")
        for f in range(7):
            for p in range(3):
                for k in range(2): P(f"v_pk_add_f32 {vr(ACC+4*f+2*k,2)}, {vr(ACC+4*f+2*k,2)}, {vr(RB+(p*7+f)*4+2*k,2)}")
            for k in range(2): P(f"v_pk_mul_f32 {vr(ACC+4*f+2*k,2)}, {vr(ACC+4*f+2*k,2)}, {vr(ZF+4*f+2*k,2)}")
            for k in range(2): P(f"v_cvt_pk_bf16_f32 v{UO+2*f+k}, v{ACC+4*f+2*k}, v{ACC+4*f+2*k+1}")
        Lo = P.lab("Lo"); Le = P.lab("Le")
        P(f"s_bitcmp1_b32 s{self.F4}, 0\ns_cbranch_scc1 {Lo}")
        P.cond_begin()
        self.local4([f"buffer_store_dwordx4 {vr(UO+4*k,4)}, v{vL16}, {S(SWS)}, s94 offen offset:{k*1024} @SC" for k in range(3)]
                   + [f"buffer_store_dwordx2 {vr(UO+12,2)}, v242, {S(SWS)}, s94 offen offset:3072 @SC"])
        P(f"s_branch {Le}")
        P.cond_end()
        P(f"{Lo}:")
        P.cond_begin()
        self.local4([f"buffer_store_dwordx2 {vr(UO,2)}, v242, {S(SWS)}, s94 offen offset:512 @SC"]
                   + [f"buffer_store_dwordx4 {vr(UO+2+4*k,4)}, v{vL16}, {S(SWS)}, s94 offen offset:{1024+k*1024} @SC" for k in range(3)])
        P.cond_end()
        P(f"{Le}:")
        P(f"""v_bfe_u32 v240, v0, 4, 1
        v_bfe_u32 v13, v0, 5, 1
        v_lshl_add_u32 v240, v240, 1, v13
        v_lshlrev_b32 v240, 4, v240
        v_lshl_add_u32 v240, v{vI}, 10, v240
        s_lshl_b32 s92, s88, 14
        s_lshl_b32 s87, s{sFB}, 7
        s_add_u32 s92, s92, s87
        s_lshl_b32 s66, s{sTB}, 7
        s_add_u32 s66, s66, {F4}
        v_and_b32 v243, 7, v0
        v_lshlrev_b32 v243, 2, v243""")
        P("s_waitcnt vmcnt(0)")
        self.barrier()
        self.wave0(lambda: self.set_flag(1 << 26, not self.map84))
        self.stamp("F4")

    def phase5(self):
        P = self.P
        UF = 16; ACC = 128; HR = 244
        order = self.order5
        late = []
        for k in self.KL: late += self.wout(k, 241, "woutL")
        lm = self.opt.get("late", 0)
        if lm == 0: P.add(late)
        for kk in order[7:16]: P.add(self.p5_reads(kk))
        for f in range(4):
            for k in range(2):
                P(f"v_lshlrev_b32 v{ACC+4*f+2*k}, 16, v{HR+2*f+k}\nv_and_b32 v{ACC+4*f+2*k+1}, 0xffff0000, v{HR+2*f+k}")
        self.wave0(lambda: self.poll(243, soff="s66"))
        P("s_barrier")
        self.stamp("sync4")
        def ul(kk):
            o = [f"s_add_u32 s60, s93, {(kk//4)*4096}"]
            if kk % 7 == 3: return o + [f"buffer_load_dwordx2 {vr(UF+4*kk+2*h,2)}, v242, {S(SWS)}, s60 offen offset:{(kk%4)*1024 + h*512} sc1" for h in range(2)]
            return o + [f"buffer_load_dwordx4 {vr(UF+4*kk,4)}, v{vL16}, {S(SWS)}, s60 offen offset:{(kk%4)*1024} sc1"]
        if self.opt.get("pfu", 0):
            P(f"""s_mul_i32 s86, s{sFB}, 3584
            s_add_u32 s86, s86, s93
            v_lshlrev_b32 v5, 7, v0
            s_mov_b64 exec, 0xfffffff
            buffer_load_dword v144, v5, {S(SWS)}, s86 offen sc1
            s_mov_b64 exec, -1""")
        UD = self.opt.get("UD", 10)
        for i in range(UD): P.add(ul(order[i]))
        if lm == 1: P.add(late)
        for i, kk in enumerate(order):
            m = []
            for f in range(4):
                k, r = self.p5_breg(kk, f); acc = vr(ACC+4*f, 4)
                m.append(f"{MF} {acc}, {ar(r,4)}, {vr(UF+4*kk,4)}, {acc}")
            fl = ul(order[i + UD]) if i + UD < 28 else []
            j = i + 8
            if j == 19: P.wait_tag("woutL"); P("s_barrier")
            if 16 <= j < 28: fl = fl + self.p5_reads(order[j])
            P.add(mix(m, fl))
        OO = 160
        for c in range(2):
            for f in (2*c, 2*c+1):
                for k in range(2): P(f"v_cvt_pk_bf16_f32 v{OO+2*f+k}, v{ACC+4*f+2*k}, v{ACC+4*f+2*k+1}")
        for c in range(2):
            for k in range(2): P(f"v_permlane16_swap_b32 v{OO+4*c+k}, v{OO+4*c+2+k}")
            P(f"buffer_store_dwordx4 {vr(OO+4*c,4)}, v240, {S(SOUT)}, s92 offen offset:{c*64} {self.opt.get('ost', 'nt')}")
        Lb = P.lab("Lz")
        P(f"s_or_b32 s86, s2, s{sW}\ns_cmp_lg_u32 s86, 0\ns_cbranch_scc1 {Lb}\nv_mov_b32 v5, s{sE}\ns_mov_b32 s86, {EPOCH}\ns_mov_b64 exec, 1\nbuffer_store_dword v5, off, {S(SWS)}, s86 sc1\ns_mov_b64 exec, -1\n{Lb}:")
        self.stamp("end")

    def build(self):
        P = self.P
        self.prologue()
        for k, ph in enumerate([self.phase1, self.phase2, self.phase3, self.phase4, self.phase5]):
            if k < self.stop: ph()
        if self.stamps:
            P("s_memtime s[98:99]\nv_writelane_b32 v7, s98, 63")
            P(f"""v_writelane_b32 v7, s{sM}, 61
            s_lshl_b32 s86, s2, 10
            s_lshl_b32 s87, s{sW}, 8
            s_add_u32 s86, s86, s87
            s_add_u32 s86, s86, {STAMP}
            v_lshlrev_b32 v12, 2, v0
            buffer_store_dword v7, v12, {S(SWS)}, s86 offen""")
        if self.opt.get("dbg"):
            sel = [self.names.index(n) for n in self.opt["dbg"]]
            P("s_load_dwordx2 s[64:65], s[0:1], 72\nv_not_b32 v12, v7\nv_readlane_b32 s86, v12, 0\nv_writelane_b32 v13, s86, 0")
            for k, i in enumerate(sel): P(f"v_readlane_b32 s86, v7, {i}\ns_nop 3\nv_writelane_b32 v13, s86, {k+1}")
            P(f"v_lshlrev_b32 v12, 2, v0\ns_mov_b64 exec, {(1 << (len(sel)+1)) - 1}\ns_cmp_lg_u32 s{sW}, 0\ns_cbranch_scc1 L_end\nglobal_atomic_umax v12, v13, s[64:65] sc1")
        P("L_end:\ns_endpgm")
        A = Asm()
        A.begin_kernel(NAME, 256, 256, 163840)
        A.lines += P.finalize()
        A.end_kernel(NAME, 256, 256)
        return A

HEADER = open("sequential_preLN__linear_attn_block__mixer_gmlp__prompt.s.ref").read().split("; Override")[0]
def generate(path, plain=False, **kw):
    g = G(**kw); A = g.build()
    t = A.text(HEADER)
    if plain: t = t.replace(f"; @launch kernel={NAME} grid", "; @launch grid")
    open(path, "w").write(t)
    return g.names
if __name__ == "__main__":
    import argparse
    ap = argparse.ArgumentParser(); ap.add_argument("out"); ap.add_argument("--stop", type=int, default=99); ap.add_argument("--stamps", action="store_true"); ap.add_argument("--opt", default="{}")
    a = ap.parse_args()
    generate(a.out, plain=True, stop=a.stop, stamps=a.stamps, opt=eval(a.opt))
```

```python
import re

REG_RE = re.compile(r"^(-|\|)?(abs\()?([vas])(\d+|\[(\d+):(\d+)\])\)?\|?$")

def regs_of(tok):
    tok = tok.strip()
    if tok in ("vcc",): return [("s", "vcc_lo"), ("s", "vcc_hi")]
    if tok in ("vcc_lo", "vcc_hi", "m0", "exec_lo", "exec_hi"): return [("s", tok)]
    if tok == "exec": return [("s", "exec_lo"), ("s", "exec_hi")]
    m = REG_RE.match(tok)
    if not m: return []
    k = m.group(3)
    if m.group(5) is not None:
        return [(k, i) for i in range(int(m.group(5)), int(m.group(6)) + 1)]
    return [(k, int(m.group(4)))]

TRANS = ("v_exp_f32", "v_log_f32", "v_rcp_f32", "v_rsq_f32", "v_sqrt_f32", "v_sin_f32", "v_cos_f32")

class Ins:
    __slots__ = ("text", "op", "dst", "src", "kind", "tag", "mods", "stdata", "passes", "A", "B", "C")
    def __init__(self, text, tag=None):
        self.text = text; self.tag = tag
        t = text.split(";")[0].strip()
        parts = t.split(None, 1)
        self.op = op = parts[0]
        rest = parts[1] if len(parts) > 1 else ""
        ops = []; cur = ""; depth = 0
        for ch in rest:
            if ch in "[(": depth += 1
            if ch in "])": depth -= 1
            if ch == "," and depth == 0: ops.append(cur.strip()); cur = ""
            else: cur += ch
        if cur.strip(): ops.append(cur.strip())
        mods = ""
        if ops:
            sp = ops[-1].split(None, 1)
            ops[-1] = sp[0]
            if len(sp) > 1: mods = sp[1]
        self.mods = mods
        self.dst = []; self.src = []; self.stdata = []; self.passes = 0
        self.A = self.B = self.C = []
        R = regs_of
        if op.startswith("v_mfma"):
            self.kind = "mfma"
            self.dst = R(ops[0]); self.A = R(ops[1]); self.B = R(ops[2]); self.C = R(ops[3])
            self.src = self.A + self.B + self.C
            self.passes = 8 if "32x32" in op else 4
        elif op.startswith("ds_"):
            self.kind = "ds"
            if op.startswith("ds_read") or op.startswith("ds_bpermute") or op.startswith("ds_swizzle"):
                self.dst = R(ops[0])
                for o in ops[1:]: self.src += R(o)
            else:
                for o in ops: self.src += R(o)
        elif op.startswith("buffer_") or op.startswith("global_"):
            self.kind = "vmem"
            lds = " lds" in (" " + mods)
            if op.startswith("buffer_inv") or op.startswith("buffer_wbl2"):
                pass
            elif op.startswith("buffer_load"):
                if lds:
                    for o in ops: self.src += R(o)
                    self.src += [("s", "m0")]
                    self.kind = "dma"
                else:
                    self.dst = R(ops[0])
                    for o in ops[1:]: self.src += R(o)
            elif op.startswith("global_load"):
                self.dst = R(ops[0])
                for o in ops[1:]: self.src += R(o)
            elif op.startswith("buffer_store") or op.startswith("buffer_atomic"):
                for o in ops: self.src += R(o)
                self.stdata = R(ops[0])
                if "atomic" in op and "sc0" in mods: self.dst = R(ops[0])
            elif op.startswith("global_store") or op.startswith("global_atomic"):
                for o in ops: self.src += R(o)
                self.stdata = R(ops[1])
            else:
                raise ValueError(text)
        elif op.startswith("s_load") or op.startswith("s_memrealtime") or op.startswith("s_memtime"):
            self.kind = "smem"
            self.dst = R(ops[0])
            for o in ops[1:]: self.src += R(o)
        elif op.startswith("s_"):
            self.kind = "salu"
            if op.startswith(("s_cmp", "s_cbranch", "s_branch", "s_waitcnt", "s_barrier", "s_nop", "s_sleep", "s_endpgm", "s_setprio", "s_bitcmp")):
                for o in ops: self.src += R(o)
                if op.startswith("s_cbranch_vcc"): self.src += R("vcc")
            else:
                self.dst = R(ops[0])
                for o in ops[1:]: self.src += R(o)
                if "saveexec" in op: self.dst += R("exec")
        elif op.startswith("v_"):
            self.kind = "valu"
            if op.startswith("v_cmp"):
                self.dst = R(ops[0])
                for o in ops[1:]: self.src += R(o)
            elif op.startswith("v_permlane") and "swap" in op:
                self.dst = R(ops[0]) + R(ops[1]); self.src = list(self.dst)
            elif op.startswith(("v_add_co", "v_sub_co", "v_addc_co", "v_subb_co")):
                self.dst = R(ops[0]) + R(ops[1])
                for o in ops[2:]: self.src += R(o)
            else:
                self.dst = R(ops[0])
                for o in ops[1:]: self.src += R(o)
                if op.startswith(("v_fmac", "v_dot2c", "v_pk_fmac")) or "_dpp" in op or op.startswith("v_writelane"):
                    self.src += self.dst
                if op.startswith("v_cndmask") and len(ops) == 3: self.src += R("vcc")
        else:
            raise ValueError("unknown op: " + text)

class Prog:
    def __init__(self):
        self.items = []
        self.uid = 0
    def __call__(self, s, tag=None):
        for l in s.split("\n"):
            l = l.strip()
            if not l or l.startswith(";"): continue
            if l.endswith(":"): self.items.append(("label", l[:-1]))
            elif l.startswith("."): self.items.append(("raw", l))
            else: self.items.append(Ins(l, tag))
    def add(self, lst):
        for x in lst:
            if isinstance(x, str): self(x)
            elif isinstance(x, tuple) and x[0] == "T": self(x[1], x[2])
            else: self.items.append(x)
    def lab(self, base="L"):
        self.uid += 1; return f"{base}{self.uid}"
    def wait_tag(self, *tags): self.items.append(("wait_tag", tags))
    def wait_ds(self): self.items.append(("wait_ds",))
    @staticmethod
    def WT(*tags): return ("wait_tag", tags)
    @staticmethod
    def WD(*tags): return ("wait_dstag", tags)
    def cond_begin(self): self.items.append(("cond_begin",))
    def cond_end(self): self.items.append(("cond_end",))
    def alt_begin(self, sreg, fastmod=""):
        self.uid += 1; self.items.append(("alt_begin", sreg, self.uid, fastmod))
    def alt_end(self): self.items.append(("alt_end",))
    def comment(self, t): self.items.append(("raw", "; " + t))

    def finalize(self):
        out = []
        vm = []
        lg = []
        sm = []
        hist = []
        stack = []
        def age(n):
            nonlocal hist
            hist = [(a + n, i) for a, i in hist if a + n < 24]
        def emit_text(t, states=1):
            out.append("    " + t); age(states)
        def need_vm(pred):
            n = None
            for idx, e in enumerate(vm):
                if pred(e):
                    n = sum(1 for y in vm[idx + 1:] if not y["opt"]); last = idx
                    if e["opt"]:
                        for y in vm[idx + 1:]:
                            if y.get("shadow"): n -= 1; break
                            if not y["opt"]: break
            return (n, last) if n is not None else None
        def need_lg(pred):
            n = None
            for idx, e in enumerate(lg):
                if pred(e): n = sum(1 for y in lg[idx + 1:] if not y["opt"]); last = idx
            return (n, last) if n is not None else None
        def do_wait(v, l, smem=False):
            nonlocal vm, lg, sm
            parts = []
            if v is not None:
                v = (min(v[0], 63), v[1])
                parts.append(f"vmcnt({v[0]})"); vm = vm[v[1] + 1:]
            if smem:
                parts.append("lgkmcnt(0)"); lg = []; sm = []
            elif l is not None:
                n = l[0]
                if sm: n = 0
                if n > 15:
                    n = 15
                parts.append(f"lgkmcnt({n})")
                if n == 0: lg = []; sm = []
                else: lg = lg[max(l[1] + 1, len(lg) - n) if all(not y['opt'] for y in lg) else l[1] + 1:]
            if parts:
                prev = out[-1].strip() if out else ""
                if prev.startswith("s_waitcnt ") and not any(p.split("(")[0] in prev for p in parts):
                    out[-1] = out[-1] + " " + " ".join(parts)
                else: emit_text("s_waitcnt " + " ".join(parts))
        def hazard(i):
            need = 0
            rs = set(i.src); ws = set(i.dst)
            for a, p in hist:
                pd = set(p.dst); req = 0
                if p.kind == "valu":
                    vd = {r for r in pd if r[0] in "va"}; sd = {r for r in pd if r[0] == "s"}
                    if i.kind == "mfma" and vd & rs: req = max(req, 2)
                    if i.kind == "valu":
                        if i.op.startswith(("v_readfirstlane", "v_readlane")) and vd & rs: req = max(req, 1)
                        if ("_dpp" in i.op or i.op.startswith("v_permlane")) and vd & rs: req = max(req, 2)
                        if sd & rs: req = max(req, 2)
                        if p.op.startswith(TRANS) and vd & rs: req = max(req, 1)
                        if p.op.startswith("v_dot2") and vd & (rs | ws):
                            if i.op == p.op:
                                ab = set(i.src[:2]) if not i.op.startswith("v_dot2c") else set(i.src[:2])
                                if vd & ab: req = max(req, 3)
                            else: req = max(req, 3)
                    if p.op.startswith("v_dot2") and i.kind in ("vmem", "ds", "dma", "mfma") and vd & rs: req = max(req, 3)
                    if i.kind in ("vmem", "dma") and sd & rs: req = max(req, 5)
                    if i.kind == "salu" and sd & rs: req = max(req, 1)
                if p.kind == "mfma":
                    n = {4: 8, 8: 12}[p.passes]
                    if i.kind == "mfma":
                        if pd & (set(i.A) | set(i.B)): req = max(req, n)
                        if pd & set(i.C) and not (i.C == p.dst and i.passes == p.passes): req = max(req, n - 2)
                        if pd & ws and not (i.C == p.dst): req = max(req, n - 2)
                    elif i.kind in ("valu", "vmem", "ds", "dma"):
                        if pd & (rs | ws): req = max(req, n)
                    if i.kind == "valu" and set(p.C) & ws: req = max(req, {4: 3, 8: 7}[p.passes])
                if p.kind == "salu" and ("s", "m0") in pd and i.kind == "dma": req = max(req, 1)
                if p.kind == "vmem" and len(p.stdata) >= 3 and set(p.stdata) & ws: req = max(req, 2)
                if req - a > need: need = req - a
            return need
        for it in self.items:
            if isinstance(it, tuple):
                k = it[0]
                if k == "label": out.append(it[1] + ":")
                elif k == "raw": out.append(it[1])
                elif k == "wait_tag":
                    tags = set(it[1])
                    do_wait(need_vm(lambda e: e["tag"] in tags), None)
                elif k == "wait_dstag":
                    tags = set(it[1])
                    do_wait(None, need_lg(lambda e: e["tag"] in tags))
                elif k == "NOPIF": pass
                elif k == "count1":
                    vm.append(dict(dst=set(), tag=None, opt=False, shadow=True))
                elif k == "alt_begin":
                    emit_text(f"s_cmp_eq_u32 s{it[1]}, 0"); emit_text(f"s_cbranch_scc1 La{it[2]}")
                    alt = (len(out), it[2], it[3])
                elif k == "alt_end":
                    body = out[alt[0]:]
                    out[alt[0]:] = [l.replace(" @SC", alt[2]) for l in body] + [f"    s_branch Lb{alt[1]}", f"La{alt[1]}:"] + [l.replace(" @SC", " sc1") for l in body] + [f"Lb{alt[1]}:"]
                elif k == "wait_ds":
                    if lg or sm: do_wait(None, None, smem=True)
                elif k == "cond_begin":
                    stack.append(([dict(e) for e in vm], [dict(e) for e in lg], list(sm), list(hist)))
                    for e in vm: e["old"] = len(stack)
                    for e in lg: e["old"] = len(stack)
                elif k == "cond_end":
                    svm, slg, ssm, shist = stack.pop()
                    d = len(stack) + 1
                    newvm = [dict(e, opt=True) for e in vm if e.get("old", 99) > d or "old" not in e]
                    newlg = [dict(e, opt=True) for e in lg if e.get("old", 99) > d or "old" not in e]
                    vm = svm + newvm; lg = slg + newlg; sm = list(set(ssm) | set(sm))
                    hist = hist + shist
                elif k == "reset":
                    vm = []; lg = []; sm = []
                continue
            i = it
            touched = set(i.src) | set(i.dst)
            if i.op == "s_waitcnt":
                m = re.search(r"vmcnt\((\d+)\)", i.text)
                if m:
                    n = int(m.group(1))
                    if n == 0: vm = []
                    elif not any(e["opt"] for e in vm): vm = vm[max(0, len(vm) - n):]
                m = re.search(r"lgkmcnt\((\d+)\)", i.text)
                if m and int(m.group(1)) == 0: lg = []; sm = []
                emit_text(i.text); continue
            v = need_vm(lambda e: e["dst"] & touched)
            l = need_lg(lambda e: e["dst"] & touched)
            s = bool(set(sm) & touched)
            if v is not None or l is not None or s: do_wait(v, l, s)
            n = hazard(i)
            while n > 0:
                c = min(n, 16); emit_text(f"s_nop {c-1}", c); n -= c
            if i.op == "s_nop":
                emit_text(i.text, int(i.text.split()[1]) + 1); continue
            emit_text(i.text)
            hist.append((0, i))
            if i.kind in ("vmem", "dma"):
                vm.append(dict(dst=set(i.dst), tag=i.tag, opt=False))
                assert sum(1 for e in vm) <= 200
            elif i.kind == "ds": lg.append(dict(dst=set(i.dst), tag=i.tag, opt=False))
            elif i.kind == "smem": sm += i.dst
        return out

def interleave(main, fill, every=1, per=1, start=0):
    out = []; fi = 0
    for idx, m in enumerate(main):
        out.append(m)
        if idx >= start and (idx - start) % every == every - 1:
            for _ in range(per):
                if fi < len(fill): out.append(fill[fi]); fi += 1
    out += fill[fi:]
    return out

def spread(main, fill):
    out = []; n = len(main); m = len(fill); fi = 0
    for idx, x in enumerate(main):
        out.append(x)
        tgt = (idx + 1) * m // n
        while fi < tgt: out.append(fill[fi]); fi += 1
    return out
```

```python
import sys, struct
sys.path.insert(0, "gen")
from asmlib import Asm, vr, ar, sr
from emit import Prog, spread, interleave

NAME = "sequential_preLN__linear_attn_block__mixer_gmlp__prompt_kernel"
def f2u(x): return struct.unpack("<I", struct.pack("<f", x))[0]

F1, F2, F3, F3B, F4, F1B = 0x0, 0x2000, 0x2800, 0x4800, 0x5000, 0x6000
EPOCH = 0x9000; KZ = 0x9080; XID = 0x9100
KV = 0xA000; KVS = 1152
STAMP = 0x80000
HST = 0xC0000
PQ, H, Z2, Z1, U, STATS = 0x100000, 0x300000, 0x500000, 0x900000, 0xD00000, 0x1100000
WS_BYTES = 0x1200000
R1 = 8
SX, SWQKV, SWO, SWIN, SWSP, SBSP, SWOUT, SOUT, SWS = 8, 12, 16, 20, 24, 28, 32, 36, 40
def S(d): return f"s[{d}:{d+3}]"
sTB, sE, sFB, sM, sXCC = 3, 4, 5, 6, 7
sX, sJ, sW, sSPIN = 48, 49, 50, 51
sLOG2E, sEPS6, sK2, sONE = 52, 54, 56, 58
sA8, sA4 = 62, 63
sRB, sCBK = 100, 101
sT4, sF4 = 88, 89
vL16, vI, vG, vFLAG, vSW = 1, 2, 3, 4, 6
vT = [8, 9, 10, 11]
SPIN_MAX = 1 << 16
MF = "v_mfma_f32_16x16x32_bf16"
K1C = -2.302208198
WT, WD = Prog.WT, Prog.WD
NOPIF = ("NOPIF",)

def L(s): return [x.strip() for x in s.split("\n") if x.strip()]
def mix(m, f, lead=0):
    if not m: return list(f)
    return m[:lead] + spread(m[lead:], f)
def weave(a, b, g=3):
    groups = [b[i:i+g] for i in range(0, len(b), g)]
    if not groups: return list(a)
    out = []; n = len(groups); ai = 0
    for k, grp in enumerate(groups):
        tgt = (k * len(a) + len(a) // 2) // n if len(a) else 0
        out += a[ai:tgt]; ai = max(ai, tgt); out += grp
    return out + a[ai:]
def zipped(lists):
    out = []; n = max(len(l) for l in lists)
    for k in range(n):
        for l in lists:
            if k < len(l): out.append(l[k])
    return out

def lay2(m, reads, other, nr=None):
    k = min(len(m) - 1, (len(reads) + 1) // 2) if nr is None else nr
    if not reads: return [("wait_ds",)] + mix(m, other)
    return [("wait_ds",)] + mix(m[:k], reads) + mix(m[k:], other)

class G:
    def __init__(self, stop=99, stamps=False, opt=None):
        self.P = Prog(); self.stop = stop; self.stamps = stamps; self.nst = 0; self.names = []
        self.opt = opt or {}
        self.map84 = self.opt.get("map84", 1)
        self.T4 = sA8 if self.map84 else sTB; self.F4 = sA4 if self.map84 else sFB
    def stamp(self, name, fine=False):
        if self.stamps and (not fine or self.opt.get("fine")):
            k = self.nst; self.nst += 1; self.names.append(name)
            self.P(f"{'s_memtime' if self.opt.get('cyc') else 's_memrealtime'} s[98:99]\nv_writelane_b32 v7, s98, {k}")
    def dmai(self, voff, srd, soff, tag):
        nt = " nt" if (self.opt.get("nt", 0) >> {SX: 0, SWQKV: 1, SWO: 2, SWIN: 3, SWSP: 4, SWOUT: 5}[srd]) & 1 else ""
        return ("T", f"buffer_load_dwordx4 v{voff}, {S(srd)}, s{soff} offen{nt} lds", tag)
    def srds(self, lst):
        for d, p, n in lst:
            self.P(f"s_mov_b32 s{d}, s{p}\ns_and_b32 s{d+1}, s{p+1}, 0xffff\ns_mov_b32 s{d+2}, {n}\ns_mov_b32 s{d+3}, 0x20000")
    def set_flag(self, mask, local=False):
        P = self.P
        P(f"s_mov_b64 exec, {mask:#x}\nv_mov_b32 v5, s{sE}")
        if local: self.local([f"buffer_store_dword v5, v{vFLAG}, {S(SWS)}, 0 offen @SC"], flag=True)
        else: P(f"buffer_store_dword v5, v{vFLAG}, {S(SWS)}, 0 offen sc1")
        P("s_mov_b64 exec, -1")
    def local(self, items, tag=None, flag=False):
        P = self.P
        dm = self.opt.get("dmode", 1)
        if not flag and dm == 0:
            for x in items: P(x.replace(" @SC", " sc1"), tag)
            return
        P.alt_begin(sM, "" if flag or dm == 1 else {2: " nt", 3: " sc0"}[dm])
        for x in items: P(x, tag)
        P.alt_end()
    def local4(self, items, tag=None):
        if self.map84:
            for x in items: self.P(x.replace(" @SC", " sc1"), tag)
        else: self.local(items, tag)
    def thru(self, items, tag=None):
        for x in items: self.P(x.replace(" @SC", " sc1"), tag)
    def wave(self, w, fn):
        P = self.P; Lb = P.lab("Lw")
        P(f"s_cmp_lg_u32 s{sW}, {w}\ns_cbranch_scc1 {Lb}")
        P.cond_begin(); fn(); P.cond_end()
        P(f"{Lb}:")
    def wave0(self, fn): self.wave(0, fn)
    def spin_tail(self, Lb, E):
        self.P(f"s_add_u32 s{sSPIN}, s{sSPIN}, 1\ns_cbranch_vccz {E}\ns_cmp_lt_u32 s{sSPIN}, {SPIN_MAX}\ns_cbranch_scc1 {Lb}")
    def poll(self, vaddr, x4=False, soff="0"):
        P = self.P; Lb = P.lab("Lp"); E = P.lab("Le")
        P(f"s_mov_b32 s{sSPIN}, 0\n{Lb}:")
        if x4:
            P(f"buffer_load_dwordx4 v[12:15], v{vaddr}, {S(SWS)}, {soff} offen sc1\ns_waitcnt vmcnt(0)")
            P("\n".join(f"v_xor_b32 v{r}, s{sE}, v{r}" for r in range(12, 16)) + "\nv_or3_b32 v12, v12, v13, v14\nv_or_b32 v12, v12, v15\nv_cmp_ne_u32 vcc, 0, v12")
        else:
            P(f"buffer_load_dword v12, v{vaddr}, {S(SWS)}, {soff} offen sc1\ns_waitcnt vmcnt(0)\nv_cmp_ne_u32 vcc, s{sE}, v12")
        self.spin_tail(Lb, E); P(f"{E}:")
    def check_retry(self, load, cmp):
        P = self.P; Lb = P.lab("Lk"); E = P.lab("Le")
        P(f"s_mov_b32 s{sSPIN}, 0\n{cmp}\ns_cbranch_vccz {E}")
        P.cond_begin()
        P(f"{Lb}:\n{load}\ns_waitcnt vmcnt(0)\n{cmp}")
        self.spin_tail(Lb, E)
        P.cond_end(); P(f"{E}:")
    def barrier(self):
        self.P.wait_ds(); self.P("s_barrier")
    def xreduce(self, regs, tmp, ops=("v_permlane32_swap_b32", "v_permlane16_swap_b32")):
        P = self.P
        for op in ops:
            for k, r in enumerate(regs): P(f"v_mov_b32 v{tmp+k}, v{r}")
            for k, r in enumerate(regs): P(f"{op} v{tmp+k}, v{r}")
            for k, r in enumerate(regs): P(f"v_add_f32 v{r}, v{r}, v{tmp+k}")
    def finstats(self, sums, n, outA, outB):
        ls = []
        for k, (s, q) in enumerate(sums):
            ls.append([f"v_mul_f32 v{s}, {f2u(-1.0/n):#x}, v{s}", f"v_mul_f32 v{q}, {f2u(1.0/n):#x}, v{q}",
                       f"v_fma_f32 v{q}, -v{s}, v{s}, v{q}", f"v_max_f32 v{q}, 0, v{q}", f"v_add_f32 v{q}, {f2u(1e-5):#x}, v{q}",
                       f"v_rsq_f32 v{outA[k]}, v{q}", f"v_mul_f32 v{outB[k]}, v{s}, v{outA[k]}"])
        self.P.add(zipped(ls))
    def phi_pair(self, x, t, out):
        return [f"v_pk_mul_f32 {vr(t,2)}, {vr(x,2)}, s[{sLOG2E}:{sLOG2E+1}]",
                f"v_max_f32 v{x}, 0, v{x}", f"v_max_f32 v{x+1}, 0, v{x+1}",
                f"v_min_f32 v{t}, 0, v{t}", f"v_min_f32 v{t+1}, 0, v{t+1}",
                f"v_exp_f32 v{t}, v{t}", f"v_exp_f32 v{t+1}, v{t+1}",
                f"v_pk_add_f32 {vr(x,2)}, {vr(x,2)}, s[{sEPS6}:{sEPS6+1}]",
                f"v_pk_add_f32 {vr(x,2)}, {vr(x,2)}, {vr(t,2)}",
                f"v_cvt_pk_bf16_f32 v{out}, v{x}, v{x+1}"]
    def gelu_pair(self, x, t, k1):
        return [f"v_pk_mul_f32 {vr(t,2)}, {vr(x,2)}, {vr(x,2)}",
                f"v_pk_fma_f32 {vr(t,2)}, {vr(t,2)}, s[{sK2}:{sK2+1}], {vr(k1,2)}",
                f"v_pk_mul_f32 {vr(t,2)}, {vr(t,2)}, {vr(x,2)}",
                f"v_exp_f32 v{t}, v{t}", f"v_exp_f32 v{t+1}, v{t+1}",
                f"v_pk_add_f32 {vr(t,2)}, {vr(t,2)}, s[{sONE}:{sONE+1}]",
                f"v_rcp_f32 v{t}, v{t}", f"v_rcp_f32 v{t+1}, v{t+1}",
                f"v_pk_mul_f32 {vr(x,2)}, {vr(x,2)}, {vr(t,2)}"]
    @staticmethod
    def bc(r): return vr(r & ~1, 2), r & 1
    def affine_pair(self, x, t, A, B, cs, a_bc):
        if a_bc:
            bn, bb = self.bc(B); an, ab = self.bc(A)
            return [f"v_pk_mul_f32 {vr(t,2)}, {vr(cs,2)}, {bn} op_sel:[0,{bb}] op_sel_hi:[1,{bb}]",
                    f"v_pk_fma_f32 {vr(x,2)}, {vr(x,2)}, {an}, {vr(t,2)} op_sel:[0,{ab},0] op_sel_hi:[1,{ab},1]"]
        cn, cb = self.bc(cs)
        return [f"v_pk_mul_f32 {vr(t,2)}, {vr(B,2)}, {cn} op_sel:[0,{cb}] op_sel_hi:[1,{cb}]",
                f"v_pk_fma_f32 {vr(x,2)}, {vr(x,2)}, {vr(A,2)}, {vr(t,2)}"]

    def prologue(self):
        P = self.P
        P(f"""
        s_cmp_ge_u32 s2, 256
        s_cbranch_scc1 L_end
        s_load_dwordx4 s[64:67], s[0:1], 0
        v_lshrrev_b32 v1, 6, v0
        v_and_b32 v0, 63, v0
        v_readfirstlane_b32 s{sW}, v1
        s_and_b32 s{sX}, s2, 7
        s_lshr_b32 s{sJ}, s2, 3
        v_lshrrev_b32 v{vG}, 4, v0
        s_lshr_b32 s{sA8}, s{sX}, 1
        s_lshl_b32 s{sA8}, s{sA8}, 3
        s_lshr_b32 s86, s{sJ}, 2
        s_add_u32 s{sA8}, s{sA8}, s86
        s_and_b32 s{sA4}, s{sX}, 1
        s_lshl_b32 s{sA4}, s{sA4}, 2
        {f's_xor_b32 s86, s86, s{sJ}' if self.opt.get('hx') else f's_mov_b32 s86, s{sJ}'}
        s_and_b32 s86, s86, 3
        s_add_u32 s{sA4}, s{sA4}, s86
        """)
        if self.stamps: P("v_mov_b32 v7, 0\ns_memtime s[98:99]\nv_writelane_b32 v7, s98, 62")
        self.stamp("start")

    def late_setup(self):
        P = self.P
        self.srds([(SWS, 84, WS_BYTES)])
        P(f"s_mov_b32 s86, {EPOCH}\nbuffer_load_dword v225, off, {S(SWS)}, s86 sc1")
        self.srds([(SWO, 68, 524288), (SWIN, 72, 1835008), (SWSP, 74, 8388608), (SBSP, 76, 4096), (SWOUT, 78, 917504), (SOUT, 80, 2097152)])
        P(f"""
        v_lshlrev_b32 v{vL16}, 4, v0
        v_and_b32 v{vI}, 15, v0
        s_getreg_b32 s{sXCC}, hwreg(HW_REG_XCC_ID, 0, 4)
        s_lshr_b32 s{sRB}, s{sJ}, 4
        s_lshl_b32 s86, s{sX}, 1
        s_add_u32 s{sRB}, s{sRB}, s86
        s_and_b32 s{sCBK}, s{sJ}, 15
        s_lshr_b32 s{sTB}, s{sJ}, 3
        s_lshl_b32 s86, s{sX}, 2
        s_add_u32 s{sTB}, s{sTB}, s86
        s_and_b32 s{sFB}, s{sJ}, 7
        s_lshl_b32 s86, s2, 2
        v_lshl_add_u32 v{vFLAG}, v0, 10, s86
        s_lshl_b32 s86, s{sCBK}, 4
        s_add_u32 s86, s86, s{sRB}
        s_lshl_b32 s86, s86, 2
        s_add_u32 s86, s86, {(F3 - 17*1024) & 0xffffffff}
        v_lshl_add_u32 v5, v0, 10, s86
        v_cmp_lt_u32 vcc, 16, v0
        v_cndmask_b32 v{vFLAG}, v{vFLAG}, v5, vcc
        s_lshl_b32 s86, s{sRB}, 7
        s_lshl_b32 s87, s{sCBK}, 2
        s_add_u32 s86, s86, s87
        s_add_u32 s87, s86, {F2}
        v_writelane_b32 v{vFLAG}, s87, 16
        s_add_u32 s87, s86, {F3B}
        v_writelane_b32 v{vFLAG}, s87, 25
        s_lshl_b32 s86, s{sA8 if self.map84 else sTB}, 7
        s_lshl_b32 s87, s{sA4 if self.map84 else sFB}, 2
        s_add_u32 s86, s86, s87
        s_add_u32 s87, s86, {F4}
        v_writelane_b32 v{vFLAG}, s87, 26
        s_lshl_b32 s86, s{sA8}, 7
        s_lshl_b32 s87, s{sA4}, 2
        s_add_u32 s86, s86, s87
        s_add_u32 s87, s86, {F1B}
        v_writelane_b32 v{vFLAG}, s87, 27
        s_mov_b32 s{sLOG2E}, {f2u(1.4426950408889634):#x}
        s_mov_b32 s{sLOG2E+1}, {f2u(1.4426950408889634):#x}
        s_mov_b32 s{sEPS6}, {f2u(1e-6):#x}
        s_mov_b32 s{sEPS6+1}, {f2u(1e-6):#x}
        s_mov_b32 s{sK2}, {f2u(K1C*0.044715):#x}
        s_mov_b32 s{sK2+1}, {f2u(K1C*0.044715):#x}
        s_mov_b32 s{sONE}, 1.0
        s_mov_b32 s{sONE+1}, 1.0
        """)

    def phase1(self):
        P = self.P
        SCR = 147456
        vX = [216, 217]; vWd = [218, 219]; vA = [220, 221]; vO = [222, 223]; vB = 224
        OWN = 16; BK = 24; BV = 32; ONES = 40; ACK = 48; ACV = 64; CSK = 80; CSV = 84; DS = 88; DQ = 92
        ACQ = 96; CSQ = 112; ST = 120; STQ = 152
        P(f"""
        s_lshl_b32 s88, s{sA8}, 16
        s_lshl_b32 s87, s{sW}, 14
        s_add_u32 s88, s88, s87
        s_lshl_b32 s90, s{sA4}, 7
        s_mul_i32 s87, s{sW}, {16*3072}
        s_add_u32 s90, s90, s87
        s_lshl_b32 s91, s{sW}, 11
        v_lshrrev_b32 v5, 3, v0
        v_and_b32 v6, 7, v0
        v_xor_b32 v12, v6, v{vG}
        v_lshlrev_b32 v12, 4, v12
        v_lshl_add_u32 v{vX[0]}, v5, 10, v12
        v_xor_b32 v{vX[1]}, 64, v{vX[0]}
        v_add_u32 v{vX[1]}, 8192, v{vX[1]}
        v_and_b32 v12, 2, v5
        v_xor_b32 v12, v6, v12
        v_lshlrev_b32 v12, 4, v12
        v_mul_u32_u24 v13, 3072, v5
        v_add_u32 v{vWd[0]}, v13, v12
        v_xor_b32 v{vWd[1]}, 64, v{vWd[0]}
        v_add_u32 v{vWd[1]}, {8*3072}, v{vWd[1]}
        s_waitcnt lgkmcnt(0)
        """)
        P("""s_load_dwordx2 s[84:85], s[0:1], 80
        s_load_dwordx2 s[68:69], s[0:1], 16
        s_load_dwordx8 s[72:79], s[0:1], 32
        s_load_dwordx2 s[80:81], s[0:1], 64""")
        self.srds([(SX, 64, 2097152), (SWQKV, 66, 1572864)])
        def issue_stage(s):
            slot = (s % 6) * 24576; out = []
            if s < 8:
                parts = [(0, SX, vX, 88, s * 128), (8192, SWQKV, vWd, 90, s * 64 * 3072 + 1024), (16384, SWQKV, vWd, 90, s * 64 * 3072 + 2048)]
            else:
                parts = [(8192 * k, SWQKV, vWd, 90, c * 64 * 3072) for k, c in enumerate(range(3 * (s - 8), min(8, 3 * (s - 8) + 3)))]
            for lo, srd, vo, sb, so in parts:
                out.append([f"s_add_u32 m0, s91, {slot + lo}", f"s_add_u32 s60, s{sb}, {so}", self.dmai(vo[0], srd, 60, f"st{s}")])
                out.append([f"s_add_u32 m0, s91, {slot + lo + 1024}", self.dmai(vo[1], srd, 60, f"st{s}")])
            return out
        if self.opt.get("rot1", 2):
            P(f"s_lshr_b32 s92, s{sJ}, 2" if self.opt.get("rot1", 2) == 1 else f"s_lshr_b32 s92, s{sJ}, 2\ns_and_b32 s92, s92, 6")
            def issue_stage(s):
                slot = (s % 6) * 24576; out = []
                def two(lo, srd, vo, pre):
                    out.append([f"s_add_u32 m0, s91, {slot + lo}"] + pre + [self.dmai(vo[0], srd, 60, f"st{s}")])
                    out.append([f"s_add_u32 m0, s91, {slot + lo + 1024}", self.dmai(vo[1], srd, 60, f"st{s}")])
                if s < 8:
                    two(0, SX, vX, [f"s_add_u32 s61, s92, {s}", "s_and_b32 s61, s61, 7", "s_lshl_b32 s60, s61, 7", "s_add_u32 s60, s60, s88"])
                    two(8192, SWQKV, vWd, [f"s_mul_i32 s61, s61, {64*3072}", "s_add_u32 s61, s61, s90", "s_add_u32 s60, s61, 1024"])
                    two(16384, SWQKV, vWd, ["s_add_u32 s60, s61, 2048"])
                else:
                    for k, c in enumerate(range(3 * (s - 8), min(8, 3 * (s - 8) + 3))):
                        two(8192 * k, SWQKV, vWd, [f"s_add_u32 s61, s92, {c}", "s_and_b32 s61, s61, 7", f"s_mul_i32 s61, s61, {64*3072}", "s_add_u32 s60, s61, s90"])
                return out
        flat = lambda g: [x for y in g for x in y]
        D = self.opt.get("D", 3)
        self.stamp("pre", True)
        for s in range(2): P.add(flat(issue_stage(s)))
        self.stamp("iss01", True)
        self.late_setup()
        P(f"""s_lshl_b32 s93, s{sA4}, 2
        s_add_u32 s93, s93, s{sW}
        s_mul_i32 s94, s93, {KVS}
        s_add_u32 s94, s94, {KV}
        s_lshl_b32 s95, s{sA4}, 2
        s_add_u32 s95, s95, {KZ}
        v_lshlrev_b32 v226, 7, v0""")
        Lb = P.lab("Lz")
        P(f"s_cmp_lg_u32 s{sA8}, 0\ns_cbranch_scc1 {Lb}"); P.cond_begin()
        P(f"""v_mov_b32 v12, 0
        v_mov_b32 v13, 0
        v_mov_b32 v14, 0
        v_mov_b32 v15, 0
        buffer_store_dwordx4 v[12:15], v{vL16}, {S(SWS)}, s94 offen sc1
        s_mov_b64 exec, 0xff
        buffer_store_dwordx4 v[12:15], v{vL16}, {S(SWS)}, s94 offen offset:1024 sc1
        s_mov_b64 exec, -1""")
        P.cond_end(); P(f"{Lb}:")
        def w0():
            P(f"""s_getpc_b64 s[86:87]
            L_pc:
            s_and_b32 s61, s{sJ}, 7
            s_lshl_b32 s61, s61, 13
            v_add_u32 v231, s61, v226
            v_min_u32 v231, L_end-L_pc, v231
            global_load_dword v239, v231, s[86:87]""")
        self.wave(0, w0)
        self.wave(1, lambda: P(f"s_lshl_b32 s86, s2, 13\ns_mov_b32 exec_lo, 0xfcfcfcfc\ns_mov_b32 exec_hi, 0xfcfcfcfc\nbuffer_load_dword v235, v226, {S(SX)}, s86 offen\ns_mov_b64 exec, -1"))
        self.wave(2, lambda: P(f"s_mul_i32 s86, s2, {36*128}\ns_add_u32 s86, s86, {3072*128}\ns_mov_b32 exec_hi, 15\nbuffer_load_dword v236, v226, {S(SWQKV)}, s86 offen\ns_mov_b64 exec, -1"))
        self.wave(3, lambda: P(f"""s_lshl_b32 s86, s{sX}, 7
            s_lshl_b32 s87, s{sJ}, 2
            s_add_u32 s86, s86, s87
            s_add_u32 s86, s86, {XID}
            v_mov_b32 v5, s{sXCC}
            s_mov_b64 exec, 1
            buffer_store_dword v5, off, {S(SWS)}, s86 sc1
            s_mov_b64 exec, -1"""))
        P.items.append(("count1",))
        def pf1(srd, per, d):
            P(f"s_lshl_b32 s86, s2, 2\ns_add_u32 s86, s86, s{sW}\ns_mul_i32 s86, s86, {per*128}\ns_mov_b64 exec, {(1<<per)-1}\nbuffer_load_dword v{d}, v226, {S(srd)}, s86 offen\ns_mov_b64 exec, -1")
        def hook(pt):
            if self.opt.get("ptouch", -1) == pt: P(f"s_mov_b64 exec, 0xffffff\nbuffer_load_dword v237, v238, {S(SWS)}, 0 offen {self.opt.get('tm', '')}\ns_mov_b64 exec, -1")
            if self.opt.get("pwo", 7) == pt: pf1(SWO, 4, 232)
            if self.opt.get("pwin", 7) == pt: pf1(SWIN, 14, 233)
            if self.opt.get("pwout", 7) == pt: pf1(SWOUT, 7, 234)
        for s in range(2, D): P.add(flat(issue_stage(s)))
        P(f"""
        v_lshrrev_b32 v12, 1, v{vI}
        v_xor_b32 v12, v12, v{vG}
        v_lshlrev_b32 v12, 4, v12
        v_lshl_add_u32 v{vA[0]}, v{vI}, 7, v12
        v_xor_b32 v{vA[1]}, 64, v{vA[0]}
        v_add_u32 v{vO[0]}, s91, v{vA[0]}
        v_add_u32 v{vO[1]}, s91, v{vA[1]}
        v_lshrrev_b32 v12, 2, v{vI}
        v_lshl_add_u32 v13, v{vG}, 3, v12
        v_and_b32 v14, 2, v12
        v_and_b32 v15, 1, v{vG}
        v_lshl_or_b32 v14, v15, 2, v14
        v_bfe_u32 v15, v0, 1, 1
        s_lshl_b32 s86, s{sW}, 1
        v_add_u32 v15, s86, v15
        v_xor_b32 v14, v14, v15
        v_lshlrev_b32 v14, 4, v14
        v_lshl_add_u32 v14, v13, 7, v14
        v_and_b32 v15, 1, v0
        v_lshl_add_u32 v{vB}, v15, 3, v14
        """)
        for k in range(4): P(f"v_mov_b32 v{ONES+k}, 0x3f803f80")
        P(f"""s_lshl_b32 s86, s{sW}, 6
        s_add_u32 s86, s86, {SCR}
        v_lshl_add_u32 v212, v{vI}, 2, s86
        v_lshlrev_b32 v213, 4, v{vG}
        v_add_u32 v213, {SCR}, v213
        v_lshlrev_b32 v214, 2, v{vI}
        v_add_u32 v214, {SCR}, v214
        s_add_u32 s86, s91, {SCR + 1024}
        v_add_u32 v227, s86, v{vL16}
        v_lshl_add_u32 v228, v{vG}, 4, s86
        v_lshl_add_u32 v229, v0, 2, s86
        v_lshlrev_b32 v215, 2, v0
        v_and_b32 v12, 3, v0
        v_cmp_eq_u32 s[44:45], 1, v12
        v_cmp_eq_u32 s[46:47], 2, v12
        v_cmp_eq_u32 s[82:83], 3, v12""")
        if self.opt.get('ptouch', -1) >= 0: P(f"""s_lshr_b32 s86, s{sJ}, 2
        s_lshl_b32 s87, s{sX}, 3
        s_add_u32 s86, s86, s87
        s_and_b32 s87, s{sJ}, 3
        s_lshl_b32 s96, s86, 5
        s_lshl_b32 s97, s87, 2
        s_add_u32 s96, s96, s97
        s_add_u32 s96, s96, s{sW}
        s_lshl_b32 s96, s96, 10
        s_add_u32 s96, s96, {H}
        v_and_b32 v12, 7, v0
        v_lshlrev_b32 v12, 7, v12
        v_bfe_u32 v13, v0, 3, 1
        v_lshl_add_u32 v12, v13, 14, v12
        v_add_u32 v238, s96, v12
        s_lshl_b32 s96, s86, 12
        s_lshl_b32 s97, s87, 8
        s_add_u32 s96, s96, s97
        s_lshr_b32 s97, s{sW}, 1
        s_lshl_b32 s97, s97, 10
        s_add_u32 s96, s96, s97
        s_add_u32 s96, s96, {HST}
        v_and_b32 v12, 1, v0
        v_lshlrev_b32 v12, 7, v12
        v_bfe_u32 v13, v0, 1, 1
        v_lshl_add_u32 v12, v13, 11, v12
        v_add_u32 v12, s96, v12
        v_cmp_lt_u32 vcc, 15, v0
        v_cndmask_b32 v238, v238, v12, vcc
        s_lshl_b32 s96, s{sRB}, 15
        s_lshl_b32 s97, s{sCBK}, 11
        s_add_u32 s96, s96, s97
        s_lshl_b32 s97, s{sW}, 9
        s_add_u32 s96, s96, s97
        s_add_u32 s96, s96, {STATS}
        v_and_b32 v12, 3, v0
        v_lshl_add_u32 v12, v12, 7, s96
        v_cmp_lt_u32 vcc, 19, v0
        v_cndmask_b32 v238, v238, v12, vcc""")
        cur = [0]
        def setbase(slot, regs):
            want = (slot // 2) * 49152; out = []
            if want != cur[0]:
                out = [f"v_add_u32 v{r}, {want - cur[0]}, v{r}" if want > cur[0] else f"v_subrev_u32 v{r}, {cur[0] - want}, v{r}" for r in regs]
                cur[0] = want
            return (slot % 2) * 24576, out
        def reads(ks, so):
            t = ks & 1; out = []
            for base, lo in ((BK, 8192), (BV, 16384)):
                for h in range(2): out.append(f"ds_read_b64_tr_b16 {vr(base+4*t+2*h,2)}, v{vB} offset:{so + lo + t*4096 + h*512}")
            for rf in range(4): out.append(f"ds_read_b128 {ar((ks*4+rf)*4,4)}, v{vA[t]} offset:{so + rf*2048}")
            out.append(f"ds_read_b128 {vr(OWN+4*t,4)}, v{vO[t]} offset:{so}")
            return out
        def mfmas(ks):
            t = ks & 1; m = []
            c = lambda r: vr(r, 4) if ks else "0"
            m.append(f"{MF} {vr(DS,4)}, {vr(OWN+4*t,4)}, {vr(ONES,4)}, {c(DS)}")
            m.append(f"{MF} {vr(DQ,4)}, {vr(OWN+4*t,4)}, {vr(OWN+4*t,4)}, {c(DQ)}")
            m.append(f"{MF} {vr(CSK,4)}, {vr(ONES,4)}, {vr(BK+4*t,4)}, {c(CSK)}")
            m.append(f"{MF} {vr(CSV,4)}, {vr(ONES,4)}, {vr(BV+4*t,4)}, {c(CSV)}")
            for rf in range(4):
                for base, acc in ((BK, ACK), (BV, ACV)):
                    m.append(f"{MF} {vr(acc+4*rf,4)}, {ar((ks*4+rf)*4,4)}, {vr(base+4*t,4)}, {c(acc+4*rf)}")
            return m
        def lay(m, r, g):
            if not m: return r + flat(g)
            g = g + [[]] * (3 - len(g))
            return mix(m[:4], r[:5] + g[0]) + mix(m[4:7], r[5:]) + mix(m[7:9], g[1]) + m[9:10] + mix(m[10:], g[2])
        for s in range(8):
            P.wait_tag(f"st{s}"); self.barrier()
            if s == 0: self.stamp("st0")
            else: self.stamp(f"st{s}", True)
            if s == 2:
                P(f"v_readfirstlane_b32 s{sE}, v225\ns_add_u32 s{sE}, s{sE}, 1")
                Lb = P.lab("Lz")
                P(f"s_or_b32 s86, s{sA8}, s{sW}\ns_cmp_lg_u32 s86, 0\ns_cbranch_scc1 {Lb}"); P.cond_begin()
                P(f"v_mov_b32 v5, s{sE}\ns_mov_b64 exec, 1\nbuffer_store_dword v5, off, {S(SWS)}, s95 sc1\ns_mov_b64 exec, -1")
                P.cond_end(); P(f"{Lb}:")
            so, adj = setbase(s % 6, vA + vO + [vB])
            iss = issue_stage(s + D) if s + D <= 10 else []
            if s == 6: P(f"buffer_load_dword v230, off, {S(SWS)}, s95 sc1")
            hook(s)
            h = len(iss) // 2
            P.add(adj + lay(mfmas(2*s - 1) if s else [], reads(2*s, so), iss[:h]))
            P.wait_ds()
            P.add(lay(mfmas(2*s), reads(2*s + 1, so), iss[h:]))
        for s in range(8 + D, 11): P.add(flat(issue_stage(s)))
        m = mfmas(15)
        sel = []
        for k, sm in ((1, 44), (2, 46), (3, 82)):
            sel += [f"v_cndmask_b32 v{DS}, v{DS}, v{DS+k}, s[{sm}:{sm+1}]", f"v_cndmask_b32 v{DQ}, v{DQ}, v{DQ+k}, s[{sm}:{sm+1}]"]
        fin = [f"v_mul_f32 v{DS}, {f2u(-1.0/512):#x}, v{DS}", f"v_mul_f32 v{DQ}, {f2u(1.0/512):#x}, v{DQ}", f"v_fma_f32 v{DQ}, -v{DS}, v{DS}, v{DQ}",
               f"v_max_f32 v{DQ}, 0, v{DQ}", f"v_add_f32 v{DQ}, {f2u(1e-5):#x}, v{DQ}", f"v_rsq_f32 v{DS+1}, v{DQ}"]
        P.add(m[:6] + mix(m[6:], sel + fin))
        P(f"""v_mul_f32 v{DS+2}, v{DS}, v{DS+1}
        s_mov_b32 exec_lo, 0x00f0000f
        s_mov_b32 exec_hi, 0xf0000f00
        ds_write_b32 v212, v{DS+1}
        ds_write_b32 v212, v{DS+2} offset:256
        s_mov_b64 exec, -1""")
        self.stamp("p1gemm")
        self.barrier()
        for rf in range(4):
            P(f"ds_read_b128 {vr(ST+8*rf,4)}, v213 offset:{rf*64}\nds_read_b128 {vr(ST+8*rf+4,4)}, v213 offset:{256+rf*64}")
        for rf in range(4):
            P(f"ds_read_b32 v{STQ+2*rf}, v214 offset:{rf*64}\nds_read_b32 v{STQ+2*rf+1}, v214 offset:{256+rf*64}")
        PK = 160; PV = 168; TT = 176; KVD = 184; ZD = 188
        for rf in range(4):
            ls = []
            for hp in range(2):
                x = ACK + 4*rf + 2*hp; t = TT + 2*hp
                ls.append(self.affine_pair(x, t, ST+8*rf+2*hp, ST+8*rf+4+2*hp, CSK, False) + self.phi_pair(x, t, PK + 2*rf + hp))
                x = ACV + 4*rf + 2*hp; t = TT + 4 + 2*hp
                ls.append(self.affine_pair(x, t, ST+8*rf+2*hp, ST+8*rf+4+2*hp, CSV, False) + [f"v_cvt_pk_bf16_f32 v{PV+2*rf+hp}, v{x}, v{x+1}"])
            P.add(zipped(ls))
        p2a, p2b = self.p2_setup()
        P(f"""{MF} {vr(KVD,4)}, {vr(PK,4)}, {vr(PV,4)}, 0
        {MF} {vr(ZD,4)}, {vr(PK,4)}, {vr(ONES,4)}, 0
        {MF} {vr(KVD,4)}, {vr(PK+4,4)}, {vr(PV+4,4)}, {vr(KVD,4)}
        {MF} {vr(ZD,4)}, {vr(PK+4,4)}, {vr(ONES,4)}, {vr(ZD,4)}""")
        P.add(p2a[:8])
        P(f"ds_write_b128 v227, {vr(KVD,4)}\nds_write_b128 v228, {vr(ZD,4)} offset:1024")
        P.add(p2a[8:])
        P.wait_ds()
        for t in range(5): P(f"ds_read_b32 v{192+t}, v229 offset:{t*256}")
        self.check_retry(f"buffer_load_dword v230, off, {S(SWS)}, s95 sc1", f"v_cmp_ne_u32 vcc, s{sE}, v230")
        for t in range(4): P(f"buffer_atomic_add_f32 v{192+t}, v215, {S(SWS)}, s94 offen offset:{t*256} sc1", "atom")
        P(f"s_mov_b64 exec, 0xffff\nbuffer_atomic_add_f32 v196, v215, {S(SWS)}, s94 offen offset:1024 sc1\ns_mov_b64 exec, -1", "atom")
        self.stamp("atom")
        hook(8)
        def qreads(ks):
            c = ks >> 1; t = ks & 1
            so, adj = setbase(2 + c // 3, [vB])
            return adj + [f"ds_read_b64_tr_b16 {vr(BK+4*(ks&3)+2*h,2)}, v{vB} offset:{so + (c%3)*8192 + t*4096 + h*512}" for h in range(2)]
        def qm(ks):
            b = vr(BK+4*(ks&3),4)
            out = [f"{MF} {vr(ACQ+4*rf,4)}, {b}, {ar((ks*4+rf)*4,4)}, {vr(ACQ+4*rf,4) if ks else '0'}" for rf in range(4)]
            return out + [f"{MF} {vr(CSQ,4)}, {b}, {vr(ONES,4)}, {vr(CSQ,4) if ks else '0'}"]
        P.wait_tag("st10"); self.barrier()
        P.add(qreads(0) + qreads(1))
        wo_e = self.wo_dma(0)
        p2b = p2b + L(f"""s_lshl_b32 s87, s{sA8}, 6
        s_add_u32 s87, s87, s93
        s_lshl_b32 s87, s87, 10
        s_add_u32 s64, s87, {PQ}
        s_add_u32 s65, s64, 32768""")
        n = (len(p2b) + 15) // 16
        for ks in range(16):
            P.add(mix(qm(ks), (qreads(ks + 2) if ks + 2 < 16 else []) + wo_e[len(wo_e)*ks//16:len(wo_e)*(ks+1)//16] + p2b[n*ks:n*ks+n]))
        PQR = 160
        P.wait_tag("atom"); self.barrier()
        self.wave0(lambda: self.set_flag((1 << R1) - 1))
        self.stamp("F1a")
        hook(9)
        wo_l = self.wo_dma(1)
        for p in range(2):
            ls = []
            for rf in (2*p, 2*p+1):
                for hp in range(2):
                    x = ACQ + 4*rf + 2*hp; t = TT + 2*((2*rf+hp) % 4)
                    ls.append(self.affine_pair(x, t, STQ+2*rf, STQ+2*rf+1, CSQ+2*hp, True) + self.phi_pair(x, t, PQR + 2*rf + hp))
            P.add(zipped(ls))
            P(f"buffer_store_dwordx4 {vr(PQR+4*p,4)}, v{vL16}, {S(SWS)}, s{64+p} offen sc1", "pq")
        nw = self.opt.get("nw", 6)
        P.add(weave(self.wo_reads(0) + self.wo_reads(1), wo_l[:3*nw]))
        P.wait_tag("pq")
        P("s_barrier")
        self.wave0(lambda: self.set_flag(1 << 27))
        self.stamp("F1")
        hook(10)
        P.add(wo_l[3*nw:])

    def p2_setup(self):
        a = L(f"""
        s_lshr_b32 s88, s{sJ}, 2
        s_lshl_b32 s86, s{sX}, 3
        s_add_u32 s88, s88, s86
        s_and_b32 s89, s{sJ}, 3
        v_lshrrev_b32 v12, 3, v0
        v_and_b32 v13, 6, v12
        v_and_b32 v14, 7, v0
        v_xor_b32 v13, v13, v14
        v_lshlrev_b32 v{vSW}, 4, v13
        v_lshl_add_u32 v200, v12, 10, v{vSW}
        s_lshl_b32 s90, s{sW}, 17
        s_lshl_b32 s86, s89, 8
        s_add_u32 s90, s90, s86
        s_lshl_b32 s91, s{sW}, 14
        s_add_u32 s96, s91, 65536
        s_cmp_eq_u32 s{sW}, 3
        s_cselect_b32 s91, 131072, s91""")
        b = L(f"""
        v_lshrrev_b32 v12, 2, v{vI}
        v_lshl_add_u32 v12, v{vG}, 2, v12
        v_and_b32 v13, 6, v12
        v_bfe_u32 v14, v0, 1, 1
        v_xor_b32 v13, v13, v14
        v_and_b32 v14, 1, v0
        v_lshlrev_b32 v14, 3, v14
        v_lshl_add_u32 v14, v12, 7, v14
        v_lshl_add_u32 v{vT[0]}, v13, 4, v14
        v_xor_b32 v{vT[1]}, 32, v{vT[0]}
        v_xor_b32 v{vT[2]}, 64, v{vT[0]}
        v_xor_b32 v{vT[3]}, 96, v{vT[0]}
        s_and_b32 s86, s{sW}, 1
        s_lshl_b32 s86, s86, 6""")
        for p in range(4):
            b += L(f"s_add_u32 s87, s{sW}, {p}\ns_and_b32 s87, s87, 2\ns_lshl_b32 s87, s87, 12\ns_add_u32 s87, s87, s91")
            for cf in range(2):
                b += [f"v_xor_b32 v{204+2*p+cf}, s86, v{vT[2*(p&1)+cf]}", f"v_add_u32 v{204+2*p+cf}, s87, v{204+2*p+cf}"]
        return a, b
    def wo_dma(self, half):
        out = []
        for i in range(8):
            for st in range(2):
                if self.opt.get('rotwo', 0):
                    if st == 0:
                        out += [f"s_add_u32 s61, s88, {i}", "s_and_b32 s61, s61, 7", "s_lshl_b32 s66, s61, 10", f"s_add_u32 s66, s66, s{96 if half else 91}", "s_mov_b32 m0, s66",
                                "s_lshl_b32 s61, s61, 13", "s_add_u32 s61, s61, s90", f"s_add_u32 s60, s61, {8*half*8192}", self.dmai(200, SWO, 60, f"wo{2*half}")]
                    else:
                        out += ["s_add_u32 m0, s66, 8192", "s_add_u32 s60, s60, 128", self.dmai(200, SWO, 60, f"wo{2*half}")]
                else:
                    out += [f"s_add_u32 m0, s{96 if half else 91}, {st*8192 + i*1024}", f"s_add_u32 s60, s90, {(8*half+i)*8192 + st*128}", self.dmai(200, SWO, 60, f"wo{2*half + i//4}")]
        return out
    def wo_reads(self, kk):
        return [WT(f"wo{kk}")] + [f"ds_read_b64_tr_b16 {ar(((kk*4+p)*2+cf)*4+2*h,2)}, v{204+2*p+cf} offset:{(kk&1)*4096 + h*2048}" for p in range(4) for cf in range(2) for h in range(2)]
    def win_setup(self, v):
        return L(f"""v_lshrrev_b32 v{v}, 3, v0
        v_mul_u32_u24 v{v}, 3584, v{v}
        v_add_u32 v{v}, v{v}, v{vSW}
        s_min_u32 s70, s{sCBK}, 13
        s_lshl_b32 s70, s70, 7
        s_mul_i32 s71, s{sW}, {8*3584}
        s_add_u32 s70, s70, s71
        s_lshl_b32 s71, s{sW}, 10
        s_and_b32 s86, s{sRB}, 1
        s_mul_i32 s78, s86, {8*4096}
        s_mul_i32 s79, s86, {8*32*3584}
        s_mul_i32 s80, s86, {self.opt.get('nw1', 10)//2*4096}
        s_mul_i32 s81, s86, {self.opt.get('nw1', 10)//2*32*3584}""")
    def win_dma(self, half, t, v):
        n = 16 if half == 0 else self.opt.get('nw1', 10)
        if self.opt.get('rotw', 0) and t < n and n % 2 == 0:
            sg = "s_add_u32" if t < n // 2 else "s_sub_u32"
            r = 78 if half == 0 else 80
            return [f"s_add_u32 m0, s71, {half*65536 + t*4096}", f"{sg} m0, m0, s{r}", f"s_add_u32 s60, s70, {t*32*3584 + (1792 if half == 0 else 0)}", f"{sg} s60, s60, s{r+1}", self.dmai(v, SWIN, 60, f"win{half}")]
        return [f"s_add_u32 m0, s71, {half*65536 + t*4096}", NOPIF, f"s_add_u32 s60, s70, {t*32*3584 + (1792 if half == 0 else 0)}", NOPIF, self.dmai(v, SWIN, 60, f"win{half}")]

    def win0_dma(self, v):
        out = L(f"s_min_u32 s72, s{sCBK}, 13\ns_lshl_b32 s72, s72, 7\ns_mul_i32 s73, s{sW}, {128*3584}\ns_add_u32 s72, s72, s73\ns_lshl_b32 s73, s{sW}, 14")
        for i in range(16):
            out += [f"s_add_u32 m0, s73, {i*1024}", f"s_add_u32 s60, s72, {i*8*3584 + 1792}", self.dmai(v, SWIN, 60, "win0")]
        return out

    def phase2(self):
        P = self.P
        EX = 114688
        XR = 244; EPSQ = 124
        P(f"""s_lshl_b32 s86, s88, 15
        s_lshl_b32 s87, s89, 8
        s_add_u32 s86, s86, s87
        s_lshl_b32 s87, s{sW}, 6
        s_add_u32 s60, s86, s87
        s_lshl_b32 s87, s{sW}, 11
        s_add_u32 m0, s87, 147456
        v_lshrrev_b32 v12, 2, v0
        v_lshrrev_b32 v13, 3, v0
        v_xor_b32 v13, v13, v0
        v_and_b32 v13, 3, v13
        v_lshlrev_b32 v13, 4, v13
        v_lshl_add_u32 v12, v12, 10, v13""")
        P.add([self.dmai(12, SX, 60, "xt"), "s_add_u32 m0, s87, 148480", "s_add_u32 s60, s60, 16384", self.dmai(12, SX, 60, "xt")])
        P(f"""v_lshrrev_b32 v13, 1, v{vI}
        v_lshrrev_b32 v14, 1, v{vG}
        v_xor_b32 v13, v13, v14
        v_and_b32 v13, 3, v13
        v_lshlrev_b32 v13, 4, v13
        v_lshl_add_u32 v13, v{vI}, 6, v13
        v_and_b32 v14, 1, v{vG}
        v_lshl_add_u32 v13, v14, 3, v13
        s_add_u32 s87, s87, 147456
        v_add_u32 v20, s87, v13
        v_xor_b32 v21, 32, v20""")
        P(f"""s_lshl_b32 s86, s{sW}, 3
        s_mul_i32 s92, s86, {KVS}
        s_add_u32 s92, s92, {KV}
        s_add_u32 s93, s92, {4*KVS}
        s_lshl_b32 s94, s88, 5
        s_add_u32 s94, s94, s86
        s_lshl_b32 s94, s94, 10
        s_add_u32 s94, s94, {PQ}
        s_add_u32 s95, s94, 4096
        v_and_b32 v12, 7, v0
        v_mul_u32_u24 v12, {KVS}, v12
        v_lshl_add_u32 v19, v{vG}, 4, v12
        v_and_b32 v18, 31, v0
        v_lshlrev_b32 v18, 2, v18
        s_lshl_b32 s66, s{sX}, 7
        s_add_u32 s66, s66, {XID}
        s_lshl_b32 s67, s{sX}, 10
        s_lshr_b32 s97, s88, 1
        s_lshl_b32 s97, s97, 7
        s_add_u32 s97, s97, {F1B}
        v_and_b32 v16, 7, v0
        v_lshlrev_b32 v16, 2, v16""")
        for k in range(4): P(f"v_mov_b32 v{EPSQ+k}, s{sEPS6}")
        P.add(self.win_setup(123))
        for p in range(1, 4):
            P(f"s_add_u32 s86, s{sW}, {p}\ns_and_b32 s86, s86, 3\ns_mul_i32 s86, s86, 12288\ns_add_u32 s86, s86, {EX + (p-1)*4096}")
            P(f"v_add_u32 v{118+p}, s86, v{vL16}")
        P(f"""s_mul_i32 s86, s{sW}, 12288
        s_add_u32 s86, s86, {EX}
        v_add_u32 v118, s86, v{vL16}
        s_lshl_b32 s64, s88, 5
        s_lshl_b32 s87, s89, 2
        s_add_u32 s64, s64, s87
        s_add_u32 s64, s64, s{sW}
        s_lshl_b32 s64, s64, 10
        s_add_u32 s64, s64, {H}
        s_add_u32 s65, s64, 16384
        s_lshl_b32 s61, s88, 12
        s_lshl_b32 s86, s89, 8
        s_add_u32 s61, s61, s86
        s_lshr_b32 s86, s{sW}, 1
        s_lshl_b32 s86, s86, 10
        s_add_u32 s61, s61, s86
        s_and_b32 s86, s{sW}, 1
        s_lshl_b32 s86, s86, 3
        s_add_u32 s61, s61, s86
        s_add_u32 s61, s61, {HST}
        v_lshlrev_b32 v122, 4, v{vI}
        v_lshl_add_u32 v122, v{vG}, 11, v122""")
        if self.opt.get("touch", 1):
            P(f"""v_and_b32 v12, 7, v0
            v_lshlrev_b32 v12, 7, v12
            v_bfe_u32 v13, v0, 3, 1
            v_lshl_add_u32 v12, v13, 14, v12
            s_mov_b64 exec, 0xffff
            buffer_load_dword v253, v12, {S(SWS)}, s64 offen {self.opt.get('tm', '')}
            v_and_b32 v12, 1, v0
            v_lshlrev_b32 v12, 7, v12
            v_bfe_u32 v13, v0, 1, 1
            v_lshl_add_u32 v12, v13, 11, v12
            s_mov_b64 exec, 0xf
            buffer_load_dword v254, v12, {S(SWS)}, s61 offen {self.opt.get('tm', '')}
            s_mov_b64 exec, -1""")
        fl2 = f"buffer_load_dwordx4 v[12:15], v{vL16}, {S(SWS)}, s67 offen sc1\nbuffer_load_dword v17, v16, {S(SWS)}, s97 offen sc1"
        if self.opt.get("nbp", 0): self.wave0(lambda: P(fl2))
        P("s_sub_u32 s86, s96, s91")
        for r in range(204, 212): P(f"v_add_u32 v{r}, s86, v{r}")
        P.add(self.wo_reads(2) + self.wo_reads(3))
        P.wait_tag("xt")
        for a in range(2):
            for cf in range(2): P(f"ds_read_b64 {vr(XR+(a*2+cf)*2,2)}, v{20+cf} offset:{a*1024}")
        self.stamp("wo")
        cm = "\n".join(f"v_xor_b32 v{r}, s{sE}, v{r}" for r in (12, 13, 14, 15, 17)) + "\nv_or3_b32 v12, v12, v13, v14\nv_or3_b32 v12, v12, v15, v17\nv_cmp_ne_u32 vcc, 0, v12"
        def pl():
            if not self.opt.get("nbp", 0): P(fl2)
            self.check_retry(fl2, cm)
        self.wave0(pl)
        self.barrier()
        self.stamp("sync1")
        KR = 16; KP = 48; ZR = 64; ZC = 68; ZP = 70; PQR = 86; ACC = 128; OF = 192; ND = 212
        P(f"buffer_load_dwordx4 {vr(ZR,4)}, v19, {S(SWS)}, s92 offen offset:1024 sc1")
        P(f"buffer_load_dword v252, v18, {S(SWS)}, s66 offen sc1")
        for h in range(8):
            P(f"buffer_load_dwordx4 {vr(KR+4*h,4)}, v{vL16}, {S(SWS)}, s{92+h//4} offen offset:{(h%4)*KVS} sc1")
            P(f"buffer_load_dwordx4 {vr(PQR+4*h,4)}, v{vL16}, {S(SWS)}, s{94+h//4} offen offset:{(h%4)*1024} sc1")
        wd = []
        if not self.opt.get("w0early", 0):
            for t in range(16): wd += self.win_dma(0, t, 123)
        NW1 = self.opt.get('nw1', 10)
        for t in range(NW1): wd += self.win_dma(1, t, 123)
        P(f"v_cvt_pk_bf16_f32 v{ZC}, v{ZR}, v{ZR+1}\nv_cvt_pk_bf16_f32 v{ZC+1}, v{ZR+2}, v{ZR+3}")
        P(f"v_cmp_ne_u32 vcc, s{sXCC}, v252")
        for h in range(8):
            for k in range(2): P(f"v_mov_b32_dpp v{ZP+2*h+k}, v{ZC+k} row_newbcast:{h} row_mask:0xf bank_mask:0xf")
        P(f"s_cmp_eq_u64 vcc, 0\ns_cselect_b32 s{sM}, {self.opt.get('fast', 1)}, 0")
        def ostep(kk):
            c = []; m = []
            for hh in range(2):
                h = 2*kk + hh
                c += [f"v_cvt_pk_bf16_f32 v{KP+2*h}, v{KR+4*h}, v{KR+4*h+1}", f"v_cvt_pk_bf16_f32 v{KP+2*h+1}, v{KR+4*h+2}, v{KR+4*h+3}"]
            for hh in range(2):
                h = 2*kk + hh
                for a in range(2):
                    m.append(f"v_mfma_f32_16x16x16_bf16 {vr(ND+8*(2*hh+a)+4,4)}, {vr(ZP+2*h,2)}, {vr(PQR+4*h+2*a,2)}, {vr(EPSQ,4)}")
            for hh in range(2):
                h = 2*kk + hh
                for a in range(2):
                    m.append(f"v_mfma_f32_16x16x16_bf16 {vr(ND+8*(2*hh+a),4)}, {vr(KP+2*h,2)}, {vr(PQR+4*h+2*a,2)}, 0")
            v = [f"v_rcp_f32 v{ND+8*q+4}, v{ND+8*q+4}" for q in range(4)]
            for hh in range(2):
                for a in range(2):
                    nd = ND + 8*(2*hh+a); o = OF + 8*(kk&1) + 4*a + 2*hh
                    v += [f"v_mul_f32 v{nd+k}, v{nd+k}, v{nd+4}" for k in range(4)]
                    v += [f"v_cvt_pk_bf16_f32 v{o}, v{nd}, v{nd+1}", f"v_cvt_pk_bf16_f32 v{o+1}, v{nd+2}, v{nd+3}"]
            return c, m, v
        def gstep(kk):
            m = []
            for p in range(4):
                for cf in range(2):
                    for a in range(2):
                        acc = vr(ACC + ((p*2+a)*2+cf)*4, 4)
                        m.append(f"{MF} {acc}, {ar(((kk*4+p)*2+cf)*4,4)}, {vr(OF+8*(kk&1)+4*a,4)}, {acc if kk else '0'}")
            return m
        c, m, v = ostep(0); P.add(c[:2] + mix(m[:4], c[2:]) + m[4:] + v)
        self.stamp("p2o0", True)
        XF = 80
        xun = []
        for q in range(4):
            for k in range(2): xun += [f"v_lshlrev_b32 v{XF+4*q+2*k}, 16, v{XR+2*q+k}", f"v_and_b32 v{XF+4*q+2*k+1}, 0xffff0000, v{XR+2*q+k}"]
        xw = [f"ds_write_b128 v{118+p}, {vr(ACC+(p*4+q)*4,4)} offset:{q*1024}" for p in range(1, 4) for q in range(4)]
        for kk in range(4):
            g = gstep(kk)
            if kk < 3:
                c, m, v = ostep(kk+1)
                q_ = 25
                P.add(mix(m[:4], c) + mix(m[4:], wd[q_*kk:q_*kk+10]) + mix(g, weave(v, wd[q_*kk+10:q_*kk+q_], 5), 1))
            else:
                g = g[4:] + g[:4]
                P.add(mix(g[:9], wd[3*q_:3*q_+15]) + mix(g[9:], xw[:7]) + xw[7:])
        self.stamp("p2mm")
        P.add(weave(xun, wd[3*q_+15:], 5))
        for q in range(4):
            for k in range(2): P(f"v_pk_add_f32 {vr(ACC+4*q+2*k,2)}, {vr(ACC+4*q+2*k,2)}, {vr(XF+4*q+2*k,2)}")
        self.barrier()
        RB = 32; HO = 96
        for q in range(4):
            for p in range(3): P(f"ds_read_b128 {vr(RB+(p*4+q)*4,4)}, v118 offset:{(p*4+q)*1024}")
        for q in range(4):
            for p in range(3):
                for k in range(2): P(f"v_pk_add_f32 {vr(ACC+4*q+2*k,2)}, {vr(ACC+4*q+2*k,2)}, {vr(RB+(p*4+q)*4+2*k,2)}")
            for k in range(2): P(f"v_cvt_pk_bf16_f32 v{HO+2*q+k}, v{ACC+4*q+2*k}, v{ACC+4*q+2*k+1}")
        self.local([f"buffer_store_dwordx4 {vr(HO+4*a,4)}, v{vL16}, {S(SWS)}, s{64+a} offen @SC" for a in range(2)])
        SS = 104
        ls = []
        for a in range(2):
            x = ACC + 8*a; s_ = SS + 4*a
            ls.append([f"v_pk_add_f32 {vr(s_,2)}, {vr(x,2)}, {vr(x+2,2)}", f"v_pk_mul_f32 {vr(s_+2,2)}, {vr(x,2)}, {vr(x,2)}",
                       f"v_pk_add_f32 {vr(s_,2)}, {vr(s_,2)}, {vr(x+4,2)}", f"v_pk_fma_f32 {vr(s_+2,2)}, {vr(x+2,2)}, {vr(x+2,2)}, {vr(s_+2,2)}",
                       f"v_pk_add_f32 {vr(s_,2)}, {vr(s_,2)}, {vr(x+6,2)}", f"v_pk_fma_f32 {vr(s_+2,2)}, {vr(x+4,2)}, {vr(x+4,2)}, {vr(s_+2,2)}",
                       f"v_add_f32 v{s_}, v{s_}, v{s_+1}", f"v_pk_fma_f32 {vr(s_+2,2)}, {vr(x+6,2)}, {vr(x+6,2)}, {vr(s_+2,2)}",
                       f"v_add_f32 v{s_+1}, v{s_+2}, v{s_+3}"])
        P.add(zipped(ls))
        self.xreduce([SS, SS+1, SS+4, SS+5], 112, ops=("v_permlane32_swap_b32",))
        P(f"""v_permlane16_swap_b32 v{SS}, v{SS+4}
        v_permlane16_swap_b32 v{SS+1}, v{SS+5}
        v_pk_add_f32 {vr(SS,2)}, {vr(SS,2)}, {vr(SS+4,2)}
        s_mov_b32 exec_hi, 0""")
        self.local([f"buffer_store_dwordx2 {vr(SS,2)}, v122, {S(SWS)}, s61 offen @SC"])
        P("s_mov_b64 exec, -1")
        self.p3_setup()
        P("s_waitcnt vmcnt(0)")
        self.barrier()
        self.wave0(lambda: self.set_flag(1 << 16, True))
        self.stamp("F2")

    def wsp_setup(self):
        o = L(f"""v_lshrrev_b32 v12, 3, v0
        v_and_b32 v13, 7, v0
        v_xor_b32 v13, v13, v{vG}
        v_lshlrev_b32 v13, 4, v13
        v_lshl_add_u32 v244, v12, 12, v13
        v_xor_b32 v245, 64, v244
        v_add_u32 v245, 32768, v245
        s_lshl_b32 s96, s{self.T4}, 18
        s_lshl_b32 s86, s{sW}, 10
        s_add_u32 s96, s96, s86
        s_lshl_b32 s97, s{sW}, 14
        s_and_b32 s76, s{sJ}, {(3 if self.map84 else 7) if self.opt.get('rot4', 0) else 0}
        s_lshl_b32 s76, s76, {1 if self.map84 else 0}
        v_lshrrev_b32 v12, 1, v{vI}
        v_xor_b32 v12, v12, v{vG}
        v_lshlrev_b32 v12, 4, v12
        v_lshl_add_u32 v12, v{vI}, 7, v12
        v_xor_b32 v13, 64, v12""")
        for p in range(4):
            o += L(f"s_add_u32 s86, s{sW}, {p}\ns_and_b32 s86, s86, 3\ns_lshl_b32 s86, s86, 11\ns_add_u32 s86, s86, s97\nv_add_u32 v{246+2*p}, s86, v12\nv_add_u32 v{247+2*p}, s86, v13")
        return o
    def wsp_issue(self, c, hi=False):
        out = [WD(f"wr{c-2}")] if c >= 2 and hi is False else []
        out += [f"s_add_u32 s77, s76, {c}", "s_and_b32 s77, s77, 7", "s_lshl_b32 s77, s77, 7", "s_add_u32 s77, s77, s96", NOPIF, NOPIF]
        for i in range(8):
            out.append(f"s_add_u32 m0, s97, {(c&1)*8192 + i*1024 + (65536 if hi else 0)}")
            out.append(f"s_add_u32 s60, s77, {(i>>1)*65536}" if i % 2 == 0 else NOPIF)
            out.append(self.dmai(244+(i&1), SWSP, 60, f"wsp{c}"))
        return out
    def wsp_read(self, c):
        return [WT(f"wsp{c}")] + [("T", f"ds_read_b128 {ar(((2*c+t)*4+p)*4,4)}, v{246+2*p+t} offset:{(c&1)*8192}", f"wr{c}") for t in range(2) for p in range(4)]
    def wsp_tohi(self): return [f"v_xor_b32 v{r}, 0x10000, v{r}" for r in range(246, 254)]
    KE = list(range(21, 28)); KT = list(range(9, 21)); KL = list(range(9))
    def wout_setup(self, v):
        return L(f"""v_lshrrev_b32 v{v}, 3, v0
        v_lshl_add_u32 v{v}, v{v}, 10, v{vSW}
        s_lshl_b32 s68, s{sW}, 13
        s_lshl_b32 s86, s{sFB}, 7
        s_add_u32 s68, s68, s86
        s_lshl_b32 s69, s{sW}, 10
        s_add_u32 s69, s69, 49152""")
    def wout(self, k, v, tag="wout"):
        return [f"s_add_u32 m0, s69, {k*4096}", f"s_add_u32 s61, s68, {k*4*8192}", self.dmai(v, SWOUT, 61, tag)]
    def wout_pf(self):
        if not self.opt.get("pfwo", 0): return []
        return L(f"""s_lshr_b32 s86, s{sJ}, 3
        s_lshl_b32 s86, s86, 2
        s_add_u32 s86, s86, s{sW}
        s_mul_i32 s86, s86, {42*1024}
        s_lshl_b32 s87, s{sFB}, 7
        s_add_u32 s86, s86, s87
        v_lshlrev_b32 v5, 10, v0
        s_mov_b32 exec_hi, 0x3ff
        buffer_load_dword v19, v5, {S(SWOUT)}, s86 offen
        s_mov_b64 exec, -1""")
    def pf_addr(self, v):
        return L(f"""v_bfe_u32 v{v}, v0, 2, 2
        v_lshlrev_b32 v{v}, 10, v{v}
        v_lshl_add_u32 v{v}, v{vG}, 12, v{v}
        v_and_b32 v5, 3, v0
        v_lshl_add_u32 v{v}, v5, 7, v{v}""")
    SCR3 = 131072
    def p3_setup(self):
        SCR = self.SCR3
        self.P(f"""s_lshl_b32 s90, s{sRB}, 3
        s_lshl_b32 s86, s{sW}, 1
        s_add_u32 s90, s90, s86
        s_lshl_b32 s93, s90, 11
        s_add_u32 s93, s93, {HST}
        s_lshl_b32 s90, s90, 14
        s_add_u32 s90, s90, {H}
        s_lshl_b32 s91, s{sW}, 9
        s_add_u32 s91, s91, {SCR + 512}
        s_lshl_b32 s67, s{sRB}, 7
        s_add_u32 s67, s67, {F2}
        v_lshlrev_b32 v240, 2, v{vI}
        v_mov_b32 v12, 0x3f803f80
        v_accvgpr_write_b32 a240, v12
        v_accvgpr_write_b32 a241, v12
        v_accvgpr_write_b32 a242, v12
        v_accvgpr_write_b32 a243, v12
        s_lshl_b32 s86, s{sW}, 5
        v_xor_b32 v15, s86, v{vT[0]}
        s_mul_i32 s74, s{sRB}, 14
        s_add_u32 s74, s74, s{sCBK}
        s_mul_i32 s74, s74, 3
        s_add_u32 s74, s74, s{sW}
        s_lshl_b32 s74, s74, 14
        s_add_u32 s74, s74, 512
        s_cmp_eq_u32 s{sW}, 3
        s_cselect_b32 s74, 0x1000000, s74""")

    def colsum(self, base, tmp, dst_off):
        rd = [[f"ds_read_b64_tr_b16 {vr(tmp+4*t+2*h,2)}, v15 offset:{t*4096 + h*2048}" for h in range(2)] for t in range(16)]
        out = rd[0] + rd[1] + rd[2]
        for t in range(16):
            out.append(f"{MF} {ar(236,4)}, {ar(240,4)}, {vr(tmp+4*t,4)}, {ar(236,4) if t else '0'}")
            if t + 3 < 16: out += rd[t+3]
        tail = L(f"s_lshl_b32 s86, s{sW}, 6\ns_add_u32 s86, s86, {dst_off}\nv_lshl_add_u32 v5, v{vI}, 2, s86\nds_write_b32 v5, a236")
        return out, tail

    def phase3(self):
        P = self.P
        SCR = self.SCR3
        HF = 16; BB = 144; A2 = 176; A1 = 212
        AON, AEX, ACS = 240, 244, 236
        Lskip = "L_p3skip"; Ljoin = "L_p3join"
        P(f"s_cmp_ge_u32 s{sCBK}, 14\ns_cbranch_scc1 {Lskip}")
        def breads(t):
            return [f"ds_read_b64_tr_b16 {vr(BB+16*(t&1)+4*f+2*h,2)}, v{vT[f]} offset:{t*4096 + h*2048}" for f in range(4) for h in range(2)]
        o, tl = self.colsum(0, 16, 110592); P.add(o + tl)
        P.add(breads(0))
        self.wave0(lambda: self.poll(240, soff="s67"))
        self.barrier()
        self.stamp("sync2")
        HS = A1; CS2 = A1 + 16; K1 = 254
        def hl(t):
            if t >= 16:
                a = t - 16
                return [f"buffer_load_dwordx4 {vr(HS+8*a+4*hf,4)}, v{vL16}, {S(SWS)}, s93 offen offset:{a*2048+hf*1024} sc1" for hf in range(2)] if a < 2 else []
            o = [f"s_add_u32 s64, s90, {t*1024}", f"s_add_u32 s65, s90, {16384 + t*1024}"] if t % 4 == 0 else []
            return o + [f"buffer_load_dwordx4 {vr(HF+(t*2+a)*4,4)}, v{vL16}, {S(SWS)}, s{64+a} offen offset:{(t%4)*1024} sc1" for a in range(2)]
        HD = self.opt.get("HD", 5)
        for t in range(HD): P.add(hl(t))
        P("v_add_u32 v5, 110592, v240")
        for f in range(4): P(f"ds_read_b32 v{CS2+f}, v5 offset:{f*64}")
        late = []
        for t in range(self.opt.get('nw1', 10), 16): late += self.win_dma(1, t, 241)
        misc = [f"v_lshrrev_b32 v241, 3, v0", "v_mul_u32_u24 v241, 3584, v241", f"v_add_u32 v241, v241, v{vSW}"] + self.wout_setup(242)
        P.add(misc)
        misc = self.wsp_setup() + L(f"""v_mov_b32 v{K1}, {f2u(K1C):#x}
        v_mov_b32 v{K1+1}, {f2u(K1C):#x}
        v_lshl_add_u32 v13, v{vI}, 2, s91
        v_lshl_add_u32 v14, v{vG}, 4, s91
        v_bfe_u32 v12, v0, 3, 1
        v_lshlrev_b32 v12, 8, v12
        v_lshl_add_u32 v12, v{vG}, 6, v12
        v_bfe_u32 v5, v0, 2, 1
        v_lshl_add_u32 v12, v5, 5, v12
        v_and_b32 v5, 1, v0
        v_lshl_add_u32 v12, v5, 4, v12
        v_cmp_eq_u32 s[72:73], 1, v5
        s_lshl_b32 s92, s{sRB}, 15
        s_lshl_b32 s86, s{sW}, 9
        s_add_u32 s92, s92, s86
        s_add_u32 s92, s92, {STATS}
        s_lshl_b32 s66, s{sCBK}, 11
        s_add_u32 s66, s66, s92""")
        nm = (len(misc) + 11) // 12
        for t in range(16):
            m = []
            for f in range(4):
                for a in range(2):
                    acc = vr(A2 + (a*4+f)*4, 4)
                    m.append(f"{MF} {acc}, {vr(HF+(t*2+a)*4,4)}, {vr(BB+16*(t&1)+4*f,4)}, {acc if t else '0'}")
            if t in (1, 4, 8, 12): self.stamp(f"z2k{t}", True)
            hh = hl(t + HD); g = max(1, len(hh) - 1)
            if t + HD >= 18:
                k = t + HD - 18
                hh = late[:10]; late = late[10:]; g = 5
            P.add(lay2(m, breads(t+1) if t < 15 else [], weave(misc[nm*t:nm*t+nm], hh, g)) if self.opt.get('lay', 1) else mix(m, weave((breads(t+1) if t < 15 else []) + misc[nm*t:nm*t+nm], hh, g)))
        self.stamp("z2mm")
        P.add(late)
        if self.opt.get("touch", 1): P(f"v_lshlrev_b32 v5, 7, v0\ns_mov_b64 exec, 0xf\nbuffer_load_dword a234, v5, {S(SWS)}, s66 offen {self.opt.get('tm', '')}\ns_mov_b64 exec, -1")
        if self.opt.get("l2pf", 2) == 1: P(f"buffer_load_dword a235, v242, {S(SWSP)}, s74 offen")
        LA = [208, 210]; LB = [209, 211]
        for a in range(2):
            x = HS + 8*a
            P(f"v_pk_add_f32 {vr(x,2)}, {vr(x,2)}, {vr(x+2,2)}\nv_pk_add_f32 {vr(x+4,2)}, {vr(x+4,2)}, {vr(x+6,2)}")
        for a in range(2):
            x = HS + 8*a
            P(f"v_pk_add_f32 {vr(x,2)}, {vr(x,2)}, {vr(x+4,2)}")
        self.barrier()
        self.xreduce([HS, HS+1, HS+8, HS+9], BB)
        self.finstats([(HS, HS+1), (HS+8, HS+9)], 512, LA, LB)
        for a in range(2): P(f"ds_write_b32 v13, v{LA[a]} offset:{a*64}\nds_write_b32 v13, v{LB[a]} offset:{128+a*64}")
        iss01 = self.wsp_issue(0) + self.wsp_issue(1)
        P.add(iss01[:12]); iss01 = iss01[12:]
        P.wait_ds()
        RA = BB; RBb = BB + 8
        for a in range(2): P(f"ds_read_b128 {vr(RA+4*a,4)}, v14 offset:{a*64}\nds_read_b128 {vr(RBb+4*a,4)}, v14 offset:{128+a*64}")
        P.add(iss01[:6]); iss01 = iss01[6:]
        TT = BB + 16; SM = A1; SQ2 = A1 + 8
        for k in self.KE: iss01 += self.wout(k, 242, "woutE")
        for f in range(4):
            ls = []
            for a in range(2):
                for hp in range(2):
                    x = A2 + (a*4+f)*4 + 2*hp; t = TT + 2*(2*a+hp); sm = SM + 4*a + 2*hp; sq = SQ2 + 4*a + 2*hp
                    l = self.affine_pair(x, t, RA+4*a+2*hp, RBb+4*a+2*hp, CS2+f, False) + self.gelu_pair(x, t, K1)
                    if f == 0: l += [f"v_pk_mul_f32 {vr(sq,2)}, {vr(x,2)}, {vr(x,2)}"]
                    else: l += [f"v_pk_fma_f32 {vr(sq,2)}, {vr(x,2)}, {vr(x,2)}, {vr(sq,2)}",
                                f"v_pk_add_f32 {vr(sm,2)}, {vr(sm if f > 1 else A2 + a*16 + 2*hp,2)}, {vr(x,2)}"]
                    ls.append(l)
            self.stamp(f"z2e{f}", True)
            P.add(weave(zipped(ls), iss01[[0, 21, 42, 54][f]:[21, 42, 54, 63][f]]))
        def val(a, r, st): return (SQ2 if st else SM) + 4*a + r
        L1 = A1 + 16; L2 = A1 + 24
        z1pre = [f"v_add_u32 v{r}, 65536, v{r}" for r in vT + [15]]
        for a, bm in ((0, 0x3), (1, 0xc)):
            for r in range(4):
                for st in range(2): P(f"v_add_f32_dpp v{L1+2*r+st}, v{val(a,r,st)}, v{val(a,r,st)} row_ror:8 row_mask:0xf bank_mask:{bm:#x}")
        P.add(z1pre)
        P.wait_tag("win1")
        for rh, bm in ((0, 0x5), (1, 0xa)):
            for rl in range(2):
                for st in range(2):
                    s_ = L1 + 2*(2*rh+rl) + st
                    P(f"v_add_f32_dpp v{L2+2*rl+st}, v{s_}, v{s_} row_half_mirror row_mask:0xf bank_mask:{bm:#x}")
        P("s_barrier")
        for qp in ("[1,0,3,2]", "[2,3,0,1]"):
            for k in range(4): P(f"v_add_f32_dpp v{L2+k}, v{L2+k}, v{L2+k} quad_perm:{qp} row_mask:0xf bank_mask:0xf")
        P.add(breads(0))
        P(f"""v_cndmask_b32 v{L2}, v{L2}, v{L2+2}, s[72:73]
        v_cndmask_b32 v{L2+1}, v{L2+1}, v{L2+3}, s[72:73]
        v_mov_b32 v{L2+2}, s{sE}
        v_mov_b32 v{L2+3}, s{sE}
        s_mov_b32 exec_lo, 0x33333333
        s_mov_b32 exec_hi, 0x33333333""")
        self.local([f"buffer_store_dwordx4 {vr(L2,4)}, v12, {S(SWS)}, s66 offen @SC"])
        P("s_mov_b64 exec, -1")
        self.stamp("z2ep")
        i2, i3, i4, i5 = [self.wsp_issue(c) for c in range(2, 6)]
        r0, r1, r2, r3 = [self.wsp_read(c) for c in range(4)]
        GS = HF
        misc = L(f"""v_lshrrev_b32 v12, 5, v0
        v_lshlrev_b32 v12, 11, v12
        v_and_b32 v13, 31, v0
        v_lshl_add_u32 v12, v13, 4, v12
        v_lshl_add_u32 v13, v13, 2, s91
        s_lshl_b32 s93, s{sRB}, 2
        s_add_u32 s93, s93, s{sW}
        s_mul_i32 s93, s93, 7168
        s_add_u32 s93, s93, {Z2}""")
        for f in range(4):
            misc += L(f"""s_lshl_b32 s86, s{sCBK}, 2
            s_add_u32 s86, s86, {f}
            s_mul_i32 s87, s86, 37
            s_lshr_b32 s87, s87, 8
            s_mul_i32 s87, s87, {64*7 - 7}
            s_add_u32 s86, s86, s87
            s_lshl_b32 s86, s86, 10
            s_add_u32 s{64+f}, s86, s93""")
        misc += L(f"""s_lshl_b32 s93, s{sRB}, 3
        s_lshl_b32 s86, s{sW}, 1
        s_add_u32 s93, s93, s86
        s_mul_i32 s93, s93, 56
        s_lshl_b32 s86, s{sCBK}, 2
        s_add_u32 s93, s93, s86
        s_lshl_b32 s93, s93, 9
        s_add_u32 s93, s93, {Z1}
        s_add_u32 s94, s93, {56*512}""")
        T1 = self.opt.get("T1", 7); TG = self.opt.get("TG", 5); TF = self.opt.get("TF", 13)
        gll = []
        for m_ in range(7): gll += [f"s_add_u32 s60, s92, {m_*4096}", f"buffer_load_dwordx4 {vr(GS+4*m_,4)}, v12, {S(SWS)}, s60 offen sc1"]
        gl = "\n".join(gll)
        misc = misc + L(f"""v_bfe_u32 v5, v0, 4, 1
        v_bfe_u32 v241 , v0, 5, 1""") if False else misc
        def z1k(t, extra):
            m = []
            for f in range(4):
                for a in range(2):
                    acc = vr(A1 + (a*4+f)*4, 4)
                    m.append(f"{MF} {acc}, {vr(BB+16*(t&1)+4*f,4)}, {vr(HF+(t*2+a)*4,4)}, {acc if t else '0'}")
            nxt = breads(t+1) if t < 15 else []
            self.stamp(f"z1k{t}", True) if t in (0, 2, 4, T1, 10, 14) else None
            P.add(lay2(m, nxt, extra) if self.opt.get('lay', 1) else mix(m, weave(nxt, extra)))
        bq = i2 + i3
        ex = {0: misc[:9], 1: r0, 2: r1, 3: misc[9:18], 4: gll, 5: bq[:13] , 6: bq[13:19] + misc[18:22]}
        bq = bq[19:]
        for t in range(T1): z1k(t, ex.get(t, []))
        self.stamp("z1a")
        RA2 = HF + 28; RB2 = HF + 36; ZO = HF
        cmpc = "\n".join(f"v_xor_b32 v{GS+4*m_+2}, s{sE}, v{GS+4*m_+2}" for m_ in range(7))
        cmpc += f"\nv_or3_b32 v5, v{GS+2}, v{GS+6}, v{GS+10}\nv_or3_b32 v5, v5, v{GS+14}, v{GS+18}\nv_or3_b32 v5, v5, v{GS+22}, v{GS+26}\nv_cmp_ne_u32 vcc, 0, v5"
        self.check_retry(gl, cmpc)
        self.stamp("gath", True)
        P(f"v_pk_add_f32 {vr(GS,2)}, {vr(GS,2)}, {vr(GS+4,2)}\nv_pk_add_f32 {vr(GS+8,2)}, {vr(GS+8,2)}, {vr(GS+12,2)}\nv_pk_add_f32 {vr(GS+16,2)}, {vr(GS+16,2)}, {vr(GS+20,2)}")
        P(f"v_pk_add_f32 {vr(GS,2)}, {vr(GS,2)}, {vr(GS+8,2)}\nv_pk_add_f32 {vr(GS+16,2)}, {vr(GS+16,2)}, {vr(GS+24,2)}\nv_pk_add_f32 {vr(GS,2)}, {vr(GS,2)}, {vr(GS+16,2)}")
        P.add(bq[:3]); bq = bq[3:]
        self.xreduce([GS, GS+1], GS+2, ops=("v_permlane32_swap_b32",))
        self.finstats([(GS, GS+1)], 896, [GS+4], [GS+5])
        P(f"""ds_write_b32 v13, v{GS+4} offset:256
        ds_write_b32 v13, v{GS+5} offset:384
        v_bfe_u32 v12, v0, 4, 1
        v_bfe_u32 v13, v0, 5, 1
        v_lshl_add_u32 v12, v12, 1, v13
        v_lshl_add_u32 v12, v12, 4, v{vI}
        v_lshlrev_b32 v12, 4, v12""")
        P.add(bq[:3] + misc[22:30]); bq = bq[3:]
        P.wait_ds()
        for a in range(2): P(f"ds_read_b128 {vr(RA2+4*a,4)}, v14 offset:{256+a*64}\nds_read_b128 {vr(RB2+4*a,4)}, v14 offset:{384+a*64}")
        P.add(misc[30:41] + bq[:10]); bq = bq[10:]
        nb = self.opt.get("nb", 6)
        for f in range(4):
            for a in range(2):
                for hp in range(2):
                    x = A2 + (a*4+f)*4 + 2*hp
                    P(f"v_pk_fma_f32 {vr(x,2)}, {vr(x,2)}, {vr(RA2+4*a+2*hp,2)}, {vr(RB2+4*a+2*hp,2)}")
            for a in range(2):
                for hp in range(2):
                    x = A2 + (a*4+f)*4 + 2*hp
                    P(f"v_cvt_pk_bf16_f32 v{ZO+4*f+2*a+hp}, v{x}, v{x+1}")
            if f: P(f"buffer_store_dwordx4 {vr(ZO+4*(f-1),4)}, v12, {S(SWS)}, s{64+f-1} offen sc1", "z2n")
            for hp in range(2): P(f"v_permlane16_swap_b32 v{ZO+4*f+hp}, v{ZO+4*f+2+hp}")
        P(f"buffer_store_dwordx4 {vr(ZO+12,4)}, v12, {S(SWS)}, s67 offen sc1", "z2n")
        self.stamp("z2st", True)
        TR = self.opt.get("TR", 13)
        cq_ = i4 + i5
        ex = {T1: bq[:9] , T1 + 1: bq[9:18], T1 + 2: bq[18:], T1 + 3: misc[41:], TR: r2, TR + 1: r3}
        for t in range(T1, 16):
            if t == TF:
                P.wait_tag("z2n"); P("s_barrier")
                self.wave0(lambda: self.set_flag(0xff << 17))
                self.stamp("F3")
            e = ex.get(t)
            if e is None:
                e = []
                if t > TR + 1: e = cq_[:13 if t == TR + 2 else 6]; cq_ = cq_[len(e):]
            z1k(t, e)
        C1 = A2; Z1O = A2 + 16
        o, tl = self.colsum(65536, 32, SCR + 256)
        P.add(weave(o, [f"v_subrev_u32 v{vT[f]}, 65536, v{vT[f]}" for f in range(4)] + L(f"v_lshlrev_b32 v12, 4, v{vG}\nv_add_u32 v12, {SCR+256}, v12\nv_lshlrev_b32 v13, 3, v0") + cq_, 3) + tl)
        self.barrier()
        self.stamp("z1mm")
        for f in range(4): P(f"ds_read_b128 {vr(C1+4*f,4)}, v12 offset:{f*64}")
        ep = []
        for f in range(4):
            ls = []
            for a in range(2):
                for hp in range(2):
                    x = A1 + (a*4+f)*4 + 2*hp; t = TT + 2*(2*a+hp)
                    ls.append(self.affine_pair(x, t, LA[a], LB[a], C1+4*f+2*hp, True))
            ep += zipped(ls)
        d67 = self.wsp_issue(6, True) + self.wsp_issue(7, True)
        P.add(self.p4_setup())
        self.wave0(lambda: P(self.f3load))
        P.add(weave(ep, d67))
        P(f"s_branch {Ljoin}")
        P(f"{Lskip}:")
        P.cond_begin()
        P("s_waitcnt vmcnt(0) lgkmcnt(0)")
        if self.opt.get("l2pf", 2):
            P(f"""s_lshl_b32 s86, s{sRB}, 1
            s_add_u32 s86, s86, s{sCBK}
            s_sub_u32 s86, s86, 14
            s_lshl_b32 s86, s86, 2
            s_add_u32 s86, s86, s{sW}
            s_lshl_b32 s60, s86, 16""")
            P.add(self.pf_addr(12))
            for k in range(4): P(f"buffer_load_dword v{16+k}, v12, {S(SWSP)}, s60 offen\ns_add_u32 s60, s60, 16384")
            if self.opt.get("l2pf", 2) == 3:
                P(f"""s_sub_u32 s60, s60, 65024
                v_lshrrev_b32 v13, 3, v0
                v_lshlrev_b32 v13, 12, v13
                v_bfe_u32 v5, v0, 1, 2
                v_lshl_add_u32 v13, v5, 10, v13
                v_and_b32 v5, 1, v0
                v_lshl_add_u32 v13, v5, 7, v13
                buffer_load_dword v20, v13, {S(SWSP)}, s60 offen
                s_add_u32 s60, s60, 32768
                buffer_load_dword v21, v13, {S(SWSP)}, s60 offen""")
            if self.opt.get("l2pf", 2) == 4:
                P("s_sub_u32 s64, s60, 65024")
            if self.opt.get("l2pf", 2) == 2:
                P("s_sub_u32 s60, s60, 65024")
                for k in range(4): P(f"buffer_load_dword v{20+k}, v12, {S(SWSP)}, s60 offen\ns_add_u32 s60, s60, 16384")
        if self.opt.get("pwout", 7) == -1:
            P(f"""s_lshl_b32 s86, s{sRB}, 1
            s_add_u32 s86, s86, s{sCBK}
            s_sub_u32 s86, s86, 14
            s_lshl_b32 s86, s86, 2
            s_add_u32 s86, s86, s{sW}
            s_mul_i32 s86, s86, {56*128}
            v_lshlrev_b32 v5, 7, v0
            s_mov_b32 exec_hi, 0xffffff
            buffer_load_dword v24, v5, {S(SWOUT)}, s86 offen
            s_mov_b64 exec, -1""")
        P.add(self.wsp_setup() + self.wout_setup(15))
        P.add(self.wsp_issue(0) + self.wsp_issue(1))
        P.add(self.wout_pf())
        for k in self.KE: P.add(self.wout(k, 15, "woutE"))
        if self.opt.get("l2pf", 2) == 4:
            P.add(self.pf_addr(14))
            for k in range(4): P(f"buffer_load_dword v{20+k}, v14, {S(SWSP)}, s64 offen\ns_add_u32 s64, s64, 16384")
        P.add(self.wsp_issue(6, True) + self.wsp_issue(7, True))
        P.add(self.wsp_read(0) + self.wsp_read(1) + self.wsp_issue(2) + self.wsp_issue(3) + self.wsp_read(2) + self.wsp_read(3))
        P.add(self.wsp_issue(4) + self.wsp_issue(5) + self.p4_setup())
        P(self.f3load)
        P(f"s_mov_b32 s93, {WS_BYTES}\ns_mov_b32 s94, {WS_BYTES}\nv_lshlrev_b32 v13, 3, v0")
        P("s_waitcnt vmcnt(0) lgkmcnt(0)")
        P.cond_end()
        P(f"{Ljoin}:")
        self.stamp("wsp")

    def p5_breg(self, kk, f):
        if kk >= 21: return ("a", (kk - 21) * 16 + 4*f)
        i = self.order5.index(kk) - 7
        return ("a", 112 + (i % 9) * 16 + 4*f)
    def p5_reads(self, kk):
        out = []
        want = 49152 if kk < 16 else 49152 + 65536
        if self.cur5 != want:
            d = want - self.cur5
            out += [f"v_add_u32 v{vT[f]}, {d}, v{vT[f]}" if d > 0 else f"v_subrev_u32 v{vT[f]}, {-d}, v{vT[f]}" for f in range(4)]; self.cur5 = want
        for f in range(4):
            k, r = self.p5_breg(kk, f)
            for h in range(2): out.append(f"ds_read_b64_tr_b16 {ar(r+2*h,2)}, v{vT[f]} offset:{(kk%16)*4096 + h*2048}")
        return out

    f3load = f"buffer_load_dword v17, v16, {S(SWS)}, s75 offen sc1"
    def p4_setup(self):
        return L(f"""s_mul_i32 s90, s{self.F4}, 7
        s_add_u32 s91, s90, 6
        s_lshr_b32 s90, s90, 2
        s_lshr_b32 s91, s91, 2
        s_lshl_b32 s92, s{self.F4}, 6
        s_lshl_b32 s86, s{sW}, 4
        s_add_u32 s92, s92, s86
        s_mul_i32 s92, s92, 7168
        s_add_u32 s92, s92, {Z2}
        v_add_u32 v18, 4096, v{vL16}
        s_lshl_b32 s86, s90, 4
        s_lshl_b32 s87, s91, 4
        s_add_u32 s87, s87, 15
        v_add_u32 v16, s86, v0
        v_min_u32 v16, s87, v16
        v_lshlrev_b32 v16, 2, v16
        s_lshl_b32 s75, s{sX}, 10
        s_add_u32 s75, s75, {F3}""") + ([] if self.map84 else L(f"""s_lshl_b32 s86, s{self.T4}, 2
        s_add_u32 s86, s86, s{sW}
        s_mul_i32 s86, s86, {28*1024}
        s_mul_i32 s87, s{self.F4}, 3584
        s_add_u32 s86, s86, s87
        s_add_u32 s86, s86, {U}
        v_lshlrev_b32 v5, 7, v0
        s_mov_b64 exec, 0xfffffff
        buffer_load_dword v20, v5, {S(SWS)}, s86 offen
        s_mov_b64 exec, -1"""))

    def phase4(self):
        P = self.P
        ACC = 16; BB = 128
        self.order5 = self.KE + list(range(16, 21)) + list(range(9, 16)) + self.KL
        self.cur5 = 0
        self.wave0(lambda: self.check_retry(self.f3load, f"v_cmp_ne_u32 vcc, s{sE}, v17"))
        P("s_barrier")
        self.stamp("sync3")
        def bload(ks):
            out = [f"s_lshl_b32 s60, s76, 1", f"s_add_u32 s60, s60, {ks}", "s_and_b32 s60, s60, 15", "s_mul_i32 s60, s60, 7168", "s_add_u32 s60, s60, s92"]
            for f in range(7):
                out.append(f"buffer_load_dwordx4 {vr(BB+28*(ks%3)+4*f,4)}, v{vL16 if f < 4 else 14}, {S(SWS)}, s60 offen offset:{(f%4)*1024} sc1")
            return out
        P("v_mov_b32 v14, v18")
        for ks in range(2): P.add(bload(ks))
        P(f"v_mov_b32 v244, {f2u(K1C):#x}")
        late_setup = L(f"""v_lshrrev_b32 v249, 3, v0
        v_lshl_add_u32 v249, v249, 10, v{vSW}
        s_lshl_b32 s95, s{self.T4}, 2
        s_add_u32 s95, s95, s{sW}
        s_lshl_b32 s88, s{sTB}, 2
        s_add_u32 s88, s88, s{sW}
        s_lshr_b32 s64, s{self.T4}, 1
        s_lshl_b32 s64, s64, 7
        s_add_u32 s64, s64, {F3B}
        v_add_u32 v250, s90, v0
        v_min_u32 v250, s91, v250
        v_lshlrev_b32 v250, 2, v250
        s_mul_i32 s65, s95, 56
        s_mul_i32 s87, s{self.F4}, 7
        s_add_u32 s65, s65, s87
        s_lshl_b32 s65, s65, 9
        s_add_u32 s65, s65, {Z1}
        s_lshl_b32 s66, s95, 5
        v_lshlrev_b32 v244, 1, v{vI}
        s_lshl_b32 s67, s88, 4
        s_lshl_b32 s87, s{sFB}, 1
        s_add_u32 s67, s67, s87
        s_lshl_b32 s67, s67, 10
        s_add_u32 s67, s67, {H}
        s_mul_i32 s78, s88, {28*1024}
        s_add_u32 s78, s78, {U}
        s_mul_i32 s79, s95, 28
        s_mul_i32 s87, s{self.F4}, 7
        s_lshr_b32 s87, s87, 1
        s_add_u32 s79, s79, s87
        s_lshl_b32 s79, s79, 10
        s_add_u32 s79, s79, {U}""")
        for p in range(1, 4):
            late_setup += L(f"s_add_u32 s86, s{sW}, {p}\ns_and_b32 s86, s86, 3\ns_mul_i32 s86, s86, 21504\ns_add_u32 s86, s86, {(p-1)*7168}\nv_add_u32 v{245+p}, s86, v{vL16}")
        late_setup += L(f"s_mul_i32 s86, s{sW}, 21504\nv_add_u32 v255, s86, v{vL16}")
        A1 = 212; GT = [15, 245, 254, 255]
        def gelu(q):
            a, f = q >> 2, q & 3; x0 = A1 + 4*q; ls = []
            for e in range(4):
                x = x0 + e; t = GT[e]
                ls.append([f"v_mul_f32 v{t}, v{x}, v{x}", f"v_fma_f32 v{t}, v{t}, s{sK2}, v244", f"v_mul_f32 v{t}, v{t}, v{x}", f"v_exp_f32 v{t}, v{t}",
                           f"v_add_f32 v{t}, 1.0, v{t}", f"v_rcp_f32 v{t}, v{t}", f"v_mul_f32 v{x}, v{x}, v{t}"])
            return zipped(ls) + [f"v_cvt_pk_bf16_f32 v{x0}, v{x0}, v{x0+1}", f"v_cvt_pk_bf16_f32 v{x0+1}, v{x0+2}, v{x0+3}",
                                 ("T", f"buffer_store_dwordx2 {vr(x0,2)}, v13, {S(SWS)}, s{93+a} offen offset:{f*512} sc1", "z1st")]
        Z1R = 212; BS = 226; HR = 228
        GP = self.opt.get("GP", 8)
        if GP:
            P(f"v_mov_b32 v245, {f2u(K1C):#x}")
            b2 = bload(2)
            pk = []
            for q0 in range(0, GP, 2):
                ls = [self.gelu_pair(A1 + 4*q0 + 2*e, 112 + 2*e, 244) for e in range(4)]
                pk += zipped(ls)
                for q in (q0, q0 + 1):
                    x0 = A1 + 4*q
                    pk += [f"v_cvt_pk_bf16_f32 v{x0}, v{x0}, v{x0+1}", f"v_cvt_pk_bf16_f32 v{x0+1}, v{x0+2}, v{x0+3}",
                           ("T", f"buffer_store_dwordx2 {vr(x0,2)}, v13, {S(SWS)}, s{93+(q>>2)} offen offset:{(q&3)*512} sc1", "z1st")]
            P.add(b2[:5] + weave(pk, b2[5:], 1))
        fl = f"buffer_load_dword v254, v250, {S(SWS)}, s64 offen sc1"
        wt = []
        for k in self.KT: wt += self.wout(k, 249, "woutT")
        for ks in range(16):
            m = []
            if ks < 15: fp = [(f, p) for f in range(7) for p in range(4)]
            else: fp = [(f, p) for p in (1, 2, 3, 0) for f in range(7)]
            for f, p in fp:
                acc = vr(ACC + (p*7+f)*4, 4)
                m.append(f"{MF} {acc}, {vr(BB+28*(ks%3)+4*f,4)}, {ar((ks*4+p)*4,4)}, {acc if ks else '0'}")
            if ks in (1, 2, 4, 8, 12, 15): self.stamp(f"p4k{ks}", True)
            if ks <= 14:
                ld = bload(ks + 2) if ks <= 13 and not (GP and ks == 0) else []
                pre = {1: self.wsp_read(4), 2: self.wsp_read(5), 3: self.wsp_tohi() + self.wsp_read(6), 4: self.wsp_read(7)}.get(ks, [])
                G0 = self.opt.get("G0", 0)
                if G0 <= ks < G0 + 8 - GP: pre = weave(gelu(ks - G0 + GP), pre, 1)
                if 8 <= ks <= 14: pre = pre + self.p5_reads(self.KE[ks - 8])
                if ks in (9, 10): pre = pre + late_setup[(ks-9)*25:(ks-9)*25+25]
                if ks == max(G0 + 9 - GP, 3):
                    P.wait_tag("z1st", "woutE"); P("s_barrier")
                    self.wave0(lambda: self.set_flag(1 << 25, not self.map84))
                if ks == 7 and GP < 6: P.wait_tag("woutE"); P("s_barrier")
                if ks == 14: pre = pre + wt[:12]
                if ks == self.opt.get("FL", 13): pre = pre + [fl]
                if ld: body = mix(m[:3], ld[:6]) + interleave(m[3:21], ld[6:], 3, 1) + m[21:]
                else: body = m
                out = []; nm_ = 0; pi = 0
                for x in body:
                    out.append(x)
                    if isinstance(x, str) and x.startswith("v_mfma"):
                        nm_ += 1
                        tgt = len(pre) * nm_ // 28
                        out += pre[pi:tgt]; pi = tgt
                P.add(out)
            else:
                self.check_retry(fl, f"v_cmp_ne_u32 vcc, s{sE}, v254")
                w = [f"buffer_load_dwordx2 {vr(Z1R+2*f,2)}, v13, {S(SWS)}, s65 offen offset:{f*512} sc1" for f in range(7)]
                w += [f"buffer_load_ushort v{BS}, v244, {S(SBSP)}, s66 offen"]
                xw = [f"ds_write_b128 v{245+p}, {vr(ACC+(p*7+f)*4,4)} offset:{f*1024}" for p in range(1, 4) for f in range(7)]
                P.add(mix(m[:10], w[:4]) + mix(m[10:], weave(xw[:16], w[4:], 1)) + xw[16:])
        self.stamp("p4mm")
        ZF = BB; UO = BB + 48
        v = [f"v_lshlrev_b32 v{BS}, 16, v{BS}"]
        for f in range(7):
            for k in range(2):
                v += [f"v_lshlrev_b32 v{ZF+4*f+2*k}, 16, v{Z1R+2*f+k}", f"v_and_b32 v{ZF+4*f+2*k+1}, 0xffff0000, v{Z1R+2*f+k}",
                      f"v_pk_add_f32 {vr(ACC+4*f+2*k,2)}, {vr(ACC+4*f+2*k,2)}, {vr(BS,2)} op_sel_hi:[1,0]"]
        P.add(wt[12:24])
        self.barrier()
        RB = ACC + 28
        for f in range(7):
            for p in range(3): P(f"ds_read_b128 {vr(RB+(p*7+f)*4,4)}, v255 offset:{(p*7+f)*1024}")
        P.add(wt[24:] + v)
        P(f"buffer_load_dwordx4 {vr(HR,4)}, v{vL16}, {S(SWS)}, s67 offen sc1\nbuffer_load_dwordx4 {vr(HR+4,4)}, v{vL16}, {S(SWS)}, s67 offen offset:1024 sc1")
        for f in range(7):
            for p in range(3):
                for k in range(2): P(f"v_pk_add_f32 {vr(ACC+4*f+2*k,2)}, {vr(ACC+4*f+2*k,2)}, {vr(RB+(p*7+f)*4+2*k,2)}")
            for k in range(2): P(f"v_pk_mul_f32 {vr(ACC+4*f+2*k,2)}, {vr(ACC+4*f+2*k,2)}, {vr(ZF+4*f+2*k,2)}")
            for k in range(2): P(f"v_cvt_pk_bf16_f32 v{UO+2*f+k}, v{ACC+4*f+2*k}, v{ACC+4*f+2*k+1}")
        Lo = P.lab("Lo"); Le = P.lab("Le")
        P(f"s_bitcmp1_b32 s{self.F4}, 0\ns_cbranch_scc1 {Lo}")
        P.cond_begin()
        self.local4([f"buffer_store_dwordx4 {vr(UO+4*k,4)}, v{vL16}, {S(SWS)}, s79 offen offset:{k*1024} @SC" for k in range(3)]
                   + [f"buffer_store_dwordx2 {vr(UO+12,2)}, v13, {S(SWS)}, s79 offen offset:3072 @SC"])
        P(f"s_branch {Le}")
        P.cond_end()
        P(f"{Lo}:")
        P.cond_begin()
        self.local4([f"buffer_store_dwordx2 {vr(UO,2)}, v13, {S(SWS)}, s79 offen offset:512 @SC"]
                   + [f"buffer_store_dwordx4 {vr(UO+2+4*k,4)}, v{vL16}, {S(SWS)}, s79 offen offset:{1024+k*1024} @SC" for k in range(3)])
        P.cond_end()
        P(f"{Le}:")
        P(f"""v_bfe_u32 v240, v0, 4, 1
        v_bfe_u32 v5, v0, 5, 1
        v_lshl_add_u32 v240, v240, 1, v5
        v_lshlrev_b32 v240, 4, v240
        v_lshl_add_u32 v240, v{vI}, 10, v240
        s_lshl_b32 s92, s88, 14
        s_lshl_b32 s87, s{sFB}, 7
        s_add_u32 s92, s92, s87
        s_lshl_b32 s66, s{sTB}, 7
        s_add_u32 s66, s66, {F4}
        v_and_b32 v243, 7, v0
        v_lshlrev_b32 v243, 2, v243""")
        P("s_waitcnt vmcnt(0)")
        self.barrier()
        self.wave0(lambda: self.set_flag(1 << 26, not self.map84))
        self.stamp("F4")

    def phase5(self):
        P = self.P
        UF = 16; ACC = 128; HR = 228
        order = self.order5
        late = []
        for k in self.KL: late += self.wout(k, 249, "woutL")
        lm = self.opt.get("late", 0)
        if lm == 0: P.add(late)
        for kk in order[7:16]: P.add(self.p5_reads(kk))
        for f in range(4):
            for k in range(2):
                P(f"v_lshlrev_b32 v{ACC+4*f+2*k}, 16, v{HR+2*f+k}\nv_and_b32 v{ACC+4*f+2*k+1}, 0xffff0000, v{HR+2*f+k}")
        self.wave0(lambda: self.poll(243, soff="s66"))
        P("s_barrier")
        self.stamp("sync4")
        def ul(kk):
            o = [f"s_add_u32 s60, s78, {(kk//4)*4096}"]
            if kk % 7 == 3: return o + [f"buffer_load_dwordx2 {vr(UF+4*kk+2*h,2)}, v13, {S(SWS)}, s60 offen offset:{(kk%4)*1024 + h*512} sc1" for h in range(2)]
            return o + [f"buffer_load_dwordx4 {vr(UF+4*kk,4)}, v{vL16}, {S(SWS)}, s60 offen offset:{(kk%4)*1024} sc1"]
        if self.opt.get("pfu", 0):
            P(f"""s_mul_i32 s86, s{sFB}, 3584
            s_add_u32 s86, s86, s78
            v_lshlrev_b32 v5, 7, v0
            s_mov_b64 exec, 0xfffffff
            buffer_load_dword v144, v5, {S(SWS)}, s86 offen sc1
            s_mov_b64 exec, -1""")
        UD = self.opt.get("UD", 10)
        for i in range(UD): P.add(ul(order[i]))
        if lm == 1: P.add(late)
        for i, kk in enumerate(order):
            m = []
            for f in range(4):
                k, r = self.p5_breg(kk, f); acc = vr(ACC+4*f, 4)
                m.append(f"{MF} {acc}, {ar(r,4)}, {vr(UF+4*kk,4)}, {acc}")
            fl = ul(order[i + UD]) if i + UD < 28 else []
            j = i + 8
            if j == 19: P.wait_tag("woutL"); P("s_barrier")
            if 16 <= j < 28: fl = fl + self.p5_reads(order[j])
            P.add(mix(m, fl))
        OO = 160
        for c in range(2):
            for f in (2*c, 2*c+1):
                for k in range(2): P(f"v_cvt_pk_bf16_f32 v{OO+2*f+k}, v{ACC+4*f+2*k}, v{ACC+4*f+2*k+1}")
        for c in range(2):
            for k in range(2): P(f"v_permlane16_swap_b32 v{OO+4*c+k}, v{OO+4*c+2+k}")
            P(f"buffer_store_dwordx4 {vr(OO+4*c,4)}, v240, {S(SOUT)}, s92 offen offset:{c*64} {self.opt.get('ost', 'nt')}")
        Lb = P.lab("Lz")
        P(f"s_or_b32 s86, s2, s{sW}\ns_cmp_lg_u32 s86, 0\ns_cbranch_scc1 {Lb}\nv_mov_b32 v5, s{sE}\ns_mov_b32 s86, {EPOCH}\ns_mov_b64 exec, 1\nbuffer_store_dword v5, off, {S(SWS)}, s86 sc1\ns_mov_b64 exec, -1\n{Lb}:")
        self.stamp("end")

    def build(self):
        P = self.P
        self.prologue()
        for k, ph in enumerate([self.phase1, self.phase2, self.phase3, self.phase4, self.phase5]):
            if k < self.stop: ph()
        if self.stamps:
            P("s_memtime s[98:99]\nv_writelane_b32 v7, s98, 63")
            P(f"""v_writelane_b32 v7, s{sM}, 61
            s_lshl_b32 s86, s2, 10
            s_lshl_b32 s87, s{sW}, 8
            s_add_u32 s86, s86, s87
            s_add_u32 s86, s86, {STAMP}
            v_lshlrev_b32 v12, 2, v0
            buffer_store_dword v7, v12, {S(SWS)}, s86 offen""")
        if self.opt.get("dbg"):
            sel = [self.names.index(n) for n in self.opt["dbg"]]
            P("s_load_dwordx2 s[64:65], s[0:1], 72\nv_not_b32 v12, v7\nv_readlane_b32 s86, v12, 0\nv_writelane_b32 v13, s86, 0")
            for k, i in enumerate(sel): P(f"v_readlane_b32 s86, v7, {i}\ns_nop 3\nv_writelane_b32 v13, s86, {k+1}")
            P(f"v_lshlrev_b32 v12, 2, v0\ns_mov_b64 exec, {(1 << (len(sel)+1)) - 1}\ns_cmp_lg_u32 s{sW}, 0\ns_cbranch_scc1 L_end\nglobal_atomic_umax v12, v13, s[64:65] sc1")
        P("L_end:\ns_endpgm")
        A = Asm()
        A.begin_kernel(NAME, 256, 256, 163840)
        A.lines += P.finalize()
        A.end_kernel(NAME, 256, 256)
        return A

HEADER = open("sequential_preLN__linear_attn_block__mixer_gmlp__prompt.s.ref").read().split("; Override")[0]
def generate(path, plain=False, **kw):
    g = G(**kw); A = g.build()
    t = A.text(HEADER)
    if plain: t = t.replace(f"; @launch kernel={NAME} grid", "; @launch grid")
    open(path, "w").write(t)
    return g.names
if __name__ == "__main__":
    import argparse
    ap = argparse.ArgumentParser(); ap.add_argument("out"); ap.add_argument("--stop", type=int, default=99); ap.add_argument("--stamps", action="store_true"); ap.add_argument("--opt", default="{}")
    a = ap.parse_args()
    generate(a.out, plain=True, stop=a.stop, stamps=a.stamps, opt=eval(a.opt))
```

```python
import sys, struct
sys.path.insert(0, "gen")
from asmlib import Asm, vr, ar, sr
from emit import Prog, spread, interleave

NAME = "sequential_preLN__linear_attn_block__mixer_gmlp__prompt_kernel"
def f2u(x): return struct.unpack("<I", struct.pack("<f", x))[0]

F1, F2, F3, F3B, F4, F1B = 0x0, 0x2000, 0x2800, 0x4800, 0x5000, 0x6000
EPOCH = 0x9000; KZ = 0x9080; XID = 0x9100
KV = 0xA000; KVS = 1152
STAMP = 0x80000
HST = 0xC0000
PQ, H, Z2, Z1, U, STATS = 0x100000, 0x300000, 0x500000, 0x900000, 0xD00000, 0x1100000
WS_BYTES = 0x1200000
R1 = 8
SX, SWQKV, SWO, SWIN, SWSP, SBSP, SWOUT, SOUT, SWS = 8, 12, 16, 20, 24, 28, 32, 36, 40
def S(d): return f"s[{d}:{d+3}]"
sTB, sE, sFB, sM, sXCC = 3, 4, 5, 6, 7
sX, sJ, sW, sSPIN = 48, 49, 50, 51
sLOG2E, sEPS6, sK2, sONE = 52, 54, 56, 58
sA8, sA4 = 62, 63
sRB, sCBK = 100, 101
sT4, sF4 = 88, 89
vL16, vI, vG, vFLAG, vSW = 1, 2, 3, 4, 6
vT = [8, 9, 10, 11]
SPIN_MAX = 1 << 16
MF = "v_mfma_f32_16x16x32_bf16"
K1C = -2.302208198
WT, WD = Prog.WT, Prog.WD
NOPIF = ("NOPIF",)

def L(s): return [x.strip() for x in s.split("\n") if x.strip()]
def mix(m, f, lead=0):
    if not m: return list(f)
    return m[:lead] + spread(m[lead:], f)
def weave(a, b, g=3):
    groups = [b[i:i+g] for i in range(0, len(b), g)]
    if not groups: return list(a)
    out = []; n = len(groups); ai = 0
    for k, grp in enumerate(groups):
        tgt = (k * len(a) + len(a) // 2) // n if len(a) else 0
        out += a[ai:tgt]; ai = max(ai, tgt); out += grp
    return out + a[ai:]
def zipped(lists):
    out = []; n = max(len(l) for l in lists)
    for k in range(n):
        for l in lists:
            if k < len(l): out.append(l[k])
    return out

def lay2(m, reads, other, nr=None):
    k = min(len(m) - 1, (len(reads) + 1) // 2) if nr is None else nr
    if not reads: return [("wait_ds",)] + mix(m, other)
    return [("wait_ds",)] + mix(m[:k], reads) + mix(m[k:], other)

class G:
    def __init__(self, stop=99, stamps=False, opt=None):
        self.P = Prog(); self.stop = stop; self.stamps = stamps; self.nst = 0; self.names = []
        self.opt = opt or {}
        self.map84 = self.opt.get("map84", 1)
        self.T4 = sA8 if self.map84 else sTB; self.F4 = sA4 if self.map84 else sFB
    def stamp(self, name, fine=False):
        if self.stamps and (not fine or self.opt.get("fine")):
            k = self.nst; self.nst += 1; self.names.append(name)
            self.P(f"{'s_memtime' if self.opt.get('cyc') else 's_memrealtime'} s[98:99]\nv_writelane_b32 v7, s98, {k}")
    def dmai(self, voff, srd, soff, tag):
        nt = " nt" if (self.opt.get("nt", 0) >> {SX: 0, SWQKV: 1, SWO: 2, SWIN: 3, SWSP: 4, SWOUT: 5}[srd]) & 1 else ""
        return ("T", f"buffer_load_dwordx4 v{voff}, {S(srd)}, s{soff} offen{nt} lds", tag)
    def srds(self, lst):
        for d, p, n in lst:
            self.P(f"s_mov_b32 s{d}, s{p}\ns_and_b32 s{d+1}, s{p+1}, 0xffff\ns_mov_b32 s{d+2}, {n}\ns_mov_b32 s{d+3}, 0x20000")
    def set_flag(self, mask, local=False):
        P = self.P
        P(f"s_mov_b64 exec, {mask:#x}\nv_mov_b32 v5, s{sE}")
        if local: self.local([f"buffer_store_dword v5, v{vFLAG}, {S(SWS)}, 0 offen @SC"], flag=True)
        else: P(f"buffer_store_dword v5, v{vFLAG}, {S(SWS)}, 0 offen sc1")
        P("s_mov_b64 exec, -1")
    def local(self, items, tag=None, flag=False):
        P = self.P
        dm = self.opt.get("dmode", 1)
        if not flag and dm == 0:
            for x in items: P(x.replace(" @SC", " sc1"), tag)
            return
        P.alt_begin(sM, "" if flag or dm == 1 else {2: " nt", 3: " sc0"}[dm])
        for x in items: P(x, tag)
        P.alt_end()
    def local4(self, items, tag=None):
        if self.map84:
            for x in items: self.P(x.replace(" @SC", " sc1"), tag)
        else: self.local(items, tag)
    def thru(self, items, tag=None):
        for x in items: self.P(x.replace(" @SC", " sc1"), tag)
    def wave(self, w, fn):
        P = self.P; Lb = P.lab("Lw")
        P(f"s_cmp_lg_u32 s{sW}, {w}\ns_cbranch_scc1 {Lb}")
        P.cond_begin(); fn(); P.cond_end()
        P(f"{Lb}:")
    def wave0(self, fn): self.wave(0, fn)
    def spin_tail(self, Lb, E):
        self.P(f"s_add_u32 s{sSPIN}, s{sSPIN}, 1\ns_cbranch_vccz {E}\ns_cmp_lt_u32 s{sSPIN}, {SPIN_MAX}\ns_cbranch_scc1 {Lb}")
    def poll(self, vaddr, x4=False, soff="0"):
        P = self.P; Lb = P.lab("Lp"); E = P.lab("Le")
        P(f"s_mov_b32 s{sSPIN}, 0\n{Lb}:")
        if x4:
            P(f"buffer_load_dwordx4 v[12:15], v{vaddr}, {S(SWS)}, {soff} offen sc1\ns_waitcnt vmcnt(0)")
            P("\n".join(f"v_xor_b32 v{r}, s{sE}, v{r}" for r in range(12, 16)) + "\nv_or3_b32 v12, v12, v13, v14\nv_or_b32 v12, v12, v15\nv_cmp_ne_u32 vcc, 0, v12")
        else:
            P(f"buffer_load_dword v12, v{vaddr}, {S(SWS)}, {soff} offen sc1\ns_waitcnt vmcnt(0)\nv_cmp_ne_u32 vcc, s{sE}, v12")
        self.spin_tail(Lb, E); P(f"{E}:")
    def poll2(self, vaddr, soff, gap):
        P = self.P; Lb = P.lab("Lp"); E = P.lab("Le")
        ld = lambda r: f"buffer_load_dword v{r}, v{vaddr}, {S(SWS)}, {soff} offen sc1"
        P(f"s_mov_b32 s{sSPIN}, 0\n{ld(12)}\ns_sleep {gap}\n{Lb}:\n{ld(5)}\ns_waitcnt vmcnt(1)\nv_cmp_ne_u32 vcc, s{sE}, v12\ns_cbranch_vccz {E}")
        P(f"{ld(12)}\ns_waitcnt vmcnt(1)\nv_cmp_ne_u32 vcc, s{sE}, v5")
        self.spin_tail(Lb, E); P(f"{E}:")
    def check_retry(self, load, cmp):
        P = self.P; Lb = P.lab("Lk"); E = P.lab("Le")
        P(f"s_mov_b32 s{sSPIN}, 0\n{cmp}\ns_cbranch_vccz {E}")
        P.cond_begin()
        P(f"{Lb}:\n{load}\ns_waitcnt vmcnt(0)\n{cmp}")
        self.spin_tail(Lb, E)
        P.cond_end(); P(f"{E}:")
    def barrier(self):
        self.P.wait_ds(); self.P("s_barrier")
    def xreduce(self, regs, tmp, ops=("v_permlane32_swap_b32", "v_permlane16_swap_b32")):
        P = self.P
        for op in ops:
            for k, r in enumerate(regs): P(f"v_mov_b32 v{tmp+k}, v{r}")
            for k, r in enumerate(regs): P(f"{op} v{tmp+k}, v{r}")
            for k, r in enumerate(regs): P(f"v_add_f32 v{r}, v{r}, v{tmp+k}")
    def finstats(self, sums, n, outA, outB):
        ls = []
        for k, (s, q) in enumerate(sums):
            ls.append([f"v_mul_f32 v{s}, {f2u(-1.0/n):#x}, v{s}", f"v_mul_f32 v{q}, {f2u(1.0/n):#x}, v{q}",
                       f"v_fma_f32 v{q}, -v{s}, v{s}, v{q}", f"v_max_f32 v{q}, 0, v{q}", f"v_add_f32 v{q}, {f2u(1e-5):#x}, v{q}",
                       f"v_rsq_f32 v{outA[k]}, v{q}", f"v_mul_f32 v{outB[k]}, v{s}, v{outA[k]}"])
        self.P.add(zipped(ls))
    def phi_pair(self, x, t, out):
        return [f"v_pk_mul_f32 {vr(t,2)}, {vr(x,2)}, s[{sLOG2E}:{sLOG2E+1}]",
                f"v_max_f32 v{x}, 0, v{x}", f"v_max_f32 v{x+1}, 0, v{x+1}",
                f"v_min_f32 v{t}, 0, v{t}", f"v_min_f32 v{t+1}, 0, v{t+1}",
                f"v_exp_f32 v{t}, v{t}", f"v_exp_f32 v{t+1}, v{t+1}",
                f"v_pk_add_f32 {vr(x,2)}, {vr(x,2)}, s[{sEPS6}:{sEPS6+1}]",
                f"v_pk_add_f32 {vr(x,2)}, {vr(x,2)}, {vr(t,2)}",
                f"v_cvt_pk_bf16_f32 v{out}, v{x}, v{x+1}"]
    def gelu_pair(self, x, t, k1):
        return [f"v_pk_mul_f32 {vr(t,2)}, {vr(x,2)}, {vr(x,2)}",
                f"v_pk_fma_f32 {vr(t,2)}, {vr(t,2)}, s[{sK2}:{sK2+1}], {vr(k1,2)}",
                f"v_pk_mul_f32 {vr(t,2)}, {vr(t,2)}, {vr(x,2)}",
                f"v_exp_f32 v{t}, v{t}", f"v_exp_f32 v{t+1}, v{t+1}",
                f"v_pk_add_f32 {vr(t,2)}, {vr(t,2)}, s[{sONE}:{sONE+1}]",
                f"v_rcp_f32 v{t}, v{t}", f"v_rcp_f32 v{t+1}, v{t+1}",
                f"v_pk_mul_f32 {vr(x,2)}, {vr(x,2)}, {vr(t,2)}"]
    @staticmethod
    def bc(r): return vr(r & ~1, 2), r & 1
    def affine_pair(self, x, t, A, B, cs, a_bc):
        if a_bc:
            bn, bb = self.bc(B); an, ab = self.bc(A)
            return [f"v_pk_mul_f32 {vr(t,2)}, {vr(cs,2)}, {bn} op_sel:[0,{bb}] op_sel_hi:[1,{bb}]",
                    f"v_pk_fma_f32 {vr(x,2)}, {vr(x,2)}, {an}, {vr(t,2)} op_sel:[0,{ab},0] op_sel_hi:[1,{ab},1]"]
        cn, cb = self.bc(cs)
        return [f"v_pk_mul_f32 {vr(t,2)}, {vr(B,2)}, {cn} op_sel:[0,{cb}] op_sel_hi:[1,{cb}]",
                f"v_pk_fma_f32 {vr(x,2)}, {vr(x,2)}, {vr(A,2)}, {vr(t,2)}"]

    def prologue(self):
        P = self.P
        P(f"""
        s_cmp_ge_u32 s2, 256
        s_cbranch_scc1 L_end
        s_load_dwordx4 s[64:67], s[0:1], 0
        v_lshrrev_b32 v1, 6, v0
        v_and_b32 v0, 63, v0
        v_readfirstlane_b32 s{sW}, v1
        s_and_b32 s{sX}, s2, 7
        s_lshr_b32 s{sJ}, s2, 3
        v_lshrrev_b32 v{vG}, 4, v0
        s_lshr_b32 s{sA8}, s{sX}, 1
        s_lshl_b32 s{sA8}, s{sA8}, 3
        s_lshr_b32 s86, s{sJ}, 2
        s_add_u32 s{sA8}, s{sA8}, s86
        s_and_b32 s{sA4}, s{sX}, 1
        s_lshl_b32 s{sA4}, s{sA4}, 2
        {f's_xor_b32 s86, s86, s{sJ}' if self.opt.get('hx') else f's_mov_b32 s86, s{sJ}'}
        s_and_b32 s86, s86, 3
        s_add_u32 s{sA4}, s{sA4}, s86
        """)
        if self.opt.get("thr"): P("s_memrealtime s[98:99]\ns_waitcnt lgkmcnt(0)")
        if self.stamps: P("v_mov_b32 v7, 0\ns_memtime s[98:99]\nv_writelane_b32 v7, s98, 62")
        self.stamp("start")

    def late_setup(self):
        P = self.P
        self.srds([(SWS, 84, WS_BYTES)])
        P(f"s_mov_b32 s86, {EPOCH}\nbuffer_load_dword v225, off, {S(SWS)}, s86 sc1")
        self.srds([(SWO, 68, 524288), (SWIN, 72, 1835008), (SWSP, 74, 8388608), (SBSP, 76, 4096), (SWOUT, 78, 917504), (SOUT, 80, 2097152)])
        P(f"""
        v_lshlrev_b32 v{vL16}, 4, v0
        v_and_b32 v{vI}, 15, v0
        s_getreg_b32 s{sXCC}, hwreg(HW_REG_XCC_ID, 0, 4)
        s_lshr_b32 s{sRB}, s{sJ}, 4
        s_lshl_b32 s86, s{sX}, 1
        s_add_u32 s{sRB}, s{sRB}, s86
        s_and_b32 s{sCBK}, s{sJ}, 15
        s_lshr_b32 s{sTB}, s{sJ}, 3
        s_lshl_b32 s86, s{sX}, 2
        s_add_u32 s{sTB}, s{sTB}, s86
        s_and_b32 s{sFB}, s{sJ}, 7
        s_lshl_b32 s86, s2, 2
        v_lshl_add_u32 v{vFLAG}, v0, 10, s86
        s_lshl_b32 s86, s{sCBK}, 4
        s_add_u32 s86, s86, s{sRB}
        s_lshl_b32 s86, s86, 2
        s_add_u32 s86, s86, {(F3 - 17*1024) & 0xffffffff}
        v_lshl_add_u32 v5, v0, 10, s86
        v_cmp_lt_u32 vcc, 16, v0
        v_cndmask_b32 v{vFLAG}, v{vFLAG}, v5, vcc
        s_lshl_b32 s86, s{sRB}, 7
        s_lshl_b32 s87, s{sCBK}, 2
        s_add_u32 s86, s86, s87
        s_add_u32 s87, s86, {F2}
        v_writelane_b32 v{vFLAG}, s87, 16
        s_add_u32 s87, s86, {F3B}
        v_writelane_b32 v{vFLAG}, s87, 25
        s_lshl_b32 s86, s{sA8 if self.map84 else sTB}, 7
        s_lshl_b32 s87, s{sA4 if self.map84 else sFB}, 2
        s_add_u32 s86, s86, s87
        s_add_u32 s87, s86, {F4}
        v_writelane_b32 v{vFLAG}, s87, 26
        s_lshl_b32 s86, s{sA8}, 7
        s_lshl_b32 s87, s{sA4}, 2
        s_add_u32 s86, s86, s87
        s_add_u32 s87, s86, {F1B}
        v_writelane_b32 v{vFLAG}, s87, 27
        s_mov_b32 s{sLOG2E}, {f2u(1.4426950408889634):#x}
        s_mov_b32 s{sLOG2E+1}, {f2u(1.4426950408889634):#x}
        s_mov_b32 s{sEPS6}, {f2u(1e-6):#x}
        s_mov_b32 s{sEPS6+1}, {f2u(1e-6):#x}
        s_mov_b32 s{sK2}, {f2u(K1C*0.044715):#x}
        s_mov_b32 s{sK2+1}, {f2u(K1C*0.044715):#x}
        s_mov_b32 s{sONE}, 1.0
        s_mov_b32 s{sONE+1}, 1.0
        """)

    def phase1(self):
        P = self.P
        SCR = 147456
        vX = [216, 217]; vWd = [218, 219]; vA = [220, 221]; vO = [222, 223]; vB = 224
        OWN = 16; BK = 24; BV = 32; ONES = 40; ACK = 48; ACV = 64; CSK = 80; CSV = 84; DS = 88; DQ = 92
        ACQ = 96; CSQ = 112; ST = 120; STQ = 152
        P(f"""
        s_lshl_b32 s88, s{sA8}, 16
        s_lshl_b32 s87, s{sW}, 14
        s_add_u32 s88, s88, s87
        s_lshl_b32 s90, s{sA4}, 7
        s_mul_i32 s87, s{sW}, {16*3072}
        s_add_u32 s90, s90, s87
        s_lshl_b32 s91, s{sW}, 11
        v_lshrrev_b32 v5, 3, v0
        v_and_b32 v6, 7, v0
        v_xor_b32 v12, v6, v{vG}
        v_lshlrev_b32 v12, 4, v12
        v_lshl_add_u32 v{vX[0]}, v5, 10, v12
        v_xor_b32 v{vX[1]}, 64, v{vX[0]}
        v_add_u32 v{vX[1]}, 8192, v{vX[1]}
        v_and_b32 v12, 2, v5
        v_xor_b32 v12, v6, v12
        v_lshlrev_b32 v12, 4, v12
        v_mul_u32_u24 v13, 3072, v5
        v_add_u32 v{vWd[0]}, v13, v12
        v_xor_b32 v{vWd[1]}, 64, v{vWd[0]}
        v_add_u32 v{vWd[1]}, {8*3072}, v{vWd[1]}
        s_waitcnt lgkmcnt(0)
        """)
        P("""s_load_dwordx2 s[84:85], s[0:1], 80
        s_load_dwordx2 s[68:69], s[0:1], 16
        s_load_dwordx8 s[72:79], s[0:1], 32
        s_load_dwordx2 s[80:81], s[0:1], 64""")
        self.srds([(SX, 64, 2097152), (SWQKV, 66, 1572864)])
        def issue_stage(s):
            slot = (s % 6) * 24576; out = []
            if s < 8:
                parts = [(0, SX, vX, 88, s * 128), (8192, SWQKV, vWd, 90, s * 64 * 3072 + 1024), (16384, SWQKV, vWd, 90, s * 64 * 3072 + 2048)]
            else:
                parts = [(8192 * k, SWQKV, vWd, 90, c * 64 * 3072) for k, c in enumerate(range(3 * (s - 8), min(8, 3 * (s - 8) + 3)))]
            for lo, srd, vo, sb, so in parts:
                out.append([f"s_add_u32 m0, s91, {slot + lo}", f"s_add_u32 s60, s{sb}, {so}", self.dmai(vo[0], srd, 60, f"st{s}")])
                out.append([f"s_add_u32 m0, s91, {slot + lo + 1024}", self.dmai(vo[1], srd, 60, f"st{s}")])
            return out
        if self.opt.get("rot1", 2):
            P(f"s_lshr_b32 s92, s{sJ}, 2" if self.opt.get("rot1", 2) == 1 else f"s_lshr_b32 s92, s{sJ}, 2\ns_and_b32 s92, s92, 6")
            def issue_stage(s):
                slot = (s % 6) * 24576; out = []
                def two(lo, srd, vo, pre):
                    out.append([f"s_add_u32 m0, s91, {slot + lo}"] + pre + [self.dmai(vo[0], srd, 60, f"st{s}")])
                    out.append([f"s_add_u32 m0, s91, {slot + lo + 1024}", self.dmai(vo[1], srd, 60, f"st{s}")])
                if s < 8:
                    two(0, SX, vX, [f"s_add_u32 s61, s92, {s}", "s_and_b32 s61, s61, 7", "s_lshl_b32 s60, s61, 7", "s_add_u32 s60, s60, s88"])
                    two(8192, SWQKV, vWd, [f"s_mul_i32 s61, s61, {64*3072}", "s_add_u32 s61, s61, s90", "s_add_u32 s60, s61, 1024"])
                    two(16384, SWQKV, vWd, ["s_add_u32 s60, s61, 2048"])
                else:
                    for k, c in enumerate(range(3 * (s - 8), min(8, 3 * (s - 8) + 3))):
                        two(8192 * k, SWQKV, vWd, [f"s_add_u32 s61, s92, {c}", "s_and_b32 s61, s61, 7", f"s_mul_i32 s61, s61, {64*3072}", "s_add_u32 s60, s61, s90"])
                return out
        flat = lambda g: [x for y in g for x in y]
        D = self.opt.get("D", 3)
        self.stamp("pre", True)
        for s in range(2): P.add(flat(issue_stage(s)))
        self.stamp("iss01", True)
        self.late_setup()
        P(f"""s_lshl_b32 s93, s{sA4}, 2
        s_add_u32 s93, s93, s{sW}
        s_mul_i32 s94, s93, {KVS}
        s_add_u32 s94, s94, {KV}
        s_lshl_b32 s95, s{sA4}, 2
        s_add_u32 s95, s95, {KZ}
        v_lshlrev_b32 v226, 7, v0""")
        Lb = P.lab("Lz")
        P(f"s_cmp_lg_u32 s{sA8}, 0\ns_cbranch_scc1 {Lb}"); P.cond_begin()
        P(f"""v_mov_b32 v12, 0
        v_mov_b32 v13, 0
        v_mov_b32 v14, 0
        v_mov_b32 v15, 0
        buffer_store_dwordx4 v[12:15], v{vL16}, {S(SWS)}, s94 offen sc1
        s_mov_b64 exec, 0xff
        buffer_store_dwordx4 v[12:15], v{vL16}, {S(SWS)}, s94 offen offset:1024 sc1
        s_mov_b64 exec, -1""")
        P.cond_end(); P(f"{Lb}:")
        def w0():
            P(f"""s_getpc_b64 s[86:87]
            L_pc:
            s_and_b32 s61, s{sJ}, 7
            s_lshl_b32 s61, s61, 13
            v_add_u32 v231, s61, v226
            v_min_u32 v231, L_end-L_pc, v231
            global_load_dword v239, v231, s[86:87]""")
        self.wave(0, w0)
        self.wave(1, lambda: P(f"s_lshl_b32 s86, s2, 13\ns_mov_b32 exec_lo, 0xfcfcfcfc\ns_mov_b32 exec_hi, 0xfcfcfcfc\nbuffer_load_dword v235, v226, {S(SX)}, s86 offen\ns_mov_b64 exec, -1"))
        self.wave(2, lambda: P(f"s_mul_i32 s86, s2, {36*128}\ns_add_u32 s86, s86, {3072*128}\ns_mov_b32 exec_hi, 15\nbuffer_load_dword v236, v226, {S(SWQKV)}, s86 offen\ns_mov_b64 exec, -1"))
        self.wave(3, lambda: P(f"""s_lshl_b32 s86, s{sX}, 7
            s_lshl_b32 s87, s{sJ}, 2
            s_add_u32 s86, s86, s87
            s_add_u32 s86, s86, {XID}
            v_mov_b32 v5, s{sXCC}
            s_mov_b64 exec, 1
            buffer_store_dword v5, off, {S(SWS)}, s86 sc1
            s_mov_b64 exec, -1"""))
        P.items.append(("count1",))
        def pf1(srd, per, d):
            P(f"s_lshl_b32 s86, s2, 2\ns_add_u32 s86, s86, s{sW}\ns_mul_i32 s86, s86, {per*128}\ns_mov_b64 exec, {(1<<per)-1}\nbuffer_load_dword v{d}, v226, {S(srd)}, s86 offen\ns_mov_b64 exec, -1")
        def hook(pt):
            if self.opt.get("ptouch", -1) == pt: P(f"s_mov_b64 exec, 0xffffff\nbuffer_load_dword v237, v238, {S(SWS)}, 0 offen {self.opt.get('tm', '')}\ns_mov_b64 exec, -1")
            if self.opt.get("pwo", 7) == pt: pf1(SWO, 4, 232)
            if self.opt.get("pwin", 7) == pt: pf1(SWIN, 14, 233)
            if self.opt.get("pwout", 7) == pt: pf1(SWOUT, 7, 234)
        for s in range(2, D): P.add(flat(issue_stage(s)))
        P(f"""
        v_lshrrev_b32 v12, 1, v{vI}
        v_xor_b32 v12, v12, v{vG}
        v_lshlrev_b32 v12, 4, v12
        v_lshl_add_u32 v{vA[0]}, v{vI}, 7, v12
        v_xor_b32 v{vA[1]}, 64, v{vA[0]}
        v_add_u32 v{vO[0]}, s91, v{vA[0]}
        v_add_u32 v{vO[1]}, s91, v{vA[1]}
        v_lshrrev_b32 v12, 2, v{vI}
        v_lshl_add_u32 v13, v{vG}, 3, v12
        v_and_b32 v14, 2, v12
        v_and_b32 v15, 1, v{vG}
        v_lshl_or_b32 v14, v15, 2, v14
        v_bfe_u32 v15, v0, 1, 1
        s_lshl_b32 s86, s{sW}, 1
        v_add_u32 v15, s86, v15
        v_xor_b32 v14, v14, v15
        v_lshlrev_b32 v14, 4, v14
        v_lshl_add_u32 v14, v13, 7, v14
        v_and_b32 v15, 1, v0
        v_lshl_add_u32 v{vB}, v15, 3, v14
        """)
        for k in range(4): P(f"v_mov_b32 v{ONES+k}, 0x3f803f80")
        P(f"""s_lshl_b32 s86, s{sW}, 6
        s_add_u32 s86, s86, {SCR}
        v_lshl_add_u32 v212, v{vI}, 2, s86
        v_lshlrev_b32 v213, 4, v{vG}
        v_add_u32 v213, {SCR}, v213
        v_lshlrev_b32 v214, 2, v{vI}
        v_add_u32 v214, {SCR}, v214
        s_add_u32 s86, s91, {SCR + 1024}
        v_add_u32 v227, s86, v{vL16}
        v_lshl_add_u32 v228, v{vG}, 4, s86
        v_lshl_add_u32 v229, v0, 2, s86
        v_lshlrev_b32 v215, 2, v0
        v_and_b32 v12, 3, v0
        v_cmp_eq_u32 s[44:45], 1, v12
        v_cmp_eq_u32 s[46:47], 2, v12
        v_cmp_eq_u32 s[82:83], 3, v12""")
        if self.opt.get('ptouch', -1) >= 0: P(f"""s_lshr_b32 s86, s{sJ}, 2
        s_lshl_b32 s87, s{sX}, 3
        s_add_u32 s86, s86, s87
        s_and_b32 s87, s{sJ}, 3
        s_lshl_b32 s96, s86, 5
        s_lshl_b32 s97, s87, 2
        s_add_u32 s96, s96, s97
        s_add_u32 s96, s96, s{sW}
        s_lshl_b32 s96, s96, 10
        s_add_u32 s96, s96, {H}
        v_and_b32 v12, 7, v0
        v_lshlrev_b32 v12, 7, v12
        v_bfe_u32 v13, v0, 3, 1
        v_lshl_add_u32 v12, v13, 14, v12
        v_add_u32 v238, s96, v12
        s_lshl_b32 s96, s86, 12
        s_lshl_b32 s97, s87, 8
        s_add_u32 s96, s96, s97
        s_lshr_b32 s97, s{sW}, 1
        s_lshl_b32 s97, s97, 10
        s_add_u32 s96, s96, s97
        s_add_u32 s96, s96, {HST}
        v_and_b32 v12, 1, v0
        v_lshlrev_b32 v12, 7, v12
        v_bfe_u32 v13, v0, 1, 1
        v_lshl_add_u32 v12, v13, 11, v12
        v_add_u32 v12, s96, v12
        v_cmp_lt_u32 vcc, 15, v0
        v_cndmask_b32 v238, v238, v12, vcc
        s_lshl_b32 s96, s{sRB}, 15
        s_lshl_b32 s97, s{sCBK}, 11
        s_add_u32 s96, s96, s97
        s_lshl_b32 s97, s{sW}, 9
        s_add_u32 s96, s96, s97
        s_add_u32 s96, s96, {STATS}
        v_and_b32 v12, 3, v0
        v_lshl_add_u32 v12, v12, 7, s96
        v_cmp_lt_u32 vcc, 19, v0
        v_cndmask_b32 v238, v238, v12, vcc""")
        cur = [0]
        def setbase(slot, regs):
            want = (slot // 2) * 49152; out = []
            if want != cur[0]:
                out = [f"v_add_u32 v{r}, {want - cur[0]}, v{r}" if want > cur[0] else f"v_subrev_u32 v{r}, {cur[0] - want}, v{r}" for r in regs]
                cur[0] = want
            return (slot % 2) * 24576, out
        def reads(ks, so):
            t = ks & 1; out = []
            for base, lo in ((BK, 8192), (BV, 16384)):
                for h in range(2): out.append(f"ds_read_b64_tr_b16 {vr(base+4*t+2*h,2)}, v{vB} offset:{so + lo + t*4096 + h*512}")
            for rf in range(4): out.append(f"ds_read_b128 {ar((ks*4+rf)*4,4)}, v{vA[t]} offset:{so + rf*2048}")
            out.append(f"ds_read_b128 {vr(OWN+4*t,4)}, v{vO[t]} offset:{so}")
            return out
        def mfmas(ks):
            t = ks & 1; m = []
            c = lambda r: vr(r, 4) if ks else "0"
            m.append(f"{MF} {vr(DS,4)}, {vr(OWN+4*t,4)}, {vr(ONES,4)}, {c(DS)}")
            m.append(f"{MF} {vr(DQ,4)}, {vr(OWN+4*t,4)}, {vr(OWN+4*t,4)}, {c(DQ)}")
            m.append(f"{MF} {vr(CSK,4)}, {vr(ONES,4)}, {vr(BK+4*t,4)}, {c(CSK)}")
            m.append(f"{MF} {vr(CSV,4)}, {vr(ONES,4)}, {vr(BV+4*t,4)}, {c(CSV)}")
            for rf in range(4):
                for base, acc in ((BK, ACK), (BV, ACV)):
                    m.append(f"{MF} {vr(acc+4*rf,4)}, {ar((ks*4+rf)*4,4)}, {vr(base+4*t,4)}, {c(acc+4*rf)}")
            return m
        def lay(m, r, g):
            if not m: return r + flat(g)
            g = g + [[]] * (3 - len(g))
            return mix(m[:4], r[:5] + g[0]) + mix(m[4:7], r[5:]) + mix(m[7:9], g[1]) + m[9:10] + mix(m[10:], g[2])
        for s in range(8):
            P.wait_tag(f"st{s}"); self.barrier()
            if s == 0: self.stamp("st0")
            else: self.stamp(f"st{s}", True)
            if s == 2:
                P(f"v_readfirstlane_b32 s{sE}, v225\ns_add_u32 s{sE}, s{sE}, 1")
                Lb = P.lab("Lz")
                P(f"s_or_b32 s86, s{sA8}, s{sW}\ns_cmp_lg_u32 s86, 0\ns_cbranch_scc1 {Lb}"); P.cond_begin()
                P(f"v_mov_b32 v5, s{sE}\ns_mov_b64 exec, 1\nbuffer_store_dword v5, off, {S(SWS)}, s95 sc1\ns_mov_b64 exec, -1")
                P.cond_end(); P(f"{Lb}:")
            so, adj = setbase(s % 6, vA + vO + [vB])
            iss = issue_stage(s + D) if s + D <= 10 else []
            if s == 6: P(f"buffer_load_dword v230, off, {S(SWS)}, s95 sc1")
            hook(s)
            h = len(iss) // 2
            P.add(adj + lay(mfmas(2*s - 1) if s else [], reads(2*s, so), iss[:h]))
            P.wait_ds()
            P.add(lay(mfmas(2*s), reads(2*s + 1, so), iss[h:]))
        for s in range(8 + D, 11): P.add(flat(issue_stage(s)))
        m = mfmas(15)
        sel = []
        for k, sm in ((1, 44), (2, 46), (3, 82)):
            sel += [f"v_cndmask_b32 v{DS}, v{DS}, v{DS+k}, s[{sm}:{sm+1}]", f"v_cndmask_b32 v{DQ}, v{DQ}, v{DQ+k}, s[{sm}:{sm+1}]"]
        fin = [f"v_mul_f32 v{DS}, {f2u(-1.0/512):#x}, v{DS}", f"v_mul_f32 v{DQ}, {f2u(1.0/512):#x}, v{DQ}", f"v_fma_f32 v{DQ}, -v{DS}, v{DS}, v{DQ}",
               f"v_max_f32 v{DQ}, 0, v{DQ}", f"v_add_f32 v{DQ}, {f2u(1e-5):#x}, v{DQ}", f"v_rsq_f32 v{DS+1}, v{DQ}"]
        P.add(m[:6] + mix(m[6:], sel + fin))
        P(f"""v_mul_f32 v{DS+2}, v{DS}, v{DS+1}
        s_mov_b32 exec_lo, 0x00f0000f
        s_mov_b32 exec_hi, 0xf0000f00
        ds_write_b32 v212, v{DS+1}
        ds_write_b32 v212, v{DS+2} offset:256
        s_mov_b64 exec, -1""")
        self.stamp("p1gemm")
        self.barrier()
        for rf in range(4):
            P(f"ds_read_b128 {vr(ST+8*rf,4)}, v213 offset:{rf*64}\nds_read_b128 {vr(ST+8*rf+4,4)}, v213 offset:{256+rf*64}")
        for rf in range(4):
            P(f"ds_read_b32 v{STQ+2*rf}, v214 offset:{rf*64}\nds_read_b32 v{STQ+2*rf+1}, v214 offset:{256+rf*64}")
        PK = 160; PV = 168; TT = 176; KVD = 184; ZD = 188
        for rf in range(4):
            ls = []
            for hp in range(2):
                x = ACK + 4*rf + 2*hp; t = TT + 2*hp
                ls.append(self.affine_pair(x, t, ST+8*rf+2*hp, ST+8*rf+4+2*hp, CSK, False) + self.phi_pair(x, t, PK + 2*rf + hp))
                x = ACV + 4*rf + 2*hp; t = TT + 4 + 2*hp
                ls.append(self.affine_pair(x, t, ST+8*rf+2*hp, ST+8*rf+4+2*hp, CSV, False) + [f"v_cvt_pk_bf16_f32 v{PV+2*rf+hp}, v{x}, v{x+1}"])
            P.add(zipped(ls))
        p2a, p2b = self.p2_setup()
        P(f"""{MF} {vr(KVD,4)}, {vr(PK,4)}, {vr(PV,4)}, 0
        {MF} {vr(ZD,4)}, {vr(PK,4)}, {vr(ONES,4)}, 0
        {MF} {vr(KVD,4)}, {vr(PK+4,4)}, {vr(PV+4,4)}, {vr(KVD,4)}
        {MF} {vr(ZD,4)}, {vr(PK+4,4)}, {vr(ONES,4)}, {vr(ZD,4)}""")
        P.add(p2a[:8])
        P(f"ds_write_b128 v227, {vr(KVD,4)}\nds_write_b128 v228, {vr(ZD,4)} offset:1024")
        P.add(p2a[8:])
        P.wait_ds()
        for t in range(5): P(f"ds_read_b32 v{192+t}, v229 offset:{t*256}")
        self.check_retry(f"buffer_load_dword v230, off, {S(SWS)}, s95 sc1", f"v_cmp_ne_u32 vcc, s{sE}, v230")
        for t in range(4): P(f"buffer_atomic_add_f32 v{192+t}, v215, {S(SWS)}, s94 offen offset:{t*256} sc1", "atom")
        P(f"s_mov_b64 exec, 0xffff\nbuffer_atomic_add_f32 v196, v215, {S(SWS)}, s94 offen offset:1024 sc1\ns_mov_b64 exec, -1", "atom")
        self.stamp("atom")
        hook(8)
        def qreads(ks):
            c = ks >> 1; t = ks & 1
            so, adj = setbase(2 + c // 3, [vB])
            return adj + [f"ds_read_b64_tr_b16 {vr(BK+4*(ks&3)+2*h,2)}, v{vB} offset:{so + (c%3)*8192 + t*4096 + h*512}" for h in range(2)]
        def qm(ks):
            b = vr(BK+4*(ks&3),4)
            out = [f"{MF} {vr(ACQ+4*rf,4)}, {b}, {ar((ks*4+rf)*4,4)}, {vr(ACQ+4*rf,4) if ks else '0'}" for rf in range(4)]
            return out + [f"{MF} {vr(CSQ,4)}, {b}, {vr(ONES,4)}, {vr(CSQ,4) if ks else '0'}"]
        P.wait_tag("st10"); self.barrier()
        P.add(qreads(0) + qreads(1))
        wo_e = self.wo_dma(0)
        p2b = p2b + L(f"""s_lshl_b32 s87, s{sA8}, 6
        s_add_u32 s87, s87, s93
        s_lshl_b32 s87, s87, 10
        s_add_u32 s64, s87, {PQ}
        s_add_u32 s65, s64, 32768""")
        n = (len(p2b) + 15) // 16
        for ks in range(16):
            P.add(mix(qm(ks), (qreads(ks + 2) if ks + 2 < 16 else []) + wo_e[len(wo_e)*ks//16:len(wo_e)*(ks+1)//16] + p2b[n*ks:n*ks+n]))
        PQR = 160
        one = self.opt.get("one", 0)
        if one == 0:
            P.wait_tag("atom"); self.barrier()
            self.wave0(lambda: self.set_flag((1 << R1) - 1))
        elif one == 1: self.barrier()
        self.stamp("F1a")
        hook(9)
        wo_l = self.wo_dma(1)
        for p in range(2):
            ls = []
            for rf in (2*p, 2*p+1):
                for hp in range(2):
                    x = ACQ + 4*rf + 2*hp; t = TT + 2*((2*rf+hp) % 4)
                    ls.append(self.affine_pair(x, t, STQ+2*rf, STQ+2*rf+1, CSQ+2*hp, True) + self.phi_pair(x, t, PQR + 2*rf + hp))
            P.add(zipped(ls))
            if one == 2 and p == 0:
                P.wait_tag("atom"); self.barrier()
                self.wave0(lambda: self.set_flag((1 << R1) - 1))
            P(f"buffer_store_dwordx4 {vr(PQR+4*p,4)}, v{vL16}, {S(SWS)}, s{64+p} offen sc1", "pq")
        nw = self.opt.get("nw", 6)
        P.add(weave(self.wo_reads(0) + self.wo_reads(1), wo_l[:3*nw]))
        P.wait_tag("pq")
        P("s_barrier")
        self.wave0(lambda: self.set_flag((1 << R1) - 1 if one == 1 else 1 << 27))
        self.stamp("F1")
        hook(10)
        P.add(wo_l[3*nw:])

    def p2_setup(self):
        a = L(f"""
        s_lshr_b32 s88, s{sJ}, 2
        s_lshl_b32 s86, s{sX}, 3
        s_add_u32 s88, s88, s86
        s_and_b32 s89, s{sJ}, 3
        v_lshrrev_b32 v12, 3, v0
        v_and_b32 v13, 6, v12
        v_and_b32 v14, 7, v0
        v_xor_b32 v13, v13, v14
        v_lshlrev_b32 v{vSW}, 4, v13
        v_lshl_add_u32 v200, v12, 10, v{vSW}
        s_lshl_b32 s90, s{sW}, 17
        s_lshl_b32 s86, s89, 8
        s_add_u32 s90, s90, s86
        s_lshl_b32 s91, s{sW}, 14
        s_add_u32 s96, s91, 65536
        s_cmp_eq_u32 s{sW}, 3
        s_cselect_b32 s91, 131072, s91""")
        b = L(f"""
        v_lshrrev_b32 v12, 2, v{vI}
        v_lshl_add_u32 v12, v{vG}, 2, v12
        v_and_b32 v13, 6, v12
        v_bfe_u32 v14, v0, 1, 1
        v_xor_b32 v13, v13, v14
        v_and_b32 v14, 1, v0
        v_lshlrev_b32 v14, 3, v14
        v_lshl_add_u32 v14, v12, 7, v14
        v_lshl_add_u32 v{vT[0]}, v13, 4, v14
        v_xor_b32 v{vT[1]}, 32, v{vT[0]}
        v_xor_b32 v{vT[2]}, 64, v{vT[0]}
        v_xor_b32 v{vT[3]}, 96, v{vT[0]}
        s_and_b32 s86, s{sW}, 1
        s_lshl_b32 s86, s86, 6""")
        for p in range(4):
            b += L(f"s_add_u32 s87, s{sW}, {p}\ns_and_b32 s87, s87, 2\ns_lshl_b32 s87, s87, 12\ns_add_u32 s87, s87, s91")
            for cf in range(2):
                b += [f"v_xor_b32 v{204+2*p+cf}, s86, v{vT[2*(p&1)+cf]}", f"v_add_u32 v{204+2*p+cf}, s87, v{204+2*p+cf}"]
        return a, b
    def wo_dma(self, half):
        out = []
        for i in range(8):
            for st in range(2):
                if self.opt.get('rotwo', 0):
                    if st == 0:
                        out += [f"s_add_u32 s61, s88, {i}", "s_and_b32 s61, s61, 7", "s_lshl_b32 s66, s61, 10", f"s_add_u32 s66, s66, s{96 if half else 91}", "s_mov_b32 m0, s66",
                                "s_lshl_b32 s61, s61, 13", "s_add_u32 s61, s61, s90", f"s_add_u32 s60, s61, {8*half*8192}", self.dmai(200, SWO, 60, f"wo{2*half}")]
                    else:
                        out += ["s_add_u32 m0, s66, 8192", "s_add_u32 s60, s60, 128", self.dmai(200, SWO, 60, f"wo{2*half}")]
                else:
                    out += [f"s_add_u32 m0, s{96 if half else 91}, {st*8192 + i*1024}", f"s_add_u32 s60, s90, {(8*half+i)*8192 + st*128}", self.dmai(200, SWO, 60, f"wo{2*half + i//4}")]
        return out
    def wo_reads(self, kk):
        return [WT(f"wo{kk}")] + [f"ds_read_b64_tr_b16 {ar(((kk*4+p)*2+cf)*4+2*h,2)}, v{204+2*p+cf} offset:{(kk&1)*4096 + h*2048}" for p in range(4) for cf in range(2) for h in range(2)]
    def win_setup(self, v):
        return L(f"""v_lshrrev_b32 v{v}, 3, v0
        v_mul_u32_u24 v{v}, 3584, v{v}
        v_add_u32 v{v}, v{v}, v{vSW}
        s_min_u32 s70, s{sCBK}, 13
        s_lshl_b32 s70, s70, 7
        s_mul_i32 s71, s{sW}, {8*3584}
        s_add_u32 s70, s70, s71
        s_lshl_b32 s71, s{sW}, 10
        s_and_b32 s86, s{sRB}, 1
        s_mul_i32 s78, s86, {8*4096}
        s_mul_i32 s79, s86, {8*32*3584}
        s_mul_i32 s80, s86, {self.opt.get('nw1', 10)//2*4096}
        s_mul_i32 s81, s86, {self.opt.get('nw1', 10)//2*32*3584}""")
    def win_dma(self, half, t, v):
        n = 16 if half == 0 else self.opt.get('nw1', 10)
        if self.opt.get('rotw', 0) and t < n and n % 2 == 0:
            sg = "s_add_u32" if t < n // 2 else "s_sub_u32"
            r = 78 if half == 0 else 80
            return [f"s_add_u32 m0, s71, {half*65536 + t*4096}", f"{sg} m0, m0, s{r}", f"s_add_u32 s60, s70, {t*32*3584 + (1792 if half == 0 else 0)}", f"{sg} s60, s60, s{r+1}", self.dmai(v, SWIN, 60, f"win{half}")]
        return [f"s_add_u32 m0, s71, {half*65536 + t*4096}", NOPIF, f"s_add_u32 s60, s{82 if half else 70}, {t*32*3584 + (1792 if half == 0 else 0)}", NOPIF, self.dmai(v, SWIN, 60, f"win{half}")]

    def win0_dma(self, v):
        out = L(f"s_min_u32 s72, s{sCBK}, 13\ns_lshl_b32 s72, s72, 7\ns_mul_i32 s73, s{sW}, {128*3584}\ns_add_u32 s72, s72, s73\ns_lshl_b32 s73, s{sW}, 14")
        for i in range(16):
            out += [f"s_add_u32 m0, s73, {i*1024}", f"s_add_u32 s60, s72, {i*8*3584 + 1792}", self.dmai(v, SWIN, 60, "win0")]
        return out

    def phase2(self):
        P = self.P
        EX = 114688
        XR = 244; EPSQ = 124
        P(f"""s_lshl_b32 s86, s88, 15
        s_lshl_b32 s87, s89, 8
        s_add_u32 s86, s86, s87
        s_lshl_b32 s87, s{sW}, 6
        s_add_u32 s60, s86, s87
        s_lshl_b32 s87, s{sW}, 11
        s_add_u32 m0, s87, 147456
        v_lshrrev_b32 v12, 2, v0
        v_lshrrev_b32 v13, 3, v0
        v_xor_b32 v13, v13, v0
        v_and_b32 v13, 3, v13
        v_lshlrev_b32 v13, 4, v13
        v_lshl_add_u32 v12, v12, 10, v13""")
        P.add([self.dmai(12, SX, 60, "xt"), "s_add_u32 m0, s87, 148480", "s_add_u32 s60, s60, 16384", self.dmai(12, SX, 60, "xt")])
        P(f"""v_lshrrev_b32 v13, 1, v{vI}
        v_lshrrev_b32 v14, 1, v{vG}
        v_xor_b32 v13, v13, v14
        v_and_b32 v13, 3, v13
        v_lshlrev_b32 v13, 4, v13
        v_lshl_add_u32 v13, v{vI}, 6, v13
        v_and_b32 v14, 1, v{vG}
        v_lshl_add_u32 v13, v14, 3, v13
        s_add_u32 s87, s87, 147456
        v_add_u32 v20, s87, v13
        v_xor_b32 v21, 32, v20""")
        P(f"""s_lshl_b32 s86, s{sW}, 3
        s_mul_i32 s92, s86, {KVS}
        s_add_u32 s92, s92, {KV}
        s_add_u32 s93, s92, {4*KVS}
        s_lshl_b32 s94, s88, 5
        s_add_u32 s94, s94, s86
        s_lshl_b32 s94, s94, 10
        s_add_u32 s94, s94, {PQ}
        s_add_u32 s95, s94, 4096
        v_and_b32 v12, 7, v0
        v_mul_u32_u24 v12, {KVS}, v12
        v_lshl_add_u32 v19, v{vG}, 4, v12
        v_and_b32 v18, 31, v0
        v_lshlrev_b32 v18, 2, v18
        s_lshl_b32 s66, s{sX}, 7
        s_add_u32 s66, s66, {XID}
        s_lshl_b32 s67, s{sX}, 10
        s_lshr_b32 s97, s88, 1
        s_lshl_b32 s97, s97, 7
        s_add_u32 s97, s97, {F1B}
        v_and_b32 v16, 7, v0
        v_lshlrev_b32 v16, 2, v16""")
        for k in range(4): P(f"v_mov_b32 v{EPSQ+k}, s{sEPS6}")
        P.add(self.win_setup(123))
        P("s_mov_b32 s82, s70")
        if self.opt.get("redir", 1):
            Lb = P.lab("Lr")
            P(f"""s_cmp_lt_u32 s{sCBK}, 14
            s_cbranch_scc1 {Lb}
            s_mov_b32 s{SWIN}, s{SWSP}
            s_mov_b32 s{SWIN+1}, s{SWSP+1}
            s_mov_b32 s{SWIN+2}, 8388608
            s_lshl_b32 s86, s{sRB}, 1
            s_add_u32 s86, s86, s{sCBK}
            s_sub_u32 s86, s86, 14
            s_lshl_b32 s86, s86, 2
            s_add_u32 s86, s86, s{sW}
            s_mul_i32 s87, s86, 147
            s_lshr_b32 s87, s87, 12
            s_mul_i32 s87, s87, 420
            s_add_u32 s86, s86, s87
            s_lshl_b32 s86, s86, 12
            s_mov_b32 s70, s86
            s_mov_b32 s82, 0x40000000
            v_lshrrev_b32 v123, 4, v0
            v_lshlrev_b32 v123, 10, v123
            v_bfe_u32 v12, v0, 3, 1
            v_lshl_add_u32 v123, v12, 7, v123
            v_and_b32 v12, 7, v0
            v_lshl_add_u32 v123, v12, 4, v123
            v_add_u32 v123, {4096 - 1792}, v123
            s_sub_u32 s70, s70, 4096
            s_cmp_eq_u32 s86, 0
            s_cselect_b32 s70, 0x40000000, s70
            {Lb}:""")
        for p in range(1, 4):
            P(f"s_add_u32 s86, s{sW}, {p}\ns_and_b32 s86, s86, 3\ns_mul_i32 s86, s86, 12288\ns_add_u32 s86, s86, {EX + (p-1)*4096}")
            P(f"v_add_u32 v{118+p}, s86, v{vL16}")
        P(f"""s_mul_i32 s86, s{sW}, 12288
        s_add_u32 s86, s86, {EX}
        v_add_u32 v118, s86, v{vL16}
        s_lshl_b32 s64, s88, 5
        s_lshl_b32 s87, s89, 2
        s_add_u32 s64, s64, s87
        s_add_u32 s64, s64, s{sW}
        s_lshl_b32 s64, s64, 10
        s_add_u32 s64, s64, {H}
        s_add_u32 s65, s64, 16384
        s_lshl_b32 s61, s88, 12
        s_lshl_b32 s86, s89, 8
        s_add_u32 s61, s61, s86
        s_lshr_b32 s86, s{sW}, 1
        s_lshl_b32 s86, s86, 10
        s_add_u32 s61, s61, s86
        s_and_b32 s86, s{sW}, 1
        s_lshl_b32 s86, s86, 3
        s_add_u32 s61, s61, s86
        s_add_u32 s61, s61, {HST}
        v_lshlrev_b32 v122, 4, v{vI}
        v_lshl_add_u32 v122, v{vG}, 11, v122""")
        if self.opt.get("touch", 3) == 1:
            P(f"""v_and_b32 v12, 7, v0
            v_lshlrev_b32 v12, 7, v12
            v_bfe_u32 v13, v0, 3, 1
            v_lshl_add_u32 v12, v13, 14, v12
            s_mov_b64 exec, 0xffff
            buffer_load_dword v253, v12, {S(SWS)}, s64 offen {self.opt.get('tm', '')}
            v_and_b32 v12, 1, v0
            v_lshlrev_b32 v12, 7, v12
            v_bfe_u32 v13, v0, 1, 1
            v_lshl_add_u32 v12, v13, 11, v12
            s_mov_b64 exec, 0xf
            buffer_load_dword v254, v12, {S(SWS)}, s61 offen {self.opt.get('tm', '')}
            s_mov_b64 exec, -1""")
        fl2 = f"buffer_load_dwordx4 v[12:15], v{vL16}, {S(SWS)}, s67 offen sc1\n" + (f"v_mov_b32 v17, s{sE}" if self.opt.get("one", 0) == 1 else f"buffer_load_dword v17, v16, {S(SWS)}, s97 offen sc1")
        if self.opt.get("nbp", 0): self.wave0(lambda: P(fl2))
        P("s_sub_u32 s86, s96, s91")
        for r in range(204, 212): P(f"v_add_u32 v{r}, s86, v{r}")
        P.add(self.wo_reads(2) + self.wo_reads(3))
        P.wait_tag("xt")
        for a in range(2):
            for cf in range(2): P(f"ds_read_b64 {vr(XR+(a*2+cf)*2,2)}, v{20+cf} offset:{a*1024}")
        self.stamp("wo")
        cm = "\n".join(f"v_xor_b32 v{r}, s{sE}, v{r}" for r in (12, 13, 14, 15, 17)) + "\nv_or3_b32 v12, v12, v13, v14\nv_or3_b32 v12, v12, v15, v17\nv_cmp_ne_u32 vcc, 0, v12"
        def pl():
            if not self.opt.get("nbp", 0): P(fl2)
            self.check_retry(fl2, cm)
        self.wave0(pl)
        self.barrier()
        self.stamp("sync1")
        KR = 16; KP = 48; ZR = 64; ZC = 68; ZP = 70; PQR = 86; ACC = 128; OF = 192; ND = 212
        P(f"buffer_load_dwordx4 {vr(ZR,4)}, v19, {S(SWS)}, s92 offen offset:1024 sc1")
        P(f"buffer_load_dword v252, v18, {S(SWS)}, s66 offen sc1")
        for h in range(8):
            P(f"buffer_load_dwordx4 {vr(KR+4*h,4)}, v{vL16}, {S(SWS)}, s{92+h//4} offen offset:{(h%4)*KVS} sc1")
            P(f"buffer_load_dwordx4 {vr(PQR+4*h,4)}, v{vL16}, {S(SWS)}, s{94+h//4} offen offset:{(h%4)*1024} sc1")
        if self.opt.get("touch", 3) == 2:
            P(f"""v_and_b32 v12, 7, v0
            v_lshlrev_b32 v12, 7, v12
            v_bfe_u32 v13, v0, 3, 1
            v_lshl_add_u32 v12, v13, 14, v12
            s_mov_b64 exec, 0xffff
            buffer_load_dword v253, v12, {S(SWS)}, s64 offen {self.opt.get('tm', '')}
            v_and_b32 v12, 1, v0
            v_lshlrev_b32 v12, 7, v12
            v_bfe_u32 v13, v0, 1, 1
            v_lshl_add_u32 v12, v13, 11, v12
            s_mov_b64 exec, 0xf
            buffer_load_dword v254, v12, {S(SWS)}, s61 offen {self.opt.get('tm', '')}
            s_mov_b64 exec, -1""")
        wd = []
        if not self.opt.get("w0early", 0):
            for t in range(16): wd += self.win_dma(0, t, 123)
        NW1 = self.opt.get('nw1', 10)
        for t in range(NW1): wd += self.win_dma(1, t, 123)
        ni, ns = self.opt.get("ni", 0), self.opt.get("ns", 0)
        P.add(wd[:5*ni]); wd = wd[5*ni:]
        wds = wd[len(wd) - 5*ns:] if ns else []; wd = wd[:len(wd) - 5*ns]
        P(f"v_cvt_pk_bf16_f32 v{ZC}, v{ZR}, v{ZR+1}\nv_cvt_pk_bf16_f32 v{ZC+1}, v{ZR+2}, v{ZR+3}")
        P(f"v_cmp_ne_u32 vcc, s{sXCC}, v252")
        for h in range(8):
            for k in range(2): P(f"v_mov_b32_dpp v{ZP+2*h+k}, v{ZC+k} row_newbcast:{h} row_mask:0xf bank_mask:0xf")
        P(f"s_cmp_eq_u64 vcc, 0\ns_cselect_b32 s{sM}, {self.opt.get('fast', 1)}, 0")
        def ostep(kk):
            c = []; m = []
            for hh in range(2):
                h = 2*kk + hh
                c += [f"v_cvt_pk_bf16_f32 v{KP+2*h}, v{KR+4*h}, v{KR+4*h+1}", f"v_cvt_pk_bf16_f32 v{KP+2*h+1}, v{KR+4*h+2}, v{KR+4*h+3}"]
            for hh in range(2):
                h = 2*kk + hh
                for a in range(2):
                    m.append(f"v_mfma_f32_16x16x16_bf16 {vr(ND+8*(2*hh+a)+4,4)}, {vr(ZP+2*h,2)}, {vr(PQR+4*h+2*a,2)}, {vr(EPSQ,4)}")
            for hh in range(2):
                h = 2*kk + hh
                for a in range(2):
                    m.append(f"v_mfma_f32_16x16x16_bf16 {vr(ND+8*(2*hh+a),4)}, {vr(KP+2*h,2)}, {vr(PQR+4*h+2*a,2)}, 0")
            v = [f"v_rcp_f32 v{ND+8*q+4}, v{ND+8*q+4}" for q in range(4)]
            for hh in range(2):
                for a in range(2):
                    nd = ND + 8*(2*hh+a); o = OF + 8*(kk&1) + 4*a + 2*hh
                    v += [f"v_mul_f32 v{nd+k}, v{nd+k}, v{nd+4}" for k in range(4)]
                    v += [f"v_cvt_pk_bf16_f32 v{o}, v{nd}, v{nd+1}", f"v_cvt_pk_bf16_f32 v{o+1}, v{nd+2}, v{nd+3}"]
            return c, m, v
        def gstep(kk):
            m = []
            for p in range(4):
                for cf in range(2):
                    for a in range(2):
                        acc = vr(ACC + ((p*2+a)*2+cf)*4, 4)
                        m.append(f"{MF} {acc}, {ar(((kk*4+p)*2+cf)*4,4)}, {vr(OF+8*(kk&1)+4*a,4)}, {acc if kk else '0'}")
            return m
        c, m, v = ostep(0); P.add(c[:2] + mix(m[:4], c[2:]) + m[4:] + v)
        self.stamp("p2o0", True)
        if self.opt.get("touch", 3) == 3:
            P(f"""v_and_b32 v12, 7, v0
            v_lshlrev_b32 v12, 7, v12
            v_bfe_u32 v13, v0, 3, 1
            v_lshl_add_u32 v12, v13, 14, v12
            s_mov_b64 exec, 0xffff
            buffer_load_dword v253, v12, {S(SWS)}, s64 offen {self.opt.get('tm', '')}
            v_and_b32 v12, 1, v0
            v_lshlrev_b32 v12, 7, v12
            v_bfe_u32 v13, v0, 1, 1
            v_lshl_add_u32 v12, v13, 11, v12
            s_mov_b64 exec, 0xf
            buffer_load_dword v254, v12, {S(SWS)}, s61 offen {self.opt.get('tm', '')}
            s_mov_b64 exec, -1""")
        XF = 80
        xun = []
        for q in range(4):
            for k in range(2): xun += [f"v_lshlrev_b32 v{XF+4*q+2*k}, 16, v{XR+2*q+k}", f"v_and_b32 v{XF+4*q+2*k+1}, 0xffff0000, v{XR+2*q+k}"]
        xw = [f"ds_write_b128 v{118+p}, {vr(ACC+(p*4+q)*4,4)} offset:{q*1024}" for p in range(1, 4) for q in range(4)]
        for kk in range(4):
            g = gstep(kk)
            if kk < 3:
                c, m, v = ostep(kk+1)
                q_ = min(25, 5 * ((len(wd) // 5 + 3) // 4)); h_ = 5 * (q_ // 10)
                P.add(mix(m[:4], c) + mix(m[4:], wd[q_*kk:q_*kk+h_]) + mix(g, weave(v, wd[q_*kk+h_:q_*kk+q_], 5), 1))
            else:
                g = g[4:] + g[:4]
                P.add(mix(g[:9], wd[3*q_:3*q_+15]) + mix(g[9:], xw[:7]) + xw[7:])
        self.stamp("p2mm")
        if self.opt.get("touch", 3) == 4:
            P(f"""v_and_b32 v12, 7, v0
            v_lshlrev_b32 v12, 7, v12
            v_bfe_u32 v13, v0, 3, 1
            v_lshl_add_u32 v12, v13, 14, v12
            s_mov_b64 exec, 0xffff
            buffer_load_dword v253, v12, {S(SWS)}, s64 offen {self.opt.get('tm', '')}
            v_and_b32 v12, 1, v0
            v_lshlrev_b32 v12, 7, v12
            v_bfe_u32 v13, v0, 1, 1
            v_lshl_add_u32 v12, v13, 11, v12
            s_mov_b64 exec, 0xf
            buffer_load_dword v254, v12, {S(SWS)}, s61 offen {self.opt.get('tm', '')}
            s_mov_b64 exec, -1""")
        P.add(weave(xun, wd[3*q_+15:], 5))
        for q in range(4):
            for k in range(2): P(f"v_pk_add_f32 {vr(ACC+4*q+2*k,2)}, {vr(ACC+4*q+2*k,2)}, {vr(XF+4*q+2*k,2)}")
        self.barrier()
        RB = 32; HO = 96
        for q in range(4):
            for p in range(3): P(f"ds_read_b128 {vr(RB+(p*4+q)*4,4)}, v118 offset:{(p*4+q)*1024}")
        for q in range(4):
            for p in range(3):
                for k in range(2): P(f"v_pk_add_f32 {vr(ACC+4*q+2*k,2)}, {vr(ACC+4*q+2*k,2)}, {vr(RB+(p*4+q)*4+2*k,2)}")
            for k in range(2): P(f"v_cvt_pk_bf16_f32 v{HO+2*q+k}, v{ACC+4*q+2*k}, v{ACC+4*q+2*k+1}")
        self.local([f"buffer_store_dwordx4 {vr(HO+4*a,4)}, v{vL16}, {S(SWS)}, s{64+a} offen @SC" for a in range(2)], "hst")
        SS = 104
        ls = []
        for a in range(2):
            x = ACC + 8*a; s_ = SS + 4*a
            ls.append([f"v_pk_add_f32 {vr(s_,2)}, {vr(x,2)}, {vr(x+2,2)}", f"v_pk_mul_f32 {vr(s_+2,2)}, {vr(x,2)}, {vr(x,2)}",
                       f"v_pk_add_f32 {vr(s_,2)}, {vr(s_,2)}, {vr(x+4,2)}", f"v_pk_fma_f32 {vr(s_+2,2)}, {vr(x+2,2)}, {vr(x+2,2)}, {vr(s_+2,2)}",
                       f"v_pk_add_f32 {vr(s_,2)}, {vr(s_,2)}, {vr(x+6,2)}", f"v_pk_fma_f32 {vr(s_+2,2)}, {vr(x+4,2)}, {vr(x+4,2)}, {vr(s_+2,2)}",
                       f"v_add_f32 v{s_}, v{s_}, v{s_+1}", f"v_pk_fma_f32 {vr(s_+2,2)}, {vr(x+6,2)}, {vr(x+6,2)}, {vr(s_+2,2)}",
                       f"v_add_f32 v{s_+1}, v{s_+2}, v{s_+3}"])
        P.add(zipped(ls))
        self.xreduce([SS, SS+1, SS+4, SS+5], 112, ops=("v_permlane32_swap_b32",))
        P(f"""v_permlane16_swap_b32 v{SS}, v{SS+4}
        v_permlane16_swap_b32 v{SS+1}, v{SS+5}
        v_pk_add_f32 {vr(SS,2)}, {vr(SS,2)}, {vr(SS+4,2)}
        s_mov_b32 exec_hi, 0""")
        self.local([f"buffer_store_dwordx2 {vr(SS,2)}, v122, {S(SWS)}, s61 offen @SC"], "hst")
        P("s_mov_b64 exec, -1")
        P.add(wds)
        self.p3_setup()
        P.wait_tag("hst")
        self.barrier()
        self.wave0(lambda: self.set_flag(1 << 16, True))
        self.stamp("F2")

    def wsp_setup(self):
        o = L(f"""v_lshrrev_b32 v12, 3, v0
        v_and_b32 v13, 7, v0
        v_xor_b32 v13, v13, v{vG}
        v_lshlrev_b32 v13, 4, v13
        v_lshl_add_u32 v244, v12, 12, v13
        v_xor_b32 v245, 64, v244
        v_add_u32 v245, 32768, v245
        s_lshl_b32 s96, s{self.T4}, 18
        s_lshl_b32 s86, s{sW}, 10
        s_add_u32 s96, s96, s86
        s_lshl_b32 s97, s{sW}, 14
        s_and_b32 s76, s{sJ}, {(3 if self.map84 else 7) if self.opt.get('rot4', 0) else 0}
        s_lshl_b32 s76, s76, {1 if self.map84 else 0}
        v_lshrrev_b32 v12, 1, v{vI}
        v_xor_b32 v12, v12, v{vG}
        v_lshlrev_b32 v12, 4, v12
        v_lshl_add_u32 v12, v{vI}, 7, v12
        v_xor_b32 v13, 64, v12""")
        for p in range(4):
            o += L(f"s_add_u32 s86, s{sW}, {p}\ns_and_b32 s86, s86, 3\ns_lshl_b32 s86, s86, 11\ns_add_u32 s86, s86, s97\nv_add_u32 v{246+2*p}, s86, v12\nv_add_u32 v{247+2*p}, s86, v13")
        return o
    def wsp_issue(self, c, hi=False):
        out = [WD(f"wr{c-2}")] if c >= 2 and hi is False else []
        out += [f"s_add_u32 s77, s76, {c}", "s_and_b32 s77, s77, 7", "s_lshl_b32 s77, s77, 7", "s_add_u32 s77, s77, s96", NOPIF, NOPIF]
        for i in range(8):
            out.append(f"s_add_u32 m0, s97, {(c&1)*8192 + i*1024 + (65536 if hi else 0)}")
            out.append(f"s_add_u32 s60, s77, {(i>>1)*65536}" if i % 2 == 0 else NOPIF)
            out.append(self.dmai(244+(i&1), SWSP, 60, f"wsp{c}"))
        return out
    def wsp_read(self, c):
        return [WT(f"wsp{c}")] + [("T", f"ds_read_b128 {ar(((2*c+t)*4+p)*4,4)}, v{246+2*p+t} offset:{(c&1)*8192}", f"wr{c}") for t in range(2) for p in range(4)]
    def wsp_tohi(self): return [f"v_xor_b32 v{r}, 0x10000, v{r}" for r in range(246, 254)]
    KE = list(range(21, 28)); KT = list(range(9, 21)); KL = list(range(9))
    def wout_setup(self, v):
        return L(f"""v_lshrrev_b32 v{v}, 3, v0
        v_lshl_add_u32 v{v}, v{v}, 10, v{vSW}
        s_lshl_b32 s68, s{sW}, 13
        s_lshl_b32 s86, s{sFB}, 7
        s_add_u32 s68, s68, s86
        s_lshl_b32 s69, s{sW}, 10
        s_add_u32 s69, s69, 49152""")
    def wout(self, k, v, tag="wout"):
        return [f"s_add_u32 m0, s69, {k*4096}", f"s_add_u32 s61, s68, {k*4*8192}", self.dmai(v, SWOUT, 61, tag)]
    def wout_pf(self):
        if not self.opt.get("pfwo", 0): return []
        return L(f"""s_lshr_b32 s86, s{sJ}, 3
        s_lshl_b32 s86, s86, 2
        s_add_u32 s86, s86, s{sW}
        s_mul_i32 s86, s86, {42*1024}
        s_lshl_b32 s87, s{sFB}, 7
        s_add_u32 s86, s86, s87
        v_lshlrev_b32 v5, 10, v0
        s_mov_b32 exec_hi, 0x3ff
        buffer_load_dword v19, v5, {S(SWOUT)}, s86 offen
        s_mov_b64 exec, -1""")
    def pf_addr(self, v):
        return L(f"""v_bfe_u32 v{v}, v0, 2, 2
        v_lshlrev_b32 v{v}, 10, v{v}
        v_lshl_add_u32 v{v}, v{vG}, 12, v{v}
        v_and_b32 v5, 3, v0
        v_lshl_add_u32 v{v}, v5, 7, v{v}""")
    SCR3 = 131072
    def p3_setup(self):
        SCR = self.SCR3
        self.P(f"""s_lshl_b32 s90, s{sRB}, 3
        s_lshl_b32 s86, s{sW}, 1
        s_add_u32 s90, s90, s86
        s_lshl_b32 s93, s90, 11
        s_add_u32 s93, s93, {HST}
        s_lshl_b32 s90, s90, 14
        s_add_u32 s90, s90, {H}
        s_lshl_b32 s91, s{sW}, 9
        s_add_u32 s91, s91, {SCR + 512}
        s_lshl_b32 s67, s{sRB}, 7
        s_add_u32 s67, s67, {F2}
        v_lshlrev_b32 v240, 2, v{vI}
        v_mov_b32 v12, 0x3f803f80
        v_accvgpr_write_b32 a240, v12
        v_accvgpr_write_b32 a241, v12
        v_accvgpr_write_b32 a242, v12
        v_accvgpr_write_b32 a243, v12
        s_lshl_b32 s86, s{sW}, 5
        v_xor_b32 v15, s86, v{vT[0]}
        s_mul_i32 s74, s{sRB}, 14
        s_add_u32 s74, s74, s{sCBK}
        s_mul_i32 s74, s74, 3
        s_add_u32 s74, s74, s{sW}
        s_lshl_b32 s74, s74, 14
        s_add_u32 s74, s74, 512
        s_cmp_eq_u32 s{sW}, 3
        s_cselect_b32 s74, 0x1000000, s74""")

    def colsum(self, base, tmp, dst_off):
        rd = [[f"ds_read_b64_tr_b16 {vr(tmp+4*t+2*h,2)}, v15 offset:{t*4096 + h*2048}" for h in range(2)] for t in range(16)]
        out = rd[0] + rd[1] + rd[2]
        for t in range(16):
            out.append(f"{MF} {ar(236,4)}, {ar(240,4)}, {vr(tmp+4*t,4)}, {ar(236,4) if t else '0'}")
            if t + 3 < 16: out += rd[t+3]
        tail = L(f"s_lshl_b32 s86, s{sW}, 6\ns_add_u32 s86, s86, {dst_off}\nv_lshl_add_u32 v5, v{vI}, 2, s86\nds_write_b32 v5, a236")
        return out, tail

    def phase3(self):
        P = self.P
        SCR = self.SCR3
        HF = 16; BB = 144; A2 = 176; A1 = 212
        AON, AEX, ACS = 240, 244, 236
        Lskip = "L_p3skip"; Ljoin = "L_p3join"
        P(f"s_cmp_ge_u32 s{sCBK}, 14\ns_cbranch_scc1 {Lskip}")
        def breads(t):
            return [f"ds_read_b64_tr_b16 {vr(BB+16*(t&1)+4*f+2*h,2)}, v{vT[f]} offset:{t*4096 + h*2048}" for f in range(4) for h in range(2)]
        o, tl = self.colsum(0, 16, 110592); P.add(o + tl)
        P.add(breads(0))
        self.wave0(lambda: self.poll(240, soff="s67"))
        self.barrier()
        self.stamp("sync2")
        HS = A1; CS2 = A1 + 16; K1 = 254
        def hl(t):
            if t >= 16:
                a = t - 16
                return [f"buffer_load_dwordx4 {vr(HS+8*a+4*hf,4)}, v{vL16}, {S(SWS)}, s93 offen offset:{a*2048+hf*1024} sc1" for hf in range(2)] if a < 2 else []
            o = [f"s_add_u32 s64, s90, {t*1024}", f"s_add_u32 s65, s90, {16384 + t*1024}"] if t % 4 == 0 else []
            return o + [f"buffer_load_dwordx4 {vr(HF+(t*2+a)*4,4)}, v{vL16}, {S(SWS)}, s{64+a} offen offset:{(t%4)*1024} sc1" for a in range(2)]
        HD = self.opt.get("HD", 5)
        for t in range(HD): P.add(hl(t))
        P("v_add_u32 v5, 110592, v240")
        for f in range(4): P(f"ds_read_b32 v{CS2+f}, v5 offset:{f*64}")
        late = []
        for t in range(self.opt.get('nw1', 10), 16): late += self.win_dma(1, t, 241)
        misc = [f"v_lshrrev_b32 v241, 3, v0", "v_mul_u32_u24 v241, 3584, v241", f"v_add_u32 v241, v241, v{vSW}"] + self.wout_setup(242)
        P.add(misc)
        misc = self.wsp_setup() + L(f"""v_mov_b32 v{K1}, {f2u(K1C):#x}
        v_mov_b32 v{K1+1}, {f2u(K1C):#x}
        v_lshl_add_u32 v13, v{vI}, 2, s91
        v_lshl_add_u32 v14, v{vG}, 4, s91
        v_bfe_u32 v12, v0, 3, 1
        v_lshlrev_b32 v12, 8, v12
        v_lshl_add_u32 v12, v{vG}, 6, v12
        v_bfe_u32 v5, v0, 2, 1
        v_lshl_add_u32 v12, v5, 5, v12
        v_and_b32 v5, 1, v0
        v_lshl_add_u32 v12, v5, 4, v12
        v_cmp_eq_u32 s[72:73], 1, v5
        s_lshl_b32 s92, s{sRB}, 15
        s_lshl_b32 s86, s{sW}, 9
        s_add_u32 s92, s92, s86
        s_add_u32 s92, s92, {STATS}
        s_lshl_b32 s66, s{sCBK}, 11
        s_add_u32 s66, s66, s92""")
        nm = (len(misc) + 11) // 12
        for t in range(16):
            m = []
            for f in range(4):
                for a in range(2):
                    acc = vr(A2 + (a*4+f)*4, 4)
                    m.append(f"{MF} {acc}, {vr(HF+(t*2+a)*4,4)}, {vr(BB+16*(t&1)+4*f,4)}, {acc if t else '0'}")
            if t in (1, 4, 8, 12): self.stamp(f"z2k{t}", True)
            hh = hl(t + HD); g = max(1, len(hh) - 1)
            if t + HD >= 18:
                k = t + HD - 18
                hh = late[:10]; late = late[10:]; g = 5
            P.add(lay2(m, breads(t+1) if t < 15 else [], weave(misc[nm*t:nm*t+nm], hh, g)) if self.opt.get('lay', 1) else mix(m, weave((breads(t+1) if t < 15 else []) + misc[nm*t:nm*t+nm], hh, g)))
        self.stamp("z2mm")
        P.add(late)
        if self.opt.get("touch", 3): P(f"v_lshlrev_b32 v5, 7, v0\ns_mov_b64 exec, 0xf\nbuffer_load_dword a234, v5, {S(SWS)}, s66 offen {self.opt.get('tm', '')}\ns_mov_b64 exec, -1")
        if self.opt.get("l2pf", 2) == 1: P(f"buffer_load_dword a235, v242, {S(SWSP)}, s74 offen")
        LA = [208, 210]; LB = [209, 211]
        for a in range(2):
            x = HS + 8*a
            P(f"v_pk_add_f32 {vr(x,2)}, {vr(x,2)}, {vr(x+2,2)}\nv_pk_add_f32 {vr(x+4,2)}, {vr(x+4,2)}, {vr(x+6,2)}")
        for a in range(2):
            x = HS + 8*a
            P(f"v_pk_add_f32 {vr(x,2)}, {vr(x,2)}, {vr(x+4,2)}")
        self.barrier()
        self.xreduce([HS, HS+1, HS+8, HS+9], BB)
        self.finstats([(HS, HS+1), (HS+8, HS+9)], 512, LA, LB)
        for a in range(2): P(f"ds_write_b32 v13, v{LA[a]} offset:{a*64}\nds_write_b32 v13, v{LB[a]} offset:{128+a*64}")
        iss01 = self.wsp_issue(0) + self.wsp_issue(1)
        P.add(iss01[:12]); iss01 = iss01[12:]
        P.wait_ds()
        RA = BB; RBb = BB + 8
        for a in range(2): P(f"ds_read_b128 {vr(RA+4*a,4)}, v14 offset:{a*64}\nds_read_b128 {vr(RBb+4*a,4)}, v14 offset:{128+a*64}")
        P.add(iss01[:6]); iss01 = iss01[6:]
        TT = BB + 16; SM = A1; SQ2 = A1 + 8
        for k in self.KE: iss01 += self.wout(k, 242, "woutE")
        for f in range(4):
            ls = []
            for a in range(2):
                for hp in range(2):
                    x = A2 + (a*4+f)*4 + 2*hp; t = TT + 2*(2*a+hp); sm = SM + 4*a + 2*hp; sq = SQ2 + 4*a + 2*hp
                    l = self.affine_pair(x, t, RA+4*a+2*hp, RBb+4*a+2*hp, CS2+f, False) + self.gelu_pair(x, t, K1)
                    if f == 0: l += [f"v_pk_mul_f32 {vr(sq,2)}, {vr(x,2)}, {vr(x,2)}"]
                    else: l += [f"v_pk_fma_f32 {vr(sq,2)}, {vr(x,2)}, {vr(x,2)}, {vr(sq,2)}",
                                f"v_pk_add_f32 {vr(sm,2)}, {vr(sm if f > 1 else A2 + a*16 + 2*hp,2)}, {vr(x,2)}"]
                    ls.append(l)
            self.stamp(f"z2e{f}", True)
            P.add(weave(zipped(ls), iss01[[0, 21, 42, 54][f]:[21, 42, 54, 63][f]]))
        def val(a, r, st): return (SQ2 if st else SM) + 4*a + r
        L1 = A1 + 16; L2 = A1 + 24
        z1pre = [f"v_add_u32 v{r}, 65536, v{r}" for r in vT + [15]]
        for a, bm in ((0, 0x3), (1, 0xc)):
            for r in range(4):
                for st in range(2): P(f"v_add_f32_dpp v{L1+2*r+st}, v{val(a,r,st)}, v{val(a,r,st)} row_ror:8 row_mask:0xf bank_mask:{bm:#x}")
        P.add(z1pre)
        P.wait_tag("win1")
        for rh, bm in ((0, 0x5), (1, 0xa)):
            for rl in range(2):
                for st in range(2):
                    s_ = L1 + 2*(2*rh+rl) + st
                    P(f"v_add_f32_dpp v{L2+2*rl+st}, v{s_}, v{s_} row_half_mirror row_mask:0xf bank_mask:{bm:#x}")
        P("s_barrier")
        for qp in ("[1,0,3,2]", "[2,3,0,1]"):
            for k in range(4): P(f"v_add_f32_dpp v{L2+k}, v{L2+k}, v{L2+k} quad_perm:{qp} row_mask:0xf bank_mask:0xf")
        P.add(breads(0))
        P(f"""v_cndmask_b32 v{L2}, v{L2}, v{L2+2}, s[72:73]
        v_cndmask_b32 v{L2+1}, v{L2+1}, v{L2+3}, s[72:73]
        v_mov_b32 v{L2+2}, s{sE}
        v_mov_b32 v{L2+3}, s{sE}
        s_mov_b32 exec_lo, 0x33333333
        s_mov_b32 exec_hi, 0x33333333""")
        self.local([f"buffer_store_dwordx4 {vr(L2,4)}, v12, {S(SWS)}, s66 offen @SC"])
        P("s_mov_b64 exec, -1")
        self.stamp("z2ep")
        i2, i3, i4, i5 = [self.wsp_issue(c) for c in range(2, 6)]
        r0, r1, r2, r3 = [self.wsp_read(c) for c in range(4)]
        GS = HF
        misc = L(f"""v_lshrrev_b32 v12, 5, v0
        v_lshlrev_b32 v12, 11, v12
        v_and_b32 v13, 31, v0
        v_lshl_add_u32 v12, v13, 4, v12
        v_lshl_add_u32 v13, v13, 2, s91
        s_lshl_b32 s93, s{sRB}, 2
        s_add_u32 s93, s93, s{sW}
        s_mul_i32 s93, s93, 7168
        s_add_u32 s93, s93, {Z2}""")
        for f in range(4):
            misc += L(f"""s_lshl_b32 s86, s{sCBK}, 2
            s_add_u32 s86, s86, {f}
            s_mul_i32 s87, s86, 37
            s_lshr_b32 s87, s87, 8
            s_mul_i32 s87, s87, {64*7 - 7}
            s_add_u32 s86, s86, s87
            s_lshl_b32 s86, s86, 10
            s_add_u32 s{64+f}, s86, s93""")
        misc += L(f"""s_lshl_b32 s93, s{sRB}, 3
        s_lshl_b32 s86, s{sW}, 1
        s_add_u32 s93, s93, s86
        s_mul_i32 s93, s93, 56
        s_lshl_b32 s86, s{sCBK}, 2
        s_add_u32 s93, s93, s86
        s_lshl_b32 s93, s93, 9
        s_add_u32 s93, s93, {Z1}
        s_add_u32 s94, s93, {56*512}""")
        T1 = self.opt.get("T1", 8); TG = self.opt.get("TG", 5); TF = self.opt.get("TF", 13)
        gll = []
        for m_ in range(7): gll += [f"s_add_u32 s60, s92, {m_*4096}", f"buffer_load_dwordx4 {vr(GS+4*m_,4)}, v12, {S(SWS)}, s60 offen sc1"]
        gl = "\n".join(gll)
        misc = misc + L(f"""v_bfe_u32 v5, v0, 4, 1
        v_bfe_u32 v241 , v0, 5, 1""") if False else misc
        def z1k(t, extra):
            m = []
            for f in range(4):
                for a in range(2):
                    acc = vr(A1 + (a*4+f)*4, 4)
                    m.append(f"{MF} {acc}, {vr(BB+16*(t&1)+4*f,4)}, {vr(HF+(t*2+a)*4,4)}, {acc if t else '0'}")
            nxt = breads(t+1) if t < 15 else []
            self.stamp(f"z1k{t}", True) if t in (0, 2, 4, T1, 10, 14) else None
            P.add(lay2(m, nxt, extra) if self.opt.get('lay', 1) else mix(m, weave(nxt, extra)))
        bq = i2 + i3
        ex = {0: misc[:9], 1: r0, 2: r1, 3: misc[9:18], 4: gll, 5: bq[:13] , 6: bq[13:19] + misc[18:22]}
        bq = bq[19:]
        for t in range(T1): z1k(t, ex.get(t, []))
        self.stamp("z1a")
        RA2 = HF + 28; RB2 = HF + 36; ZO = HF
        cmpc = "\n".join(f"v_xor_b32 v{GS+4*m_+2}, s{sE}, v{GS+4*m_+2}" for m_ in range(7))
        cmpc += f"\nv_or3_b32 v5, v{GS+2}, v{GS+6}, v{GS+10}\nv_or3_b32 v5, v5, v{GS+14}, v{GS+18}\nv_or3_b32 v5, v5, v{GS+22}, v{GS+26}\nv_cmp_ne_u32 vcc, 0, v5"
        self.check_retry(gl, cmpc)
        self.stamp("gath", True)
        P(f"v_pk_add_f32 {vr(GS,2)}, {vr(GS,2)}, {vr(GS+4,2)}\nv_pk_add_f32 {vr(GS+8,2)}, {vr(GS+8,2)}, {vr(GS+12,2)}\nv_pk_add_f32 {vr(GS+16,2)}, {vr(GS+16,2)}, {vr(GS+20,2)}")
        P(f"v_pk_add_f32 {vr(GS,2)}, {vr(GS,2)}, {vr(GS+8,2)}\nv_pk_add_f32 {vr(GS+16,2)}, {vr(GS+16,2)}, {vr(GS+24,2)}\nv_pk_add_f32 {vr(GS,2)}, {vr(GS,2)}, {vr(GS+16,2)}")
        P.add(bq[:3]); bq = bq[3:]
        self.xreduce([GS, GS+1], GS+2, ops=("v_permlane32_swap_b32",))
        self.finstats([(GS, GS+1)], 896, [GS+4], [GS+5])
        P(f"""ds_write_b32 v13, v{GS+4} offset:256
        ds_write_b32 v13, v{GS+5} offset:384
        v_bfe_u32 v12, v0, 4, 1
        v_bfe_u32 v13, v0, 5, 1
        v_lshl_add_u32 v12, v12, 1, v13
        v_lshl_add_u32 v12, v12, 4, v{vI}
        v_lshlrev_b32 v12, 4, v12""")
        P.add(bq[:3] + misc[22:30]); bq = bq[3:]
        P.wait_ds()
        for a in range(2): P(f"ds_read_b128 {vr(RA2+4*a,4)}, v14 offset:{256+a*64}\nds_read_b128 {vr(RB2+4*a,4)}, v14 offset:{384+a*64}")
        P.add(misc[30:41] + bq[:10]); bq = bq[10:]
        nb = self.opt.get("nb", 6)
        for f in range(4):
            for a in range(2):
                for hp in range(2):
                    x = A2 + (a*4+f)*4 + 2*hp
                    P(f"v_pk_fma_f32 {vr(x,2)}, {vr(x,2)}, {vr(RA2+4*a+2*hp,2)}, {vr(RB2+4*a+2*hp,2)}")
            for a in range(2):
                for hp in range(2):
                    x = A2 + (a*4+f)*4 + 2*hp
                    P(f"v_cvt_pk_bf16_f32 v{ZO+4*f+2*a+hp}, v{x}, v{x+1}")
            if f: P(f"buffer_store_dwordx4 {vr(ZO+4*(f-1),4)}, v12, {S(SWS)}, s{64+f-1} offen sc1", "z2n")
            for hp in range(2): P(f"v_permlane16_swap_b32 v{ZO+4*f+hp}, v{ZO+4*f+2+hp}")
        P(f"buffer_store_dwordx4 {vr(ZO+12,4)}, v12, {S(SWS)}, s67 offen sc1", "z2n")
        self.stamp("z2st", True)
        TR = self.opt.get("TR", 13)
        cq_ = i4 + i5
        ex = {T1: bq[:9] , T1 + 1: bq[9:18], T1 + 2: bq[18:], T1 + 3: misc[41:], TR: r2, TR + 1: r3}
        for t in range(T1, 16):
            if t == TF:
                P.wait_tag("z2n"); P("s_barrier")
                self.wave0(lambda: self.set_flag(0xff << 17))
                self.stamp("F3")
            e = ex.get(t)
            if e is None:
                e = []
                if t > TR + 1: e = cq_[:13 if t == TR + 2 else 6]; cq_ = cq_[len(e):]
            z1k(t, e)
        C1 = A2; Z1O = A2 + 16
        o, tl = self.colsum(65536, 32, SCR + 256)
        P.add(weave(o, [f"v_subrev_u32 v{vT[f]}, 65536, v{vT[f]}" for f in range(4)] + L(f"v_lshlrev_b32 v12, 4, v{vG}\nv_add_u32 v12, {SCR+256}, v12\nv_lshlrev_b32 v13, 3, v0") + cq_, 3) + tl)
        self.barrier()
        self.stamp("z1mm")
        for f in range(4): P(f"ds_read_b128 {vr(C1+4*f,4)}, v12 offset:{f*64}")
        ep = []
        for f in range(4):
            ls = []
            for a in range(2):
                for hp in range(2):
                    x = A1 + (a*4+f)*4 + 2*hp; t = TT + 2*(2*a+hp)
                    ls.append(self.affine_pair(x, t, LA[a], LB[a], C1+4*f+2*hp, True))
            ep += zipped(ls)
        d67 = self.wsp_issue(6, True) + self.wsp_issue(7, True)
        P.add(self.p4_setup())
        self.wave0(lambda: P(self.f3load))
        P.add(weave(ep, d67))
        P(f"s_branch {Ljoin}")
        P(f"{Lskip}:")
        P.cond_begin()
        P("s_waitcnt vmcnt(0) lgkmcnt(0)")
        mode = self.opt.get("ina", 0)
        if mode:
            P(f"""s_lshl_b32 s86, s{sRB}, 1
            s_add_u32 s86, s86, s{sCBK}
            s_sub_u32 s86, s86, 14
            s_lshl_b32 s86, s86, 2
            s_add_u32 s86, s86, s{sW}
            s_lshr_b32 s87, s86, 4
            s_lshl_b32 s87, s87, 20
            s_and_b32 s86, s86, 15
            s_mul_i32 s86, s86, {12*4096}
            s_add_u32 s64, s86, s87""")
            P.add(self.pf_addr(14))
            def pfh(h): return [f"s_add_u32 s65, s64, {k*16384 + h*512}\nbuffer_load_dword v{16+3*h+k+4}, v14, {S(SWSP)}, s65 offen" for k in range(3)]
            for x in pfh(0): P(x)
            P.add(self.wsp_setup() + self.wout_setup(15))
            if mode == 2:
                for x in pfh(1): P(x)
            P.add(self.wsp_issue(0) + self.wsp_issue(1))
            if mode == 1:
                for x in pfh(1): P(x)
            P.add(self.wsp_issue(6, True) + self.wsp_issue(7, True))
            P.add(self.wsp_read(0) + self.wsp_read(1) + self.wsp_issue(2) + self.wsp_issue(3))
            for k in self.KE: P.add(self.wout(k, 15, "woutE"))
            P.add(self.wsp_read(2) + self.wsp_read(3) + self.wsp_issue(4) + self.wsp_issue(5) + self.p4_setup())
        else:
            if self.opt.get("l2pf", 2):
                P(f"""s_lshl_b32 s86, s{sRB}, 1
                s_add_u32 s86, s86, s{sCBK}
                s_sub_u32 s86, s86, 14
                s_lshl_b32 s86, s86, 2
                s_add_u32 s86, s86, s{sW}
                s_lshl_b32 s60, s86, 16""")
                P.add(self.pf_addr(12))
                if self.opt.get("redir", 1):
                    P(f"""v_lshrrev_b32 v13, 3, v0
                    v_lshlrev_b32 v13, 12, v13
                    v_bfe_u32 v5, v0, 1, 2
                    v_lshl_add_u32 v13, v5, 10, v13
                    v_and_b32 v5, 1, v0
                    v_lshl_add_u32 v13, v5, 7, v13
                    buffer_load_dword v16, v13, {S(SWSP)}, s60 offen offset:256
                    s_add_u32 s60, s60, 32768
                    buffer_load_dword v17, v13, {S(SWSP)}, s60 offen offset:256
                    s_add_u32 s60, s60, 32768""")
                else:
                    for k in range(4): P(f"buffer_load_dword v{16+k}, v12, {S(SWSP)}, s60 offen\ns_add_u32 s60, s60, 16384")
                if self.opt.get("l2pf", 2) == 3:
                    P(f"""s_sub_u32 s60, s60, 65024
                    v_lshrrev_b32 v13, 3, v0
                    v_lshlrev_b32 v13, 12, v13
                    v_bfe_u32 v5, v0, 1, 2
                    v_lshl_add_u32 v13, v5, 10, v13
                    v_and_b32 v5, 1, v0
                    v_lshl_add_u32 v13, v5, 7, v13
                    buffer_load_dword v20, v13, {S(SWSP)}, s60 offen
                    s_add_u32 s60, s60, 32768
                    buffer_load_dword v21, v13, {S(SWSP)}, s60 offen""")
                if self.opt.get("l2pf", 2) == 4:
                    P("s_sub_u32 s64, s60, 65024")
                if self.opt.get("l2pf", 2) == 2:
                    P("s_sub_u32 s60, s60, 65024")
                    for k in range(4): P(f"buffer_load_dword v{20+k}, v12, {S(SWSP)}, s60 offen\ns_add_u32 s60, s60, 16384")
            if self.opt.get("pwout", 7) == -1:
                P(f"""s_lshl_b32 s86, s{sRB}, 1
                s_add_u32 s86, s86, s{sCBK}
                s_sub_u32 s86, s86, 14
                s_lshl_b32 s86, s86, 2
                s_add_u32 s86, s86, s{sW}
                s_mul_i32 s86, s86, {56*128}
                v_lshlrev_b32 v5, 7, v0
                s_mov_b32 exec_hi, 0xffffff
                buffer_load_dword v24, v5, {S(SWOUT)}, s86 offen
                s_mov_b64 exec, -1""")
            P.add(self.wsp_setup() + self.wout_setup(15))
            P.add(self.wsp_issue(0) + self.wsp_issue(1))
            P.add(self.wout_pf())
            for k in self.KE: P.add(self.wout(k, 15, "woutE"))
            if self.opt.get("l2pf", 2) == 4:
                P.add(self.pf_addr(14))
                for k in range(4): P(f"buffer_load_dword v{20+k}, v14, {S(SWSP)}, s64 offen\ns_add_u32 s64, s64, 16384")
            P.add(self.wsp_issue(6, True) + self.wsp_issue(7, True))
            P.add(self.wsp_read(0) + self.wsp_read(1) + self.wsp_issue(2) + self.wsp_issue(3) + self.wsp_read(2) + self.wsp_read(3))
            P.add(self.wsp_issue(4) + self.wsp_issue(5) + self.p4_setup())
        P(self.f3load)
        P(f"s_mov_b32 s93, {WS_BYTES}\ns_mov_b32 s94, {WS_BYTES}\nv_lshlrev_b32 v13, 3, v0")
        P("s_waitcnt vmcnt(0) lgkmcnt(0)")
        P.cond_end()
        P(f"{Ljoin}:")
        self.stamp("wsp")

    def p5_breg(self, kk, f):
        if kk >= 21: return ("a", (kk - 21) * 16 + 4*f)
        i = self.order5.index(kk) - 7
        return ("a", 112 + (i % 9) * 16 + 4*f)
    def p5_reads(self, kk):
        out = []
        want = 49152 if kk < 16 else 49152 + 65536
        if self.cur5 != want:
            d = want - self.cur5
            out += [f"v_add_u32 v{vT[f]}, {d}, v{vT[f]}" if d > 0 else f"v_subrev_u32 v{vT[f]}, {-d}, v{vT[f]}" for f in range(4)]; self.cur5 = want
        for f in range(4):
            k, r = self.p5_breg(kk, f)
            for h in range(2): out.append(f"ds_read_b64_tr_b16 {ar(r+2*h,2)}, v{vT[f]} offset:{(kk%16)*4096 + h*2048}")
        return out

    f3load = f"buffer_load_dword v17, v16, {S(SWS)}, s75 offen sc1"
    def p4_setup(self):
        return L(f"""s_mul_i32 s90, s{self.F4}, 7
        s_add_u32 s91, s90, 6
        s_lshr_b32 s90, s90, 2
        s_lshr_b32 s91, s91, 2
        s_lshl_b32 s92, s{self.F4}, 6
        s_lshl_b32 s86, s{sW}, 4
        s_add_u32 s92, s92, s86
        s_mul_i32 s92, s92, 7168
        s_add_u32 s92, s92, {Z2}
        v_add_u32 v18, 4096, v{vL16}
        s_lshl_b32 s86, s90, 4
        s_lshl_b32 s87, s91, 4
        s_add_u32 s87, s87, 15
        v_add_u32 v16, s86, v0
        v_min_u32 v16, s87, v16
        v_lshlrev_b32 v16, 2, v16
        s_lshl_b32 s75, s{sX}, 10
        s_add_u32 s75, s75, {F3}""") + ([] if self.map84 else L(f"""s_lshl_b32 s86, s{self.T4}, 2
        s_add_u32 s86, s86, s{sW}
        s_mul_i32 s86, s86, {28*1024}
        s_mul_i32 s87, s{self.F4}, 3584
        s_add_u32 s86, s86, s87
        s_add_u32 s86, s86, {U}
        v_lshlrev_b32 v5, 7, v0
        s_mov_b64 exec, 0xfffffff
        buffer_load_dword v20, v5, {S(SWS)}, s86 offen
        s_mov_b64 exec, -1"""))

    def phase4(self):
        P = self.P
        ACC = 16; BB = 128
        self.order5 = self.KE + list(range(16, 21)) + list(range(9, 16)) + self.KL
        self.cur5 = 0
        self.wave0(lambda: self.check_retry(self.f3load, f"v_cmp_ne_u32 vcc, s{sE}, v17"))
        P("s_barrier")
        self.stamp("sync3")
        def bload(ks):
            out = [f"s_lshl_b32 s60, s76, 1", f"s_add_u32 s60, s60, {ks}", "s_and_b32 s60, s60, 15", "s_mul_i32 s60, s60, 7168", "s_add_u32 s60, s60, s92"]
            for f in range(7):
                out.append(f"buffer_load_dwordx4 {vr(BB+28*(ks%3)+4*f,4)}, v{vL16 if f < 4 else 14}, {S(SWS)}, s60 offen offset:{(f%4)*1024} sc1")
            return out
        P("v_mov_b32 v14, v18")
        for ks in range(2): P.add(bload(ks))
        P(f"v_mov_b32 v244, {f2u(K1C):#x}")
        late_setup = L(f"""v_lshrrev_b32 v249, 3, v0
        v_lshl_add_u32 v249, v249, 10, v{vSW}
        s_lshl_b32 s95, s{self.T4}, 2
        s_add_u32 s95, s95, s{sW}
        s_lshl_b32 s88, s{sTB}, 2
        s_add_u32 s88, s88, s{sW}
        s_lshr_b32 s64, s{self.T4}, 1
        s_lshl_b32 s64, s64, 7
        s_add_u32 s64, s64, {F3B}
        v_add_u32 v250, s90, v0
        v_min_u32 v250, s91, v250
        v_lshlrev_b32 v250, 2, v250
        s_mul_i32 s65, s95, 56
        s_mul_i32 s87, s{self.F4}, 7
        s_add_u32 s65, s65, s87
        s_lshl_b32 s65, s65, 9
        s_add_u32 s65, s65, {Z1}
        s_lshl_b32 s66, s95, 5
        v_lshlrev_b32 v244, 1, v{vI}
        s_lshl_b32 s67, s88, 4
        s_lshl_b32 s87, s{sFB}, 1
        s_add_u32 s67, s67, s87
        s_lshl_b32 s67, s67, 10
        s_add_u32 s67, s67, {H}
        s_mul_i32 s78, s88, {28*1024}
        s_add_u32 s78, s78, {U}
        s_mul_i32 s79, s95, 28
        s_mul_i32 s87, s{self.F4}, 7
        s_lshr_b32 s87, s87, 1
        s_add_u32 s79, s79, s87
        s_lshl_b32 s79, s79, 10
        s_add_u32 s79, s79, {U}""")
        for p in range(1, 4):
            late_setup += L(f"s_add_u32 s86, s{sW}, {p}\ns_and_b32 s86, s86, 3\ns_mul_i32 s86, s86, 21504\ns_add_u32 s86, s86, {(p-1)*7168}\nv_add_u32 v{245+p}, s86, v{vL16}")
        late_setup += L(f"s_mul_i32 s86, s{sW}, 21504\nv_add_u32 v255, s86, v{vL16}")
        A1 = 212; GT = [15, 245, 254, 255]
        def gelu(q):
            a, f = q >> 2, q & 3; x0 = A1 + 4*q; ls = []
            for e in range(4):
                x = x0 + e; t = GT[e]
                ls.append([f"v_mul_f32 v{t}, v{x}, v{x}", f"v_fma_f32 v{t}, v{t}, s{sK2}, v244", f"v_mul_f32 v{t}, v{t}, v{x}", f"v_exp_f32 v{t}, v{t}",
                           f"v_add_f32 v{t}, 1.0, v{t}", f"v_rcp_f32 v{t}, v{t}", f"v_mul_f32 v{x}, v{x}, v{t}"])
            return zipped(ls) + [f"v_cvt_pk_bf16_f32 v{x0}, v{x0}, v{x0+1}", f"v_cvt_pk_bf16_f32 v{x0+1}, v{x0+2}, v{x0+3}",
                                 ("T", f"buffer_store_dwordx2 {vr(x0,2)}, v13, {S(SWS)}, s{93+a} offen offset:{f*512} sc1", "z1st")]
        Z1R = 212; BS = 226; HR = 228
        GP = self.opt.get("GP", 8)
        if GP:
            P(f"v_mov_b32 v245, {f2u(K1C):#x}")
            b2 = bload(2)
            pk = []
            for q0 in range(0, GP, 2):
                ls = [self.gelu_pair(A1 + 4*q0 + 2*e, 112 + 2*e, 244) for e in range(4)]
                pk += zipped(ls)
                for q in (q0, q0 + 1):
                    x0 = A1 + 4*q
                    pk += [f"v_cvt_pk_bf16_f32 v{x0}, v{x0}, v{x0+1}", f"v_cvt_pk_bf16_f32 v{x0+1}, v{x0+2}, v{x0+3}",
                           ("T", f"buffer_store_dwordx2 {vr(x0,2)}, v13, {S(SWS)}, s{93+(q>>2)} offen offset:{(q&3)*512} sc1", "z1st")]
            P.add(b2[:5] + weave(pk, b2[5:], 1))
        fl = f"buffer_load_dword v254, v250, {S(SWS)}, s64 offen sc1"
        wt = []
        for k in self.KT: wt += self.wout(k, 249, "woutT")
        for ks in range(16):
            m = []
            if ks < 15: fp = [(f, p) for f in range(7) for p in range(4)]
            else: fp = [(f, p) for p in (1, 2, 3, 0) for f in range(7)]
            for f, p in fp:
                acc = vr(ACC + (p*7+f)*4, 4)
                m.append(f"{MF} {acc}, {vr(BB+28*(ks%3)+4*f,4)}, {ar((ks*4+p)*4,4)}, {acc if ks else '0'}")
            if ks in (1, 2, 4, 8, 12, 15): self.stamp(f"p4k{ks}", True)
            if ks <= 14:
                ld = bload(ks + 2) if ks <= 13 and not (GP and ks == 0) else []
                pre = {1: self.wsp_read(4), 2: self.wsp_read(5), 3: self.wsp_tohi() + self.wsp_read(6), 4: self.wsp_read(7)}.get(ks, [])
                G0 = self.opt.get("G0", 0)
                if G0 <= ks < G0 + 8 - GP: pre = weave(gelu(ks - G0 + GP), pre, 1)
                if 8 <= ks <= 14: pre = pre + self.p5_reads(self.KE[ks - 8])
                if ks in (9, 10): pre = pre + late_setup[(ks-9)*25:(ks-9)*25+25]
                if ks == max(G0 + 9 - GP, 3):
                    P.wait_tag("z1st", "woutE"); P("s_barrier")
                    self.wave0(lambda: self.set_flag(1 << 25, not self.map84))
                if ks == 7 and GP < 6: P.wait_tag("woutE"); P("s_barrier")
                if ks == 14: pre = pre + wt[:12]
                if ks == self.opt.get("FL", 13): pre = pre + [fl]
                if ld: body = mix(m[:3], ld[:6]) + interleave(m[3:21], ld[6:], 3, 1) + m[21:]
                else: body = m
                out = []; nm_ = 0; pi = 0
                for x in body:
                    out.append(x)
                    if isinstance(x, str) and x.startswith("v_mfma"):
                        nm_ += 1
                        tgt = len(pre) * nm_ // 28
                        out += pre[pi:tgt]; pi = tgt
                P.add(out)
            else:
                self.check_retry(fl, f"v_cmp_ne_u32 vcc, s{sE}, v254")
                w = [f"buffer_load_dwordx2 {vr(Z1R+2*f,2)}, v13, {S(SWS)}, s65 offen offset:{f*512} sc1" for f in range(7)]
                w += [f"buffer_load_ushort v{BS}, v244, {S(SBSP)}, s66 offen"]
                xw = [f"ds_write_b128 v{245+p}, {vr(ACC+(p*7+f)*4,4)} offset:{f*1024}" for p in range(1, 4) for f in range(7)]
                P.add(mix(m[:10], w[:4]) + mix(m[10:], weave(xw[:16], w[4:], 1)) + xw[16:])
        self.stamp("p4mm")
        ZF = BB; UO = BB + 48
        v = [f"v_lshlrev_b32 v{BS}, 16, v{BS}"]
        for f in range(7):
            for k in range(2):
                v += [f"v_lshlrev_b32 v{ZF+4*f+2*k}, 16, v{Z1R+2*f+k}", f"v_and_b32 v{ZF+4*f+2*k+1}, 0xffff0000, v{Z1R+2*f+k}",
                      f"v_pk_add_f32 {vr(ACC+4*f+2*k,2)}, {vr(ACC+4*f+2*k,2)}, {vr(BS,2)} op_sel_hi:[1,0]"]
        P.add(wt[12:24])
        self.barrier()
        RB = ACC + 28
        for f in range(7):
            for p in range(3): P(f"ds_read_b128 {vr(RB+(p*7+f)*4,4)}, v255 offset:{(p*7+f)*1024}")
        P.add(wt[24:] + v)
        P(f"buffer_load_dwordx4 {vr(HR,4)}, v{vL16}, {S(SWS)}, s67 offen sc1\nbuffer_load_dwordx4 {vr(HR+4,4)}, v{vL16}, {S(SWS)}, s67 offen offset:1024 sc1")
        for f in range(7):
            for p in range(3):
                for k in range(2): P(f"v_pk_add_f32 {vr(ACC+4*f+2*k,2)}, {vr(ACC+4*f+2*k,2)}, {vr(RB+(p*7+f)*4+2*k,2)}")
            for k in range(2): P(f"v_pk_mul_f32 {vr(ACC+4*f+2*k,2)}, {vr(ACC+4*f+2*k,2)}, {vr(ZF+4*f+2*k,2)}")
            for k in range(2): P(f"v_cvt_pk_bf16_f32 v{UO+2*f+k}, v{ACC+4*f+2*k}, v{ACC+4*f+2*k+1}")
        Lo = P.lab("Lo"); Le = P.lab("Le")
        P(f"s_bitcmp1_b32 s{self.F4}, 0\ns_cbranch_scc1 {Lo}")
        P.cond_begin()
        self.local4([f"buffer_store_dwordx4 {vr(UO+4*k,4)}, v{vL16}, {S(SWS)}, s79 offen offset:{k*1024} @SC" for k in range(3)]
                   + [f"buffer_store_dwordx2 {vr(UO+12,2)}, v13, {S(SWS)}, s79 offen offset:3072 @SC"])
        P(f"s_branch {Le}")
        P.cond_end()
        P(f"{Lo}:")
        P.cond_begin()
        self.local4([f"buffer_store_dwordx2 {vr(UO,2)}, v13, {S(SWS)}, s79 offen offset:512 @SC"]
                   + [f"buffer_store_dwordx4 {vr(UO+2+4*k,4)}, v{vL16}, {S(SWS)}, s79 offen offset:{1024+k*1024} @SC" for k in range(3)])
        P.cond_end()
        P(f"{Le}:")
        P(f"""v_bfe_u32 v240, v0, 4, 1
        v_bfe_u32 v5, v0, 5, 1
        v_lshl_add_u32 v240, v240, 1, v5
        v_lshlrev_b32 v240, 4, v240
        v_lshl_add_u32 v240, v{vI}, 10, v240
        s_lshl_b32 s92, s88, 14
        s_lshl_b32 s87, s{sFB}, 7
        s_add_u32 s92, s92, s87
        s_lshl_b32 s66, s{sTB}, 7
        s_add_u32 s66, s66, {F4}
        v_and_b32 v243, 7, v0
        v_lshlrev_b32 v243, 2, v243""")
        P("s_waitcnt vmcnt(0)")
        self.barrier()
        self.wave0(lambda: self.set_flag(1 << 26, not self.map84))
        self.stamp("F4")

    def phase5(self):
        P = self.P
        UF = 16; ACC = 128; HR = 228
        order = self.order5
        late = []
        for k in self.KL: late += self.wout(k, 249, "woutL")
        lm = self.opt.get("late", 0)
        if lm == 0: P.add(late)
        for kk in order[7:16]: P.add(self.p5_reads(kk))
        for f in range(4):
            for k in range(2):
                P(f"v_lshlrev_b32 v{ACC+4*f+2*k}, 16, v{HR+2*f+k}\nv_and_b32 v{ACC+4*f+2*k+1}, 0xffff0000, v{HR+2*f+k}")
        self.wave0(lambda: self.poll2(243, "s66", self.opt["pp"]) if self.opt.get("pp") else self.poll(243, soff="s66"))
        P("s_barrier")
        self.stamp("sync4")
        def ul(kk):
            o = [f"s_add_u32 s60, s78, {(kk//4)*4096}"]
            if kk % 7 == 3: return o + [f"buffer_load_dwordx2 {vr(UF+4*kk+2*h,2)}, v13, {S(SWS)}, s60 offen offset:{(kk%4)*1024 + h*512} sc1" for h in range(2)]
            return o + [f"buffer_load_dwordx4 {vr(UF+4*kk,4)}, v{vL16}, {S(SWS)}, s60 offen offset:{(kk%4)*1024} sc1"]
        if self.opt.get("pfu", 0):
            P(f"""s_mul_i32 s86, s{sFB}, 3584
            s_add_u32 s86, s86, s78
            v_lshlrev_b32 v5, 7, v0
            s_mov_b64 exec, 0xfffffff
            buffer_load_dword v144, v5, {S(SWS)}, s86 offen sc1
            s_mov_b64 exec, -1""")
        UD = self.opt.get("UD", 10)
        for i in range(UD): P.add(ul(order[i]))
        if lm == 1: P.add(late)
        Lb = P.lab("Lz")
        P(f"s_or_b32 s86, s2, s{sW}\ns_cmp_lg_u32 s86, 0\ns_cbranch_scc1 {Lb}")
        P.cond_begin()
        P(f"v_mov_b32 v145, s{sE}\ns_mov_b32 s86, {EPOCH}\ns_mov_b64 exec, 1\nbuffer_store_dword v145, off, {S(SWS)}, s86 sc1\ns_mov_b64 exec, -1")
        P.cond_end(); P(f"{Lb}:")
        for i, kk in enumerate(order):
            m = []
            for f in range(4):
                k, r = self.p5_breg(kk, f); acc = vr(ACC+4*f, 4)
                m.append(f"{MF} {acc}, {ar(r,4)}, {vr(UF+4*kk,4)}, {acc}")
            fl = ul(order[i + UD]) if i + UD < 28 else []
            j = i + 8
            if j == 19: P.wait_tag("woutL"); P("s_barrier")
            if 16 <= j < 28: fl = fl + self.p5_reads(order[j])
            P.add(mix(m, fl))
        OO = 160
        for c in range(2):
            for f in (2*c, 2*c+1):
                for k in range(2): P(f"v_cvt_pk_bf16_f32 v{OO+2*f+k}, v{ACC+4*f+2*k}, v{ACC+4*f+2*k+1}")
        if self.opt.get("spinM") is not None:
            P(f"s_cmp_lg_u32 s{sM}, {self.opt['spinM']}\ns_cbranch_scc1 L_nospin\ns_memrealtime s[96:97]\ns_waitcnt lgkmcnt(0)\ns_add_u32 s98, s96, 500\nL_spin:\ns_memrealtime s[96:97]\ns_waitcnt lgkmcnt(0)\ns_sub_u32 s97, s98, s96\ns_cmp_gt_i32 s97, 0\ns_cbranch_scc1 L_spin\nL_nospin:")
        if self.opt.get("thr"):
            P(f"s_memrealtime s[96:97]\ns_waitcnt lgkmcnt(0)\ns_sub_u32 s96, s96, s98\ns_mul_i32 s96, s96, s{sM}\ns_cmp_gt_u32 s96, {self.opt['thr']}\ns_cbranch_scc1 L_end")
        for c in range(2):
            for k in range(2): P(f"v_permlane16_swap_b32 v{OO+4*c+k}, v{OO+4*c+2+k}")
            P(f"buffer_store_dwordx4 {vr(OO+4*c,4)}, v240, {S(SOUT)}, s92 offen offset:{c*64} {self.opt.get('ost', 'nt')}")
        self.stamp("end")

    def build(self):
        P = self.P
        self.prologue()
        for k, ph in enumerate([self.phase1, self.phase2, self.phase3, self.phase4, self.phase5]):
            if k < self.stop: ph()
        if self.stamps:
            P("s_memtime s[98:99]\nv_writelane_b32 v7, s98, 63")
            P(f"""v_writelane_b32 v7, s{sM}, 61
            s_lshl_b32 s86, s2, 10
            s_lshl_b32 s87, s{sW}, 8
            s_add_u32 s86, s86, s87
            s_add_u32 s86, s86, {STAMP}
            v_lshlrev_b32 v12, 2, v0
            buffer_store_dword v7, v12, {S(SWS)}, s86 offen""")
        if self.opt.get("dbg"):
            sel = [self.names.index(n) for n in self.opt["dbg"]]
            P("s_load_dwordx2 s[64:65], s[0:1], 72\nv_not_b32 v12, v7\nv_readlane_b32 s86, v12, 0\nv_writelane_b32 v13, s86, 0")
            for k, i in enumerate(sel): P(f"v_readlane_b32 s86, v7, {i}\ns_nop 3\nv_writelane_b32 v13, s86, {k+1}")
            P(f"v_lshlrev_b32 v12, 2, v0\ns_mov_b64 exec, {(1 << (len(sel)+1)) - 1}\ns_cmp_lg_u32 s{sW}, 0\ns_cbranch_scc1 L_end\nglobal_atomic_umax v12, v13, s[64:65] sc1")
        P("L_end:\ns_endpgm")
        A = Asm()
        A.begin_kernel(NAME, 256, 256, 163840)
        A.lines += P.finalize()
        A.end_kernel(NAME, 256, 256)
        return A

HEADER = open("sequential_preLN__linear_attn_block__mixer_gmlp__prompt.s.ref").read().split("; Override")[0]
def generate(path, plain=False, **kw):
    g = G(**kw); A = g.build()
    t = A.text(HEADER)
    if plain: t = t.replace(f"; @launch kernel={NAME} grid", "; @launch grid")
    open(path, "w").write(t)
    return g.names
if __name__ == "__main__":
    import argparse
    ap = argparse.ArgumentParser(); ap.add_argument("out"); ap.add_argument("--stop", type=int, default=99); ap.add_argument("--stamps", action="store_true"); ap.add_argument("--opt", default="{}")
    a = ap.parse_args()
    generate(a.out, plain=True, stop=a.stop, stamps=a.stamps, opt=eval(a.opt))
```

```python
import sys, struct
sys.path.insert(0, "gen")
from asmlib import Asm, vr, ar, sr
from emit import Prog, spread, interleave

NAME = "sequential_preLN__linear_attn_block__mixer_gmlp__prompt_kernel"
def f2u(x): return struct.unpack("<I", struct.pack("<f", x))[0]

F1, F2, F3, F3B, F4, F1B = 0x0, 0x2000, 0x2800, 0x4800, 0x5000, 0x6000
FP = 0x7000; EPOCH = 0x9000; KZ = 0x9080; XID = 0x9100
KV = 0xA000; KVS = 1152
STAMP = 0x80000
HST = 0xC0000
PQ, H, Z2, Z1, U, STATS = 0x100000, 0x300000, 0x500000, 0x900000, 0xD00000, 0x1100000
WS_BYTES = 0x1200000
R1 = 8
SX, SWQKV, SWO, SWIN, SWSP, SBSP, SWOUT, SOUT, SWS = 8, 12, 16, 20, 24, 28, 32, 36, 40
def S(d): return f"s[{d}:{d+3}]"
sTB, sE, sFB, sM, sXCC = 3, 4, 5, 6, 7
sX, sJ, sW, sSPIN = 48, 49, 50, 51
sLOG2E, sEPS6, sK2, sONE = 52, 54, 56, 58
sA8, sA4 = 62, 63
sRB, sCBK = 100, 101
sT4, sF4 = 88, 89
vL16, vI, vG, vFLAG, vSW = 1, 2, 3, 4, 6
vT = [8, 9, 10, 11]
SPIN_MAX = 1 << 16
MF = "v_mfma_f32_16x16x32_bf16"
K1C = -2.302208198
WT, WD = Prog.WT, Prog.WD
NOPIF = ("NOPIF",)

def L(s): return [x.strip() for x in s.split("\n") if x.strip()]
def mix(m, f, lead=0):
    if not m: return list(f)
    return m[:lead] + spread(m[lead:], f)
def weave(a, b, g=3):
    groups = [b[i:i+g] for i in range(0, len(b), g)]
    if not groups: return list(a)
    out = []; n = len(groups); ai = 0
    for k, grp in enumerate(groups):
        tgt = (k * len(a) + len(a) // 2) // n if len(a) else 0
        out += a[ai:tgt]; ai = max(ai, tgt); out += grp
    return out + a[ai:]
def zipped(lists):
    out = []; n = max(len(l) for l in lists)
    for k in range(n):
        for l in lists:
            if k < len(l): out.append(l[k])
    return out

def lay2(m, reads, other, nr=None):
    k = min(len(m) - 1, (len(reads) + 1) // 2) if nr is None else nr
    if not reads: return [("wait_ds",)] + mix(m, other)
    return [("wait_ds",)] + mix(m[:k], reads) + mix(m[k:], other)

class G:
    def __init__(self, stop=99, stamps=False, opt=None):
        global U, H
        H = PQ if (opt or {}).get('ov', 1) else 0x300000
        U = Z1 if (opt or {}).get('uz', 0) else 0xD00000
        self.P = Prog(); self.stop = stop; self.stamps = stamps; self.nst = 0; self.names = []
        self.opt = opt or {}
        self.map84 = self.opt.get("map84", 1)
        self.T4 = sA8 if self.map84 else sTB; self.F4 = sA4 if self.map84 else sFB
    def stamp(self, name, fine=False):
        if self.stamps and (not fine or self.opt.get("fine")):
            k = self.nst; self.nst += 1; self.names.append(name)
            self.P(f"{'s_memtime' if self.opt.get('cyc') else 's_memrealtime'} s[98:99]\nv_writelane_b32 v7, s98, {k}")
    def dmai(self, voff, srd, soff, tag):
        nt = " nt" if (self.opt.get("nt", 0) >> {SX: 0, SWQKV: 1, SWO: 2, SWIN: 3, SWSP: 4, SWOUT: 5}[srd]) & 1 else ""
        if tag.startswith("st") and int(tag[2:]) < self.opt.get("ntst", 0) and (srd == SX or self.opt.get("ntw", 1)): nt = " nt"
        return ("T", f"buffer_load_dwordx4 v{voff}, {S(srd)}, s{soff} offen{nt} lds", tag)
    def srds(self, lst):
        for d, p, n in lst:
            self.P(f"s_mov_b32 s{d}, s{p}\ns_and_b32 s{d+1}, s{p+1}, 0xffff\ns_mov_b32 s{d+2}, {n}\ns_mov_b32 s{d+3}, 0x20000")
    def set_flag(self, mask, local=False):
        P = self.P
        P(f"s_mov_b64 exec, {mask:#x}\nv_mov_b32 v5, s{sE}")
        if local: self.local([f"buffer_store_dword v5, v{vFLAG}, {S(SWS)}, 0 offen @SC"], flag=True)
        else: P(f"buffer_store_dword v5, v{vFLAG}, {S(SWS)}, 0 offen sc1")
        P("s_mov_b64 exec, -1")
    def local(self, items, tag=None, flag=False):
        P = self.P
        dm = self.opt.get("dmode", 1)
        if not flag and dm == 0:
            for x in items: P(x.replace(" @SC", " sc1"), tag)
            return
        P.alt_begin(sM, "" if flag or dm == 1 else {2: " nt", 3: " sc0"}[dm])
        for x in items: P(x, tag)
        P.alt_end()
    def local4(self, items, tag=None):
        if self.map84:
            for x in items: self.P(x.replace(" @SC", " sc1"), tag)
        else: self.local(items, tag)
    def thru(self, items, tag=None):
        for x in items: self.P(x.replace(" @SC", " sc1"), tag)
    def wave(self, w, fn):
        P = self.P; Lb = P.lab("Lw")
        P(f"s_cmp_lg_u32 s{sW}, {w}\ns_cbranch_scc1 {Lb}")
        P.cond_begin(); fn(); P.cond_end()
        P(f"{Lb}:")
    def wave0(self, fn): self.wave(0, fn)
    def spin_tail(self, Lb, E):
        self.P(f"s_add_u32 s{sSPIN}, s{sSPIN}, 1\ns_cbranch_vccz {E}\ns_cmp_lt_u32 s{sSPIN}, {SPIN_MAX}\ns_cbranch_scc1 {Lb}")
    def poll(self, vaddr, x4=False, soff="0"):
        P = self.P; Lb = P.lab("Lp"); E = P.lab("Le")
        P(f"s_mov_b32 s{sSPIN}, 0\n{Lb}:")
        if x4:
            P(f"buffer_load_dwordx4 v[12:15], v{vaddr}, {S(SWS)}, {soff} offen sc1\ns_waitcnt vmcnt(0)")
            P("\n".join(f"v_xor_b32 v{r}, s{sE}, v{r}" for r in range(12, 16)) + "\nv_or3_b32 v12, v12, v13, v14\nv_or_b32 v12, v12, v15\nv_cmp_ne_u32 vcc, 0, v12")
        else:
            P(f"buffer_load_dword v12, v{vaddr}, {S(SWS)}, {soff} offen sc1\ns_waitcnt vmcnt(0)\nv_cmp_ne_u32 vcc, s{sE}, v12")
        self.spin_tail(Lb, E); P(f"{E}:")
    def poll2(self, vaddr, soff, gap):
        P = self.P; Lb = P.lab("Lp"); E = P.lab("Le")
        ld = lambda r: f"buffer_load_dword v{r}, v{vaddr}, {S(SWS)}, {soff} offen sc1"
        P(f"s_mov_b32 s{sSPIN}, 0\n{ld(12)}\ns_sleep {gap}\n{Lb}:\n{ld(5)}\ns_waitcnt vmcnt(1)\nv_cmp_ne_u32 vcc, s{sE}, v12\ns_cbranch_vccz {E}")
        P(f"{ld(12)}\ns_waitcnt vmcnt(1)\nv_cmp_ne_u32 vcc, s{sE}, v5")
        self.spin_tail(Lb, E); P(f"{E}:")
    def check_retry(self, load, cmp):
        P = self.P; Lb = P.lab("Lk"); E = P.lab("Le")
        P(f"s_mov_b32 s{sSPIN}, 0\n{cmp}\ns_cbranch_vccz {E}")
        P.cond_begin()
        P(f"{Lb}:\n{load}\ns_waitcnt vmcnt(0)\n{cmp}")
        self.spin_tail(Lb, E)
        P.cond_end(); P(f"{E}:")
    def barrier(self):
        self.P.wait_ds(); self.P("s_barrier")
    def xreduce(self, regs, tmp, ops=("v_permlane32_swap_b32", "v_permlane16_swap_b32")):
        P = self.P
        for op in ops:
            for k, r in enumerate(regs): P(f"v_mov_b32 v{tmp+k}, v{r}")
            for k, r in enumerate(regs): P(f"{op} v{tmp+k}, v{r}")
            for k, r in enumerate(regs): P(f"v_add_f32 v{r}, v{r}, v{tmp+k}")
    def finstats(self, sums, n, outA, outB):
        ls = []
        for k, (s, q) in enumerate(sums):
            ls.append([f"v_mul_f32 v{s}, {f2u(-1.0/n):#x}, v{s}", f"v_mul_f32 v{q}, {f2u(1.0/n):#x}, v{q}",
                       f"v_fma_f32 v{q}, -v{s}, v{s}, v{q}", f"v_max_f32 v{q}, 0, v{q}", f"v_add_f32 v{q}, {f2u(1e-5):#x}, v{q}",
                       f"v_rsq_f32 v{outA[k]}, v{q}", f"v_mul_f32 v{outB[k]}, v{s}, v{outA[k]}"])
        self.P.add(zipped(ls))
    def phi_pair(self, x, t, out):
        return [f"v_pk_mul_f32 {vr(t,2)}, {vr(x,2)}, s[{sLOG2E}:{sLOG2E+1}]",
                f"v_max_f32 v{x}, 0, v{x}", f"v_max_f32 v{x+1}, 0, v{x+1}",
                f"v_min_f32 v{t}, 0, v{t}", f"v_min_f32 v{t+1}, 0, v{t+1}",
                f"v_exp_f32 v{t}, v{t}", f"v_exp_f32 v{t+1}, v{t+1}",
                f"v_pk_add_f32 {vr(x,2)}, {vr(x,2)}, s[{sEPS6}:{sEPS6+1}]",
                f"v_pk_add_f32 {vr(x,2)}, {vr(x,2)}, {vr(t,2)}",
                f"v_cvt_pk_bf16_f32 v{out}, v{x}, v{x+1}"]
    def gelu_pair(self, x, t, k1):
        return [f"v_pk_mul_f32 {vr(t,2)}, {vr(x,2)}, {vr(x,2)}",
                f"v_pk_fma_f32 {vr(t,2)}, {vr(t,2)}, s[{sK2}:{sK2+1}], {vr(k1,2)}",
                f"v_pk_mul_f32 {vr(t,2)}, {vr(t,2)}, {vr(x,2)}",
                f"v_exp_f32 v{t}, v{t}", f"v_exp_f32 v{t+1}, v{t+1}",
                f"v_pk_add_f32 {vr(t,2)}, {vr(t,2)}, s[{sONE}:{sONE+1}]",
                f"v_rcp_f32 v{t}, v{t}", f"v_rcp_f32 v{t+1}, v{t+1}",
                f"v_pk_mul_f32 {vr(x,2)}, {vr(x,2)}, {vr(t,2)}"]
    @staticmethod
    def bc(r): return vr(r & ~1, 2), r & 1
    def affine_pair(self, x, t, A, B, cs, a_bc):
        if a_bc:
            bn, bb = self.bc(B); an, ab = self.bc(A)
            return [f"v_pk_mul_f32 {vr(t,2)}, {vr(cs,2)}, {bn} op_sel:[0,{bb}] op_sel_hi:[1,{bb}]",
                    f"v_pk_fma_f32 {vr(x,2)}, {vr(x,2)}, {an}, {vr(t,2)} op_sel:[0,{ab},0] op_sel_hi:[1,{ab},1]"]
        cn, cb = self.bc(cs)
        return [f"v_pk_mul_f32 {vr(t,2)}, {vr(B,2)}, {cn} op_sel:[0,{cb}] op_sel_hi:[1,{cb}]",
                f"v_pk_fma_f32 {vr(x,2)}, {vr(x,2)}, {vr(A,2)}, {vr(t,2)}"]

    def prologue(self):
        P = self.P
        P(f"""
        s_cmp_ge_u32 s2, 256
        s_cbranch_scc1 L_end
        s_load_dwordx4 s[64:67], s[0:1], 0
        v_lshrrev_b32 v1, 6, v0
        v_and_b32 v0, 63, v0
        v_readfirstlane_b32 s{sW}, v1
        s_and_b32 s{sX}, s2, 7
        s_lshr_b32 s{sJ}, s2, 3
        v_lshrrev_b32 v{vG}, 4, v0
        s_lshr_b32 s{sA8}, s{sX}, 1
        s_lshl_b32 s{sA8}, s{sA8}, 3
        s_lshr_b32 s86, s{sJ}, 2
        s_add_u32 s{sA8}, s{sA8}, s86
        s_and_b32 s{sA4}, s{sX}, 1
        s_lshl_b32 s{sA4}, s{sA4}, 2
        {f's_xor_b32 s86, s86, s{sJ}' if self.opt.get('hx') else f's_mov_b32 s86, s{sJ}'}
        s_and_b32 s86, s86, 3
        s_add_u32 s{sA4}, s{sA4}, s86
        """)
        if self.opt.get("thr"): P("s_memrealtime s[98:99]\ns_waitcnt lgkmcnt(0)")
        if self.stamps: P("v_mov_b32 v7, 0\ns_memtime s[98:99]\nv_writelane_b32 v7, s98, 62")
        self.stamp("start")

    def late_setup(self):
        P = self.P
        self.srds([(SWS, 84, WS_BYTES)])
        P(f"s_mov_b32 s86, {EPOCH}\nbuffer_load_dword v225, off, {S(SWS)}, s86 sc1")
        self.srds([(SWO, 68, 524288), (SWIN, 72, 1835008), (SWSP, 74, 8388608), (SBSP, 76, 4096), (SWOUT, 78, 917504), (SOUT, 80, 2097152)])
        P(f"""
        v_lshlrev_b32 v{vL16}, 4, v0
        v_and_b32 v{vI}, 15, v0
        s_getreg_b32 s{sXCC}, hwreg(HW_REG_XCC_ID, 0, 4)
        s_lshr_b32 s{sRB}, s{sJ}, 4
        s_lshl_b32 s86, s{sX}, 1
        s_add_u32 s{sRB}, s{sRB}, s86
        s_and_b32 s{sCBK}, s{sJ}, 15
        s_lshr_b32 s{sTB}, s{sJ}, 3
        s_lshl_b32 s86, s{sX}, 2
        s_add_u32 s{sTB}, s{sTB}, s86
        s_and_b32 s{sFB}, s{sJ}, 7
        s_lshl_b32 s86, s2, 2
        v_lshl_add_u32 v{vFLAG}, v0, 10, s86
        s_lshl_b32 s86, s{sCBK}, 4
        s_add_u32 s86, s86, s{sRB}
        s_lshl_b32 s86, s86, 2
        s_add_u32 s86, s86, {(F3 - 17*1024) & 0xffffffff}
        v_lshl_add_u32 v5, v0, 10, s86
        v_cmp_lt_u32 vcc, 16, v0
        v_cndmask_b32 v{vFLAG}, v{vFLAG}, v5, vcc
        s_lshl_b32 s86, s{sRB}, 7
        s_lshl_b32 s87, s{sCBK}, 2
        s_add_u32 s86, s86, s87
        s_add_u32 s87, s86, {F2}
        v_writelane_b32 v{vFLAG}, s87, 16
        s_add_u32 s87, s86, {F3B}
        v_writelane_b32 v{vFLAG}, s87, 25
        s_lshl_b32 s86, s{sA8 if self.map84 else sTB}, 7
        s_lshl_b32 s87, s{sA4 if self.map84 else sFB}, 2
        s_add_u32 s86, s86, s87
        s_add_u32 s87, s86, {F4}
        v_writelane_b32 v{vFLAG}, s87, 26
        s_lshl_b32 s86, s{sA8}, 7
        s_lshl_b32 s87, s{sA4}, 2
        s_add_u32 s86, s86, s87
        s_add_u32 s87, s86, {F1B}
        v_writelane_b32 v{vFLAG}, s87, 27
        s_mov_b32 s{sLOG2E}, {f2u(1.4426950408889634):#x}
        s_mov_b32 s{sLOG2E+1}, {f2u(1.4426950408889634):#x}
        s_mov_b32 s{sEPS6}, {f2u(1e-6):#x}
        s_mov_b32 s{sEPS6+1}, {f2u(1e-6):#x}
        s_mov_b32 s{sK2}, {f2u(K1C*0.044715):#x}
        s_mov_b32 s{sK2+1}, {f2u(K1C*0.044715):#x}
        s_mov_b32 s{sONE}, 1.0
        s_mov_b32 s{sONE+1}, 1.0
        """)

    def phase1(self):
        P = self.P
        SCR = 147456
        vX = [216, 217]; vWd = [218, 219]; vA = [220, 221]; vO = [222, 223]; vB = 224
        OWN = 16; BK = 24; BV = 32; ONES = 40; ACK = 48; ACV = 64; CSK = 80; CSV = 84; DS = 88; DQ = 92
        ACQ = 96; CSQ = 112; ST = 120; STQ = 152
        P(f"""
        s_lshl_b32 s88, s{sA8}, 16
        s_lshl_b32 s87, s{sW}, 14
        s_add_u32 s88, s88, s87
        s_lshl_b32 s90, s{sA4}, 7
        s_mul_i32 s87, s{sW}, {16*3072}
        s_add_u32 s90, s90, s87
        s_lshl_b32 s91, s{sW}, 11
        v_lshrrev_b32 v5, 3, v0
        v_and_b32 v6, 7, v0
        v_xor_b32 v12, v6, v{vG}
        v_lshlrev_b32 v12, 4, v12
        v_lshl_add_u32 v{vX[0]}, v5, 10, v12
        v_xor_b32 v{vX[1]}, 64, v{vX[0]}
        v_add_u32 v{vX[1]}, 8192, v{vX[1]}
        v_and_b32 v12, 2, v5
        v_xor_b32 v12, v6, v12
        v_lshlrev_b32 v12, 4, v12
        v_mul_u32_u24 v13, 3072, v5
        v_add_u32 v{vWd[0]}, v13, v12
        v_xor_b32 v{vWd[1]}, 64, v{vWd[0]}
        v_add_u32 v{vWd[1]}, {8*3072}, v{vWd[1]}
        s_waitcnt lgkmcnt(0)
        """)
        P("""s_load_dwordx2 s[84:85], s[0:1], 80
        s_load_dwordx2 s[68:69], s[0:1], 16
        s_load_dwordx8 s[72:79], s[0:1], 32
        s_load_dwordx2 s[80:81], s[0:1], 64""")
        self.srds([(SX, 64, 2097152), (SWQKV, 66, 1572864)])
        def issue_stage(s):
            slot = (s % 6) * 24576; out = []
            if s < 8:
                parts = [(0, SX, vX, 88, s * 128), (8192, SWQKV, vWd, 90, s * 64 * 3072 + 1024), (16384, SWQKV, vWd, 90, s * 64 * 3072 + 2048)]
            else:
                parts = [(8192 * k, SWQKV, vWd, 90, c * 64 * 3072) for k, c in enumerate(range(3 * (s - 8), min(8, 3 * (s - 8) + 3)))]
            for lo, srd, vo, sb, so in parts:
                out.append([f"s_add_u32 m0, s91, {slot + lo}", f"s_add_u32 s60, s{sb}, {so}", self.dmai(vo[0], srd, 60, f"st{s}")])
                out.append([f"s_add_u32 m0, s91, {slot + lo + 1024}", self.dmai(vo[1], srd, 60, f"st{s}")])
            return out
        if self.opt.get("rot1", 2):
            P(f"s_lshr_b32 s92, s{sJ}, 2" if self.opt.get("rot1", 2) == 1 else f"s_lshr_b32 s92, s{sJ}, 2\ns_and_b32 s92, s92, 6")
            def issue_stage(s):
                slot = (s % 6) * 24576; out = []
                def two(lo, srd, vo, pre):
                    out.append([f"s_add_u32 m0, s91, {slot + lo}"] + pre + [self.dmai(vo[0], srd, 60, f"st{s}")])
                    out.append([f"s_add_u32 m0, s91, {slot + lo + 1024}", self.dmai(vo[1], srd, 60, f"st{s}")])
                if s < 8:
                    two(0, SX, vX, [f"s_add_u32 s61, s92, {s}", "s_and_b32 s61, s61, 7", "s_lshl_b32 s60, s61, 7", "s_add_u32 s60, s60, s88"])
                    two(8192, SWQKV, vWd, [f"s_mul_i32 s61, s61, {64*3072}", "s_add_u32 s61, s61, s90", "s_add_u32 s60, s61, 1024"])
                    two(16384, SWQKV, vWd, ["s_add_u32 s60, s61, 2048"])
                else:
                    for k, c in enumerate(range(3 * (s - 8), min(8, 3 * (s - 8) + 3))):
                        two(8192 * k, SWQKV, vWd, [f"s_add_u32 s61, s92, {c}", "s_and_b32 s61, s61, 7", f"s_mul_i32 s61, s61, {64*3072}", "s_add_u32 s60, s61, s90"])
                return out
        flat = lambda g: [x for y in g for x in y]
        D = self.opt.get("D", 3)
        self.stamp("pre", True)
        for s in range(2): P.add(flat(issue_stage(s)))
        self.stamp("iss01", True)
        self.late_setup()
        P(f"""s_lshl_b32 s93, s{sA4}, 2
        s_add_u32 s93, s93, s{sW}
        s_mul_i32 s94, s93, {KVS}
        s_add_u32 s94, s94, {KV}
        s_lshl_b32 s95, s{sA4}, 2
        s_add_u32 s95, s95, {KZ}
        v_lshlrev_b32 v226, 7, v0""")
        Lb = P.lab("Lz")
        P(f"s_cmp_lg_u32 s{sA8}, 0\ns_cbranch_scc1 {Lb}"); P.cond_begin()
        P(f"""v_mov_b32 v12, 0
        v_mov_b32 v13, 0
        v_mov_b32 v14, 0
        v_mov_b32 v15, 0
        buffer_store_dwordx4 v[12:15], v{vL16}, {S(SWS)}, s94 offen sc1
        s_mov_b64 exec, 0xff
        buffer_store_dwordx4 v[12:15], v{vL16}, {S(SWS)}, s94 offen offset:1024 sc1
        s_mov_b64 exec, -1""")
        P.cond_end(); P(f"{Lb}:")
        def w0():
            P(f"""s_getpc_b64 s[86:87]
            L_pc:
            s_and_b32 s61, s{sJ}, 7
            s_lshl_b32 s61, s61, 13
            v_add_u32 v231, s61, v226
            v_min_u32 v231, L_end-L_pc, v231
            global_load_dword v239, v231, s[86:87]""")
        self.wave(0, w0)
        self.wave(1, lambda: P(f"s_lshl_b32 s86, s2, 13\ns_mov_b32 exec_lo, 0xfcfcfcfc\ns_mov_b32 exec_hi, 0xfcfcfcfc\nbuffer_load_dword v235, v226, {S(SX)}, s86 offen\ns_mov_b64 exec, -1"))
        self.wave(2, lambda: P(f"s_mul_i32 s86, s2, {36*128}\ns_add_u32 s86, s86, {3072*128}\ns_mov_b32 exec_hi, 15\nbuffer_load_dword v236, v226, {S(SWQKV)}, s86 offen\ns_mov_b64 exec, -1"))
        self.wave(3, lambda: P(f"""s_lshl_b32 s86, s{sX}, 7
            s_lshl_b32 s87, s{sJ}, 2
            s_add_u32 s86, s86, s87
            s_add_u32 s86, s86, {XID}
            v_mov_b32 v5, s{sXCC}
            s_mov_b64 exec, 1
            buffer_store_dword v5, off, {S(SWS)}, s86 sc1
            s_mov_b64 exec, -1"""))
        P.items.append(("count1",))
        def pf1(srd, per, d):
            P(f"s_lshl_b32 s86, s2, 2\ns_add_u32 s86, s86, s{sW}\ns_mul_i32 s86, s86, {per*128}\ns_mov_b64 exec, {(1<<per)-1}\nbuffer_load_dword v{d}, v226, {S(srd)}, s86 offen\ns_mov_b64 exec, -1")
        def hook(pt):
            if self.opt.get("ov", 1) and pt == self.opt.get("pt2", 3):
                P(f"s_mov_b64 exec, 0x3f\nbuffer_load_dword v241, v240, {S(SWS)}, 0 offen\ns_mov_b64 exec, -1")
            if self.opt.get("c3", -1) == pt:
                P(f"""v_bfe_u32 v5, v0, 3, 1
                v_xor_b32 v242, v0, v5
                v_and_b32 v242, 1, v242
                v_xor_b32 v242, 1, v242
                v_bfe_u32 v243, v0, 2, 1
                v_lshl_add_u32 v242, v243, 1, v242
                v_mul_u32_u24 v242, 3584, v242
                v_and_b32 v243, 3, v0
                v_lshl_add_u32 v242, v243, 9, v242
                v_xor_b32 v5, 1, v5
                v_mul_u32_u24 v5, {1920 - 384}, v5
                v_add_u32 v242, v242, v5
                s_lshl_b32 s86, s{sJ}, 2
                s_add_u32 s86, s86, s{sW}
                s_mul_i32 s86, s86, {4*3584}
                s_mov_b64 exec, {self.opt.get('c3m', 0xffff)}
                buffer_load_dword v242, v242, {S(SWIN)}, s86 offen offset:384
                s_mov_b64 exec, -1""")
            if self.opt.get("c3o", -1) == pt:
                P(f"""s_lshl_b32 s86, s{sJ}, 2
                s_add_u32 s86, s86, s{sW}
                s_lshl_b32 s86, s86, 12
                v_lshlrev_b32 v5, 10, v0
                s_mov_b64 exec, 0xf
                buffer_load_dword v243, v5, {S(SWO)}, s86 offen offset:384
                s_mov_b64 exec, -1""")
            for key, off, d in (("xl0", 1792, 240), ("xl1", 0, 241)):
                if self.opt.get(key, -1) == pt: self.xl(off, d)
            if self.opt.get("ptouch", -1) == pt: P(f"s_mov_b64 exec, 0xffffff\nbuffer_load_dword v237, v238, {S(SWS)}, 0 offen {self.opt.get('tm', '')}\ns_mov_b64 exec, -1")
            if self.opt.get("pwo", 7) == pt: pf1(SWO, 4, 232)
            if self.opt.get("pwin", 7) == pt: pf1(SWIN, 14, 233)
            if self.opt.get("pwout", 7) == pt: pf1(SWOUT, 7, 234)
        for s in range(2, D): P.add(flat(issue_stage(s)))
        P(f"""
        v_lshrrev_b32 v12, 1, v{vI}
        v_xor_b32 v12, v12, v{vG}
        v_lshlrev_b32 v12, 4, v12
        v_lshl_add_u32 v{vA[0]}, v{vI}, 7, v12
        v_xor_b32 v{vA[1]}, 64, v{vA[0]}
        v_add_u32 v{vO[0]}, s91, v{vA[0]}
        v_add_u32 v{vO[1]}, s91, v{vA[1]}
        v_lshrrev_b32 v12, 2, v{vI}
        v_lshl_add_u32 v13, v{vG}, 3, v12
        v_and_b32 v14, 2, v12
        v_and_b32 v15, 1, v{vG}
        v_lshl_or_b32 v14, v15, 2, v14
        v_bfe_u32 v15, v0, 1, 1
        s_lshl_b32 s86, s{sW}, 1
        v_add_u32 v15, s86, v15
        v_xor_b32 v14, v14, v15
        v_lshlrev_b32 v14, 4, v14
        v_lshl_add_u32 v14, v13, 7, v14
        v_and_b32 v15, 1, v0
        v_lshl_add_u32 v{vB}, v15, 3, v14
        """)
        for k in range(4): P(f"v_mov_b32 v{ONES+k}, 0x3f803f80")
        P(f"""s_lshl_b32 s86, s{sW}, 6
        s_add_u32 s86, s86, {SCR}
        v_lshl_add_u32 v212, v{vI}, 2, s86
        v_lshlrev_b32 v213, 4, v{vG}
        v_add_u32 v213, {SCR}, v213
        v_lshlrev_b32 v214, 2, v{vI}
        v_add_u32 v214, {SCR}, v214
        s_add_u32 s86, s91, {SCR + 1024}
        v_add_u32 v227, s86, v{vL16}
        v_lshl_add_u32 v228, v{vG}, 4, s86
        v_lshl_add_u32 v229, v0, 2, s86
        v_lshlrev_b32 v215, 2, v0
        v_and_b32 v12, 3, v0
        v_cmp_eq_u32 s[44:45], 1, v12
        v_cmp_eq_u32 s[46:47], 2, v12
        v_cmp_eq_u32 s[82:83], 3, v12""")
        if self.opt.get('ptouch', -1) >= 0: P(f"""s_lshr_b32 s86, s{sJ}, 2
        s_lshl_b32 s87, s{sX}, 3
        s_add_u32 s86, s86, s87
        s_and_b32 s87, s{sJ}, 3
        s_lshl_b32 s96, s86, 5
        s_lshl_b32 s97, s87, 2
        s_add_u32 s96, s96, s97
        s_add_u32 s96, s96, s{sW}
        s_lshl_b32 s96, s96, 10
        s_add_u32 s96, s96, {H}
        v_and_b32 v12, 7, v0
        v_lshlrev_b32 v12, 7, v12
        v_bfe_u32 v13, v0, 3, 1
        v_lshl_add_u32 v12, v13, 14, v12
        v_add_u32 v238, s96, v12
        s_lshl_b32 s96, s86, 12
        s_lshl_b32 s97, s87, 8
        s_add_u32 s96, s96, s97
        s_lshr_b32 s97, s{sW}, 1
        s_lshl_b32 s97, s97, 10
        s_add_u32 s96, s96, s97
        s_add_u32 s96, s96, {HST}
        v_and_b32 v12, 1, v0
        v_lshlrev_b32 v12, 7, v12
        v_bfe_u32 v13, v0, 1, 1
        v_lshl_add_u32 v12, v13, 11, v12
        v_add_u32 v12, s96, v12
        v_cmp_lt_u32 vcc, 15, v0
        v_cndmask_b32 v238, v238, v12, vcc
        s_lshl_b32 s96, s{sRB}, 15
        s_lshl_b32 s97, s{sCBK}, 11
        s_add_u32 s96, s96, s97
        s_lshl_b32 s97, s{sW}, 9
        s_add_u32 s96, s96, s97
        s_add_u32 s96, s96, {STATS}
        v_and_b32 v12, 3, v0
        v_lshl_add_u32 v12, v12, 7, s96
        v_cmp_lt_u32 vcc, 19, v0
        v_cndmask_b32 v238, v238, v12, vcc""")
        P(f"""s_lshr_b32 s86, s{sJ}, 2
                s_lshl_b32 s87, s{sX}, 3
                s_add_u32 s86, s86, s87
                s_lshl_b32 s87, s86, 6
                s_add_u32 s87, s87, {FP}
                v_mov_b32 v240, s87
                v_readlane_b32 s87, v{vFLAG}, 16
                s_lshl_b32 s86, s86, 12
                v_writelane_b32 v240, s87, 1
                s_and_b32 s87, s{sJ}, 3
                s_lshl_b32 s87, s87, 8
                s_add_u32 s86, s86, s87
                s_lshr_b32 s87, s{sW}, 1
                s_lshl_b32 s87, s87, 10
                s_add_u32 s86, s86, s87
                s_add_u32 s86, s86, {HST}
                v_writelane_b32 v240, s86, 2
                s_add_u32 s87, s86, 128
                v_writelane_b32 v240, s87, 3
                s_add_u32 s87, s86, 2048
                v_writelane_b32 v240, s87, 4
                s_add_u32 s87, s86, 2176
                v_writelane_b32 v240, s87, 5""")
        cur = [0]
        def setbase(slot, regs):
            want = (slot // 2) * 49152; out = []
            if want != cur[0]:
                out = [f"v_add_u32 v{r}, {want - cur[0]}, v{r}" if want > cur[0] else f"v_subrev_u32 v{r}, {cur[0] - want}, v{r}" for r in regs]
                cur[0] = want
            return (slot % 2) * 24576, out
        def reads(ks, so):
            t = ks & 1; out = []
            for base, lo in ((BK, 8192), (BV, 16384)):
                for h in range(2): out.append(f"ds_read_b64_tr_b16 {vr(base+4*t+2*h,2)}, v{vB} offset:{so + lo + t*4096 + h*512}")
            for rf in range(4): out.append(f"ds_read_b128 {ar((ks*4+rf)*4,4)}, v{vA[t]} offset:{so + rf*2048}")
            out.append(f"ds_read_b128 {vr(OWN+4*t,4)}, v{vO[t]} offset:{so}")
            return out
        def mfmas(ks):
            t = ks & 1; m = []
            c = lambda r: vr(r, 4) if ks else "0"
            m.append(f"{MF} {vr(DS,4)}, {vr(OWN+4*t,4)}, {vr(ONES,4)}, {c(DS)}")
            m.append(f"{MF} {vr(DQ,4)}, {vr(OWN+4*t,4)}, {vr(OWN+4*t,4)}, {c(DQ)}")
            m.append(f"{MF} {vr(CSK,4)}, {vr(ONES,4)}, {vr(BK+4*t,4)}, {c(CSK)}")
            m.append(f"{MF} {vr(CSV,4)}, {vr(ONES,4)}, {vr(BV+4*t,4)}, {c(CSV)}")
            for rf in range(4):
                for base, acc in ((BK, ACK), (BV, ACV)):
                    m.append(f"{MF} {vr(acc+4*rf,4)}, {ar((ks*4+rf)*4,4)}, {vr(base+4*t,4)}, {c(acc+4*rf)}")
            return m
        def lay(m, r, g):
            if not m: return r + flat(g)
            g = g + [[]] * (3 - len(g))
            return mix(m[:4], r[:5] + g[0]) + mix(m[4:7], r[5:]) + mix(m[7:9], g[1]) + m[9:10] + mix(m[10:], g[2])
        for s in range(8):
            P.wait_tag(f"st{s}"); self.barrier()
            if s == 0: self.stamp("st0")
            else: self.stamp(f"st{s}", True)
            if s == 2:
                P(f"v_readfirstlane_b32 s{sE}, v225\ns_add_u32 s{sE}, s{sE}, 1")
                Lb = P.lab("Lz")
                P(f"s_or_b32 s86, s{sA8}, s{sW}\ns_cmp_lg_u32 s86, 0\ns_cbranch_scc1 {Lb}"); P.cond_begin()
                P(f"v_mov_b32 v5, s{sE}\ns_mov_b64 exec, 1\nbuffer_store_dword v5, off, {S(SWS)}, s95 sc1\ns_mov_b64 exec, -1")
                P.cond_end(); P(f"{Lb}:")
            so, adj = setbase(s % 6, vA + vO + [vB])
            iss = issue_stage(s + D) if s + D <= 10 else []
            if s == 6: P(f"buffer_load_dword v230, off, {S(SWS)}, s95 sc1")
            hook(s)
            h = len(iss) // 2
            P.add(adj + lay(mfmas(2*s - 1) if s else [], reads(2*s, so), iss[:h]))
            P.wait_ds()
            P.add(lay(mfmas(2*s), reads(2*s + 1, so), iss[h:]))
        for s in range(8 + D, 11): P.add(flat(issue_stage(s)))
        m = mfmas(15)
        sel = []
        for k, sm in ((1, 44), (2, 46), (3, 82)):
            sel += [f"v_cndmask_b32 v{DS}, v{DS}, v{DS+k}, s[{sm}:{sm+1}]", f"v_cndmask_b32 v{DQ}, v{DQ}, v{DQ+k}, s[{sm}:{sm+1}]"]
        fin = [f"v_mul_f32 v{DS}, {f2u(-1.0/512):#x}, v{DS}", f"v_mul_f32 v{DQ}, {f2u(1.0/512):#x}, v{DQ}", f"v_fma_f32 v{DQ}, -v{DS}, v{DS}, v{DQ}",
               f"v_max_f32 v{DQ}, 0, v{DQ}", f"v_add_f32 v{DQ}, {f2u(1e-5):#x}, v{DQ}", f"v_rsq_f32 v{DS+1}, v{DQ}"]
        P.add(m[:6] + mix(m[6:], sel + fin))
        P(f"""v_mul_f32 v{DS+2}, v{DS}, v{DS+1}
        s_mov_b32 exec_lo, 0x00f0000f
        s_mov_b32 exec_hi, 0xf0000f00
        ds_write_b32 v212, v{DS+1}
        ds_write_b32 v212, v{DS+2} offset:256
        s_mov_b64 exec, -1""")
        self.stamp("p1gemm")
        self.barrier()
        for rf in range(4):
            P(f"ds_read_b128 {vr(ST+8*rf,4)}, v213 offset:{rf*64}\nds_read_b128 {vr(ST+8*rf+4,4)}, v213 offset:{256+rf*64}")
        for rf in range(4):
            P(f"ds_read_b32 v{STQ+2*rf}, v214 offset:{rf*64}\nds_read_b32 v{STQ+2*rf+1}, v214 offset:{256+rf*64}")
        PK = 160; PV = 168; TT = 176; KVD = 184; ZD = 188
        for rf in range(4):
            ls = []
            for hp in range(2):
                x = ACK + 4*rf + 2*hp; t = TT + 2*hp
                ls.append(self.affine_pair(x, t, ST+8*rf+2*hp, ST+8*rf+4+2*hp, CSK, False) + self.phi_pair(x, t, PK + 2*rf + hp))
                x = ACV + 4*rf + 2*hp; t = TT + 4 + 2*hp
                ls.append(self.affine_pair(x, t, ST+8*rf+2*hp, ST+8*rf+4+2*hp, CSV, False) + [f"v_cvt_pk_bf16_f32 v{PV+2*rf+hp}, v{x}, v{x+1}"])
            P.add(zipped(ls))
        p2a, p2b = self.p2_setup()
        P(f"""{MF} {vr(KVD,4)}, {vr(PK,4)}, {vr(PV,4)}, 0
        {MF} {vr(ZD,4)}, {vr(PK,4)}, {vr(ONES,4)}, 0
        {MF} {vr(KVD,4)}, {vr(PK+4,4)}, {vr(PV+4,4)}, {vr(KVD,4)}
        {MF} {vr(ZD,4)}, {vr(PK+4,4)}, {vr(ONES,4)}, {vr(ZD,4)}""")
        P.add(p2a[:8])
        P(f"ds_write_b128 v227, {vr(KVD,4)}\nds_write_b128 v228, {vr(ZD,4)} offset:1024")
        P.add(p2a[8:])
        P.wait_ds()
        for t in range(5): P(f"ds_read_b32 v{192+t}, v229 offset:{t*256}")
        self.check_retry(f"buffer_load_dword v230, off, {S(SWS)}, s95 sc1", f"v_cmp_ne_u32 vcc, s{sE}, v230")
        for t in range(4): P(f"buffer_atomic_add_f32 v{192+t}, v215, {S(SWS)}, s94 offen offset:{t*256} sc1", "atom")
        P(f"s_mov_b64 exec, 0xffff\nbuffer_atomic_add_f32 v196, v215, {S(SWS)}, s94 offen offset:1024 sc1\ns_mov_b64 exec, -1", "atom")
        self.stamp("atom")
        hook(8)
        def qreads(ks):
            c = ks >> 1; t = ks & 1
            so, adj = setbase(2 + c // 3, [vB])
            return adj + [f"ds_read_b64_tr_b16 {vr(BK+4*(ks&3)+2*h,2)}, v{vB} offset:{so + (c%3)*8192 + t*4096 + h*512}" for h in range(2)]
        def qm(ks):
            b = vr(BK+4*(ks&3),4)
            out = [f"{MF} {vr(ACQ+4*rf,4)}, {b}, {ar((ks*4+rf)*4,4)}, {vr(ACQ+4*rf,4) if ks else '0'}" for rf in range(4)]
            return out + [f"{MF} {vr(CSQ,4)}, {b}, {vr(ONES,4)}, {vr(CSQ,4) if ks else '0'}"]
        P.wait_tag("st10"); self.barrier()
        P.add(qreads(0) + qreads(1))
        wo_e = self.wo_dma(0)
        p2b = p2b + L(f"""s_lshl_b32 s87, s{sA8}, 6
        s_add_u32 s87, s87, s93
        s_lshl_b32 s87, s87, 10
        s_add_u32 s64, s87, {PQ}
        s_add_u32 s65, s64, 32768""")
        n = (len(p2b) + 15) // 16
        for ks in range(16):
            if ks == self.opt.get("fa", -1):
                P.wait_tag("atom"); P("s_barrier")
                self.wave0(lambda: self.set_flag((1 << R1) - 1))
            P.add(mix(qm(ks), (qreads(ks + 2) if ks + 2 < 16 else []) + wo_e[len(wo_e)*ks//16:len(wo_e)*(ks+1)//16] + p2b[n*ks:n*ks+n]))
        PQR = 160
        one = self.opt.get("one", 0)
        if self.opt.get("fa", -1) >= 0: self.barrier()
        elif one == 0:
            P.wait_tag("atom"); self.barrier()
            self.wave0(lambda: self.set_flag((1 << R1) - 1))
        elif one == 1: self.barrier()
        self.stamp("F1a")
        hook(9)
        wo_l = self.wo_dma(1)
        for p in range(2):
            ls = []
            for rf in (2*p, 2*p+1):
                for hp in range(2):
                    x = ACQ + 4*rf + 2*hp; t = TT + 2*((2*rf+hp) % 4)
                    ls.append(self.affine_pair(x, t, STQ+2*rf, STQ+2*rf+1, CSQ+2*hp, True) + self.phi_pair(x, t, PQR + 2*rf + hp))
            P.add(zipped(ls))
            if one == 2 and p == 0:
                P.wait_tag("atom"); self.barrier()
                self.wave0(lambda: self.set_flag((1 << R1) - 1))
            P(f"buffer_store_dwordx4 {vr(PQR+4*p,4)}, v{vL16}, {S(SWS)}, s{64+p} offen sc1", "pq")
        nw = self.opt.get("nw", 6)
        P.add(weave(self.wo_reads(0) + self.wo_reads(1), wo_l[:3*nw]))
        P.wait_tag("pq")
        P("s_barrier")
        self.wave0(lambda: self.set_flag((1 << R1) - 1 if one == 1 else 1 << 27))
        self.stamp("F1")
        hook(10)
        P.add(wo_l[3*nw:])

    def p2_setup(self):
        a = L(f"""
        s_lshr_b32 s88, s{sJ}, 2
        s_lshl_b32 s86, s{sX}, 3
        s_add_u32 s88, s88, s86
        s_and_b32 s89, s{sJ}, 3
        v_lshrrev_b32 v12, 3, v0
        v_and_b32 v13, 6, v12
        v_and_b32 v14, 7, v0
        v_xor_b32 v13, v13, v14
        v_lshlrev_b32 v{vSW}, 4, v13
        v_lshl_add_u32 v200, v12, 10, v{vSW}
        s_lshl_b32 s90, s{sW}, 17
        s_lshl_b32 s86, s89, 8
        s_add_u32 s90, s90, s86
        s_lshl_b32 s91, s{sW}, 14
        s_add_u32 s96, s91, 65536
        s_cmp_eq_u32 s{sW}, 3
        s_cselect_b32 s91, 131072, s91""")
        b = L(f"""
        v_lshrrev_b32 v12, 2, v{vI}
        v_lshl_add_u32 v12, v{vG}, 2, v12
        v_and_b32 v13, 6, v12
        v_bfe_u32 v14, v0, 1, 1
        v_xor_b32 v13, v13, v14
        v_and_b32 v14, 1, v0
        v_lshlrev_b32 v14, 3, v14
        v_lshl_add_u32 v14, v12, 7, v14
        v_lshl_add_u32 v{vT[0]}, v13, 4, v14
        v_xor_b32 v{vT[1]}, 32, v{vT[0]}
        v_xor_b32 v{vT[2]}, 64, v{vT[0]}
        v_xor_b32 v{vT[3]}, 96, v{vT[0]}
        s_and_b32 s86, s{sW}, 1
        s_lshl_b32 s86, s86, 6""")
        for p in range(4):
            b += L(f"s_add_u32 s87, s{sW}, {p}\ns_and_b32 s87, s87, 2\ns_lshl_b32 s87, s87, 12\ns_add_u32 s87, s87, s91")
            for cf in range(2):
                b += [f"v_xor_b32 v{204+2*p+cf}, s86, v{vT[2*(p&1)+cf]}", f"v_add_u32 v{204+2*p+cf}, s87, v{204+2*p+cf}"]
        return a, b
    def wo_dma(self, half):
        out = []
        for i in range(8):
            for st in range(2):
                if self.opt.get('rotwo', 0):
                    if st == 0:
                        out += [f"s_add_u32 s61, s88, {i}", "s_and_b32 s61, s61, 7", "s_lshl_b32 s66, s61, 10", f"s_add_u32 s66, s66, s{96 if half else 91}", "s_mov_b32 m0, s66",
                                "s_lshl_b32 s61, s61, 13", "s_add_u32 s61, s61, s90", f"s_add_u32 s60, s61, {8*half*8192}", self.dmai(200, SWO, 60, f"wo{2*half}")]
                    else:
                        out += ["s_add_u32 m0, s66, 8192", "s_add_u32 s60, s60, 128", self.dmai(200, SWO, 60, f"wo{2*half}")]
                else:
                    out += [f"s_add_u32 m0, s{96 if half else 91}, {st*8192 + i*1024}", f"s_add_u32 s60, s90, {(8*half+i)*8192 + st*128}", self.dmai(200, SWO, 60, f"wo{2*half + i//4}")]
        return out
    def wo_reads(self, kk):
        return [WT(f"wo{kk}")] + [f"ds_read_b64_tr_b16 {ar(((kk*4+p)*2+cf)*4+2*h,2)}, v{204+2*p+cf} offset:{(kk&1)*4096 + h*2048}" for p in range(4) for cf in range(2) for h in range(2)]
    def xl(self, off, d):
        self.P(f"""v_mul_u32_u24 v5, 74, v0
        v_lshrrev_b32 v5, 10, v5
        v_mul_u32_u24 v{d}, {3584 - 14*128}, v5
        v_lshl_add_u32 v5, v0, 7, v{d}
        s_lshl_b32 s86, s{sJ}, 2
        s_add_u32 s86, s86, s{sW}
        s_mul_i32 s86, s86, {4*3584}
        s_add_u32 s86, s86, {off}
        s_mov_b32 exec_hi, 0xffffff
        buffer_load_dword v{d}, v5, s[44:47], s86 offen
        s_mov_b64 exec, -1""".replace("s[44:47]", S(SWIN)))
    def win_setup(self, v):
        return L(f"""v_lshrrev_b32 v{v}, 3, v0
        v_mul_u32_u24 v{v}, 3584, v{v}
        v_add_u32 v{v}, v{v}, v{vSW}
        s_min_u32 s70, s{sCBK}, 13
        s_lshl_b32 s70, s70, 7
        s_mul_i32 s71, s{sW}, {8*3584}
        s_add_u32 s70, s70, s71
        s_lshl_b32 s71, s{sW}, 10
""")
    def win_dma(self, half, t, v):
        n = 16 if half == 0 else self.opt.get('nw1', 10)
        if self.opt.get('rotw', 0) and t < n and n % 2 == 0:
            sg = "s_add_u32" if t < n // 2 else "s_sub_u32"
            r = 78 if half == 0 else 80
            return [f"s_add_u32 m0, s71, {half*65536 + t*4096}", f"{sg} m0, m0, s{r}", f"s_add_u32 s60, s70, {t*32*3584 + (1792 if half == 0 else 0)}", f"{sg} s60, s60, s{r+1}", self.dmai(v, SWIN, 60, f"win{half}")]
        return [f"s_add_u32 m0, s71, {half*65536 + t*4096}", NOPIF, f"s_add_u32 s60, s{82 if half else 70}, {t*32*3584 + (1792 if half == 0 else 0)}", NOPIF, self.dmai(v, SWIN, 60, f"win{half}")]

    def win0_dma(self, v):
        out = L(f"s_min_u32 s72, s{sCBK}, 13\ns_lshl_b32 s72, s72, 7\ns_mul_i32 s73, s{sW}, {128*3584}\ns_add_u32 s72, s72, s73\ns_lshl_b32 s73, s{sW}, 14")
        for i in range(16):
            out += [f"s_add_u32 m0, s73, {i*1024}", f"s_add_u32 s60, s72, {i*8*3584 + 1792}", self.dmai(v, SWIN, 60, "win0")]
        return out

    def phase2(self):
        P = self.P
        EX = 114688
        XR = 244; EPSQ = 124
        P(f"""s_lshl_b32 s86, s88, 15
        s_lshl_b32 s87, s89, 8
        s_add_u32 s86, s86, s87
        s_lshl_b32 s87, s{sW}, 6
        s_add_u32 s60, s86, s87
        s_lshl_b32 s87, s{sW}, 11
        s_add_u32 m0, s87, 147456
        v_lshrrev_b32 v12, 2, v0
        v_lshrrev_b32 v13, 3, v0
        v_xor_b32 v13, v13, v0
        v_and_b32 v13, 3, v13
        v_lshlrev_b32 v13, 4, v13
        v_lshl_add_u32 v12, v12, 10, v13""")
        P.add([self.dmai(12, SX, 60, "xt"), "s_add_u32 m0, s87, 148480", "s_add_u32 s60, s60, 16384", self.dmai(12, SX, 60, "xt")])
        P(f"""v_lshrrev_b32 v13, 1, v{vI}
        v_lshrrev_b32 v14, 1, v{vG}
        v_xor_b32 v13, v13, v14
        v_and_b32 v13, 3, v13
        v_lshlrev_b32 v13, 4, v13
        v_lshl_add_u32 v13, v{vI}, 6, v13
        v_and_b32 v14, 1, v{vG}
        v_lshl_add_u32 v13, v14, 3, v13
        s_add_u32 s87, s87, 147456
        v_add_u32 v20, s87, v13
        v_xor_b32 v21, 32, v20""")
        P(f"""s_lshl_b32 s86, s{sW}, 3
        s_mul_i32 s92, s86, {KVS}
        s_add_u32 s92, s92, {KV}
        s_add_u32 s93, s92, {4*KVS}
        s_lshl_b32 s94, s88, 5
        s_add_u32 s94, s94, s86
        s_lshl_b32 s94, s94, 10
        s_add_u32 s94, s94, {PQ}
        s_add_u32 s95, s94, 4096
        v_and_b32 v12, 7, v0
        v_mul_u32_u24 v12, {KVS}, v12
        v_lshl_add_u32 v19, v{vG}, 4, v12
        v_and_b32 v18, 31, v0
        v_lshlrev_b32 v18, 2, v18
        s_lshl_b32 s66, s{sX}, 7
        s_add_u32 s66, s66, {XID}
        s_lshl_b32 s83, s88, 6
        s_add_u32 s83, s83, {FP}
        s_lshl_b32 s74, s89, 2
        s_add_u32 s74, s74, s{sW}
        s_lshl_b32 s74, s74, 2
        s_add_u32 s74, s74, s83
        v_lshlrev_b32 v255, 2, v{vI}
        s_lshl_b32 s67, s{sX}, 10
        s_lshr_b32 s97, s88, 1
        s_lshl_b32 s97, s97, 7
        s_add_u32 s97, s97, {F1B}
        v_and_b32 v16, 7, v0
        v_lshlrev_b32 v16, 2, v16""")
        for k in range(4): P(f"v_mov_b32 v{EPSQ+k}, s{sEPS6}")
        P.add(self.win_setup(123))
        P("s_mov_b32 s82, s70")
        if self.opt.get("redir", 1):
            Lb = P.lab("Lr")
            P(f"""s_cmp_lt_u32 s{sCBK}, 14
            s_cbranch_scc1 {Lb}
            s_mov_b32 s{SWIN}, s{SWSP}
            s_mov_b32 s{SWIN+1}, s{SWSP+1}
            s_mov_b32 s{SWIN+2}, 8388608
            s_lshl_b32 s86, s{sRB}, 1
            s_add_u32 s86, s86, s{sCBK}
            s_sub_u32 s86, s86, 14
            s_lshl_b32 s86, s86, 2
            s_add_u32 s86, s86, s{sW}
            s_mul_i32 s87, s86, 147
            s_lshr_b32 s87, s87, 12
            s_mul_i32 s87, s87, 420
            s_add_u32 s86, s86, s87
            s_lshl_b32 s86, s86, 12
            s_mov_b32 s70, s86
            s_mov_b32 s82, 0x40000000
            v_lshrrev_b32 v123, 4, v0
            v_lshlrev_b32 v123, 10, v123
            v_bfe_u32 v12, v0, 3, 1
            v_lshl_add_u32 v123, v12, 7, v123
            v_and_b32 v12, 7, v0
            v_lshl_add_u32 v123, v12, 4, v123
            v_add_u32 v123, {4096 - 1792}, v123
            s_sub_u32 s70, s70, 4096
            s_cmp_eq_u32 s86, 0
            s_cselect_b32 s70, 0x40000000, s70
            {Lb}:""")
        for p in range(1, 4):
            P(f"s_add_u32 s86, s{sW}, {p}\ns_and_b32 s86, s86, 3\ns_mul_i32 s86, s86, 12288\ns_add_u32 s86, s86, {EX + (p-1)*4096}")
            P(f"v_add_u32 v{118+p}, s86, v{vL16}")
        P(f"""s_mul_i32 s86, s{sW}, 12288
        s_add_u32 s86, s86, {EX}
        v_add_u32 v118, s86, v{vL16}
        s_lshl_b32 s64, s88, 5
        s_lshl_b32 s87, s89, 2
        s_add_u32 s64, s64, s87
        s_add_u32 s64, s64, s{sW}
        s_lshl_b32 s64, s64, 10
        s_add_u32 s64, s64, {H}
        s_add_u32 s65, s64, 16384
        s_lshl_b32 s61, s88, 12
        s_lshl_b32 s86, s89, 8
        s_add_u32 s61, s61, s86
        s_lshr_b32 s86, s{sW}, 1
        s_lshl_b32 s86, s86, 10
        s_add_u32 s61, s61, s86
        s_and_b32 s86, s{sW}, 1
        s_lshl_b32 s86, s86, 3
        s_add_u32 s61, s61, s86
        s_add_u32 s61, s61, {HST}
        v_lshlrev_b32 v122, 4, v{vI}
        v_lshl_add_u32 v122, v{vG}, 11, v122""")
        if self.opt.get("touch", 3) == 1:
            P(f"""v_and_b32 v12, 7, v0
            v_lshlrev_b32 v12, 7, v12
            v_bfe_u32 v13, v0, 3, 1
            v_lshl_add_u32 v12, v13, 14, v12
            s_mov_b64 exec, {self.opt.get('tmH', 0xffff)}
            buffer_load_dword v253, v12, {S(SWS)}, s64 offen {self.opt.get('tm', '')}
            v_and_b32 v12, 1, v0
            v_lshlrev_b32 v12, 7, v12
            v_bfe_u32 v13, v0, 1, 1
            v_lshl_add_u32 v12, v13, 11, v12
            s_mov_b64 exec, {self.opt.get('tmS', 0xf)}
            buffer_load_dword v254, v12, {S(SWS)}, s61 offen {self.opt.get('tm', '')}
            s_mov_b64 exec, -1""")
        fl2 = f"buffer_load_dwordx4 v[12:15], v{vL16}, {S(SWS)}, s67 offen sc1\n" + (f"v_mov_b32 v17, s{sE}" if self.opt.get("one", 0) == 1 else f"buffer_load_dword v17, v16, {S(SWS)}, s97 offen sc1")
        if self.opt.get("nbp", 0): self.wave0(lambda: P(fl2))
        P("s_sub_u32 s86, s96, s91")
        for r in range(204, 212): P(f"v_add_u32 v{r}, s86, v{r}")
        P.add(self.wo_reads(2) + self.wo_reads(3))
        P.wait_tag("xt")
        for a in range(2):
            for cf in range(2): P(f"ds_read_b64 {vr(XR+(a*2+cf)*2,2)}, v{20+cf} offset:{a*1024}")
        self.stamp("wo")
        cm = "\n".join(f"v_xor_b32 v{r}, s{sE}, v{r}" for r in (12, 13, 14, 15, 17)) + "\nv_or3_b32 v12, v12, v13, v14\nv_or3_b32 v12, v12, v15, v17\nv_cmp_ne_u32 vcc, 0, v12"
        def pl():
            if not self.opt.get("nbp", 0): P(fl2)
            self.check_retry(fl2, cm)
        self.wave0(pl)
        self.barrier()
        self.stamp("sync1")
        KR = 16; KP = 48; ZR = 64; ZC = 68; ZP = 70; PQR = 86; ACC = 128; OF = 192; ND = 212
        P(f"buffer_load_dwordx4 {vr(ZR,4)}, v19, {S(SWS)}, s92 offen offset:1024 sc1")
        P(f"buffer_load_dword v252, v18, {S(SWS)}, s66 offen sc1")
        for h in range(8):
            P(f"buffer_load_dwordx4 {vr(KR+4*h,4)}, v{vL16}, {S(SWS)}, s{92+h//4} offen offset:{(h%4)*KVS} sc1")
            P(f"buffer_load_dwordx4 {vr(PQR+4*h,4)}, v{vL16}, {S(SWS)}, s{94+h//4} offen offset:{(h%4)*1024} sc1")
        if self.opt.get("touch", 3) == 2:
            P(f"""v_and_b32 v12, 7, v0
            v_lshlrev_b32 v12, 7, v12
            v_bfe_u32 v13, v0, 3, 1
            v_lshl_add_u32 v12, v13, 14, v12
            s_mov_b64 exec, {self.opt.get('tmH', 0xffff)}
            buffer_load_dword v253, v12, {S(SWS)}, s64 offen {self.opt.get('tm', '')}
            v_and_b32 v12, 1, v0
            v_lshlrev_b32 v12, 7, v12
            v_bfe_u32 v13, v0, 1, 1
            v_lshl_add_u32 v12, v13, 11, v12
            s_mov_b64 exec, {self.opt.get('tmS', 0xf)}
            buffer_load_dword v254, v12, {S(SWS)}, s61 offen {self.opt.get('tm', '')}
            s_mov_b64 exec, -1""")
        wd = []
        if not self.opt.get("w0early", 0):
            for t in range(16): wd += self.win_dma(0, t, 123)
        NW1 = self.opt.get('nw1', 10)
        for t in range(NW1): wd += self.win_dma(1, t, 123)
        ni, ns = self.opt.get("ni", 0), self.opt.get("ns", 0)
        P.add(wd[:5*ni]); wd = wd[5*ni:]
        wds = wd[len(wd) - 5*ns:] if ns else []; wd = wd[:len(wd) - 5*ns]
        P(f"v_cvt_pk_bf16_f32 v{ZC}, v{ZR}, v{ZR+1}\nv_cvt_pk_bf16_f32 v{ZC+1}, v{ZR+2}, v{ZR+3}")
        P(f"v_cmp_ne_u32 vcc, s{sXCC}, v252")
        for h in range(8):
            for k in range(2): P(f"v_mov_b32_dpp v{ZP+2*h+k}, v{ZC+k} row_newbcast:{h} row_mask:0xf bank_mask:0xf")
        P(f"s_cmp_eq_u64 vcc, 0\ns_cselect_b32 s{sM}, {self.opt.get('fast', 1)}, 0")
        def ostep(kk):
            c = []; m = []
            for hh in range(2):
                h = 2*kk + hh
                c += [f"v_cvt_pk_bf16_f32 v{KP+2*h}, v{KR+4*h}, v{KR+4*h+1}", f"v_cvt_pk_bf16_f32 v{KP+2*h+1}, v{KR+4*h+2}, v{KR+4*h+3}"]
            for hh in range(2):
                h = 2*kk + hh
                for a in range(2):
                    m.append(f"v_mfma_f32_16x16x16_bf16 {vr(ND+8*(2*hh+a)+4,4)}, {vr(ZP+2*h,2)}, {vr(PQR+4*h+2*a,2)}, {vr(EPSQ,4)}")
            for hh in range(2):
                h = 2*kk + hh
                for a in range(2):
                    m.append(f"v_mfma_f32_16x16x16_bf16 {vr(ND+8*(2*hh+a),4)}, {vr(KP+2*h,2)}, {vr(PQR+4*h+2*a,2)}, 0")
            v = [f"v_rcp_f32 v{ND+8*q+4}, v{ND+8*q+4}" for q in range(4)]
            for hh in range(2):
                for a in range(2):
                    nd = ND + 8*(2*hh+a); o = OF + 8*(kk&1) + 4*a + 2*hh
                    v += [f"v_mul_f32 v{nd+k}, v{nd+k}, v{nd+4}" for k in range(4)]
                    v += [f"v_cvt_pk_bf16_f32 v{o}, v{nd}, v{nd+1}", f"v_cvt_pk_bf16_f32 v{o+1}, v{nd+2}, v{nd+3}"]
            return c, m, v
        def gstep(kk):
            m = []
            for p in range(4):
                for cf in range(2):
                    for a in range(2):
                        acc = vr(ACC + ((p*2+a)*2+cf)*4, 4)
                        m.append(f"{MF} {acc}, {ar(((kk*4+p)*2+cf)*4,4)}, {vr(OF+8*(kk&1)+4*a,4)}, {acc if kk else '0'}")
            return m
        c, m, v = ostep(0); P.add(c[:2] + mix(m[:4], c[2:]) + m[4:] + v)
        self.stamp("p2o0", True)
        if self.opt.get("xl1", -1) == 20: self.xl(0, 255)
        if self.opt.get("touch", 3) == 3 and not self.opt.get("ov", 1):
            P(f"""v_and_b32 v12, 7, v0
            v_lshlrev_b32 v12, 7, v12
            v_bfe_u32 v13, v0, 3, 1
            v_lshl_add_u32 v12, v13, 14, v12
            s_mov_b64 exec, {self.opt.get('tmH', 0xffff)}
            buffer_load_dword v253, v12, {S(SWS)}, s64 offen {self.opt.get('tm', '')}
            v_and_b32 v12, 1, v0
            v_lshlrev_b32 v12, 7, v12
            v_bfe_u32 v13, v0, 1, 1
            v_lshl_add_u32 v12, v13, 11, v12
            s_mov_b64 exec, {self.opt.get('tmS', 0xf)}
            buffer_load_dword v254, v12, {S(SWS)}, s61 offen {self.opt.get('tm', '')}
            s_mov_b64 exec, -1""")
        XF = 80
        xun = []
        for q in range(4):
            for k in range(2): xun += [f"v_lshlrev_b32 v{XF+4*q+2*k}, 16, v{XR+2*q+k}", f"v_and_b32 v{XF+4*q+2*k+1}, 0xffff0000, v{XR+2*q+k}"]
        xw = [f"ds_write_b128 v{118+p}, {vr(ACC+(p*4+q)*4,4)} offset:{q*1024}" for p in range(1, 4) for q in range(4)]
        for kk in range(4):
            g = gstep(kk)
            if kk < 3:
                c, m, v = ostep(kk+1)
                q_ = min(25, 5 * ((len(wd) // 5 + 3) // 4)); h_ = 5 * (q_ // 10)
                P.add(mix(m[:4], c) + mix(m[4:], wd[q_*kk:q_*kk+h_]))
                if kk == 2 and self.opt.get("ov", 1):
                    P(f"v_mov_b32 v253, s{sE}\ns_mov_b64 exec, 1")
                    self.local([f"buffer_store_dword v253, off, {S(SWS)}, s74 @SC"], flag=True)
                    P("s_mov_b64 exec, -1")
                P.add(mix(g, weave(v, wd[q_*kk+h_:q_*kk+q_], 5), 1))
            else:
                g = g[4:] + g[:4]
                P.add(mix(g[:9], wd[3*q_:3*q_+15]) + mix(g[9:], xw[:7]) + xw[7:])
        self.stamp("p2mm")
        fpl = f"buffer_load_dword v254, v255, {S(SWS)}, s83 offen sc1"
        if self.opt.get("ov", 1) and self.opt.get("fpa", 0) == 0: P(fpl)
        if self.opt.get("touch", 3) == 4:
            P(f"""v_and_b32 v12, 7, v0
            v_lshlrev_b32 v12, 7, v12
            v_bfe_u32 v13, v0, 3, 1
            v_lshl_add_u32 v12, v13, 14, v12
            s_mov_b64 exec, {self.opt.get('tmH', 0xffff)}
            buffer_load_dword v253, v12, {S(SWS)}, s64 offen {self.opt.get('tm', '')}
            v_and_b32 v12, 1, v0
            v_lshlrev_b32 v12, 7, v12
            v_bfe_u32 v13, v0, 1, 1
            v_lshl_add_u32 v12, v13, 11, v12
            s_mov_b64 exec, {self.opt.get('tmS', 0xf)}
            buffer_load_dword v254, v12, {S(SWS)}, s61 offen {self.opt.get('tm', '')}
            s_mov_b64 exec, -1""")
        P.add(weave(xun, wd[3*q_+15:], 5))
        for q in range(4):
            for k in range(2): P(f"v_pk_add_f32 {vr(ACC+4*q+2*k,2)}, {vr(ACC+4*q+2*k,2)}, {vr(XF+4*q+2*k,2)}")
        self.barrier()
        RB = 32; HO = 96
        if self.opt.get("ov", 1) and self.opt.get("fpa", 0) == 1: P(fpl)
        for q in range(4):
            for p in range(3): P(f"ds_read_b128 {vr(RB+(p*4+q)*4,4)}, v118 offset:{(p*4+q)*1024}")
        for q in range(4):
            for p in range(3):
                for k in range(2): P(f"v_pk_add_f32 {vr(ACC+4*q+2*k,2)}, {vr(ACC+4*q+2*k,2)}, {vr(RB+(p*4+q)*4+2*k,2)}")
            for k in range(2): P(f"v_cvt_pk_bf16_f32 v{HO+2*q+k}, v{ACC+4*q+2*k}, v{ACC+4*q+2*k+1}")
        if self.opt.get("ov", 1): self.check_retry(fpl, f"v_cmp_ne_u32 vcc, s{sE}, v254")
        self.local([f"buffer_store_dwordx4 {vr(HO+4*a,4)}, v{vL16}, {S(SWS)}, s{64+a} offen @SC" for a in range(2)], "hst")
        SS = 104
        ls = []
        for a in range(2):
            x = ACC + 8*a; s_ = SS + 4*a
            ls.append([f"v_pk_add_f32 {vr(s_,2)}, {vr(x,2)}, {vr(x+2,2)}", f"v_pk_mul_f32 {vr(s_+2,2)}, {vr(x,2)}, {vr(x,2)}",
                       f"v_pk_add_f32 {vr(s_,2)}, {vr(s_,2)}, {vr(x+4,2)}", f"v_pk_fma_f32 {vr(s_+2,2)}, {vr(x+2,2)}, {vr(x+2,2)}, {vr(s_+2,2)}",
                       f"v_pk_add_f32 {vr(s_,2)}, {vr(s_,2)}, {vr(x+6,2)}", f"v_pk_fma_f32 {vr(s_+2,2)}, {vr(x+4,2)}, {vr(x+4,2)}, {vr(s_+2,2)}",
                       f"v_add_f32 v{s_}, v{s_}, v{s_+1}", f"v_pk_fma_f32 {vr(s_+2,2)}, {vr(x+6,2)}, {vr(x+6,2)}, {vr(s_+2,2)}",
                       f"v_add_f32 v{s_+1}, v{s_+2}, v{s_+3}"])
        P.add(zipped(ls))
        self.xreduce([SS, SS+1, SS+4, SS+5], 112, ops=("v_permlane32_swap_b32",))
        P(f"""v_permlane16_swap_b32 v{SS}, v{SS+4}
        v_permlane16_swap_b32 v{SS+1}, v{SS+5}
        v_pk_add_f32 {vr(SS,2)}, {vr(SS,2)}, {vr(SS+4,2)}
        s_mov_b32 exec_hi, 0""")
        self.local([f"buffer_store_dwordx2 {vr(SS,2)}, v122, {S(SWS)}, s61 offen @SC"], "hst")
        P("s_mov_b64 exec, -1")
        P.add(wds)
        self.p3_setup()
        P.wait_tag("hst")
        self.barrier()
        self.wave0(lambda: self.set_flag(1 << 16, True))
        self.stamp("F2")

    def wsp_setup(self):
        o = L(f"""v_lshrrev_b32 v12, 3, v0
        v_and_b32 v13, 7, v0
        v_xor_b32 v13, v13, v{vG}
        v_lshlrev_b32 v13, 4, v13
        v_lshl_add_u32 v244, v12, 12, v13
        v_xor_b32 v245, 64, v244
        v_add_u32 v245, 32768, v245
        s_lshl_b32 s96, s{self.T4}, 18
        s_lshl_b32 s86, s{sW}, 10
        s_add_u32 s96, s96, s86
        s_lshl_b32 s97, s{sW}, 14
        v_lshrrev_b32 v12, 1, v{vI}
        v_xor_b32 v12, v12, v{vG}
        v_lshlrev_b32 v12, 4, v12
        v_lshl_add_u32 v12, v{vI}, 7, v12
        v_xor_b32 v13, 64, v12""")
        for p in range(4):
            o += L(f"s_add_u32 s86, s{sW}, {p}\ns_and_b32 s86, s86, 3\ns_lshl_b32 s86, s86, 11\ns_add_u32 s86, s86, s97\nv_add_u32 v{246+2*p}, s86, v12\nv_add_u32 v{247+2*p}, s86, v13")
        return o
    def wsp_issue(self, c, hi=False):
        out = [WD(f"wr{c-2}")] if c >= 2 and hi is False else []
        out += [NOPIF] * 6
        for i in range(8):
            out.append(f"s_add_u32 m0, s97, {(c&1)*8192 + i*1024 + (65536 if hi else 0)}")
            out.append(f"s_add_u32 s60, s96, {(i>>1)*65536 + c*128}" if i % 2 == 0 else NOPIF)
            out.append(self.dmai(244+(i&1), SWSP, 60, f"wsp{c}"))
        return out
    def wsp_read(self, c):
        return [WT(f"wsp{c}")] + [("T", f"ds_read_b128 {ar(((2*c+t)*4+p)*4,4)}, v{246+2*p+t} offset:{(c&1)*8192}", f"wr{c}") for t in range(2) for p in range(4)]
    def wsp_tohi(self): return [f"v_xor_b32 v{r}, 0x10000, v{r}" for r in range(246, 254)]
    KE = list(range(21, 28)); KT = list(range(9, 21)); KL = list(range(9))
    def wout_setup(self, v):
        return L(f"""v_lshrrev_b32 v{v}, 3, v0
        v_lshl_add_u32 v{v}, v{v}, 10, v{vSW}
        s_lshl_b32 s68, s{sW}, 13
        s_lshl_b32 s86, s{sFB}, 7
        s_add_u32 s68, s68, s86
        s_lshl_b32 s69, s{sW}, 10
        s_add_u32 s69, s69, 49152""")
    def wout(self, k, v, tag="wout"):
        return [f"s_add_u32 m0, s69, {k*4096}", f"s_add_u32 s61, s68, {k*4*8192}", self.dmai(v, SWOUT, 61, tag)]
    def wout_pf(self):
        if not self.opt.get("pfwo", 0): return []
        return L(f"""s_lshr_b32 s86, s{sJ}, 3
        s_lshl_b32 s86, s86, 2
        s_add_u32 s86, s86, s{sW}
        s_mul_i32 s86, s86, {42*1024}
        s_lshl_b32 s87, s{sFB}, 7
        s_add_u32 s86, s86, s87
        v_lshlrev_b32 v5, 10, v0
        s_mov_b32 exec_hi, 0x3ff
        buffer_load_dword v19, v5, {S(SWOUT)}, s86 offen
        s_mov_b64 exec, -1""")
    def pf_addr(self, v):
        return L(f"""v_bfe_u32 v{v}, v0, 2, 2
        v_lshlrev_b32 v{v}, 10, v{v}
        v_lshl_add_u32 v{v}, v{vG}, 12, v{v}
        v_and_b32 v5, 3, v0
        v_lshl_add_u32 v{v}, v5, 7, v{v}""")
    SCR3 = 131072
    def p3_setup(self):
        SCR = self.SCR3
        self.P(f"""s_lshl_b32 s90, s{sRB}, 3
        s_lshl_b32 s86, s{sW}, 1
        s_add_u32 s90, s90, s86
        s_lshl_b32 s93, s90, 11
        s_add_u32 s93, s93, {HST}
        s_lshl_b32 s90, s90, 14
        s_add_u32 s90, s90, {H}
        s_lshl_b32 s91, s{sW}, 9
        s_add_u32 s91, s91, {SCR + 512}
        s_lshl_b32 s67, s{sRB}, 7
        s_add_u32 s67, s67, {F2}
        v_lshlrev_b32 v240, 2, v{vI}
        v_mov_b32 v12, 0x3f803f80
        v_accvgpr_write_b32 a240, v12
        v_accvgpr_write_b32 a241, v12
        v_accvgpr_write_b32 a242, v12
        v_accvgpr_write_b32 a243, v12
        s_lshl_b32 s86, s{sW}, 5
        v_xor_b32 v15, s86, v{vT[0]}
        s_mul_i32 s74, s{sRB}, 14
        s_add_u32 s74, s74, s{sCBK}
        s_mul_i32 s74, s74, 3
        s_add_u32 s74, s74, s{sW}
        s_lshl_b32 s74, s74, 14
        s_add_u32 s74, s74, 512
        s_cmp_eq_u32 s{sW}, 3
        s_cselect_b32 s74, 0x1000000, s74""")

    def colsum(self, base, tmp, dst_off):
        rd = [[f"ds_read_b64_tr_b16 {vr(tmp+4*t+2*h,2)}, v15 offset:{t*4096 + h*2048}" for h in range(2)] for t in range(16)]
        out = rd[0] + rd[1] + rd[2]
        for t in range(16):
            out.append(f"{MF} {ar(236,4)}, {ar(240,4)}, {vr(tmp+4*t,4)}, {ar(236,4) if t else '0'}")
            if t + 3 < 16: out += rd[t+3]
        tail = L(f"s_lshl_b32 s86, s{sW}, 6\ns_add_u32 s86, s86, {dst_off}\nv_lshl_add_u32 v5, v{vI}, 2, s86\nds_write_b32 v5, a236")
        return out, tail

    def phase3(self):
        P = self.P
        SCR = self.SCR3
        HF = 16; BB = 144; A2 = 176; A1 = 212
        AON, AEX, ACS = 240, 244, 236
        Lskip = "L_p3skip"; Ljoin = "L_p3join"
        P(f"s_cmp_ge_u32 s{sCBK}, 14\ns_cbranch_scc1 {Lskip}")
        def breads(t):
            return [f"ds_read_b64_tr_b16 {vr(BB+16*(t&1)+4*f+2*h,2)}, v{vT[f]} offset:{t*4096 + h*2048}" for f in range(4) for h in range(2)]
        o, tl = self.colsum(0, 16, 133632); P.add(o + tl)
        P.add(breads(0))
        self.wave0(lambda: self.poll(240, soff="s67"))
        self.barrier()
        self.stamp("sync2")
        HS = A1; CS2 = A1 + 16; K1 = 254
        def hl(t):
            if t >= 16:
                a = t - 16
                return [f"buffer_load_dwordx4 {vr(HS+8*a+4*hf,4)}, v{vL16}, {S(SWS)}, s93 offen offset:{a*2048+hf*1024} sc1" for hf in range(2)] if a < 2 else []
            o = [f"s_add_u32 s64, s90, {t*1024}", f"s_add_u32 s65, s90, {16384 + t*1024}"] if t % 4 == 0 else []
            return o + [f"buffer_load_dwordx4 {vr(HF+(t*2+a)*4,4)}, v{vL16}, {S(SWS)}, s{64+a} offen offset:{(t%4)*1024} sc1" for a in range(2)]
        HD = self.opt.get("HD", 5)
        for t in range(HD): P.add(hl(t))
        P("v_add_u32 v5, 133632, v240")
        for f in range(4): P(f"ds_read_b32 v{CS2+f}, v5 offset:{f*64}")
        late = []
        for t in range(self.opt.get('nw1', 10), 16): late += self.win_dma(1, t, 241)
        misc = [f"v_lshrrev_b32 v241, 3, v0", "v_mul_u32_u24 v241, 3584, v241", f"v_add_u32 v241, v241, v{vSW}"] + self.wout_setup(242)
        P.add(misc)
        misc = self.wsp_setup() + L(f"""v_mov_b32 v{K1}, {f2u(K1C):#x}
        v_mov_b32 v{K1+1}, {f2u(K1C):#x}
        v_lshl_add_u32 v13, v{vI}, 2, s91
        v_lshl_add_u32 v14, v{vG}, 4, s91
        v_bfe_u32 v12, v0, 3, 1
        v_lshlrev_b32 v12, 8, v12
        v_lshl_add_u32 v12, v{vG}, 6, v12
        v_bfe_u32 v5, v0, 2, 1
        v_lshl_add_u32 v12, v5, 5, v12
        v_and_b32 v5, 1, v0
        v_lshl_add_u32 v12, v5, 4, v12
        v_cmp_eq_u32 s[72:73], 1, v5
        s_lshl_b32 s92, s{sRB}, 15
        s_lshl_b32 s86, s{sW}, 9
        s_add_u32 s92, s92, s86
        s_add_u32 s92, s92, {STATS}
        s_lshl_b32 s66, s{sCBK}, 11
        s_add_u32 s66, s66, s92""")
        nm = (len(misc) + 11) // 12
        for t in range(16):
            m = []
            for f in range(4):
                for a in range(2):
                    acc = vr(A2 + (a*4+f)*4, 4)
                    m.append(f"{MF} {acc}, {vr(HF+(t*2+a)*4,4)}, {vr(BB+16*(t&1)+4*f,4)}, {acc if t else '0'}")
            if t in (1, 4, 8, 12): self.stamp(f"z2k{t}", True)
            hh = hl(t + HD); g = max(1, len(hh) - 1)
            if t + HD >= 18:
                k = t + HD - 18
                hh = late[:10]; late = late[10:]; g = 5
            P.add(lay2(m, breads(t+1) if t < 15 else [], weave(misc[nm*t:nm*t+nm], hh, g)) if self.opt.get('lay', 1) else mix(m, weave((breads(t+1) if t < 15 else []) + misc[nm*t:nm*t+nm], hh, g)))
        self.stamp("z2mm")
        P.add(late)
        if self.opt.get("touch", 3): P(f"v_lshlrev_b32 v5, 7, v0\ns_mov_b64 exec, 0xf\nbuffer_load_dword a234, v5, {S(SWS)}, s66 offen {self.opt.get('tm', '')}\ns_mov_b64 exec, -1")
        if self.opt.get("l2pf", 2) == 1: P(f"buffer_load_dword a235, v242, {S(SWSP)}, s74 offen")
        LA = [208, 210]; LB = [209, 211]
        for a in range(2):
            x = HS + 8*a
            P(f"v_pk_add_f32 {vr(x,2)}, {vr(x,2)}, {vr(x+2,2)}\nv_pk_add_f32 {vr(x+4,2)}, {vr(x+4,2)}, {vr(x+6,2)}")
        for a in range(2):
            x = HS + 8*a
            P(f"v_pk_add_f32 {vr(x,2)}, {vr(x,2)}, {vr(x+4,2)}")
        self.barrier()
        self.xreduce([HS, HS+1, HS+8, HS+9], BB)
        self.finstats([(HS, HS+1), (HS+8, HS+9)], 512, LA, LB)
        for a in range(2): P(f"ds_write_b32 v13, v{LA[a]} offset:{a*64}\nds_write_b32 v13, v{LB[a]} offset:{128+a*64}")
        iss01 = self.wsp_issue(0) + self.wsp_issue(1)
        P.add(iss01[:12]); iss01 = iss01[12:]
        P.wait_ds()
        RA = BB; RBb = BB + 8
        for a in range(2): P(f"ds_read_b128 {vr(RA+4*a,4)}, v14 offset:{a*64}\nds_read_b128 {vr(RBb+4*a,4)}, v14 offset:{128+a*64}")
        P.add(iss01[:6]); iss01 = iss01[6:]
        TT = BB + 16; SM = A1; SQ2 = A1 + 8
        for k in self.KE: iss01 += self.wout(k, 242, "woutE")
        for f in range(4):
            ls = []
            for a in range(2):
                for hp in range(2):
                    x = A2 + (a*4+f)*4 + 2*hp; t = TT + 2*(2*a+hp); sm = SM + 4*a + 2*hp; sq = SQ2 + 4*a + 2*hp
                    l = self.affine_pair(x, t, RA+4*a+2*hp, RBb+4*a+2*hp, CS2+f, False) + self.gelu_pair(x, t, K1)
                    if f == 0: l += [f"v_pk_mul_f32 {vr(sq,2)}, {vr(x,2)}, {vr(x,2)}"]
                    else: l += [f"v_pk_fma_f32 {vr(sq,2)}, {vr(x,2)}, {vr(x,2)}, {vr(sq,2)}",
                                f"v_pk_add_f32 {vr(sm,2)}, {vr(sm if f > 1 else A2 + a*16 + 2*hp,2)}, {vr(x,2)}"]
                    ls.append(l)
            self.stamp(f"z2e{f}", True)
            P.add(weave(zipped(ls), iss01[[0, 21, 42, 54][f]:[21, 42, 54, 63][f]]))
        def val(a, r, st): return (SQ2 if st else SM) + 4*a + r
        L1 = A1 + 16; L2 = A1 + 24
        z1pre = [f"v_add_u32 v{r}, 65536, v{r}" for r in vT + [15]]
        for a, bm in ((0, 0x3), (1, 0xc)):
            for r in range(4):
                for st in range(2): P(f"v_add_f32_dpp v{L1+2*r+st}, v{val(a,r,st)}, v{val(a,r,st)} row_ror:8 row_mask:0xf bank_mask:{bm:#x}")
        P.add(z1pre)
        P.wait_tag("win1")
        for rh, bm in ((0, 0x5), (1, 0xa)):
            for rl in range(2):
                for st in range(2):
                    s_ = L1 + 2*(2*rh+rl) + st
                    P(f"v_add_f32_dpp v{L2+2*rl+st}, v{s_}, v{s_} row_half_mirror row_mask:0xf bank_mask:{bm:#x}")
        P("s_barrier")
        for qp in ("[1,0,3,2]", "[2,3,0,1]"):
            for k in range(4): P(f"v_add_f32_dpp v{L2+k}, v{L2+k}, v{L2+k} quad_perm:{qp} row_mask:0xf bank_mask:0xf")
        P.add(breads(0))
        P(f"""v_cndmask_b32 v{L2}, v{L2}, v{L2+2}, s[72:73]
        v_cndmask_b32 v{L2+1}, v{L2+1}, v{L2+3}, s[72:73]
        v_mov_b32 v{L2+2}, s{sE}
        v_mov_b32 v{L2+3}, s{sE}
        s_mov_b32 exec_lo, 0x33333333
        s_mov_b32 exec_hi, 0x33333333""")
        self.local([f"buffer_store_dwordx4 {vr(L2,4)}, v12, {S(SWS)}, s66 offen @SC"])
        P("s_mov_b64 exec, -1")
        self.stamp("z2ep")
        i2, i3, i4, i5 = [self.wsp_issue(c) for c in range(2, 6)]
        r0, r1, r2, r3 = [self.wsp_read(c) for c in range(4)]
        GS = HF
        misc = L(f"""v_lshrrev_b32 v12, 5, v0
        v_lshlrev_b32 v12, 11, v12
        v_and_b32 v13, 31, v0
        v_lshl_add_u32 v12, v13, 4, v12
        v_lshl_add_u32 v13, v13, 2, s91
        s_lshl_b32 s93, s{sRB}, 2
        s_add_u32 s93, s93, s{sW}
        s_mul_i32 s93, s93, 7168
        s_add_u32 s93, s93, {Z2}""")
        for f in range(4):
            misc += L(f"""s_lshl_b32 s86, s{sCBK}, 2
            s_add_u32 s86, s86, {f}
            s_mul_i32 s87, s86, 37
            s_lshr_b32 s87, s87, 8
            s_mul_i32 s87, s87, {64*7 - 7}
            s_add_u32 s86, s86, s87
            s_lshl_b32 s86, s86, 10
            s_add_u32 s{64+f}, s86, s93""")
        misc += L(f"""s_lshl_b32 s93, s{sRB}, 3
        s_lshl_b32 s86, s{sW}, 1
        s_add_u32 s93, s93, s86
        s_mul_i32 s93, s93, 56
        s_lshl_b32 s86, s{sCBK}, 2
        s_add_u32 s93, s93, s86
        s_lshl_b32 s93, s93, 9
        s_add_u32 s93, s93, {Z1}
        s_add_u32 s94, s93, {56*512}""")
        T1 = self.opt.get("T1", 8); TG = self.opt.get("TG", 5); TF = self.opt.get("TF", 13)
        gll = []
        for m_ in range(7): gll += [f"s_add_u32 s60, s92, {m_*4096}", f"buffer_load_dwordx4 {vr(GS+4*m_,4)}, v12, {S(SWS)}, s60 offen sc1"]
        gl = "\n".join(gll)
        misc = misc + L(f"""v_bfe_u32 v5, v0, 4, 1
        v_bfe_u32 v241 , v0, 5, 1""") if False else misc
        def z1k(t, extra):
            m = []
            for f in range(4):
                for a in range(2):
                    acc = vr(A1 + (a*4+f)*4, 4)
                    m.append(f"{MF} {acc}, {vr(BB+16*(t&1)+4*f,4)}, {vr(HF+(t*2+a)*4,4)}, {acc if t else '0'}")
            nxt = breads(t+1) if t < 15 else []
            self.stamp(f"z1k{t}", True) if t in (0, 2, 4, T1, 10, 14) else None
            P.add(lay2(m, nxt, extra) if self.opt.get('lay', 1) else mix(m, weave(nxt, extra)))
        bq = i2 + i3
        ex = {0: misc[:9], 1: r0, 2: r1, 3: misc[9:18], 4: gll, 5: bq[:13] , 6: bq[13:19] + misc[18:22]}
        bq = bq[19:]
        for t in range(T1): z1k(t, ex.get(t, []))
        self.stamp("z1a")
        RA2 = HF + 28; RB2 = HF + 36; ZO = HF
        cmpc = "\n".join(f"v_xor_b32 v{GS+4*m_+2}, s{sE}, v{GS+4*m_+2}" for m_ in range(7))
        cmpc += f"\nv_or3_b32 v5, v{GS+2}, v{GS+6}, v{GS+10}\nv_or3_b32 v5, v5, v{GS+14}, v{GS+18}\nv_or3_b32 v5, v5, v{GS+22}, v{GS+26}\nv_cmp_ne_u32 vcc, 0, v5"
        self.check_retry(gl, cmpc)
        self.stamp("gath", True)
        P(f"v_pk_add_f32 {vr(GS,2)}, {vr(GS,2)}, {vr(GS+4,2)}\nv_pk_add_f32 {vr(GS+8,2)}, {vr(GS+8,2)}, {vr(GS+12,2)}\nv_pk_add_f32 {vr(GS+16,2)}, {vr(GS+16,2)}, {vr(GS+20,2)}")
        P(f"v_pk_add_f32 {vr(GS,2)}, {vr(GS,2)}, {vr(GS+8,2)}\nv_pk_add_f32 {vr(GS+16,2)}, {vr(GS+16,2)}, {vr(GS+24,2)}\nv_pk_add_f32 {vr(GS,2)}, {vr(GS,2)}, {vr(GS+16,2)}")
        P.add(bq[:3]); bq = bq[3:]
        self.xreduce([GS, GS+1], GS+2, ops=("v_permlane32_swap_b32",))
        self.finstats([(GS, GS+1)], 896, [GS+4], [GS+5])
        P(f"""ds_write_b32 v13, v{GS+4} offset:256
        ds_write_b32 v13, v{GS+5} offset:384
        v_bfe_u32 v12, v0, 4, 1
        v_bfe_u32 v13, v0, 5, 1
        v_lshl_add_u32 v12, v12, 1, v13
        v_lshl_add_u32 v12, v12, 4, v{vI}
        v_lshlrev_b32 v12, 4, v12""")
        P.add(bq[:3] + misc[22:30]); bq = bq[3:]
        P.wait_ds()
        for a in range(2): P(f"ds_read_b128 {vr(RA2+4*a,4)}, v14 offset:{256+a*64}\nds_read_b128 {vr(RB2+4*a,4)}, v14 offset:{384+a*64}")
        P.add(misc[30:41] + bq[:10]); bq = bq[10:]
        nb = self.opt.get("nb", 6)
        for f in range(4):
            for a in range(2):
                for hp in range(2):
                    x = A2 + (a*4+f)*4 + 2*hp
                    P(f"v_pk_fma_f32 {vr(x,2)}, {vr(x,2)}, {vr(RA2+4*a+2*hp,2)}, {vr(RB2+4*a+2*hp,2)}")
            for a in range(2):
                for hp in range(2):
                    x = A2 + (a*4+f)*4 + 2*hp
                    P(f"v_cvt_pk_bf16_f32 v{ZO+4*f+2*a+hp}, v{x}, v{x+1}")
            if f: P(f"buffer_store_dwordx4 {vr(ZO+4*(f-1),4)}, v12, {S(SWS)}, s{64+f-1} offen sc1", "z2n")
            for hp in range(2): P(f"v_permlane16_swap_b32 v{ZO+4*f+hp}, v{ZO+4*f+2+hp}")
        P(f"buffer_store_dwordx4 {vr(ZO+12,4)}, v12, {S(SWS)}, s67 offen sc1", "z2n")
        self.stamp("z2st", True)
        TR = self.opt.get("TR", 13)
        cq_ = i4 + i5
        ex = {T1: bq[:9] , T1 + 1: bq[9:18], T1 + 2: bq[18:], T1 + 3: misc[41:], TR: r2, TR + 1: r3}
        for t in range(T1, 16):
            if t == TF:
                P.wait_tag("z2n"); P("s_barrier")
                self.wave0(lambda: self.set_flag(0xff << 17))
                self.stamp("F3")
            e = ex.get(t)
            if e is None:
                e = []
                if t > TR + 1: e = cq_[:13 if t == TR + 2 else 6]; cq_ = cq_[len(e):]
            z1k(t, e)
        C1 = A2; Z1O = A2 + 16
        o, tl = self.colsum(65536, 32, SCR + 256)
        P.add(weave(o, [f"v_subrev_u32 v{vT[f]}, 65536, v{vT[f]}" for f in range(4)] + L(f"v_lshlrev_b32 v12, 4, v{vG}\nv_add_u32 v12, {SCR+256}, v12\nv_lshlrev_b32 v13, 3, v0") + cq_, 3) + tl)
        self.barrier()
        self.stamp("z1mm")
        for f in range(4): P(f"ds_read_b128 {vr(C1+4*f,4)}, v12 offset:{f*64}")
        ep = []
        for f in range(4):
            ls = []
            for a in range(2):
                for hp in range(2):
                    x = A1 + (a*4+f)*4 + 2*hp; t = TT + 2*(2*a+hp)
                    ls.append(self.affine_pair(x, t, LA[a], LB[a], C1+4*f+2*hp, True))
            ep += zipped(ls)
        d67 = self.wsp_issue(6, True) + self.wsp_issue(7, True)
        P.add(self.p4_setup())
        self.wave0(lambda: P(self.f3load))
        P.add(weave(ep, d67))
        P(f"s_branch {Ljoin}")
        P(f"{Lskip}:")
        P.cond_begin()
        P("s_waitcnt vmcnt(0) lgkmcnt(0)")
        mode = self.opt.get("ina", 0)
        if mode:
            P(f"""s_lshl_b32 s86, s{sRB}, 1
            s_add_u32 s86, s86, s{sCBK}
            s_sub_u32 s86, s86, 14
            s_lshl_b32 s86, s86, 2
            s_add_u32 s86, s86, s{sW}
            s_lshr_b32 s87, s86, 4
            s_lshl_b32 s87, s87, 20
            s_and_b32 s86, s86, 15
            s_mul_i32 s86, s86, {12*4096}
            s_add_u32 s64, s86, s87""")
            P.add(self.pf_addr(14))
            def pfh(h): return [f"s_add_u32 s65, s64, {k*16384 + h*512}\nbuffer_load_dword v{16+3*h+k+4}, v14, {S(SWSP)}, s65 offen" for k in range(3)]
            for x in pfh(0): P(x)
            P.add(self.wsp_setup() + self.wout_setup(15))
            if mode == 2:
                for x in pfh(1): P(x)
            P.add(self.wsp_issue(0) + self.wsp_issue(1))
            if mode == 1:
                for x in pfh(1): P(x)
            P.add(self.wsp_issue(6, True) + self.wsp_issue(7, True))
            P.add(self.wsp_read(0) + self.wsp_read(1) + self.wsp_issue(2) + self.wsp_issue(3))
            for k in self.KE: P.add(self.wout(k, 15, "woutE"))
            P.add(self.wsp_read(2) + self.wsp_read(3) + self.wsp_issue(4) + self.wsp_issue(5) + self.p4_setup())
        else:
            if self.opt.get("l2pf", 2):
                P(f"""s_lshl_b32 s86, s{sRB}, 1
                s_add_u32 s86, s86, s{sCBK}
                s_sub_u32 s86, s86, 14
                s_lshl_b32 s86, s86, 2
                s_add_u32 s86, s86, s{sW}
                s_lshl_b32 s60, s86, 16""")
                P.add(self.pf_addr(12))
                if self.opt.get("redir", 1):
                    P(f"""v_lshrrev_b32 v13, 3, v0
                    v_lshlrev_b32 v13, 12, v13
                    v_bfe_u32 v5, v0, 1, 2
                    v_lshl_add_u32 v13, v5, 10, v13
                    v_and_b32 v5, 1, v0
                    v_lshl_add_u32 v13, v5, 7, v13
                    buffer_load_dword v16, v13, {S(SWSP)}, s60 offen offset:256
                    s_add_u32 s60, s60, 32768
                    buffer_load_dword v17, v13, {S(SWSP)}, s60 offen offset:256
                    s_add_u32 s60, s60, 32768""")
                else:
                    for k in range(4): P(f"buffer_load_dword v{16+k}, v12, {S(SWSP)}, s60 offen\ns_add_u32 s60, s60, 16384")
                if self.opt.get("l2pf", 2) == 3:
                    P(f"""s_sub_u32 s60, s60, 65024
                    v_lshrrev_b32 v13, 3, v0
                    v_lshlrev_b32 v13, 12, v13
                    v_bfe_u32 v5, v0, 1, 2
                    v_lshl_add_u32 v13, v5, 10, v13
                    v_and_b32 v5, 1, v0
                    v_lshl_add_u32 v13, v5, 7, v13
                    buffer_load_dword v20, v13, {S(SWSP)}, s60 offen
                    s_add_u32 s60, s60, 32768
                    buffer_load_dword v21, v13, {S(SWSP)}, s60 offen""")
                if self.opt.get("l2pf", 2) == 4:
                    P("s_sub_u32 s64, s60, 65024")
                if self.opt.get("l2pf", 2) == 2:
                    P("s_sub_u32 s60, s60, 65024")
                    for k in range(4): P(f"buffer_load_dword v{20+k}, v12, {S(SWSP)}, s60 offen\ns_add_u32 s60, s60, 16384")
            if self.opt.get("pwout", 7) == -1:
                P(f"""s_lshl_b32 s86, s{sRB}, 1
                s_add_u32 s86, s86, s{sCBK}
                s_sub_u32 s86, s86, 14
                s_lshl_b32 s86, s86, 2
                s_add_u32 s86, s86, s{sW}
                s_mul_i32 s86, s86, {56*128}
                v_lshlrev_b32 v5, 7, v0
                s_mov_b32 exec_hi, 0xffffff
                buffer_load_dword v24, v5, {S(SWOUT)}, s86 offen
                s_mov_b64 exec, -1""")
            P.add(self.wsp_setup() + self.wout_setup(15))
            P.add(self.wsp_issue(0) + self.wsp_issue(1))
            P.add(self.wout_pf())
            for k in self.KE: P.add(self.wout(k, 15, "woutE"))
            if self.opt.get("l2pf", 2) == 4:
                P.add(self.pf_addr(14))
                for k in range(4): P(f"buffer_load_dword v{20+k}, v14, {S(SWSP)}, s64 offen\ns_add_u32 s64, s64, 16384")
            P.add(self.wsp_issue(6, True) + self.wsp_issue(7, True))
            P.add(self.wsp_read(0) + self.wsp_read(1) + self.wsp_issue(2) + self.wsp_issue(3) + self.wsp_read(2) + self.wsp_read(3))
            P.add(self.wsp_issue(4) + self.wsp_issue(5) + self.p4_setup())
        P(self.f3load)
        P(f"s_mov_b32 s93, {WS_BYTES}\ns_mov_b32 s94, {WS_BYTES}\nv_lshlrev_b32 v13, 3, v0")
        P("s_waitcnt vmcnt(0) lgkmcnt(0)")
        P.cond_end()
        P(f"{Ljoin}:")
        self.stamp("wsp")

    def p5_breg(self, kk, f):
        if kk >= 21: return ("a", (kk - 21) * 16 + 4*f)
        i = self.order5.index(kk) - 7
        return ("a", 112 + (i % 9) * 16 + 4*f)
    def p5_reads(self, kk):
        out = []
        want = 49152 if kk < 16 else 49152 + 65536
        if self.cur5 != want:
            d = want - self.cur5
            out += [f"v_add_u32 v{vT[f]}, {d}, v{vT[f]}" if d > 0 else f"v_subrev_u32 v{vT[f]}, {-d}, v{vT[f]}" for f in range(4)]; self.cur5 = want
        for f in range(4):
            k, r = self.p5_breg(kk, f)
            for h in range(2): out.append(f"ds_read_b64_tr_b16 {ar(r+2*h,2)}, v{vT[f]} offset:{(kk%16)*4096 + h*2048}")
        return out

    f3load = f"buffer_load_dword v17, v16, {S(SWS)}, s75 offen sc1"
    def p4_setup(self):
        return L(f"""s_mul_i32 s90, s{self.F4}, 7
        s_add_u32 s91, s90, 6
        s_lshr_b32 s90, s90, 2
        s_lshr_b32 s91, s91, 2
        s_lshl_b32 s92, s{self.F4}, 6
        s_lshl_b32 s86, s{sW}, 4
        s_add_u32 s92, s92, s86
        s_mul_i32 s92, s92, 7168
        s_add_u32 s92, s92, {Z2}
        v_add_u32 v18, 4096, v{vL16}
        s_lshl_b32 s86, s90, 4
        s_lshl_b32 s87, s91, 4
        s_add_u32 s87, s87, 15
        v_add_u32 v16, s86, v0
        v_min_u32 v16, s87, v16
        v_lshlrev_b32 v16, 2, v16
        s_lshl_b32 s75, s{sX}, 10
        s_add_u32 s75, s75, {F3}""") + ([] if self.map84 else L(f"""s_lshl_b32 s86, s{self.T4}, 2
        s_add_u32 s86, s86, s{sW}
        s_mul_i32 s86, s86, {28*1024}
        s_mul_i32 s87, s{self.F4}, 3584
        s_add_u32 s86, s86, s87
        s_add_u32 s86, s86, {U}
        v_lshlrev_b32 v5, 7, v0
        s_mov_b64 exec, 0xfffffff
        buffer_load_dword v20, v5, {S(SWS)}, s86 offen
        s_mov_b64 exec, -1"""))

    def phase4(self):
        P = self.P
        ACC = 16; BB = 128
        self.order5 = self.KE + list(range(16, 21)) + list(range(9, 16)) + self.KL
        self.cur5 = 0
        self.wave0(lambda: self.check_retry(self.f3load, f"v_cmp_ne_u32 vcc, s{sE}, v17"))
        P("s_barrier")
        self.stamp("sync3")
        def bload(ks):
            out = [f"s_add_u32 s60, s92, {ks*7168}"]
            for f in range(7):
                out.append(f"buffer_load_dwordx4 {vr(BB+28*(ks%3)+4*f,4)}, v{vL16 if f < 4 else 14}, {S(SWS)}, s60 offen offset:{(f%4)*1024} sc1")
            return out
        P("v_mov_b32 v14, v18")
        for ks in range(2): P.add(bload(ks))
        P(f"v_mov_b32 v244, {f2u(K1C):#x}")
        late_setup = L(f"""v_lshrrev_b32 v249, 3, v0
        v_lshl_add_u32 v249, v249, 10, v{vSW}
        s_lshl_b32 s95, s{self.T4}, 2
        s_add_u32 s95, s95, s{sW}
        s_lshl_b32 s88, s{sTB}, 2
        s_add_u32 s88, s88, s{sW}
        s_lshr_b32 s64, s{self.T4}, 1
        s_lshl_b32 s64, s64, 7
        s_add_u32 s64, s64, {F3B}
        v_add_u32 v250, s90, v0
        v_min_u32 v250, s91, v250
        v_lshlrev_b32 v250, 2, v250
        s_mul_i32 s65, s95, 56
        s_mul_i32 s87, s{self.F4}, 7
        s_add_u32 s65, s65, s87
        s_lshl_b32 s65, s65, 9
        s_add_u32 s65, s65, {Z1}
        s_lshl_b32 s66, s95, 5
        v_lshlrev_b32 v244, 1, v{vI}
        s_lshl_b32 s67, s88, 4
        s_lshl_b32 s87, s{sFB}, 1
        s_add_u32 s67, s67, s87
        s_lshl_b32 s67, s67, 10
        s_add_u32 s67, s67, {H}
        s_mul_i32 s78, s88, {28*1024}
        s_add_u32 s78, s78, {U}
        s_mul_i32 s79, s95, 28
        s_mul_i32 s87, s{self.F4}, 7
        s_lshr_b32 s87, s87, 1
        s_add_u32 s79, s79, s87
        s_lshl_b32 s79, s79, 10
        s_add_u32 s79, s79, {U}""")
        for p in range(1, 4):
            late_setup += L(f"s_add_u32 s86, s{sW}, {p}\ns_and_b32 s86, s86, 3\ns_mul_i32 s86, s86, 21504\ns_add_u32 s86, s86, {(p-1)*7168}\nv_add_u32 v{245+p}, s86, v{vL16}")
        late_setup += L(f"s_mul_i32 s86, s{sW}, 21504\nv_add_u32 v255, s86, v{vL16}")
        A1 = 212; GT = [15, 245, 254, 255]
        def gelu(q):
            a, f = q >> 2, q & 3; x0 = A1 + 4*q; ls = []
            for e in range(4):
                x = x0 + e; t = GT[e]
                ls.append([f"v_mul_f32 v{t}, v{x}, v{x}", f"v_fma_f32 v{t}, v{t}, s{sK2}, v244", f"v_mul_f32 v{t}, v{t}, v{x}", f"v_exp_f32 v{t}, v{t}",
                           f"v_add_f32 v{t}, 1.0, v{t}", f"v_rcp_f32 v{t}, v{t}", f"v_mul_f32 v{x}, v{x}, v{t}"])
            return zipped(ls) + [f"v_cvt_pk_bf16_f32 v{x0}, v{x0}, v{x0+1}", f"v_cvt_pk_bf16_f32 v{x0+1}, v{x0+2}, v{x0+3}",
                                 ("T", f"buffer_store_dwordx2 {vr(x0,2)}, v13, {S(SWS)}, s{93+a} offen offset:{f*512} sc1", "z1st")]
        Z1R = 212; BS = 226; HR = 228
        GP = self.opt.get("GP", 8)
        if GP:
            P(f"v_mov_b32 v245, {f2u(K1C):#x}")
            b2 = bload(2)
            pk = []
            for q0 in range(0, GP, 2):
                ls = [self.gelu_pair(A1 + 4*q0 + 2*e, 112 + 2*e, 244) for e in range(4)]
                pk += zipped(ls)
                for q in (q0, q0 + 1):
                    x0 = A1 + 4*q
                    pk += [f"v_cvt_pk_bf16_f32 v{x0}, v{x0}, v{x0+1}", f"v_cvt_pk_bf16_f32 v{x0+1}, v{x0+2}, v{x0+3}",
                           ("T", f"buffer_store_dwordx2 {vr(x0,2)}, v13, {S(SWS)}, s{93+(q>>2)} offen offset:{(q&3)*512} sc1", "z1st")]
            P.add(b2[:1] + weave(pk, b2[1:], 1))
        fl = f"buffer_load_dword v254, v250, {S(SWS)}, s64 offen sc1"
        wt = []
        for k in self.KT: wt += self.wout(k, 249, "woutT")
        for ks in range(16):
            m = []
            if ks < 15: fp = [(f, p) for f in range(7) for p in range(4)]
            else: fp = [(f, p) for p in (1, 2, 3, 0) for f in range(7)]
            for f, p in fp:
                acc = vr(ACC + (p*7+f)*4, 4)
                m.append(f"{MF} {acc}, {vr(BB+28*(ks%3)+4*f,4)}, {ar((ks*4+p)*4,4)}, {acc if ks else '0'}")
            if ks in (1, 2, 4, 8, 12, 15): self.stamp(f"p4k{ks}", True)
            if ks <= 14:
                ld = bload(ks + 2) if ks <= 13 and not (GP and ks == 0) else []
                pre = {1: self.wsp_read(4), 2: self.wsp_read(5), 3: self.wsp_tohi() + self.wsp_read(6), 4: self.wsp_read(7)}.get(ks, [])
                G0 = self.opt.get("G0", 0)
                if G0 <= ks < G0 + 8 - GP: pre = weave(gelu(ks - G0 + GP), pre, 1)
                if 8 <= ks <= 14: pre = pre + self.p5_reads(self.KE[ks - 8])
                if ks in (9, 10): pre = pre + late_setup[(ks-9)*25:(ks-9)*25+25]
                if ks == max(G0 + 9 - GP, 6):
                    P.add([WD("wr4", "wr5", "wr6", "wr7"), WT("z1st", "woutE"), "s_barrier"])
                    self.wave0(lambda: self.set_flag(1 << 25, not self.map84))
                if ks == 7 and GP < 6: P.wait_tag("woutE"); P("s_barrier")
                if ks == 14: pre = pre + wt[:12]
                if ks == self.opt.get("FL", 13): pre = pre + [fl]
                if ld: body = mix(m[:3], ld[:2]) + interleave(m[3:21], ld[2:], 3, 1) + m[21:]
                else: body = m
                out = []; nm_ = 0; pi = 0
                for x in body:
                    out.append(x)
                    if isinstance(x, str) and x.startswith("v_mfma"):
                        nm_ += 1
                        tgt = len(pre) * nm_ // 28
                        out += pre[pi:tgt]; pi = tgt
                P.add(out)
            else:
                self.check_retry(fl, f"v_cmp_ne_u32 vcc, s{sE}, v254")
                w = [f"buffer_load_dwordx2 {vr(Z1R+2*f,2)}, v13, {S(SWS)}, s65 offen offset:{f*512} sc1" for f in range(7)]
                w += [f"buffer_load_ushort v{BS}, v244, {S(SBSP)}, s66 offen"]
                xw = [f"ds_write_b128 v{245+p}, {vr(ACC+(p*7+f)*4,4)} offset:{f*1024}" for p in range(1, 4) for f in range(7)]
                P.add(mix(m[:10], w[:4]) + mix(m[10:], weave(xw[:16], w[4:], 1)) + xw[16:])
        self.stamp("p4mm")
        ZF = BB; UO = BB + 48
        v = [f"v_lshlrev_b32 v{BS}, 16, v{BS}"]
        for f in range(7):
            for k in range(2):
                v += [f"v_lshlrev_b32 v{ZF+4*f+2*k}, 16, v{Z1R+2*f+k}", f"v_and_b32 v{ZF+4*f+2*k+1}, 0xffff0000, v{Z1R+2*f+k}",
                      f"v_pk_add_f32 {vr(ACC+4*f+2*k,2)}, {vr(ACC+4*f+2*k,2)}, {vr(BS,2)} op_sel_hi:[1,0]"]
        P.add(wt[12:24])
        self.barrier()
        RB = ACC + 28
        for f in range(7):
            for p in range(3): P(f"ds_read_b128 {vr(RB+(p*7+f)*4,4)}, v255 offset:{(p*7+f)*1024}")
        P.add(wt[24:] + v)
        P(f"buffer_load_dwordx4 {vr(HR,4)}, v{vL16}, {S(SWS)}, s67 offen sc1\nbuffer_load_dwordx4 {vr(HR+4,4)}, v{vL16}, {S(SWS)}, s67 offen offset:1024 sc1")
        for f in range(7):
            for p in range(3):
                for k in range(2): P(f"v_pk_add_f32 {vr(ACC+4*f+2*k,2)}, {vr(ACC+4*f+2*k,2)}, {vr(RB+(p*7+f)*4+2*k,2)}")
            for k in range(2): P(f"v_pk_mul_f32 {vr(ACC+4*f+2*k,2)}, {vr(ACC+4*f+2*k,2)}, {vr(ZF+4*f+2*k,2)}")
            for k in range(2): P(f"v_cvt_pk_bf16_f32 v{UO+2*f+k}, v{ACC+4*f+2*k}, v{ACC+4*f+2*k+1}")
        Lo = P.lab("Lo"); Le = P.lab("Le")
        P(f"s_bitcmp1_b32 s{self.F4}, 0\ns_cbranch_scc1 {Lo}")
        P.cond_begin()
        self.local4([f"buffer_store_dwordx4 {vr(UO+4*k,4)}, v{vL16}, {S(SWS)}, s79 offen offset:{k*1024} @SC" for k in range(3)]
                   + [f"buffer_store_dwordx2 {vr(UO+12,2)}, v13, {S(SWS)}, s79 offen offset:3072 @SC"])
        P(f"s_branch {Le}")
        P.cond_end()
        P(f"{Lo}:")
        P.cond_begin()
        self.local4([f"buffer_store_dwordx2 {vr(UO,2)}, v13, {S(SWS)}, s79 offen offset:512 @SC"]
                   + [f"buffer_store_dwordx4 {vr(UO+2+4*k,4)}, v{vL16}, {S(SWS)}, s79 offen offset:{1024+k*1024} @SC" for k in range(3)])
        P.cond_end()
        P(f"{Le}:")
        P(f"""v_bfe_u32 v240, v0, 4, 1
        v_bfe_u32 v5, v0, 5, 1
        v_lshl_add_u32 v240, v240, 1, v5
        v_lshlrev_b32 v240, 4, v240
        v_lshl_add_u32 v240, v{vI}, 10, v240
        s_lshl_b32 s92, s88, 14
        s_lshl_b32 s87, s{sFB}, 7
        s_add_u32 s92, s92, s87
        s_lshl_b32 s66, s{sTB}, 7
        s_add_u32 s66, s66, {F4}
        v_and_b32 v243, 7, v0
        v_lshlrev_b32 v243, 2, v243""")
        P("s_waitcnt vmcnt(0)")
        self.barrier()
        self.wave0(lambda: self.set_flag(1 << 26, not self.map84))
        self.stamp("F4")

    def phase5(self):
        P = self.P
        UF = 16; ACC = 128; HR = 228
        order = self.order5
        late = []
        for k in self.KL: late += self.wout(k, 249, "woutL")
        lm = self.opt.get("late", 0)
        if lm == 0: P.add(late)
        for kk in order[7:16]: P.add(self.p5_reads(kk))
        for f in range(4):
            for k in range(2):
                P(f"v_lshlrev_b32 v{ACC+4*f+2*k}, 16, v{HR+2*f+k}\nv_and_b32 v{ACC+4*f+2*k+1}, 0xffff0000, v{HR+2*f+k}")
        self.wave0(lambda: self.poll2(243, "s66", self.opt["pp"]) if self.opt.get("pp") else self.poll(243, soff="s66"))
        P("s_barrier")
        self.stamp("sync4")
        def ul(kk):
            o = [f"s_add_u32 s60, s78, {(kk//4)*4096}"]
            if kk % 7 == 3: return o + [f"buffer_load_dwordx2 {vr(UF+4*kk+2*h,2)}, v13, {S(SWS)}, s60 offen offset:{(kk%4)*1024 + h*512} sc1" for h in range(2)]
            return o + [f"buffer_load_dwordx4 {vr(UF+4*kk,4)}, v{vL16}, {S(SWS)}, s60 offen offset:{(kk%4)*1024} sc1"]
        if self.opt.get("pfu", 0):
            P(f"""s_mul_i32 s86, s{sFB}, 3584
            s_add_u32 s86, s86, s78
            v_lshlrev_b32 v5, 7, v0
            s_mov_b64 exec, 0xfffffff
            buffer_load_dword v144, v5, {S(SWS)}, s86 offen sc1
            s_mov_b64 exec, -1""")
        UD = self.opt.get("UD", 10)
        for i in range(UD): P.add(ul(order[i]))
        if lm == 1: P.add(late)
        Lb = P.lab("Lz")
        P(f"s_or_b32 s86, s2, s{sW}\ns_cmp_lg_u32 s86, 0\ns_cbranch_scc1 {Lb}")
        P.cond_begin()
        P(f"v_mov_b32 v145, s{sE}\ns_mov_b32 s86, {EPOCH}\ns_mov_b64 exec, 1\nbuffer_store_dword v145, off, {S(SWS)}, s86 sc1\ns_mov_b64 exec, -1")
        P.cond_end(); P(f"{Lb}:")
        for i, kk in enumerate(order):
            m = []
            for f in range(4):
                k, r = self.p5_breg(kk, f); acc = vr(ACC+4*f, 4)
                m.append(f"{MF} {acc}, {ar(r,4)}, {vr(UF+4*kk,4)}, {acc}")
            fl = ul(order[i + UD]) if i + UD < 28 else []
            j = i + 8
            if j == 19: P.wait_tag("woutL"); P("s_barrier")
            if 16 <= j < 28: fl = fl + self.p5_reads(order[j])
            P.add(mix(m, fl))
        OO = 160
        for c in range(2):
            for f in (2*c, 2*c+1):
                for k in range(2): P(f"v_cvt_pk_bf16_f32 v{OO+2*f+k}, v{ACC+4*f+2*k}, v{ACC+4*f+2*k+1}")
        if self.opt.get("spinM") is not None:
            P(f"s_cmp_lg_u32 s{sM}, {self.opt['spinM']}\ns_cbranch_scc1 L_nospin\ns_memrealtime s[96:97]\ns_waitcnt lgkmcnt(0)\ns_add_u32 s98, s96, 500\nL_spin:\ns_memrealtime s[96:97]\ns_waitcnt lgkmcnt(0)\ns_sub_u32 s97, s98, s96\ns_cmp_gt_i32 s97, 0\ns_cbranch_scc1 L_spin\nL_nospin:")
        if self.opt.get("thr"):
            P(f"s_memrealtime s[96:97]\ns_waitcnt lgkmcnt(0)\ns_sub_u32 s96, s96, s98\ns_mul_i32 s96, s96, s{sM}\ns_cmp_gt_u32 s96, {self.opt['thr']}\ns_cbranch_scc1 L_end")
        for c in range(2):
            for k in range(2): P(f"v_permlane16_swap_b32 v{OO+4*c+k}, v{OO+4*c+2+k}")
            P(f"buffer_store_dwordx4 {vr(OO+4*c,4)}, v240, {S(SOUT)}, s92 offen offset:{c*64} {self.opt.get('ost', 'nt')}")
        self.stamp("end")

    def build(self):
        P = self.P
        self.prologue()
        for k, ph in enumerate([self.phase1, self.phase2, self.phase3, self.phase4, self.phase5]):
            if k < self.stop: ph()
        if self.stamps:
            P("s_memtime s[98:99]\nv_writelane_b32 v7, s98, 63")
            P(f"""v_writelane_b32 v7, s{sM}, 61
            s_lshl_b32 s86, s2, 10
            s_lshl_b32 s87, s{sW}, 8
            s_add_u32 s86, s86, s87
            s_add_u32 s86, s86, {STAMP}
            v_lshlrev_b32 v12, 2, v0
            buffer_store_dword v7, v12, {S(SWS)}, s86 offen""")
        if self.opt.get("dbg"):
            sel = [self.names.index(n) for n in self.opt["dbg"]]
            P("s_load_dwordx2 s[64:65], s[0:1], 72\nv_not_b32 v12, v7\nv_readlane_b32 s86, v12, 0\nv_writelane_b32 v13, s86, 0")
            for k, i in enumerate(sel): P(f"v_readlane_b32 s86, v7, {i}\ns_nop 3\nv_writelane_b32 v13, s86, {k+1}")
            P(f"v_lshlrev_b32 v12, 2, v0\ns_mov_b64 exec, {(1 << (len(sel)+1)) - 1}\ns_cmp_lg_u32 s{sW}, 0\ns_cbranch_scc1 L_end\nglobal_atomic_umax v12, v13, s[64:65] sc1")
        P("L_end:\ns_endpgm")
        A = Asm()
        A.begin_kernel(NAME, 256, 256, 163840)
        A.lines += P.finalize()
        A.end_kernel(NAME, 256, 256)
        return A

HEADER = open("sequential_preLN__linear_attn_block__mixer_gmlp__prompt.s.ref").read().split("; Override")[0]
def generate(path, plain=False, **kw):
    g = G(**kw); A = g.build()
    t = A.text(HEADER)
    if plain: t = t.replace(f"; @launch kernel={NAME} grid", "; @launch grid")
    open(path, "w").write(t)
    return g.names
if __name__ == "__main__":
    import argparse
    ap = argparse.ArgumentParser(); ap.add_argument("out"); ap.add_argument("--stop", type=int, default=99); ap.add_argument("--stamps", action="store_true"); ap.add_argument("--opt", default="{}")
    a = ap.parse_args()
    generate(a.out, plain=True, stop=a.stop, stamps=a.stamps, opt=eval(a.opt))
```

```python
import sys, struct
sys.path.insert(0, "gen")
from asmlib import Asm, vr, ar, sr
from emit import Prog, spread, interleave

NAME = "sequential_preLN__linear_attn_block__mixer_gmlp__prompt_kernel"
def f2u(x): return struct.unpack("<I", struct.pack("<f", x))[0]

F1, F2, F3, F3B, F4, F1B = 0x0, 0x2000, 0x2800, 0x4800, 0x5000, 0x6000
FP = 0x7000; EPOCH = 0x9000; KZ = 0x9080; XID = 0x9100
KV = 0xA000; KVS = 1152
STAMP = 0x80000
HST = 0xC0000
PQ, H, Z2, Z1, U, STATS = 0x100000, 0x300000, 0x500000, 0x900000, 0xD00000, 0x1100000
WS_BYTES = 0x1200000
R1 = 8
SX, SWQKV, SWO, SWIN, SWSP, SBSP, SWOUT, SOUT, SWS = 8, 12, 16, 20, 24, 28, 32, 36, 40
def S(d): return f"s[{d}:{d+3}]"
sTB, sE, sFB, sM, sXCC = 3, 4, 5, 6, 7
sX, sJ, sW, sSPIN = 48, 49, 50, 51
sLOG2E, sEPS6, sK2, sONE = 52, 54, 56, 58
sA8, sA4 = 62, 63
sRB, sCBK = 100, 101
sT4, sF4 = 88, 89
vL16, vI, vG, vFLAG, vSW = 1, 2, 3, 4, 6
vT = [8, 9, 10, 11]
SPIN_MAX = 1 << 16
MF = "v_mfma_f32_16x16x32_bf16"
K1C = -2.302208198
WT, WD = Prog.WT, Prog.WD
NOPIF = ("NOPIF",)

def L(s): return [x.strip() for x in s.split("\n") if x.strip()]
def mix(m, f, lead=0):
    if not m: return list(f)
    return m[:lead] + spread(m[lead:], f)
def weave(a, b, g=3):
    groups = [b[i:i+g] for i in range(0, len(b), g)]
    if not groups: return list(a)
    out = []; n = len(groups); ai = 0
    for k, grp in enumerate(groups):
        tgt = (k * len(a) + len(a) // 2) // n if len(a) else 0
        out += a[ai:tgt]; ai = max(ai, tgt); out += grp
    return out + a[ai:]
def zipped(lists):
    out = []; n = max(len(l) for l in lists)
    for k in range(n):
        for l in lists:
            if k < len(l): out.append(l[k])
    return out

def lay2(m, reads, other, nr=None):
    k = min(len(m) - 1, (len(reads) + 1) // 2) if nr is None else nr
    if not reads: return [("wait_ds",)] + mix(m, other)
    return [("wait_ds",)] + mix(m[:k], reads) + mix(m[k:], other)

class G:
    def __init__(self, stop=99, stamps=False, opt=None):
        global U, H, R1, F1
        R1 = (opt or {}).get('R1', 8); F1 = 0x14000 if R1 > 8 else 0
        H = PQ if (opt or {}).get('ov', 1) else 0x300000
        U = Z1 if (opt or {}).get('uz', 0) else 0xD00000
        self.P = Prog(); self.stop = stop; self.stamps = stamps; self.nst = 0; self.names = []
        self.opt = opt or {}
        self.map84 = self.opt.get("map84", 1)
        self.T4 = sA8 if self.map84 else sTB; self.F4 = sA4 if self.map84 else sFB
    def stamp(self, name, fine=False):
        if self.stamps and (not fine or self.opt.get("fine")):
            k = self.nst; self.nst += 1; self.names.append(name)
            self.P(f"{'s_memtime' if self.opt.get('cyc') else 's_memrealtime'} s[98:99]\nv_writelane_b32 v7, s98, {k}")
    def dmai(self, voff, srd, soff, tag):
        nt = " nt" if (self.opt.get("nt", 0) >> {SX: 0, SWQKV: 1, SWO: 2, SWIN: 3, SWSP: 4, SWOUT: 5}[srd]) & 1 else ""
        if tag.startswith("st") and int(tag[2:]) < self.opt.get("ntst", 0) and (srd == SX or self.opt.get("ntw", 1)): nt = " nt"
        return ("T", f"buffer_load_dwordx4 v{voff}, {S(srd)}, s{soff} offen{nt} lds", tag)
    def srds(self, lst):
        for d, p, n in lst:
            self.P(f"s_mov_b32 s{d}, s{p}\ns_and_b32 s{d+1}, s{p+1}, 0xffff\ns_mov_b32 s{d+2}, {n}\ns_mov_b32 s{d+3}, 0x20000")
    def set_flag(self, mask, local=False):
        P = self.P
        P(f"s_mov_b64 exec, {mask:#x}\nv_mov_b32 v5, s{sE}")
        if local: self.local([f"buffer_store_dword v5, v{vFLAG}, {S(SWS)}, 0 offen @SC"], flag=True)
        else: P(f"buffer_store_dword v5, v{vFLAG}, {S(SWS)}, 0 offen sc1")
        P("s_mov_b64 exec, -1")
    def local(self, items, tag=None, flag=False):
        P = self.P
        dm = self.opt.get("dmode", 1)
        if not flag and dm == 0:
            for x in items: P(x.replace(" @SC", " sc1"), tag)
            return
        P.alt_begin(sM, "" if flag or dm == 1 else {2: " nt", 3: " sc0"}[dm])
        for x in items: P(x, tag)
        P.alt_end()
    def local4(self, items, tag=None):
        if self.map84:
            for x in items: self.P(x.replace(" @SC", " sc1"), tag)
        else: self.local(items, tag)
    def thru(self, items, tag=None):
        for x in items: self.P(x.replace(" @SC", " sc1"), tag)
    def wave(self, w, fn):
        P = self.P; Lb = P.lab("Lw")
        P(f"s_cmp_lg_u32 s{sW}, {w}\ns_cbranch_scc1 {Lb}")
        P.cond_begin(); fn(); P.cond_end()
        P(f"{Lb}:")
    def wave0(self, fn): self.wave(0, fn)
    def spin_tail(self, Lb, E):
        self.P(f"s_add_u32 s{sSPIN}, s{sSPIN}, 1\ns_cbranch_vccz {E}\ns_cmp_lt_u32 s{sSPIN}, {SPIN_MAX}\ns_cbranch_scc1 {Lb}")
    def poll(self, vaddr, x4=False, soff="0"):
        P = self.P; Lb = P.lab("Lp"); E = P.lab("Le")
        P(f"s_mov_b32 s{sSPIN}, 0\n{Lb}:")
        if x4:
            P(f"buffer_load_dwordx4 v[12:15], v{vaddr}, {S(SWS)}, {soff} offen sc1\ns_waitcnt vmcnt(0)")
            P("\n".join(f"v_xor_b32 v{r}, s{sE}, v{r}" for r in range(12, 16)) + "\nv_or3_b32 v12, v12, v13, v14\nv_or_b32 v12, v12, v15\nv_cmp_ne_u32 vcc, 0, v12")
        else:
            P(f"buffer_load_dword v12, v{vaddr}, {S(SWS)}, {soff} offen sc1\ns_waitcnt vmcnt(0)\nv_cmp_ne_u32 vcc, s{sE}, v12")
        self.spin_tail(Lb, E); P(f"{E}:")
    def poll2(self, vaddr, soff, gap):
        P = self.P; Lb = P.lab("Lp"); E = P.lab("Le")
        ld = lambda r: f"buffer_load_dword v{r}, v{vaddr}, {S(SWS)}, {soff} offen sc1"
        P(f"s_mov_b32 s{sSPIN}, 0\n{ld(12)}\ns_sleep {gap}\n{Lb}:\n{ld(5)}\ns_waitcnt vmcnt(1)\nv_cmp_ne_u32 vcc, s{sE}, v12\ns_cbranch_vccz {E}")
        P(f"{ld(12)}\ns_waitcnt vmcnt(1)\nv_cmp_ne_u32 vcc, s{sE}, v5")
        self.spin_tail(Lb, E); P(f"{E}:")
    def check_retry(self, load, cmp):
        P = self.P; Lb = P.lab("Lk"); E = P.lab("Le")
        P(f"s_mov_b32 s{sSPIN}, 0\n{cmp}\ns_cbranch_vccz {E}")
        P.cond_begin()
        P(f"{Lb}:\n{load}\ns_waitcnt vmcnt(0)\n{cmp}")
        self.spin_tail(Lb, E)
        P.cond_end(); P(f"{E}:")
    def barrier(self):
        self.P.wait_ds(); self.P("s_barrier")
    def xreduce(self, regs, tmp, ops=("v_permlane32_swap_b32", "v_permlane16_swap_b32")):
        P = self.P
        for op in ops:
            for k, r in enumerate(regs): P(f"v_mov_b32 v{tmp+k}, v{r}")
            for k, r in enumerate(regs): P(f"{op} v{tmp+k}, v{r}")
            for k, r in enumerate(regs): P(f"v_add_f32 v{r}, v{r}, v{tmp+k}")
    def finstats(self, sums, n, outA, outB):
        ls = []
        for k, (s, q) in enumerate(sums):
            ls.append([f"v_mul_f32 v{s}, {f2u(-1.0/n):#x}, v{s}", f"v_mul_f32 v{q}, {f2u(1.0/n):#x}, v{q}",
                       f"v_fma_f32 v{q}, -v{s}, v{s}, v{q}", f"v_max_f32 v{q}, 0, v{q}", f"v_add_f32 v{q}, {f2u(1e-5):#x}, v{q}",
                       f"v_rsq_f32 v{outA[k]}, v{q}", f"v_mul_f32 v{outB[k]}, v{s}, v{outA[k]}"])
        self.P.add(zipped(ls))
    def phi_pair(self, x, t, out):
        return [f"v_pk_mul_f32 {vr(t,2)}, {vr(x,2)}, s[{sLOG2E}:{sLOG2E+1}]",
                f"v_max_f32 v{x}, 0, v{x}", f"v_max_f32 v{x+1}, 0, v{x+1}",
                f"v_min_f32 v{t}, 0, v{t}", f"v_min_f32 v{t+1}, 0, v{t+1}",
                f"v_exp_f32 v{t}, v{t}", f"v_exp_f32 v{t+1}, v{t+1}",
                f"v_pk_add_f32 {vr(x,2)}, {vr(x,2)}, s[{sEPS6}:{sEPS6+1}]",
                f"v_pk_add_f32 {vr(x,2)}, {vr(x,2)}, {vr(t,2)}",
                f"v_cvt_pk_bf16_f32 v{out}, v{x}, v{x+1}"]
    def gelu_pair(self, x, t, k1):
        return [f"v_pk_mul_f32 {vr(t,2)}, {vr(x,2)}, {vr(x,2)}",
                f"v_pk_fma_f32 {vr(t,2)}, {vr(t,2)}, s[{sK2}:{sK2+1}], {vr(k1,2)}",
                f"v_pk_mul_f32 {vr(t,2)}, {vr(t,2)}, {vr(x,2)}",
                f"v_exp_f32 v{t}, v{t}", f"v_exp_f32 v{t+1}, v{t+1}",
                f"v_pk_add_f32 {vr(t,2)}, {vr(t,2)}, s[{sONE}:{sONE+1}]",
                f"v_rcp_f32 v{t}, v{t}", f"v_rcp_f32 v{t+1}, v{t+1}",
                f"v_pk_mul_f32 {vr(x,2)}, {vr(x,2)}, {vr(t,2)}"]
    @staticmethod
    def bc(r): return vr(r & ~1, 2), r & 1
    def affine_pair(self, x, t, A, B, cs, a_bc):
        if a_bc:
            bn, bb = self.bc(B); an, ab = self.bc(A)
            return [f"v_pk_mul_f32 {vr(t,2)}, {vr(cs,2)}, {bn} op_sel:[0,{bb}] op_sel_hi:[1,{bb}]",
                    f"v_pk_fma_f32 {vr(x,2)}, {vr(x,2)}, {an}, {vr(t,2)} op_sel:[0,{ab},0] op_sel_hi:[1,{ab},1]"]
        cn, cb = self.bc(cs)
        return [f"v_pk_mul_f32 {vr(t,2)}, {vr(B,2)}, {cn} op_sel:[0,{cb}] op_sel_hi:[1,{cb}]",
                f"v_pk_fma_f32 {vr(x,2)}, {vr(x,2)}, {vr(A,2)}, {vr(t,2)}"]

    def prologue(self):
        P = self.P
        P(f"""
        s_cmp_ge_u32 s2, 256
        s_cbranch_scc1 L_end
        s_load_dwordx4 s[64:67], s[0:1], 0
        v_lshrrev_b32 v1, 6, v0
        v_and_b32 v0, 63, v0
        v_readfirstlane_b32 s{sW}, v1
        s_and_b32 s{sX}, s2, 7
        s_lshr_b32 s{sJ}, s2, 3
        v_lshrrev_b32 v{vG}, 4, v0
        s_lshr_b32 s{sA8}, s{sX}, 1
        s_lshl_b32 s{sA8}, s{sA8}, 3
        s_lshr_b32 s86, s{sJ}, 2
        s_add_u32 s{sA8}, s{sA8}, s86
        s_and_b32 s{sA4}, s{sX}, 1
        s_lshl_b32 s{sA4}, s{sA4}, 2
        {f's_xor_b32 s86, s86, s{sJ}' if self.opt.get('hx') else f's_mov_b32 s86, s{sJ}'}
        s_and_b32 s86, s86, 3
        s_add_u32 s{sA4}, s{sA4}, s86
        """)
        if self.opt.get("thr"): P("s_memrealtime s[98:99]\ns_waitcnt lgkmcnt(0)")
        if self.stamps: P("v_mov_b32 v7, 0\ns_memtime s[98:99]\nv_writelane_b32 v7, s98, 62")
        self.stamp("start")

    def late_setup(self):
        P = self.P
        self.srds([(SWS, 84, WS_BYTES)])
        P(f"s_mov_b32 s86, {EPOCH}\nbuffer_load_dword v225, off, {S(SWS)}, s86 sc1")
        self.srds([(SWO, 68, 524288), (SWIN, 72, 1835008), (SWSP, 74, 8388608), (SBSP, 76, 4096), (SWOUT, 78, 917504), (SOUT, 80, 2097152)])
        P(f"""
        v_lshlrev_b32 v{vL16}, 4, v0
        v_and_b32 v{vI}, 15, v0
        s_getreg_b32 s{sXCC}, hwreg(HW_REG_XCC_ID, 0, 4)
        s_lshr_b32 s{sRB}, s{sJ}, 4
        s_lshl_b32 s86, s{sX}, 1
        s_add_u32 s{sRB}, s{sRB}, s86
        s_and_b32 s{sCBK}, s{sJ}, 15
        s_lshr_b32 s{sTB}, s{sJ}, 3
        s_lshl_b32 s86, s{sX}, 2
        s_add_u32 s{sTB}, s{sTB}, s86
        s_and_b32 s{sFB}, s{sJ}, 7
        s_lshl_b32 s86, s2, 2
        s_add_u32 s86, s86, {F1}
        v_lshl_add_u32 v{vFLAG}, v0, 10, s86
        s_lshl_b32 s86, s{sCBK}, 4
        s_add_u32 s86, s86, s{sRB}
        s_lshl_b32 s86, s86, 2
        s_add_u32 s86, s86, {(F3 - 17*1024) & 0xffffffff}
        v_lshl_add_u32 v5, v0, 10, s86
        v_cmp_lt_u32 vcc, 16, v0
        v_cndmask_b32 v{vFLAG}, v{vFLAG}, v5, vcc
        s_lshl_b32 s86, s{sRB}, 7
        s_lshl_b32 s87, s{sCBK}, 2
        s_add_u32 s86, s86, s87
        s_add_u32 s87, s86, {F2}
        v_writelane_b32 v{vFLAG}, s87, 16
        s_add_u32 s87, s86, {F3B}
        v_writelane_b32 v{vFLAG}, s87, 25
        s_lshl_b32 s86, s{sA8 if self.map84 else sTB}, 7
        s_lshl_b32 s87, s{sA4 if self.map84 else sFB}, 2
        s_add_u32 s86, s86, s87
        s_add_u32 s87, s86, {F4}
        v_writelane_b32 v{vFLAG}, s87, 26
        s_lshl_b32 s86, s{sA8}, 7
        s_lshl_b32 s87, s{sA4}, 2
        s_add_u32 s86, s86, s87
        s_add_u32 s87, s86, {F1B}
        v_writelane_b32 v{vFLAG}, s87, 27
        s_mov_b32 s{sLOG2E}, {f2u(1.4426950408889634):#x}
        s_mov_b32 s{sLOG2E+1}, {f2u(1.4426950408889634):#x}
        s_mov_b32 s{sEPS6}, {f2u(1e-6):#x}
        s_mov_b32 s{sEPS6+1}, {f2u(1e-6):#x}
        s_mov_b32 s{sK2}, {f2u(K1C*0.044715):#x}
        s_mov_b32 s{sK2+1}, {f2u(K1C*0.044715):#x}
        s_mov_b32 s{sONE}, 1.0
        s_mov_b32 s{sONE+1}, 1.0
        """)

    def phase1(self):
        P = self.P
        SCR = 147456
        vX = [216, 217]; vWd = [218, 219]; vA = [220, 221]; vO = [222, 223]; vB = 224
        OWN = 16; BK = 24; BV = 32; ONES = 40; ACK = 48; ACV = 64; CSK = 80; CSV = 84; DS = 88; DQ = 92
        ACQ = 96; CSQ = 112; ST = 120; STQ = 152
        P(f"""
        s_lshl_b32 s88, s{sA8}, 16
        s_lshl_b32 s87, s{sW}, 14
        s_add_u32 s88, s88, s87
        s_lshl_b32 s90, s{sA4}, 7
        s_mul_i32 s87, s{sW}, {16*3072}
        s_add_u32 s90, s90, s87
        s_lshl_b32 s91, s{sW}, 11
        v_lshrrev_b32 v5, 3, v0
        v_and_b32 v6, 7, v0
        v_xor_b32 v12, v6, v{vG}
        v_lshlrev_b32 v12, 4, v12
        v_lshl_add_u32 v{vX[0]}, v5, 10, v12
        v_xor_b32 v{vX[1]}, 64, v{vX[0]}
        v_add_u32 v{vX[1]}, 8192, v{vX[1]}
        v_and_b32 v12, 2, v5
        v_xor_b32 v12, v6, v12
        v_lshlrev_b32 v12, 4, v12
        v_mul_u32_u24 v13, 3072, v5
        v_add_u32 v{vWd[0]}, v13, v12
        v_xor_b32 v{vWd[1]}, 64, v{vWd[0]}
        v_add_u32 v{vWd[1]}, {8*3072}, v{vWd[1]}
        s_waitcnt lgkmcnt(0)
        """)
        P("""s_load_dwordx2 s[84:85], s[0:1], 80
        s_load_dwordx2 s[68:69], s[0:1], 16
        s_load_dwordx8 s[72:79], s[0:1], 32
        s_load_dwordx2 s[80:81], s[0:1], 64""")
        self.srds([(SX, 64, 2097152), (SWQKV, 66, 1572864)])
        def issue_stage(s):
            slot = (s % 6) * 24576; out = []
            if s < 8:
                parts = [(0, SX, vX, 88, s * 128), (8192, SWQKV, vWd, 90, s * 64 * 3072 + 1024), (16384, SWQKV, vWd, 90, s * 64 * 3072 + 2048)]
            else:
                parts = [(8192 * k, SWQKV, vWd, 90, c * 64 * 3072) for k, c in enumerate(range(3 * (s - 8), min(8, 3 * (s - 8) + 3)))]
            for lo, srd, vo, sb, so in parts:
                out.append([f"s_add_u32 m0, s91, {slot + lo}", f"s_add_u32 s60, s{sb}, {so}", self.dmai(vo[0], srd, 60, f"st{s}")])
                out.append([f"s_add_u32 m0, s91, {slot + lo + 1024}", self.dmai(vo[1], srd, 60, f"st{s}")])
            return out
        if self.opt.get("rot1", 2):
            P(f"s_lshr_b32 s92, s{sJ}, 2" if self.opt.get("rot1", 2) == 1 else f"s_lshr_b32 s92, s{sJ}, 2\ns_and_b32 s92, s92, 6")
            def issue_stage(s):
                slot = (s % 6) * 24576; out = []
                def two(lo, srd, vo, pre):
                    out.append([f"s_add_u32 m0, s91, {slot + lo}"] + pre + [self.dmai(vo[0], srd, 60, f"st{s}")])
                    out.append([f"s_add_u32 m0, s91, {slot + lo + 1024}", self.dmai(vo[1], srd, 60, f"st{s}")])
                if s < 8:
                    two(0, SX, vX, [f"s_add_u32 s61, s92, {s}", "s_and_b32 s61, s61, 7", "s_lshl_b32 s60, s61, 7", "s_add_u32 s60, s60, s88"])
                    two(8192, SWQKV, vWd, [f"s_mul_i32 s61, s61, {64*3072}", "s_add_u32 s61, s61, s90", "s_add_u32 s60, s61, 1024"])
                    two(16384, SWQKV, vWd, ["s_add_u32 s60, s61, 2048"])
                else:
                    for k, c in enumerate(range(3 * (s - 8), min(8, 3 * (s - 8) + 3))):
                        two(8192 * k, SWQKV, vWd, [f"s_add_u32 s61, s92, {c}", "s_and_b32 s61, s61, 7", f"s_mul_i32 s61, s61, {64*3072}", "s_add_u32 s60, s61, s90"])
                return out
        flat = lambda g: [x for y in g for x in y]
        D = self.opt.get("D", 3)
        self.stamp("pre", True)
        for s in range(2): P.add(flat(issue_stage(s)))
        self.stamp("iss01", True)
        self.late_setup()
        P(f"""s_lshl_b32 s93, s{sA4}, 2
        s_add_u32 s93, s93, s{sW}
        s_mul_i32 s94, s93, {KVS}
        s_add_u32 s94, s94, {KV}
        s_lshl_b32 s95, s{sA4}, 2
        s_add_u32 s95, s95, {KZ}
        v_lshlrev_b32 v226, 7, v0""")
        Lb = P.lab("Lz")
        P(f"s_cmp_lg_u32 s{sA8}, 0\ns_cbranch_scc1 {Lb}"); P.cond_begin()
        P(f"""v_mov_b32 v12, 0
        v_mov_b32 v13, 0
        v_mov_b32 v14, 0
        v_mov_b32 v15, 0
        buffer_store_dwordx4 v[12:15], v{vL16}, {S(SWS)}, s94 offen sc1
        s_mov_b64 exec, 0xff
        buffer_store_dwordx4 v[12:15], v{vL16}, {S(SWS)}, s94 offen offset:1024 sc1
        s_mov_b64 exec, -1""")
        P.cond_end(); P(f"{Lb}:")
        def w0():
            P(f"""s_getpc_b64 s[86:87]
            L_pc:
            s_and_b32 s61, s{sJ}, 7
            s_lshl_b32 s61, s61, 13
            v_add_u32 v231, s61, v226
            v_min_u32 v231, L_end-L_pc, v231
            global_load_dword v239, v231, s[86:87]""")
        self.wave(0, w0)
        self.wave(1, lambda: P(f"s_lshl_b32 s86, s2, 13\ns_mov_b32 exec_lo, 0xfcfcfcfc\ns_mov_b32 exec_hi, 0xfcfcfcfc\nbuffer_load_dword v235, v226, {S(SX)}, s86 offen\ns_mov_b64 exec, -1"))
        self.wave(2, lambda: P(f"s_mul_i32 s86, s2, {36*128}\ns_add_u32 s86, s86, {3072*128}\ns_mov_b32 exec_hi, 15\nbuffer_load_dword v236, v226, {S(SWQKV)}, s86 offen\ns_mov_b64 exec, -1"))
        self.wave(3, lambda: P(f"""s_lshl_b32 s86, s{sX}, 7
            s_lshl_b32 s87, s{sJ}, 2
            s_add_u32 s86, s86, s87
            s_add_u32 s86, s86, {XID}
            v_mov_b32 v5, s{sXCC}
            s_mov_b64 exec, 1
            buffer_store_dword v5, off, {S(SWS)}, s86 sc1
            s_mov_b64 exec, -1"""))
        P.items.append(("count1",))
        def pf1(srd, per, d):
            P(f"s_lshl_b32 s86, s2, 2\ns_add_u32 s86, s86, s{sW}\ns_mul_i32 s86, s86, {per*128}\ns_mov_b64 exec, {(1<<per)-1}\nbuffer_load_dword v{d}, v226, {S(srd)}, s86 offen\ns_mov_b64 exec, -1")
        def hook(pt):
            if self.opt.get("ov", 1) and pt == self.opt.get("pt2", 3):
                P(f"s_mov_b64 exec, 0x3f\nbuffer_load_dword v241, v240, {S(SWS)}, 0 offen\ns_mov_b64 exec, -1")
            if self.opt.get("c3", -1) == pt:
                P(f"""v_bfe_u32 v5, v0, 3, 1
                v_xor_b32 v242, v0, v5
                v_and_b32 v242, 1, v242
                v_xor_b32 v242, 1, v242
                v_bfe_u32 v243, v0, 2, 1
                v_lshl_add_u32 v242, v243, 1, v242
                v_mul_u32_u24 v242, 3584, v242
                v_and_b32 v243, 3, v0
                v_lshl_add_u32 v242, v243, 9, v242
                v_xor_b32 v5, 1, v5
                v_mul_u32_u24 v5, {1920 - 384}, v5
                v_add_u32 v242, v242, v5
                s_lshl_b32 s86, s{sJ}, 2
                s_add_u32 s86, s86, s{sW}
                s_mul_i32 s86, s86, {4*3584}
                s_mov_b64 exec, {self.opt.get('c3m', 0xffff)}
                buffer_load_dword v242, v242, {S(SWIN)}, s86 offen offset:384
                s_mov_b64 exec, -1""")
            if self.opt.get("c3o", -1) == pt:
                P(f"""s_lshl_b32 s86, s{sJ}, 2
                s_add_u32 s86, s86, s{sW}
                s_lshl_b32 s86, s86, 12
                v_lshlrev_b32 v5, 10, v0
                s_mov_b64 exec, 0xf
                buffer_load_dword v243, v5, {S(SWO)}, s86 offen offset:384
                s_mov_b64 exec, -1""")
            for key, off, d in (("xl0", 1792, 240), ("xl1", 0, 241)):
                if self.opt.get(key, -1) == pt: self.xl(off, d)
            if self.opt.get("ptouch", -1) == pt: P(f"s_mov_b64 exec, 0xffffff\nbuffer_load_dword v237, v238, {S(SWS)}, 0 offen {self.opt.get('tm', '')}\ns_mov_b64 exec, -1")
            if self.opt.get("pwo", 7) == pt: pf1(SWO, 4, 232)
            if self.opt.get("pwin", 7) == pt: pf1(SWIN, 14, 233)
            if self.opt.get("pwout", 7) == pt: pf1(SWOUT, 7, 234)
        for s in range(2, D): P.add(flat(issue_stage(s)))
        P(f"""
        v_lshrrev_b32 v12, 1, v{vI}
        v_xor_b32 v12, v12, v{vG}
        v_lshlrev_b32 v12, 4, v12
        v_lshl_add_u32 v{vA[0]}, v{vI}, 7, v12
        v_xor_b32 v{vA[1]}, 64, v{vA[0]}
        v_add_u32 v{vO[0]}, s91, v{vA[0]}
        v_add_u32 v{vO[1]}, s91, v{vA[1]}
        v_lshrrev_b32 v12, 2, v{vI}
        v_lshl_add_u32 v13, v{vG}, 3, v12
        v_and_b32 v14, 2, v12
        v_and_b32 v15, 1, v{vG}
        v_lshl_or_b32 v14, v15, 2, v14
        v_bfe_u32 v15, v0, 1, 1
        s_lshl_b32 s86, s{sW}, 1
        v_add_u32 v15, s86, v15
        v_xor_b32 v14, v14, v15
        v_lshlrev_b32 v14, 4, v14
        v_lshl_add_u32 v14, v13, 7, v14
        v_and_b32 v15, 1, v0
        v_lshl_add_u32 v{vB}, v15, 3, v14
        """)
        for k in range(4): P(f"v_mov_b32 v{ONES+k}, 0x3f803f80")
        P(f"""s_lshl_b32 s86, s{sW}, 6
        s_add_u32 s86, s86, {SCR}
        v_lshl_add_u32 v212, v{vI}, 2, s86
        v_lshlrev_b32 v213, 4, v{vG}
        v_add_u32 v213, {SCR}, v213
        v_lshlrev_b32 v214, 2, v{vI}
        v_add_u32 v214, {SCR}, v214
        s_add_u32 s86, s91, {SCR + 1024}
        v_add_u32 v227, s86, v{vL16}
        v_lshl_add_u32 v228, v{vG}, 4, s86
        v_lshl_add_u32 v229, v0, 2, s86
        v_lshlrev_b32 v215, 2, v0
        v_and_b32 v12, 3, v0
        v_cmp_eq_u32 s[44:45], 1, v12
        v_cmp_eq_u32 s[46:47], 2, v12
        v_cmp_eq_u32 s[82:83], 3, v12""")
        if self.opt.get('ptouch', -1) >= 0: P(f"""s_lshr_b32 s86, s{sJ}, 2
        s_lshl_b32 s87, s{sX}, 3
        s_add_u32 s86, s86, s87
        s_and_b32 s87, s{sJ}, 3
        s_lshl_b32 s96, s86, 5
        s_lshl_b32 s97, s87, 2
        s_add_u32 s96, s96, s97
        s_add_u32 s96, s96, s{sW}
        s_lshl_b32 s96, s96, 10
        s_add_u32 s96, s96, {H}
        v_and_b32 v12, 7, v0
        v_lshlrev_b32 v12, 7, v12
        v_bfe_u32 v13, v0, 3, 1
        v_lshl_add_u32 v12, v13, 14, v12
        v_add_u32 v238, s96, v12
        s_lshl_b32 s96, s86, 12
        s_lshl_b32 s97, s87, 8
        s_add_u32 s96, s96, s97
        s_lshr_b32 s97, s{sW}, 1
        s_lshl_b32 s97, s97, 10
        s_add_u32 s96, s96, s97
        s_add_u32 s96, s96, {HST}
        v_and_b32 v12, 1, v0
        v_lshlrev_b32 v12, 7, v12
        v_bfe_u32 v13, v0, 1, 1
        v_lshl_add_u32 v12, v13, 11, v12
        v_add_u32 v12, s96, v12
        v_cmp_lt_u32 vcc, 15, v0
        v_cndmask_b32 v238, v238, v12, vcc
        s_lshl_b32 s96, s{sRB}, 15
        s_lshl_b32 s97, s{sCBK}, 11
        s_add_u32 s96, s96, s97
        s_lshl_b32 s97, s{sW}, 9
        s_add_u32 s96, s96, s97
        s_add_u32 s96, s96, {STATS}
        v_and_b32 v12, 3, v0
        v_lshl_add_u32 v12, v12, 7, s96
        v_cmp_lt_u32 vcc, 19, v0
        v_cndmask_b32 v238, v238, v12, vcc""")
        P(f"""s_lshr_b32 s86, s{sJ}, 2
                s_lshl_b32 s87, s{sX}, 3
                s_add_u32 s86, s86, s87
                s_lshl_b32 s87, s86, 6
                s_add_u32 s87, s87, {FP}
                v_mov_b32 v240, s87
                v_readlane_b32 s87, v{vFLAG}, 16
                s_lshl_b32 s86, s86, 12
                v_writelane_b32 v240, s87, 1
                s_and_b32 s87, s{sJ}, 3
                s_lshl_b32 s87, s87, 8
                s_add_u32 s86, s86, s87
                s_lshr_b32 s87, s{sW}, 1
                s_lshl_b32 s87, s87, 10
                s_add_u32 s86, s86, s87
                s_add_u32 s86, s86, {HST}
                v_writelane_b32 v240, s86, 2
                s_add_u32 s87, s86, 128
                v_writelane_b32 v240, s87, 3
                s_add_u32 s87, s86, 2048
                v_writelane_b32 v240, s87, 4
                s_add_u32 s87, s86, 2176
                v_writelane_b32 v240, s87, 5""")
        cur = [0]
        def setbase(slot, regs):
            want = (slot // 2) * 49152; out = []
            if want != cur[0]:
                out = [f"v_add_u32 v{r}, {want - cur[0]}, v{r}" if want > cur[0] else f"v_subrev_u32 v{r}, {cur[0] - want}, v{r}" for r in regs]
                cur[0] = want
            return (slot % 2) * 24576, out
        def reads(ks, so):
            t = ks & 1; out = []
            for base, lo in ((BK, 8192), (BV, 16384)):
                for h in range(2): out.append(f"ds_read_b64_tr_b16 {vr(base+4*t+2*h,2)}, v{vB} offset:{so + lo + t*4096 + h*512}")
            for rf in range(4): out.append(f"ds_read_b128 {ar((ks*4+rf)*4,4)}, v{vA[t]} offset:{so + rf*2048}")
            out.append(f"ds_read_b128 {vr(OWN+4*t,4)}, v{vO[t]} offset:{so}")
            return out
        def mfmas(ks):
            t = ks & 1; m = []
            c = lambda r: vr(r, 4) if ks else "0"
            m.append(f"{MF} {vr(DS,4)}, {vr(OWN+4*t,4)}, {vr(ONES,4)}, {c(DS)}")
            m.append(f"{MF} {vr(DQ,4)}, {vr(OWN+4*t,4)}, {vr(OWN+4*t,4)}, {c(DQ)}")
            m.append(f"{MF} {vr(CSK,4)}, {vr(ONES,4)}, {vr(BK+4*t,4)}, {c(CSK)}")
            m.append(f"{MF} {vr(CSV,4)}, {vr(ONES,4)}, {vr(BV+4*t,4)}, {c(CSV)}")
            for rf in range(4):
                for base, acc in ((BK, ACK), (BV, ACV)):
                    m.append(f"{MF} {vr(acc+4*rf,4)}, {ar((ks*4+rf)*4,4)}, {vr(base+4*t,4)}, {c(acc+4*rf)}")
            return m
        def lay(m, r, g):
            if not m: return r + flat(g)
            g = g + [[]] * (3 - len(g))
            return mix(m[:4], r[:5] + g[0]) + mix(m[4:7], r[5:]) + mix(m[7:9], g[1]) + m[9:10] + mix(m[10:], g[2])
        for s in range(8):
            P.wait_tag(f"st{s}"); self.barrier()
            if s == 0: self.stamp("st0")
            else: self.stamp(f"st{s}", True)
            if s == 2:
                P(f"v_readfirstlane_b32 s{sE}, v225\ns_mul_i32 s{sE}, s{sE}, 0x9e3779b1\ns_add_u32 s{sE}, s{sE}, 0x7f4a7c15")
                Lb = P.lab("Lz")
                P(f"s_or_b32 s86, s{sA8}, s{sW}\ns_cmp_lg_u32 s86, 0\ns_cbranch_scc1 {Lb}"); P.cond_begin()
                P(f"v_mov_b32 v5, s{sE}\ns_mov_b64 exec, 1\nbuffer_store_dword v5, off, {S(SWS)}, s95 sc1\ns_mov_b64 exec, -1")
                P.cond_end(); P(f"{Lb}:")
            so, adj = setbase(s % 6, vA + vO + [vB])
            iss = issue_stage(s + D) if s + D <= 10 else []
            if s == 6: P(f"buffer_load_dword v230, off, {S(SWS)}, s95 sc1")
            hook(s)
            h = len(iss) // 2
            P.add(adj + lay(mfmas(2*s - 1) if s else [], reads(2*s, so), iss[:h]))
            P.wait_ds()
            P.add(lay(mfmas(2*s), reads(2*s + 1, so), iss[h:]))
        for s in range(8 + D, 11): P.add(flat(issue_stage(s)))
        m = mfmas(15)
        sel = []
        for k, sm in ((1, 44), (2, 46), (3, 82)):
            sel += [f"v_cndmask_b32 v{DS}, v{DS}, v{DS+k}, s[{sm}:{sm+1}]", f"v_cndmask_b32 v{DQ}, v{DQ}, v{DQ+k}, s[{sm}:{sm+1}]"]
        fin = [f"v_mul_f32 v{DS}, {f2u(-1.0/512):#x}, v{DS}", f"v_mul_f32 v{DQ}, {f2u(1.0/512):#x}, v{DQ}", f"v_fma_f32 v{DQ}, -v{DS}, v{DS}, v{DQ}",
               f"v_max_f32 v{DQ}, 0, v{DQ}", f"v_add_f32 v{DQ}, {f2u(1e-5):#x}, v{DQ}", f"v_rsq_f32 v{DS+1}, v{DQ}"]
        P.add(m[:6] + mix(m[6:], sel + fin))
        P(f"""v_mul_f32 v{DS+2}, v{DS}, v{DS+1}
        s_mov_b32 exec_lo, 0x00f0000f
        s_mov_b32 exec_hi, 0xf0000f00
        ds_write_b32 v212, v{DS+1}
        ds_write_b32 v212, v{DS+2} offset:256
        s_mov_b64 exec, -1""")
        self.stamp("p1gemm")
        self.barrier()
        for rf in range(4):
            P(f"ds_read_b128 {vr(ST+8*rf,4)}, v213 offset:{rf*64}\nds_read_b128 {vr(ST+8*rf+4,4)}, v213 offset:{256+rf*64}")
        for rf in range(4):
            P(f"ds_read_b32 v{STQ+2*rf}, v214 offset:{rf*64}\nds_read_b32 v{STQ+2*rf+1}, v214 offset:{256+rf*64}")
        PK = 160; PV = 168; TT = 176; KVD = 184; ZD = 188
        for rf in range(4):
            ls = []
            for hp in range(2):
                x = ACK + 4*rf + 2*hp; t = TT + 2*hp
                ls.append(self.affine_pair(x, t, ST+8*rf+2*hp, ST+8*rf+4+2*hp, CSK, False) + self.phi_pair(x, t, PK + 2*rf + hp))
                x = ACV + 4*rf + 2*hp; t = TT + 4 + 2*hp
                ls.append(self.affine_pair(x, t, ST+8*rf+2*hp, ST+8*rf+4+2*hp, CSV, False) + [f"v_cvt_pk_bf16_f32 v{PV+2*rf+hp}, v{x}, v{x+1}"])
            P.add(zipped(ls))
        p2a, p2b = self.p2_setup()
        P(f"""{MF} {vr(KVD,4)}, {vr(PK,4)}, {vr(PV,4)}, 0
        {MF} {vr(ZD,4)}, {vr(PK,4)}, {vr(ONES,4)}, 0
        {MF} {vr(KVD,4)}, {vr(PK+4,4)}, {vr(PV+4,4)}, {vr(KVD,4)}
        {MF} {vr(ZD,4)}, {vr(PK+4,4)}, {vr(ONES,4)}, {vr(ZD,4)}""")
        P.add(p2a[:8])
        P(f"ds_write_b128 v227, {vr(KVD,4)}\nds_write_b128 v228, {vr(ZD,4)} offset:1024")
        P.add(p2a[8:])
        P.wait_ds()
        for t in range(5): P(f"ds_read_b32 v{192+t}, v229 offset:{t*256}")
        self.check_retry(f"buffer_load_dword v230, off, {S(SWS)}, s95 sc1", f"v_cmp_ne_u32 vcc, s{sE}, v230")
        for t in range(4): P(f"buffer_atomic_add_f32 v{192+t}, v215, {S(SWS)}, s94 offen offset:{t*256} sc1", "atom")
        P(f"s_mov_b64 exec, 0xffff\nbuffer_atomic_add_f32 v196, v215, {S(SWS)}, s94 offen offset:1024 sc1\ns_mov_b64 exec, -1", "atom")
        self.stamp("atom")
        hook(8)
        def qreads(ks):
            c = ks >> 1; t = ks & 1
            so, adj = setbase(2 + c // 3, [vB])
            return adj + [f"ds_read_b64_tr_b16 {vr(BK+4*(ks&3)+2*h,2)}, v{vB} offset:{so + (c%3)*8192 + t*4096 + h*512}" for h in range(2)]
        def qm(ks):
            b = vr(BK+4*(ks&3),4)
            out = [f"{MF} {vr(ACQ+4*rf,4)}, {b}, {ar((ks*4+rf)*4,4)}, {vr(ACQ+4*rf,4) if ks else '0'}" for rf in range(4)]
            return out + [f"{MF} {vr(CSQ,4)}, {b}, {vr(ONES,4)}, {vr(CSQ,4) if ks else '0'}"]
        P.wait_tag("st10"); self.barrier()
        P.add(qreads(0) + qreads(1))
        wo_e = self.wo_dma(0)
        p2b = p2b + L(f"""s_lshl_b32 s87, s{sA8}, 6
        s_add_u32 s87, s87, s93
        s_lshl_b32 s87, s87, 10
        s_add_u32 s64, s87, {PQ}
        s_add_u32 s65, s64, 32768""")
        n = (len(p2b) + 15) // 16
        for ks in range(16):
            if ks == self.opt.get("fa", -1):
                P.wait_tag("atom"); P("s_barrier")
                self.wave0(lambda: self.set_flag((1 << R1) - 1))
            P.add(mix(qm(ks), (qreads(ks + 2) if ks + 2 < 16 else []) + wo_e[len(wo_e)*ks//16:len(wo_e)*(ks+1)//16] + p2b[n*ks:n*ks+n]))
        PQR = 160
        one = self.opt.get("one", 0)
        if self.opt.get("fa", -1) >= 0: self.barrier()
        elif one == 0:
            P.wait_tag("atom"); self.barrier()
            self.wave0(lambda: self.set_flag((1 << R1) - 1))
        elif one == 1: self.barrier()
        self.stamp("F1a")
        hook(9)
        wo_l = self.wo_dma(1)
        for p in range(2):
            ls = []
            for rf in (2*p, 2*p+1):
                for hp in range(2):
                    x = ACQ + 4*rf + 2*hp; t = TT + 2*((2*rf+hp) % 4)
                    ls.append(self.affine_pair(x, t, STQ+2*rf, STQ+2*rf+1, CSQ+2*hp, True) + self.phi_pair(x, t, PQR + 2*rf + hp))
            P.add(zipped(ls))
            if one == 2 and p == 0:
                P.wait_tag("atom"); self.barrier()
                self.wave0(lambda: self.set_flag((1 << R1) - 1))
            P(f"buffer_store_dwordx4 {vr(PQR+4*p,4)}, v{vL16}, {S(SWS)}, s{64+p} offen sc1", "pq")
        nw = self.opt.get("nw", 8)
        P.add(weave(self.wo_reads(0) + self.wo_reads(1), wo_l[:3*nw]))
        P.wait_tag("pq")
        P("s_barrier")
        self.wave0(lambda: self.set_flag((1 << R1) - 1 if one == 1 else 1 << 27))
        self.stamp("F1")
        hook(10)
        P.add(wo_l[3*nw:])

    def p2_setup(self):
        a = L(f"""
        s_lshr_b32 s88, s{sJ}, 2
        s_lshl_b32 s86, s{sX}, 3
        s_add_u32 s88, s88, s86
        s_and_b32 s89, s{sJ}, 3
        v_lshrrev_b32 v12, 3, v0
        v_and_b32 v13, 6, v12
        v_and_b32 v14, 7, v0
        v_xor_b32 v13, v13, v14
        v_lshlrev_b32 v{vSW}, 4, v13
        v_lshl_add_u32 v200, v12, 10, v{vSW}
        s_lshl_b32 s90, s{sW}, 17
        s_lshl_b32 s86, s89, 8
        s_add_u32 s90, s90, s86
        s_lshl_b32 s91, s{sW}, 14
        s_add_u32 s96, s91, 65536
        s_cmp_eq_u32 s{sW}, 3
        s_cselect_b32 s91, 131072, s91""")
        b = L(f"""
        v_lshrrev_b32 v12, 2, v{vI}
        v_lshl_add_u32 v12, v{vG}, 2, v12
        v_and_b32 v13, 6, v12
        v_bfe_u32 v14, v0, 1, 1
        v_xor_b32 v13, v13, v14
        v_and_b32 v14, 1, v0
        v_lshlrev_b32 v14, 3, v14
        v_lshl_add_u32 v14, v12, 7, v14
        v_lshl_add_u32 v{vT[0]}, v13, 4, v14
        v_xor_b32 v{vT[1]}, 32, v{vT[0]}
        v_xor_b32 v{vT[2]}, 64, v{vT[0]}
        v_xor_b32 v{vT[3]}, 96, v{vT[0]}
        s_and_b32 s86, s{sW}, 1
        s_lshl_b32 s86, s86, 6""")
        for p in range(4):
            b += L(f"s_add_u32 s87, s{sW}, {p}\ns_and_b32 s87, s87, 2\ns_lshl_b32 s87, s87, 12\ns_add_u32 s87, s87, s91")
            for cf in range(2):
                b += [f"v_xor_b32 v{204+2*p+cf}, s86, v{vT[2*(p&1)+cf]}", f"v_add_u32 v{204+2*p+cf}, s87, v{204+2*p+cf}"]
        return a, b
    def wo_dma(self, half):
        out = []
        for i in range(8):
            for st in range(2):
                if self.opt.get('rotwo', 0):
                    if st == 0:
                        out += [f"s_add_u32 s61, s88, {i}", "s_and_b32 s61, s61, 7", "s_lshl_b32 s66, s61, 10", f"s_add_u32 s66, s66, s{96 if half else 91}", "s_mov_b32 m0, s66",
                                "s_lshl_b32 s61, s61, 13", "s_add_u32 s61, s61, s90", f"s_add_u32 s60, s61, {8*half*8192}", self.dmai(200, SWO, 60, f"wo{2*half}")]
                    else:
                        out += ["s_add_u32 m0, s66, 8192", "s_add_u32 s60, s60, 128", self.dmai(200, SWO, 60, f"wo{2*half}")]
                else:
                    out += [f"s_add_u32 m0, s{96 if half else 91}, {st*8192 + i*1024}", f"s_add_u32 s60, s90, {(8*half+i)*8192 + st*128}", self.dmai(200, SWO, 60, f"wo{2*half + i//4}")]
        return out
    def wo_reads(self, kk):
        return [WT(f"wo{kk}")] + [f"ds_read_b64_tr_b16 {ar(((kk*4+p)*2+cf)*4+2*h,2)}, v{204+2*p+cf} offset:{(kk&1)*4096 + h*2048}" for p in range(4) for cf in range(2) for h in range(2)]
    def xl(self, off, d):
        self.P(f"""v_mul_u32_u24 v5, 74, v0
        v_lshrrev_b32 v5, 10, v5
        v_mul_u32_u24 v{d}, {3584 - 14*128}, v5
        v_lshl_add_u32 v5, v0, 7, v{d}
        s_lshl_b32 s86, s{sJ}, 2
        s_add_u32 s86, s86, s{sW}
        s_mul_i32 s86, s86, {4*3584}
        s_add_u32 s86, s86, {off}
        s_mov_b32 exec_hi, 0xffffff
        buffer_load_dword v{d}, v5, s[44:47], s86 offen
        s_mov_b64 exec, -1""".replace("s[44:47]", S(SWIN)))
    def win_setup(self, v):
        return L(f"""v_lshrrev_b32 v{v}, 3, v0
        v_mul_u32_u24 v{v}, 3584, v{v}
        v_add_u32 v{v}, v{v}, v{vSW}
        s_min_u32 s70, s{sCBK}, 13
        s_lshl_b32 s70, s70, 7
        s_mul_i32 s71, s{sW}, {8*3584}
        s_add_u32 s70, s70, s71
        s_lshl_b32 s71, s{sW}, 10
""")
    def win_dma(self, half, t, v):
        n = 16 if half == 0 else self.opt.get('nw1', 10)
        if self.opt.get('rotw', 0) and t < n and n % 2 == 0:
            sg = "s_add_u32" if t < n // 2 else "s_sub_u32"
            r = 78 if half == 0 else 80
            return [f"s_add_u32 m0, s71, {half*65536 + t*4096}", f"{sg} m0, m0, s{r}", f"s_add_u32 s60, s70, {t*32*3584 + (1792 if half == 0 else 0)}", f"{sg} s60, s60, s{r+1}", self.dmai(v, SWIN, 60, f"win{half}")]
        return [f"s_add_u32 m0, s71, {half*65536 + t*4096}", NOPIF, f"s_add_u32 s60, s{82 if half else 70}, {t*32*3584 + (1792 if half == 0 else 0)}", NOPIF, self.dmai(v, SWIN, 60, f"win{half}")]

    def win0_dma(self, v):
        out = L(f"s_min_u32 s72, s{sCBK}, 13\ns_lshl_b32 s72, s72, 7\ns_mul_i32 s73, s{sW}, {128*3584}\ns_add_u32 s72, s72, s73\ns_lshl_b32 s73, s{sW}, 14")
        for i in range(16):
            out += [f"s_add_u32 m0, s73, {i*1024}", f"s_add_u32 s60, s72, {i*8*3584 + 1792}", self.dmai(v, SWIN, 60, "win0")]
        return out

    def phase2(self):
        P = self.P
        EX = 114688
        XR = 244; EPSQ = 124
        P(f"""s_lshl_b32 s86, s88, 15
        s_lshl_b32 s87, s89, 8
        s_add_u32 s86, s86, s87
        s_lshl_b32 s87, s{sW}, 6
        s_add_u32 s60, s86, s87
        s_lshl_b32 s87, s{sW}, 11
        s_add_u32 m0, s87, 147456
        v_lshrrev_b32 v12, 2, v0
        v_lshrrev_b32 v13, 3, v0
        v_xor_b32 v13, v13, v0
        v_and_b32 v13, 3, v13
        v_lshlrev_b32 v13, 4, v13
        v_lshl_add_u32 v12, v12, 10, v13""")
        P.add([self.dmai(12, SX, 60, "xt"), "s_add_u32 m0, s87, 148480", "s_add_u32 s60, s60, 16384", self.dmai(12, SX, 60, "xt")])
        P(f"""v_lshrrev_b32 v13, 1, v{vI}
        v_lshrrev_b32 v14, 1, v{vG}
        v_xor_b32 v13, v13, v14
        v_and_b32 v13, 3, v13
        v_lshlrev_b32 v13, 4, v13
        v_lshl_add_u32 v13, v{vI}, 6, v13
        v_and_b32 v14, 1, v{vG}
        v_lshl_add_u32 v13, v14, 3, v13
        s_add_u32 s87, s87, 147456
        v_add_u32 v20, s87, v13
        v_xor_b32 v21, 32, v20""")
        P(f"""s_lshl_b32 s86, s{sW}, 3
        s_mul_i32 s92, s86, {KVS}
        s_add_u32 s92, s92, {KV}
        s_add_u32 s93, s92, {4*KVS}
        s_lshl_b32 s94, s88, 5
        s_add_u32 s94, s94, s86
        s_lshl_b32 s94, s94, 10
        s_add_u32 s94, s94, {PQ}
        s_add_u32 s95, s94, 4096
        v_and_b32 v12, 7, v0
        v_mul_u32_u24 v12, {KVS}, v12
        v_lshl_add_u32 v19, v{vG}, 4, v12
        v_and_b32 v18, 31, v0
        v_lshlrev_b32 v18, 2, v18
        s_lshl_b32 s66, s{sX}, 7
        s_add_u32 s66, s66, {XID}
        s_lshl_b32 s83, s88, 6
        s_add_u32 s83, s83, {FP}
        s_lshl_b32 s74, s89, 2
        s_add_u32 s74, s74, s{sW}
        s_lshl_b32 s74, s74, 2
        s_add_u32 s74, s74, s83
        v_lshlrev_b32 v255, 2, v{vI}
        s_and_b32 s67, s2, {R1 - 1}
        s_lshl_b32 s67, s67, 10
        s_add_u32 s67, s67, {F1}
        s_lshr_b32 s97, s88, 1
        s_lshl_b32 s97, s97, 7
        s_add_u32 s97, s97, {F1B}
        v_and_b32 v16, 7, v0
        v_lshlrev_b32 v16, 2, v16""")
        for k in range(4): P(f"v_mov_b32 v{EPSQ+k}, s{sEPS6}")
        P.add(self.win_setup(123))
        P("s_mov_b32 s82, s70")
        if self.opt.get("redir", 1):
            Lb = P.lab("Lr")
            P(f"""s_cmp_lt_u32 s{sCBK}, 14
            s_cbranch_scc1 {Lb}
            s_mov_b32 s{SWIN}, s{SWSP}
            s_mov_b32 s{SWIN+1}, s{SWSP+1}
            s_mov_b32 s{SWIN+2}, 8388608
            s_lshl_b32 s86, s{sRB}, 1
            s_add_u32 s86, s86, s{sCBK}
            s_sub_u32 s86, s86, 14
            s_lshl_b32 s86, s86, 2
            s_add_u32 s86, s86, s{sW}
            s_mul_i32 s87, s86, 147
            s_lshr_b32 s87, s87, 12
            s_mul_i32 s87, s87, 420
            s_add_u32 s86, s86, s87
            s_lshl_b32 s86, s86, 12
            s_mov_b32 s70, s86
            s_mov_b32 s82, 0x40000000
            v_lshrrev_b32 v123, 4, v0
            v_lshlrev_b32 v123, 10, v123
            v_bfe_u32 v12, v0, 3, 1
            v_lshl_add_u32 v123, v12, 7, v123
            v_and_b32 v12, 7, v0
            v_lshl_add_u32 v123, v12, 4, v123
            v_add_u32 v123, {4096 - 1792}, v123
            s_sub_u32 s70, s70, 4096
            s_cmp_eq_u32 s86, 0
            s_cselect_b32 s70, 0x40000000, s70
            {Lb}:""")
        for p in range(1, 4):
            P(f"s_add_u32 s86, s{sW}, {p}\ns_and_b32 s86, s86, 3\ns_mul_i32 s86, s86, 12288\ns_add_u32 s86, s86, {EX + (p-1)*4096}")
            P(f"v_add_u32 v{118+p}, s86, v{vL16}")
        P(f"""s_mul_i32 s86, s{sW}, 12288
        s_add_u32 s86, s86, {EX}
        v_add_u32 v118, s86, v{vL16}
        s_lshl_b32 s64, s88, 5
        s_lshl_b32 s87, s89, 2
        s_add_u32 s64, s64, s87
        s_add_u32 s64, s64, s{sW}
        s_lshl_b32 s64, s64, 10
        s_add_u32 s64, s64, {H}
        s_add_u32 s65, s64, 16384
        s_lshl_b32 s61, s88, 12
        s_lshl_b32 s86, s89, 8
        s_add_u32 s61, s61, s86
        s_lshr_b32 s86, s{sW}, 1
        s_lshl_b32 s86, s86, 10
        s_add_u32 s61, s61, s86
        s_and_b32 s86, s{sW}, 1
        s_lshl_b32 s86, s86, 3
        s_add_u32 s61, s61, s86
        s_add_u32 s61, s61, {HST}
        v_lshlrev_b32 v122, 4, v{vI}
        v_lshl_add_u32 v122, v{vG}, 11, v122""")
        if self.opt.get("touch", 3) == 1:
            P(f"""v_and_b32 v12, 7, v0
            v_lshlrev_b32 v12, 7, v12
            v_bfe_u32 v13, v0, 3, 1
            v_lshl_add_u32 v12, v13, 14, v12
            s_mov_b64 exec, {self.opt.get('tmH', 0xffff)}
            buffer_load_dword v253, v12, {S(SWS)}, s64 offen {self.opt.get('tm', '')}
            v_and_b32 v12, 1, v0
            v_lshlrev_b32 v12, 7, v12
            v_bfe_u32 v13, v0, 1, 1
            v_lshl_add_u32 v12, v13, 11, v12
            s_mov_b64 exec, {self.opt.get('tmS', 0xf)}
            buffer_load_dword v254, v12, {S(SWS)}, s61 offen {self.opt.get('tm', '')}
            s_mov_b64 exec, -1""")
        fl2 = f"buffer_load_dwordx4 v[12:15], v{vL16}, {S(SWS)}, s67 offen sc1\n" + (f"v_mov_b32 v17, s{sE}" if self.opt.get("one", 0) == 1 else f"buffer_load_dword v17, v16, {S(SWS)}, s97 offen sc1")
        if self.opt.get("nbp", 0): self.wave0(lambda: P(fl2))
        P("s_sub_u32 s86, s96, s91")
        for r in range(204, 212): P(f"v_add_u32 v{r}, s86, v{r}")
        P.add(self.wo_reads(2) + self.wo_reads(3))
        P.wait_tag("xt")
        for a in range(2):
            for cf in range(2): P(f"ds_read_b64 {vr(XR+(a*2+cf)*2,2)}, v{20+cf} offset:{a*1024}")
        self.stamp("wo")
        cm = "\n".join(f"v_xor_b32 v{r}, s{sE}, v{r}" for r in (12, 13, 14, 15, 17)) + "\nv_or3_b32 v12, v12, v13, v14\nv_or3_b32 v12, v12, v15, v17\nv_cmp_ne_u32 vcc, 0, v12"
        def pl():
            if not self.opt.get("nbp", 0): P(fl2)
            self.check_retry(fl2, cm)
        self.wave0(pl)
        self.barrier()
        self.stamp("sync1")
        KR = 16; KP = 48; ZR = 64; ZC = 68; ZP = 70; PQR = 86; ACC = 128; OF = 192; ND = 212
        P(f"buffer_load_dwordx4 {vr(ZR,4)}, v19, {S(SWS)}, s92 offen offset:1024 sc1")
        P(f"buffer_load_dword v252, v18, {S(SWS)}, s66 offen sc1")
        for h in range(8):
            P(f"buffer_load_dwordx4 {vr(KR+4*h,4)}, v{vL16}, {S(SWS)}, s{92+h//4} offen offset:{(h%4)*KVS} sc1")
            P(f"buffer_load_dwordx4 {vr(PQR+4*h,4)}, v{vL16}, {S(SWS)}, s{94+h//4} offen offset:{(h%4)*1024} sc1")
        if self.opt.get("touch", 3) == 2:
            P(f"""v_and_b32 v12, 7, v0
            v_lshlrev_b32 v12, 7, v12
            v_bfe_u32 v13, v0, 3, 1
            v_lshl_add_u32 v12, v13, 14, v12
            s_mov_b64 exec, {self.opt.get('tmH', 0xffff)}
            buffer_load_dword v253, v12, {S(SWS)}, s64 offen {self.opt.get('tm', '')}
            v_and_b32 v12, 1, v0
            v_lshlrev_b32 v12, 7, v12
            v_bfe_u32 v13, v0, 1, 1
            v_lshl_add_u32 v12, v13, 11, v12
            s_mov_b64 exec, {self.opt.get('tmS', 0xf)}
            buffer_load_dword v254, v12, {S(SWS)}, s61 offen {self.opt.get('tm', '')}
            s_mov_b64 exec, -1""")
        wd = []
        if not self.opt.get("w0early", 0):
            for t in range(16): wd += self.win_dma(0, t, 123)
        NW1 = self.opt.get('nw1', 10)
        for t in range(NW1): wd += self.win_dma(1, t, 123)
        ni, ns = self.opt.get("ni", 0), self.opt.get("ns", 0)
        P.add(wd[:5*ni]); wd = wd[5*ni:]
        wds = wd[len(wd) - 5*ns:] if ns else []; wd = wd[:len(wd) - 5*ns]
        P(f"v_cvt_pk_bf16_f32 v{ZC}, v{ZR}, v{ZR+1}\nv_cvt_pk_bf16_f32 v{ZC+1}, v{ZR+2}, v{ZR+3}")
        P(f"v_cmp_ne_u32 vcc, s{sXCC}, v252")
        for h in range(8):
            for k in range(2): P(f"v_mov_b32_dpp v{ZP+2*h+k}, v{ZC+k} row_newbcast:{h} row_mask:0xf bank_mask:0xf")
        P(f"s_cmp_eq_u64 vcc, 0\ns_cselect_b32 s{sM}, {self.opt.get('fast', 1)}, 0")
        def ostep(kk):
            c = []; m = []
            for hh in range(2):
                h = 2*kk + hh
                c += [f"v_cvt_pk_bf16_f32 v{KP+2*h}, v{KR+4*h}, v{KR+4*h+1}", f"v_cvt_pk_bf16_f32 v{KP+2*h+1}, v{KR+4*h+2}, v{KR+4*h+3}"]
            for hh in range(2):
                h = 2*kk + hh
                for a in range(2):
                    m.append(f"v_mfma_f32_16x16x16_bf16 {vr(ND+8*(2*hh+a)+4,4)}, {vr(ZP+2*h,2)}, {vr(PQR+4*h+2*a,2)}, {vr(EPSQ,4)}")
            for hh in range(2):
                h = 2*kk + hh
                for a in range(2):
                    m.append(f"v_mfma_f32_16x16x16_bf16 {vr(ND+8*(2*hh+a),4)}, {vr(KP+2*h,2)}, {vr(PQR+4*h+2*a,2)}, 0")
            v = [f"v_rcp_f32 v{ND+8*q+4}, v{ND+8*q+4}" for q in range(4)]
            for hh in range(2):
                for a in range(2):
                    nd = ND + 8*(2*hh+a); o = OF + 8*(kk&1) + 4*a + 2*hh
                    v += [f"v_mul_f32 v{nd+k}, v{nd+k}, v{nd+4}" for k in range(4)]
                    v += [f"v_cvt_pk_bf16_f32 v{o}, v{nd}, v{nd+1}", f"v_cvt_pk_bf16_f32 v{o+1}, v{nd+2}, v{nd+3}"]
            return c, m, v
        def gstep(kk):
            m = []
            for p in range(4):
                for cf in range(2):
                    for a in range(2):
                        acc = vr(ACC + ((p*2+a)*2+cf)*4, 4)
                        m.append(f"{MF} {acc}, {ar(((kk*4+p)*2+cf)*4,4)}, {vr(OF+8*(kk&1)+4*a,4)}, {acc if kk else '0'}")
            return m
        c, m, v = ostep(0); P.add(c[:2] + mix(m[:4], c[2:]) + m[4:] + v)
        self.stamp("p2o0", True)
        if self.opt.get("xl1", -1) == 20: self.xl(0, 255)
        if self.opt.get("touch", 3) == 3 and not self.opt.get("ov", 1):
            P(f"""v_and_b32 v12, 7, v0
            v_lshlrev_b32 v12, 7, v12
            v_bfe_u32 v13, v0, 3, 1
            v_lshl_add_u32 v12, v13, 14, v12
            s_mov_b64 exec, {self.opt.get('tmH', 0xffff)}
            buffer_load_dword v253, v12, {S(SWS)}, s64 offen {self.opt.get('tm', '')}
            v_and_b32 v12, 1, v0
            v_lshlrev_b32 v12, 7, v12
            v_bfe_u32 v13, v0, 1, 1
            v_lshl_add_u32 v12, v13, 11, v12
            s_mov_b64 exec, {self.opt.get('tmS', 0xf)}
            buffer_load_dword v254, v12, {S(SWS)}, s61 offen {self.opt.get('tm', '')}
            s_mov_b64 exec, -1""")
        XF = 80
        xun = []
        for q in range(4):
            for k in range(2): xun += [f"v_lshlrev_b32 v{XF+4*q+2*k}, 16, v{XR+2*q+k}", f"v_and_b32 v{XF+4*q+2*k+1}, 0xffff0000, v{XR+2*q+k}"]
        xw = [f"ds_write_b128 v{118+p}, {vr(ACC+(p*4+q)*4,4)} offset:{q*1024}" for p in range(1, 4) for q in range(4)]
        for kk in range(4):
            g = gstep(kk)
            if kk < 3:
                c, m, v = ostep(kk+1)
                q_ = min(25, 5 * ((len(wd) // 5 + 3) // 4)); h_ = 5 * (q_ // 10)
                P.add(mix(m[:4], c) + mix(m[4:], wd[q_*kk:q_*kk+h_]))
                if kk == 2 and self.opt.get("ov", 1):
                    P(f"v_mov_b32 v253, s{sE}\ns_mov_b64 exec, 1")
                    self.local([f"buffer_store_dword v253, off, {S(SWS)}, s74 @SC"], flag=True)
                    P("s_mov_b64 exec, -1")
                P.add(mix(g, weave(v, wd[q_*kk+h_:q_*kk+q_], 5), 1))
            else:
                g = g[4:] + g[:4]
                P.add(mix(g[:9], wd[3*q_:3*q_+15]) + mix(g[9:], xw[:7]) + xw[7:])
        self.stamp("p2mm")
        fpl = f"buffer_load_dword v254, v255, {S(SWS)}, s83 offen sc1"
        if self.opt.get("ov", 1) and self.opt.get("fpa", 0) == 0: P(fpl)
        if self.opt.get("touch", 3) == 4:
            P(f"""v_and_b32 v12, 7, v0
            v_lshlrev_b32 v12, 7, v12
            v_bfe_u32 v13, v0, 3, 1
            v_lshl_add_u32 v12, v13, 14, v12
            s_mov_b64 exec, {self.opt.get('tmH', 0xffff)}
            buffer_load_dword v253, v12, {S(SWS)}, s64 offen {self.opt.get('tm', '')}
            v_and_b32 v12, 1, v0
            v_lshlrev_b32 v12, 7, v12
            v_bfe_u32 v13, v0, 1, 1
            v_lshl_add_u32 v12, v13, 11, v12
            s_mov_b64 exec, {self.opt.get('tmS', 0xf)}
            buffer_load_dword v254, v12, {S(SWS)}, s61 offen {self.opt.get('tm', '')}
            s_mov_b64 exec, -1""")
        P.add(weave(xun, wd[3*q_+15:], 5))
        for q in range(4):
            for k in range(2): P(f"v_pk_add_f32 {vr(ACC+4*q+2*k,2)}, {vr(ACC+4*q+2*k,2)}, {vr(XF+4*q+2*k,2)}")
        self.barrier()
        RB = 32; HO = 96
        if self.opt.get("ov", 1) and self.opt.get("fpa", 0) == 1: P(fpl)
        for q in range(4):
            for p in range(3): P(f"ds_read_b128 {vr(RB+(p*4+q)*4,4)}, v118 offset:{(p*4+q)*1024}")
        for q in range(4):
            for p in range(3):
                for k in range(2): P(f"v_pk_add_f32 {vr(ACC+4*q+2*k,2)}, {vr(ACC+4*q+2*k,2)}, {vr(RB+(p*4+q)*4+2*k,2)}")
            for k in range(2): P(f"v_cvt_pk_bf16_f32 v{HO+2*q+k}, v{ACC+4*q+2*k}, v{ACC+4*q+2*k+1}")
        if self.opt.get("ov", 1): self.check_retry(fpl, f"v_cmp_ne_u32 vcc, s{sE}, v254")
        self.local([f"buffer_store_dwordx4 {vr(HO+4*a,4)}, v{vL16}, {S(SWS)}, s{64+a} offen @SC" for a in range(2)], "hst")
        SS = 104
        ls = []
        for a in range(2):
            x = ACC + 8*a; s_ = SS + 4*a
            ls.append([f"v_pk_add_f32 {vr(s_,2)}, {vr(x,2)}, {vr(x+2,2)}", f"v_pk_mul_f32 {vr(s_+2,2)}, {vr(x,2)}, {vr(x,2)}",
                       f"v_pk_add_f32 {vr(s_,2)}, {vr(s_,2)}, {vr(x+4,2)}", f"v_pk_fma_f32 {vr(s_+2,2)}, {vr(x+2,2)}, {vr(x+2,2)}, {vr(s_+2,2)}",
                       f"v_pk_add_f32 {vr(s_,2)}, {vr(s_,2)}, {vr(x+6,2)}", f"v_pk_fma_f32 {vr(s_+2,2)}, {vr(x+4,2)}, {vr(x+4,2)}, {vr(s_+2,2)}",
                       f"v_add_f32 v{s_}, v{s_}, v{s_+1}", f"v_pk_fma_f32 {vr(s_+2,2)}, {vr(x+6,2)}, {vr(x+6,2)}, {vr(s_+2,2)}",
                       f"v_add_f32 v{s_+1}, v{s_+2}, v{s_+3}"])
        P.add(zipped(ls))
        self.xreduce([SS, SS+1, SS+4, SS+5], 112, ops=("v_permlane32_swap_b32",))
        P(f"""v_permlane16_swap_b32 v{SS}, v{SS+4}
        v_permlane16_swap_b32 v{SS+1}, v{SS+5}
        v_pk_add_f32 {vr(SS,2)}, {vr(SS,2)}, {vr(SS+4,2)}
        s_mov_b32 exec_hi, 0""")
        self.local([f"buffer_store_dwordx2 {vr(SS,2)}, v122, {S(SWS)}, s61 offen @SC"], "hst")
        P("s_mov_b64 exec, -1")
        P.add(wds)
        self.p3_setup()
        P.wait_tag("hst")
        self.barrier()
        self.wave0(lambda: self.set_flag(1 << 16, True))
        self.stamp("F2")

    def wsp_setup(self):
        o = L(f"""v_lshrrev_b32 v12, 3, v0
        v_and_b32 v13, 7, v0
        v_xor_b32 v13, v13, v{vG}
        v_lshlrev_b32 v13, 4, v13
        v_lshl_add_u32 v244, v12, 12, v13
        v_xor_b32 v245, 64, v244
        v_add_u32 v245, 32768, v245
        s_lshl_b32 s96, s{self.T4}, 18
        s_lshl_b32 s86, s{sW}, 10
        s_add_u32 s96, s96, s86
        s_lshl_b32 s97, s{sW}, 14
        v_lshrrev_b32 v12, 1, v{vI}
        v_xor_b32 v12, v12, v{vG}
        v_lshlrev_b32 v12, 4, v12
        v_lshl_add_u32 v12, v{vI}, 7, v12
        v_xor_b32 v13, 64, v12""")
        for p in range(4):
            o += L(f"s_add_u32 s86, s{sW}, {p}\ns_and_b32 s86, s86, 3\ns_lshl_b32 s86, s86, 11\ns_add_u32 s86, s86, s97\nv_add_u32 v{246+2*p}, s86, v12\nv_add_u32 v{247+2*p}, s86, v13")
        return o
    def wsp_issue(self, c, hi=False):
        out = [WD(f"wr{c-2}")] if c >= 2 and hi is False else []
        out += [NOPIF] * 6
        for i in range(8):
            out.append(f"s_add_u32 m0, s97, {(c&1)*8192 + i*1024 + (65536 if hi else 0)}")
            out.append(f"s_add_u32 s60, s96, {(i>>1)*65536 + c*128}" if i % 2 == 0 else NOPIF)
            out.append(self.dmai(244+(i&1), SWSP, 60, f"wsp{c}"))
        return out
    def wsp_read(self, c):
        return [WT(f"wsp{c}")] + [("T", f"ds_read_b128 {ar(((2*c+t)*4+p)*4,4)}, v{246+2*p+t} offset:{(c&1)*8192}", f"wr{c}") for t in range(2) for p in range(4)]
    def wsp_tohi(self): return [f"v_xor_b32 v{r}, 0x10000, v{r}" for r in range(246, 254)]
    KE = list(range(21, 28)); KT = list(range(9, 21)); KL = list(range(9))
    def wout_setup(self, v):
        return L(f"""v_lshrrev_b32 v{v}, 3, v0
        v_lshl_add_u32 v{v}, v{v}, 10, v{vSW}
        s_lshl_b32 s68, s{sW}, 13
        s_lshl_b32 s86, s{sFB}, 7
        s_add_u32 s68, s68, s86
        s_lshl_b32 s69, s{sW}, 10
        s_add_u32 s69, s69, 49152""")
    def wout(self, k, v, tag="wout"):
        return [f"s_add_u32 m0, s69, {k*4096}", f"s_add_u32 s61, s68, {k*4*8192}", self.dmai(v, SWOUT, 61, tag)]
    def wout_pf(self):
        if not self.opt.get("pfwo", 0): return []
        return L(f"""s_lshr_b32 s86, s{sJ}, 3
        s_lshl_b32 s86, s86, 2
        s_add_u32 s86, s86, s{sW}
        s_mul_i32 s86, s86, {42*1024}
        s_lshl_b32 s87, s{sFB}, 7
        s_add_u32 s86, s86, s87
        v_lshlrev_b32 v5, 10, v0
        s_mov_b32 exec_hi, 0x3ff
        buffer_load_dword v19, v5, {S(SWOUT)}, s86 offen
        s_mov_b64 exec, -1""")
    def pf_addr(self, v):
        return L(f"""v_bfe_u32 v{v}, v0, 2, 2
        v_lshlrev_b32 v{v}, 10, v{v}
        v_lshl_add_u32 v{v}, v{vG}, 12, v{v}
        v_and_b32 v5, 3, v0
        v_lshl_add_u32 v{v}, v5, 7, v{v}""")
    SCR3 = 131072
    def p3_setup(self):
        SCR = self.SCR3
        self.P(f"""s_lshl_b32 s90, s{sRB}, 3
        s_lshl_b32 s86, s{sW}, 1
        s_add_u32 s90, s90, s86
        s_lshl_b32 s93, s90, 11
        s_add_u32 s93, s93, {HST}
        s_lshl_b32 s90, s90, 14
        s_add_u32 s90, s90, {H}
        s_lshl_b32 s91, s{sW}, 9
        s_add_u32 s91, s91, {SCR + 512}
        s_lshl_b32 s67, s{sRB}, 7
        s_add_u32 s67, s67, {F2}
        v_lshlrev_b32 v240, 2, v{vI}
        v_mov_b32 v12, 0x3f803f80
        v_accvgpr_write_b32 a240, v12
        v_accvgpr_write_b32 a241, v12
        v_accvgpr_write_b32 a242, v12
        v_accvgpr_write_b32 a243, v12
        s_lshl_b32 s86, s{sW}, 5
        v_xor_b32 v15, s86, v{vT[0]}
        s_mul_i32 s74, s{sRB}, 14
        s_add_u32 s74, s74, s{sCBK}
        s_mul_i32 s74, s74, 3
        s_add_u32 s74, s74, s{sW}
        s_lshl_b32 s74, s74, 14
        s_add_u32 s74, s74, 512
        s_cmp_eq_u32 s{sW}, 3
        s_cselect_b32 s74, 0x1000000, s74""")

    def colsum(self, base, tmp, dst_off):
        rd = [[f"ds_read_b64_tr_b16 {vr(tmp+4*t+2*h,2)}, v15 offset:{t*4096 + h*2048}" for h in range(2)] for t in range(16)]
        out = rd[0] + rd[1] + rd[2]
        for t in range(16):
            out.append(f"{MF} {ar(236,4)}, {ar(240,4)}, {vr(tmp+4*t,4)}, {ar(236,4) if t else '0'}")
            if t + 3 < 16: out += rd[t+3]
        tail = L(f"s_lshl_b32 s86, s{sW}, 6\ns_add_u32 s86, s86, {dst_off}\nv_lshl_add_u32 v5, v{vI}, 2, s86\nds_write_b32 v5, a236")
        return out, tail

    def phase3(self):
        P = self.P
        SCR = self.SCR3
        HF = 16; BB = 144; A2 = 176; A1 = 212
        AON, AEX, ACS = 240, 244, 236
        Lskip = "L_p3skip"; Ljoin = "L_p3join"
        P(f"s_cmp_ge_u32 s{sCBK}, 14\ns_cbranch_scc1 {Lskip}")
        def breads(t):
            return [f"ds_read_b64_tr_b16 {vr(BB+16*(t&1)+4*f+2*h,2)}, v{vT[f]} offset:{t*4096 + h*2048}" for f in range(4) for h in range(2)]
        o, tl = self.colsum(0, 16, 133632); P.add(o + tl)
        P.add(breads(0))
        self.wave0(lambda: self.poll(240, soff="s67"))
        self.barrier()
        self.stamp("sync2")
        HS = A1; CS2 = A1 + 16; K1 = 254
        def hl(t):
            if t >= 16:
                a = t - 16
                return [f"buffer_load_dwordx4 {vr(HS+8*a+4*hf,4)}, v{vL16}, {S(SWS)}, s93 offen offset:{a*2048+hf*1024} sc1" for hf in range(2)] if a < 2 else []
            o = [f"s_add_u32 s64, s90, {t*1024}", f"s_add_u32 s65, s90, {16384 + t*1024}"] if t % 4 == 0 else []
            return o + [f"buffer_load_dwordx4 {vr(HF+(t*2+a)*4,4)}, v{vL16}, {S(SWS)}, s{64+a} offen offset:{(t%4)*1024} sc1" for a in range(2)]
        HD = self.opt.get("HD", 5)
        for t in range(HD): P.add(hl(t))
        P("v_add_u32 v5, 133632, v240")
        for f in range(4): P(f"ds_read_b32 v{CS2+f}, v5 offset:{f*64}")
        late = []
        for t in range(self.opt.get('nw1', 10), 16): late += self.win_dma(1, t, 241)
        misc = [f"v_lshrrev_b32 v241, 3, v0", "v_mul_u32_u24 v241, 3584, v241", f"v_add_u32 v241, v241, v{vSW}"] + self.wout_setup(242)
        P.add(misc)
        misc = self.wsp_setup() + L(f"""v_mov_b32 v{K1}, {f2u(K1C):#x}
        v_mov_b32 v{K1+1}, {f2u(K1C):#x}
        v_lshl_add_u32 v13, v{vI}, 2, s91
        v_lshl_add_u32 v14, v{vG}, 4, s91
        v_bfe_u32 v12, v0, 3, 1
        v_lshlrev_b32 v12, 8, v12
        v_lshl_add_u32 v12, v{vG}, 6, v12
        v_bfe_u32 v5, v0, 2, 1
        v_lshl_add_u32 v12, v5, 5, v12
        v_and_b32 v5, 1, v0
        v_lshl_add_u32 v12, v5, 4, v12
        v_cmp_eq_u32 s[72:73], 1, v5
        s_lshl_b32 s92, s{sRB}, 15
        s_lshl_b32 s86, s{sW}, 9
        s_add_u32 s92, s92, s86
        s_add_u32 s92, s92, {STATS}
        s_lshl_b32 s66, s{sCBK}, 11
        s_add_u32 s66, s66, s92""")
        nm = (len(misc) + 11) // 12
        for t in range(16):
            m = []
            for f in range(4):
                for a in range(2):
                    acc = vr(A2 + (a*4+f)*4, 4)
                    m.append(f"{MF} {acc}, {vr(HF+(t*2+a)*4,4)}, {vr(BB+16*(t&1)+4*f,4)}, {acc if t else '0'}")
            if t in (1, 4, 8, 12): self.stamp(f"z2k{t}", True)
            hh = hl(t + HD); g = max(1, len(hh) - 1)
            if t + HD >= 18:
                k = t + HD - 18
                hh = late[:10]; late = late[10:]; g = 5
            P.add(lay2(m, breads(t+1) if t < 15 else [], weave(misc[nm*t:nm*t+nm], hh, g)) if self.opt.get('lay', 1) else mix(m, weave((breads(t+1) if t < 15 else []) + misc[nm*t:nm*t+nm], hh, g)))
        self.stamp("z2mm")
        P.add(late)
        if self.opt.get("touch", 3): P(f"v_lshlrev_b32 v5, 7, v0\ns_mov_b64 exec, 0xf\nbuffer_load_dword a234, v5, {S(SWS)}, s66 offen\ns_mov_b64 exec, -1")
        if not self.map84: P(f"s_mov_b64 exec, {(1 << 25) | (1 << 26)}\nbuffer_load_dword a233, v{vFLAG}, {S(SWS)}, 0 offen\ns_mov_b64 exec, -1")
        if self.opt.get("l2pf", 2) == 1: P(f"buffer_load_dword a235, v242, {S(SWSP)}, s74 offen")
        LA = [208, 210]; LB = [209, 211]
        for a in range(2):
            x = HS + 8*a
            P(f"v_pk_add_f32 {vr(x,2)}, {vr(x,2)}, {vr(x+2,2)}\nv_pk_add_f32 {vr(x+4,2)}, {vr(x+4,2)}, {vr(x+6,2)}")
        for a in range(2):
            x = HS + 8*a
            P(f"v_pk_add_f32 {vr(x,2)}, {vr(x,2)}, {vr(x+4,2)}")
        self.barrier()
        self.xreduce([HS, HS+1, HS+8, HS+9], BB)
        self.finstats([(HS, HS+1), (HS+8, HS+9)], 512, LA, LB)
        for a in range(2): P(f"ds_write_b32 v13, v{LA[a]} offset:{a*64}\nds_write_b32 v13, v{LB[a]} offset:{128+a*64}")
        iss01 = self.wsp_issue(0) + self.wsp_issue(1)
        P.add(iss01[:12]); iss01 = iss01[12:]
        P.wait_ds()
        RA = BB; RBb = BB + 8
        for a in range(2): P(f"ds_read_b128 {vr(RA+4*a,4)}, v14 offset:{a*64}\nds_read_b128 {vr(RBb+4*a,4)}, v14 offset:{128+a*64}")
        P.add(iss01[:6]); iss01 = iss01[6:]
        TT = BB + 16; SM = A1; SQ2 = A1 + 8
        for k in self.KE: iss01 += self.wout(k, 242, "woutE")
        for f in range(4):
            ls = []
            for a in range(2):
                for hp in range(2):
                    x = A2 + (a*4+f)*4 + 2*hp; t = TT + 2*(2*a+hp); sm = SM + 4*a + 2*hp; sq = SQ2 + 4*a + 2*hp
                    l = self.affine_pair(x, t, RA+4*a+2*hp, RBb+4*a+2*hp, CS2+f, False) + self.gelu_pair(x, t, K1)
                    if f == 0: l += [f"v_pk_mul_f32 {vr(sq,2)}, {vr(x,2)}, {vr(x,2)}"]
                    else: l += [f"v_pk_fma_f32 {vr(sq,2)}, {vr(x,2)}, {vr(x,2)}, {vr(sq,2)}",
                                f"v_pk_add_f32 {vr(sm,2)}, {vr(sm if f > 1 else A2 + a*16 + 2*hp,2)}, {vr(x,2)}"]
                    ls.append(l)
            self.stamp(f"z2e{f}", True)
            P.add(weave(zipped(ls), iss01[[0, 21, 42, 54][f]:[21, 42, 54, 63][f]]))
        def val(a, r, st): return (SQ2 if st else SM) + 4*a + r
        L1 = A1 + 16; L2 = A1 + 24
        z1pre = [f"v_add_u32 v{r}, 65536, v{r}" for r in vT + [15]]
        for a, bm in ((0, 0x3), (1, 0xc)):
            for r in range(4):
                for st in range(2): P(f"v_add_f32_dpp v{L1+2*r+st}, v{val(a,r,st)}, v{val(a,r,st)} row_ror:8 row_mask:0xf bank_mask:{bm:#x}")
        P.add(z1pre)
        P.wait_tag("win1")
        for rh, bm in ((0, 0x5), (1, 0xa)):
            for rl in range(2):
                for st in range(2):
                    s_ = L1 + 2*(2*rh+rl) + st
                    P(f"v_add_f32_dpp v{L2+2*rl+st}, v{s_}, v{s_} row_half_mirror row_mask:0xf bank_mask:{bm:#x}")
        P("s_barrier")
        for qp in ("[1,0,3,2]", "[2,3,0,1]"):
            for k in range(4): P(f"v_add_f32_dpp v{L2+k}, v{L2+k}, v{L2+k} quad_perm:{qp} row_mask:0xf bank_mask:0xf")
        P.add(breads(0))
        P(f"""v_cndmask_b32 v{L2}, v{L2}, v{L2+2}, s[72:73]
        v_cndmask_b32 v{L2+1}, v{L2+1}, v{L2+3}, s[72:73]
        v_mov_b32 v{L2+2}, s{sE}
        v_mov_b32 v{L2+3}, s{sE}
        s_mov_b32 exec_lo, 0x33333333
        s_mov_b32 exec_hi, 0x33333333""")
        self.local([f"buffer_store_dwordx4 {vr(L2,4)}, v12, {S(SWS)}, s66 offen @SC"])
        P("s_mov_b64 exec, -1")
        self.stamp("z2ep")
        i2, i3, i4, i5 = [self.wsp_issue(c) for c in range(2, 6)]
        r0, r1, r2, r3 = [self.wsp_read(c) for c in range(4)]
        GS = HF
        misc = L(f"""v_lshrrev_b32 v12, 5, v0
        v_lshlrev_b32 v12, 11, v12
        v_and_b32 v13, 31, v0
        v_lshl_add_u32 v12, v13, 4, v12
        v_lshl_add_u32 v13, v13, 2, s91
        s_lshl_b32 s93, s{sRB}, 2
        s_add_u32 s93, s93, s{sW}
        s_mul_i32 s93, s93, 7168
        s_add_u32 s93, s93, {Z2}""")
        for f in range(4):
            misc += L(f"""s_lshl_b32 s86, s{sCBK}, 2
            s_add_u32 s86, s86, {f}
            s_mul_i32 s87, s86, 37
            s_lshr_b32 s87, s87, 8
            s_mul_i32 s87, s87, {64*7 - 7}
            s_add_u32 s86, s86, s87
            s_lshl_b32 s86, s86, 10
            s_add_u32 s{64+f}, s86, s93""")
        misc += L(f"""s_lshl_b32 s93, s{sRB}, 3
        s_lshl_b32 s86, s{sW}, 1
        s_add_u32 s93, s93, s86
        s_mul_i32 s93, s93, 56
        s_lshl_b32 s86, s{sCBK}, 2
        s_add_u32 s93, s93, s86
        s_lshl_b32 s93, s93, 9
        s_add_u32 s93, s93, {Z1}
        s_add_u32 s94, s93, {56*512}""")
        T1 = self.opt.get("T1", 8); TG = self.opt.get("TG", 5); TF = self.opt.get("TF", 13)
        gll = []
        for m_ in range(7): gll += [f"s_add_u32 s60, s92, {m_*4096}", f"buffer_load_dwordx4 {vr(GS+4*m_,4)}, v12, {S(SWS)}, s60 offen sc1"]
        gl = "\n".join(gll)
        misc = misc + L(f"""v_bfe_u32 v5, v0, 4, 1
        v_bfe_u32 v241 , v0, 5, 1""") if False else misc
        def z1k(t, extra):
            m = []
            for f in range(4):
                for a in range(2):
                    acc = vr(A1 + (a*4+f)*4, 4)
                    m.append(f"{MF} {acc}, {vr(BB+16*(t&1)+4*f,4)}, {vr(HF+(t*2+a)*4,4)}, {acc if t else '0'}")
            nxt = breads(t+1) if t < 15 else []
            self.stamp(f"z1k{t}", True) if t in (0, 2, 4, T1, 10, 14) else None
            P.add(lay2(m, nxt, extra) if self.opt.get('lay', 1) else mix(m, weave(nxt, extra)))
        bq = i2 + i3
        ex = {0: misc[:9], 1: r0, 2: r1, 3: misc[9:18], 4: gll, 5: bq[:13] , 6: bq[13:19] + misc[18:22]}
        bq = bq[19:]
        for t in range(T1): z1k(t, ex.get(t, []))
        self.stamp("z1a")
        RA2 = HF + 28; RB2 = HF + 36; ZO = HF
        cmpc = "\n".join(f"v_xor_b32 v{GS+4*m_+2}, s{sE}, v{GS+4*m_+2}" for m_ in range(7))
        cmpc += f"\nv_or3_b32 v5, v{GS+2}, v{GS+6}, v{GS+10}\nv_or3_b32 v5, v5, v{GS+14}, v{GS+18}\nv_or3_b32 v5, v5, v{GS+22}, v{GS+26}\nv_cmp_ne_u32 vcc, 0, v5"
        self.check_retry(gl, cmpc)
        self.stamp("gath", True)
        P(f"v_pk_add_f32 {vr(GS,2)}, {vr(GS,2)}, {vr(GS+4,2)}\nv_pk_add_f32 {vr(GS+8,2)}, {vr(GS+8,2)}, {vr(GS+12,2)}\nv_pk_add_f32 {vr(GS+16,2)}, {vr(GS+16,2)}, {vr(GS+20,2)}")
        P(f"v_pk_add_f32 {vr(GS,2)}, {vr(GS,2)}, {vr(GS+8,2)}\nv_pk_add_f32 {vr(GS+16,2)}, {vr(GS+16,2)}, {vr(GS+24,2)}\nv_pk_add_f32 {vr(GS,2)}, {vr(GS,2)}, {vr(GS+16,2)}")
        P.add(bq[:3]); bq = bq[3:]
        self.xreduce([GS, GS+1], GS+2, ops=("v_permlane32_swap_b32",))
        self.finstats([(GS, GS+1)], 896, [GS+4], [GS+5])
        P(f"""ds_write_b32 v13, v{GS+4} offset:256
        ds_write_b32 v13, v{GS+5} offset:384
        v_bfe_u32 v12, v0, 4, 1
        v_bfe_u32 v13, v0, 5, 1
        v_lshl_add_u32 v12, v12, 1, v13
        v_lshl_add_u32 v12, v12, 4, v{vI}
        v_lshlrev_b32 v12, 4, v12""")
        P.add(bq[:3] + misc[22:30]); bq = bq[3:]
        P.wait_ds()
        for a in range(2): P(f"ds_read_b128 {vr(RA2+4*a,4)}, v14 offset:{256+a*64}\nds_read_b128 {vr(RB2+4*a,4)}, v14 offset:{384+a*64}")
        P.add(misc[30:41] + bq[:10]); bq = bq[10:]
        nb = self.opt.get("nb", 6)
        for f in range(4):
            for a in range(2):
                for hp in range(2):
                    x = A2 + (a*4+f)*4 + 2*hp
                    P(f"v_pk_fma_f32 {vr(x,2)}, {vr(x,2)}, {vr(RA2+4*a+2*hp,2)}, {vr(RB2+4*a+2*hp,2)}")
            for a in range(2):
                for hp in range(2):
                    x = A2 + (a*4+f)*4 + 2*hp
                    P(f"v_cvt_pk_bf16_f32 v{ZO+4*f+2*a+hp}, v{x}, v{x+1}")
            if f: P(f"buffer_store_dwordx4 {vr(ZO+4*(f-1),4)}, v12, {S(SWS)}, s{64+f-1} offen sc1", "z2n")
            for hp in range(2): P(f"v_permlane16_swap_b32 v{ZO+4*f+hp}, v{ZO+4*f+2+hp}")
        P(f"buffer_store_dwordx4 {vr(ZO+12,4)}, v12, {S(SWS)}, s67 offen sc1", "z2n")
        self.stamp("z2st", True)
        TR = self.opt.get("TR", 13)
        cq_ = i4 + i5
        ex = {T1: bq[:9] , T1 + 1: bq[9:18], T1 + 2: bq[18:], T1 + 3: misc[41:], TR: r2, TR + 1: r3}
        for t in range(T1, 16):
            if t == TF:
                P.wait_tag("z2n"); P("s_barrier")
                self.wave0(lambda: self.set_flag(0xff << 17))
                self.stamp("F3")
            e = ex.get(t)
            if e is None:
                e = []
                if t > TR + 1: e = cq_[:13 if t == TR + 2 else 6]; cq_ = cq_[len(e):]
            z1k(t, e)
        C1 = A2; Z1O = A2 + 16
        o, tl = self.colsum(65536, 32, SCR + 256)
        P.add(weave(o, [f"v_subrev_u32 v{vT[f]}, 65536, v{vT[f]}" for f in range(4)] + L(f"v_lshlrev_b32 v12, 4, v{vG}\nv_add_u32 v12, {SCR+256}, v12\nv_lshlrev_b32 v13, 3, v0") + cq_, 3) + tl)
        self.barrier()
        self.stamp("z1mm")
        for f in range(4): P(f"ds_read_b128 {vr(C1+4*f,4)}, v12 offset:{f*64}")
        ep = []
        for f in range(4):
            ls = []
            for a in range(2):
                for hp in range(2):
                    x = A1 + (a*4+f)*4 + 2*hp; t = TT + 2*(2*a+hp)
                    ls.append(self.affine_pair(x, t, LA[a], LB[a], C1+4*f+2*hp, True))
            ep += zipped(ls)
        d67 = self.wsp_issue(6, True) + self.wsp_issue(7, True)
        P.add(self.p4_setup())
        self.wave0(lambda: P(self.f3load))
        P.add(weave(ep, d67))
        P(f"s_branch {Ljoin}")
        P(f"{Lskip}:")
        P.cond_begin()
        P("s_waitcnt vmcnt(0) lgkmcnt(0)")
        mode = self.opt.get("ina", 0)
        if mode:
            P(f"""s_lshl_b32 s86, s{sRB}, 1
            s_add_u32 s86, s86, s{sCBK}
            s_sub_u32 s86, s86, 14
            s_lshl_b32 s86, s86, 2
            s_add_u32 s86, s86, s{sW}
            s_lshr_b32 s87, s86, 4
            s_lshl_b32 s87, s87, 20
            s_and_b32 s86, s86, 15
            s_mul_i32 s86, s86, {12*4096}
            s_add_u32 s64, s86, s87""")
            P.add(self.pf_addr(14))
            def pfh(h): return [f"s_add_u32 s65, s64, {k*16384 + h*512}\nbuffer_load_dword v{16+3*h+k+4}, v14, {S(SWSP)}, s65 offen" for k in range(3)]
            for x in pfh(0): P(x)
            P.add(self.wsp_setup() + self.wout_setup(15))
            if mode == 2:
                for x in pfh(1): P(x)
            P.add(self.wsp_issue(0) + self.wsp_issue(1))
            if mode == 1:
                for x in pfh(1): P(x)
            P.add(self.wsp_issue(6, True) + self.wsp_issue(7, True))
            P.add(self.wsp_read(0) + self.wsp_read(1) + self.wsp_issue(2) + self.wsp_issue(3))
            for k in self.KE: P.add(self.wout(k, 15, "woutE"))
            P.add(self.wsp_read(2) + self.wsp_read(3) + self.wsp_issue(4) + self.wsp_issue(5) + self.p4_setup())
        else:
            if self.opt.get("l2pf", 2):
                P(f"""s_lshl_b32 s86, s{sRB}, 1
                s_add_u32 s86, s86, s{sCBK}
                s_sub_u32 s86, s86, 14
                s_lshl_b32 s86, s86, 2
                s_add_u32 s86, s86, s{sW}
                s_lshl_b32 s60, s86, 16""")
                P.add(self.pf_addr(12))
                if self.opt.get("redir", 1):
                    P(f"""v_lshrrev_b32 v13, 3, v0
                    v_lshlrev_b32 v13, 12, v13
                    v_bfe_u32 v5, v0, 1, 2
                    v_lshl_add_u32 v13, v5, 10, v13
                    v_and_b32 v5, 1, v0
                    v_lshl_add_u32 v13, v5, 7, v13
                    buffer_load_dword v16, v13, {S(SWSP)}, s60 offen offset:256
                    s_add_u32 s60, s60, 32768
                    buffer_load_dword v17, v13, {S(SWSP)}, s60 offen offset:256
                    s_add_u32 s60, s60, 32768""")
                else:
                    for k in range(4): P(f"buffer_load_dword v{16+k}, v12, {S(SWSP)}, s60 offen\ns_add_u32 s60, s60, 16384")
                if self.opt.get("l2pf", 2) == 3:
                    P(f"""s_sub_u32 s60, s60, 65024
                    v_lshrrev_b32 v13, 3, v0
                    v_lshlrev_b32 v13, 12, v13
                    v_bfe_u32 v5, v0, 1, 2
                    v_lshl_add_u32 v13, v5, 10, v13
                    v_and_b32 v5, 1, v0
                    v_lshl_add_u32 v13, v5, 7, v13
                    buffer_load_dword v20, v13, {S(SWSP)}, s60 offen
                    s_add_u32 s60, s60, 32768
                    buffer_load_dword v21, v13, {S(SWSP)}, s60 offen""")
                if self.opt.get("l2pf", 2) == 4:
                    P("s_sub_u32 s64, s60, 65024")
                if self.opt.get("l2pf", 2) == 2:
                    P("s_sub_u32 s60, s60, 65024")
                    for k in range(4): P(f"buffer_load_dword v{20+k}, v12, {S(SWSP)}, s60 offen\ns_add_u32 s60, s60, 16384")
            if self.opt.get("pwout", 7) == -1:
                P(f"""s_lshl_b32 s86, s{sRB}, 1
                s_add_u32 s86, s86, s{sCBK}
                s_sub_u32 s86, s86, 14
                s_lshl_b32 s86, s86, 2
                s_add_u32 s86, s86, s{sW}
                s_mul_i32 s86, s86, {56*128}
                v_lshlrev_b32 v5, 7, v0
                s_mov_b32 exec_hi, 0xffffff
                buffer_load_dword v24, v5, {S(SWOUT)}, s86 offen
                s_mov_b64 exec, -1""")
            P.add(self.wsp_setup() + self.wout_setup(15))
            P.add(self.wsp_issue(0) + self.wsp_issue(1))
            P.add(self.wout_pf())
            for k in self.KE: P.add(self.wout(k, 15, "woutE"))
            if self.opt.get("l2pf", 2) == 4:
                P.add(self.pf_addr(14))
                for k in range(4): P(f"buffer_load_dword v{20+k}, v14, {S(SWSP)}, s64 offen\ns_add_u32 s64, s64, 16384")
            P.add(self.wsp_issue(6, True) + self.wsp_issue(7, True))
            P.add(self.wsp_read(0) + self.wsp_read(1) + self.wsp_issue(2) + self.wsp_issue(3) + self.wsp_read(2) + self.wsp_read(3))
            P.add(self.wsp_issue(4) + self.wsp_issue(5) + self.p4_setup())
        P(self.f3load)
        P(f"s_mov_b32 s93, {WS_BYTES}\ns_mov_b32 s94, {WS_BYTES}\nv_lshlrev_b32 v13, 3, v0")
        P("s_waitcnt vmcnt(0) lgkmcnt(0)")
        P.cond_end()
        P(f"{Ljoin}:")
        self.stamp("wsp")

    def p5_breg(self, kk, f):
        if kk >= 21: return ("a", (kk - 21) * 16 + 4*f)
        i = self.order5.index(kk) - 7
        return ("a", 112 + (i % 9) * 16 + 4*f)
    def p5_reads(self, kk):
        out = []
        want = 49152 if kk < 16 else 49152 + 65536
        if self.cur5 != want:
            d = want - self.cur5
            out += [f"v_add_u32 v{vT[f]}, {d}, v{vT[f]}" if d > 0 else f"v_subrev_u32 v{vT[f]}, {-d}, v{vT[f]}" for f in range(4)]; self.cur5 = want
        for f in range(4):
            k, r = self.p5_breg(kk, f)
            for h in range(2): out.append(f"ds_read_b64_tr_b16 {ar(r+2*h,2)}, v{vT[f]} offset:{(kk%16)*4096 + h*2048}")
        return out

    f3load = f"buffer_load_dword v17, v16, {S(SWS)}, s75 offen sc1"
    def p4_setup(self):
        return L(f"""s_mul_i32 s90, s{self.F4}, 7
        s_add_u32 s91, s90, 6
        s_lshr_b32 s90, s90, 2
        s_lshr_b32 s91, s91, 2
        s_lshl_b32 s92, s{self.F4}, 6
        s_lshl_b32 s86, s{sW}, 4
        s_add_u32 s92, s92, s86
        s_mul_i32 s92, s92, 7168
        s_add_u32 s92, s92, {Z2}
        v_add_u32 v18, 4096, v{vL16}
        s_lshl_b32 s86, s90, 4
        s_lshl_b32 s87, s91, 4
        s_add_u32 s87, s87, 15
        v_add_u32 v16, s86, v0
        v_min_u32 v16, s87, v16
        v_lshlrev_b32 v16, 2, v16
        s_lshl_b32 s75, s{sX}, 10
        s_add_u32 s75, s75, {F3}""") + ([] if self.map84 or self.opt.get('uz', 0) else L(f"""s_lshl_b32 s86, s{self.T4}, 2
        s_add_u32 s86, s86, s{sW}
        s_mul_i32 s86, s86, {28*1024}
        s_mul_i32 s87, s{self.F4}, 3584
        s_add_u32 s86, s86, s87
        s_add_u32 s86, s86, {U}
        v_lshlrev_b32 v5, 7, v0
        s_mov_b64 exec, 0xfffffff
        buffer_load_dword v20, v5, {S(SWS)}, s86 offen
        s_mov_b64 exec, -1"""))

    def phase4(self):
        P = self.P
        ACC = 16; BB = 128
        self.order5 = self.KE + list(range(16, 21)) + list(range(9, 16)) + self.KL
        self.cur5 = 0
        self.wave0(lambda: self.check_retry(self.f3load, f"v_cmp_ne_u32 vcc, s{sE}, v17"))
        P("s_barrier")
        self.stamp("sync3")
        def bload(ks):
            out = [f"s_add_u32 s60, s92, {ks*7168}"]
            for f in range(7):
                out.append(f"buffer_load_dwordx4 {vr(BB+28*(ks%3)+4*f,4)}, v{vL16 if f < 4 else 14}, {S(SWS)}, s60 offen offset:{(f%4)*1024} sc1")
            return out
        P("v_mov_b32 v14, v18")
        for ks in range(2): P.add(bload(ks))
        P(f"v_mov_b32 v244, {f2u(K1C):#x}")
        late_setup = L(f"""v_lshrrev_b32 v249, 3, v0
        v_lshl_add_u32 v249, v249, 10, v{vSW}
        s_lshl_b32 s95, s{self.T4}, 2
        s_add_u32 s95, s95, s{sW}
        s_lshl_b32 s88, s{sTB}, 2
        s_add_u32 s88, s88, s{sW}
        s_lshr_b32 s64, s{self.T4}, 1
        s_lshl_b32 s64, s64, 7
        s_add_u32 s64, s64, {F3B}
        v_add_u32 v250, s90, v0
        v_min_u32 v250, s91, v250
        v_lshlrev_b32 v250, 2, v250
        s_mul_i32 s65, s95, 56
        s_mul_i32 s87, s{self.F4}, 7
        s_add_u32 s65, s65, s87
        s_lshl_b32 s65, s65, 9
        s_add_u32 s65, s65, {Z1}
        s_lshl_b32 s66, s95, 5
        v_lshlrev_b32 v244, 1, v{vI}
        s_lshl_b32 s67, s88, 4
        s_lshl_b32 s87, s{sFB}, 1
        s_add_u32 s67, s67, s87
        s_lshl_b32 s67, s67, 10
        s_add_u32 s67, s67, {H}
        s_mul_i32 s78, s88, {28*1024}
        s_add_u32 s78, s78, {U}
        s_mul_i32 s79, s95, 28
        s_mul_i32 s87, s{self.F4}, 7
        s_lshr_b32 s87, s87, 1
        s_add_u32 s79, s79, s87
        s_lshl_b32 s79, s79, 10
        s_add_u32 s79, s79, {U}""")
        for p in range(1, 4):
            late_setup += L(f"s_add_u32 s86, s{sW}, {p}\ns_and_b32 s86, s86, 3\ns_mul_i32 s86, s86, 21504\ns_add_u32 s86, s86, {(p-1)*7168}\nv_add_u32 v{245+p}, s86, v{vL16}")
        late_setup += L(f"s_mul_i32 s86, s{sW}, 21504\nv_add_u32 v255, s86, v{vL16}")
        A1 = 212; GT = [15, 245, 254, 255]
        def gelu(q):
            a, f = q >> 2, q & 3; x0 = A1 + 4*q; ls = []
            for e in range(4):
                x = x0 + e; t = GT[e]
                ls.append([f"v_mul_f32 v{t}, v{x}, v{x}", f"v_fma_f32 v{t}, v{t}, s{sK2}, v244", f"v_mul_f32 v{t}, v{t}, v{x}", f"v_exp_f32 v{t}, v{t}",
                           f"v_add_f32 v{t}, 1.0, v{t}", f"v_rcp_f32 v{t}, v{t}", f"v_mul_f32 v{x}, v{x}, v{t}"])
            return zipped(ls) + [f"v_cvt_pk_bf16_f32 v{x0}, v{x0}, v{x0+1}", f"v_cvt_pk_bf16_f32 v{x0+1}, v{x0+2}, v{x0+3}",
                                 ("T", f"buffer_store_dwordx2 {vr(x0,2)}, v13, {S(SWS)}, s{93+a} offen offset:{f*512} sc1", "z1st")]
        Z1R = 212; BS = 226; HR = 228
        GP = self.opt.get("GP", 8)
        if GP:
            P(f"v_mov_b32 v245, {f2u(K1C):#x}")
            b2 = bload(2)
            pk = []
            for q0 in range(0, GP, 2):
                ls = [self.gelu_pair(A1 + 4*q0 + 2*e, 112 + 2*e, 244) for e in range(4)]
                pk += zipped(ls)
                for q in (q0, q0 + 1):
                    x0 = A1 + 4*q
                    pk += [f"v_cvt_pk_bf16_f32 v{x0}, v{x0}, v{x0+1}", f"v_cvt_pk_bf16_f32 v{x0+1}, v{x0+2}, v{x0+3}",
                           ("T", f"buffer_store_dwordx2 {vr(x0,2)}, v13, {S(SWS)}, s{93+(q>>2)} offen offset:{(q&3)*512} sc1", "z1st")]
            P.add(b2[:1] + weave(pk, b2[1:], 1))
        fl = f"buffer_load_dword v254, v250, {S(SWS)}, s64 offen sc1"
        wt = []
        for k in self.KT: wt += self.wout(k, 249, "woutT")
        for ks in range(16):
            m = []
            if ks < 15: fp = [(f, p) for f in range(7) for p in range(4)]
            else: fp = [(f, p) for p in (1, 2, 3, 0) for f in range(7)]
            for f, p in fp:
                acc = vr(ACC + (p*7+f)*4, 4)
                m.append(f"{MF} {acc}, {vr(BB+28*(ks%3)+4*f,4)}, {ar((ks*4+p)*4,4)}, {acc if ks else '0'}")
            if ks in (1, 2, 4, 8, 12, 15): self.stamp(f"p4k{ks}", True)
            if ks <= 14:
                ld = bload(ks + 2) if ks <= 13 and not (GP and ks == 0) else []
                pre = {1: self.wsp_read(4), 2: self.wsp_read(5), 3: self.wsp_tohi() + self.wsp_read(6), 4: self.wsp_read(7)}.get(ks, [])
                G0 = self.opt.get("G0", 0)
                if G0 <= ks < G0 + 8 - GP: pre = weave(gelu(ks - G0 + GP), pre, 1)
                if 8 <= ks <= 14: pre = pre + self.p5_reads(self.KE[ks - 8])
                if ks in (9, 10): pre = pre + late_setup[(ks-9)*25:(ks-9)*25+25]
                if ks == max(G0 + 9 - GP, 6):
                    P.add([WD("wr4", "wr5", "wr6", "wr7"), WT("z1st", "woutE"), "s_barrier"])
                    self.wave0(lambda: self.set_flag(1 << 25, not self.map84))
                if ks == 7 and GP < 6: P.wait_tag("woutE"); P("s_barrier")
                if ks == 14: pre = pre + wt[:12]
                if ks == self.opt.get("FL", 13): pre = pre + [fl]
                if ld: body = mix(m[:3], ld[:2]) + interleave(m[3:21], ld[2:], 3, 1) + m[21:]
                else: body = m
                out = []; nm_ = 0; pi = 0
                for x in body:
                    out.append(x)
                    if isinstance(x, str) and x.startswith("v_mfma"):
                        nm_ += 1
                        tgt = len(pre) * nm_ // 28
                        out += pre[pi:tgt]; pi = tgt
                P.add(out)
            else:
                self.check_retry(fl, f"v_cmp_ne_u32 vcc, s{sE}, v254")
                w = [f"buffer_load_dwordx2 {vr(Z1R+2*f,2)}, v13, {S(SWS)}, s65 offen offset:{f*512} sc1" for f in range(7)]
                w += [f"buffer_load_ushort v{BS}, v244, {S(SBSP)}, s66 offen"]
                xw = [f"ds_write_b128 v{245+p}, {vr(ACC+(p*7+f)*4,4)} offset:{f*1024}" for p in range(1, 4) for f in range(7)]
                P.add(mix(m[:10], w[:4]) + mix(m[10:], weave(xw[:16], w[4:], 1)) + xw[16:])
        self.stamp("p4mm")
        ZF = BB; UO = BB + 48
        v = [f"v_lshlrev_b32 v{BS}, 16, v{BS}"]
        for f in range(7):
            for k in range(2):
                v += [f"v_lshlrev_b32 v{ZF+4*f+2*k}, 16, v{Z1R+2*f+k}", f"v_and_b32 v{ZF+4*f+2*k+1}, 0xffff0000, v{Z1R+2*f+k}",
                      f"v_pk_add_f32 {vr(ACC+4*f+2*k,2)}, {vr(ACC+4*f+2*k,2)}, {vr(BS,2)} op_sel_hi:[1,0]"]
        P.add(wt[12:24])
        self.barrier()
        RB = ACC + 28
        for f in range(7):
            for p in range(3): P(f"ds_read_b128 {vr(RB+(p*7+f)*4,4)}, v255 offset:{(p*7+f)*1024}")
        P.add(wt[24:] + v)
        P(f"buffer_load_dwordx4 {vr(HR,4)}, v{vL16}, {S(SWS)}, s67 offen sc1\nbuffer_load_dwordx4 {vr(HR+4,4)}, v{vL16}, {S(SWS)}, s67 offen offset:1024 sc1")
        for f in range(7):
            for p in range(3):
                for k in range(2): P(f"v_pk_add_f32 {vr(ACC+4*f+2*k,2)}, {vr(ACC+4*f+2*k,2)}, {vr(RB+(p*7+f)*4+2*k,2)}")
            for k in range(2): P(f"v_pk_mul_f32 {vr(ACC+4*f+2*k,2)}, {vr(ACC+4*f+2*k,2)}, {vr(ZF+4*f+2*k,2)}")
            for k in range(2): P(f"v_cvt_pk_bf16_f32 v{UO+2*f+k}, v{ACC+4*f+2*k}, v{ACC+4*f+2*k+1}")
        Lo = P.lab("Lo"); Le = P.lab("Le")
        P(f"s_bitcmp1_b32 s{self.F4}, 0\ns_cbranch_scc1 {Lo}")
        P.cond_begin()
        self.local4([f"buffer_store_dwordx4 {vr(UO+4*k,4)}, v{vL16}, {S(SWS)}, s79 offen offset:{k*1024} @SC" for k in range(3)]
                   + [f"buffer_store_dwordx2 {vr(UO+12,2)}, v13, {S(SWS)}, s79 offen offset:3072 @SC"])
        P(f"s_branch {Le}")
        P.cond_end()
        P(f"{Lo}:")
        P.cond_begin()
        self.local4([f"buffer_store_dwordx2 {vr(UO,2)}, v13, {S(SWS)}, s79 offen offset:512 @SC"]
                   + [f"buffer_store_dwordx4 {vr(UO+2+4*k,4)}, v{vL16}, {S(SWS)}, s79 offen offset:{1024+k*1024} @SC" for k in range(3)])
        P.cond_end()
        P(f"{Le}:")
        P(f"""v_bfe_u32 v240, v0, 4, 1
        v_bfe_u32 v5, v0, 5, 1
        v_lshl_add_u32 v240, v240, 1, v5
        v_lshlrev_b32 v240, 4, v240
        v_lshl_add_u32 v240, v{vI}, 10, v240
        s_lshl_b32 s92, s88, 14
        s_lshl_b32 s87, s{sFB}, 7
        s_add_u32 s92, s92, s87
        s_lshl_b32 s66, s{sTB}, 7
        s_add_u32 s66, s66, {F4}
        v_and_b32 v243, 7, v0
        v_lshlrev_b32 v243, 2, v243""")
        P("s_waitcnt vmcnt(0)")
        self.barrier()
        self.wave0(lambda: self.set_flag(1 << 26, not self.map84))
        self.stamp("F4")

    def phase5(self):
        P = self.P
        UF = 16; ACC = 128; HR = 228
        order = self.order5
        late = []
        for k in self.KL: late += self.wout(k, 249, "woutL")
        lm = self.opt.get("late", 0)
        if lm == 0: P.add(late)
        for kk in order[7:16]: P.add(self.p5_reads(kk))
        for f in range(4):
            for k in range(2):
                P(f"v_lshlrev_b32 v{ACC+4*f+2*k}, 16, v{HR+2*f+k}\nv_and_b32 v{ACC+4*f+2*k+1}, 0xffff0000, v{HR+2*f+k}")
        self.wave0(lambda: self.poll2(243, "s66", self.opt["pp"]) if self.opt.get("pp") else self.poll(243, soff="s66"))
        P("s_barrier")
        self.stamp("sync4")
        def ul(kk):
            o = [f"s_add_u32 s60, s78, {(kk//4)*4096}"]
            if kk % 7 == 3: return o + [f"buffer_load_dwordx2 {vr(UF+4*kk+2*h,2)}, v13, {S(SWS)}, s60 offen offset:{(kk%4)*1024 + h*512} sc1" for h in range(2)]
            return o + [f"buffer_load_dwordx4 {vr(UF+4*kk,4)}, v{vL16}, {S(SWS)}, s60 offen offset:{(kk%4)*1024} sc1"]
        if self.opt.get("pfu", 0):
            P(f"""s_mul_i32 s86, s{sFB}, 3584
            s_add_u32 s86, s86, s78
            v_lshlrev_b32 v5, 7, v0
            s_mov_b64 exec, 0xfffffff
            buffer_load_dword v144, v5, {S(SWS)}, s86 offen sc1
            s_mov_b64 exec, -1""")
        UD = self.opt.get("UD", 10)
        for i in range(UD): P.add(ul(order[i]))
        if lm == 1: P.add(late)
        Lb = P.lab("Lz")
        P(f"s_or_b32 s86, s2, s{sW}\ns_cmp_lg_u32 s86, 0\ns_cbranch_scc1 {Lb}")
        P.cond_begin()
        P(f"v_mov_b32 v145, s{sE}\ns_mov_b32 s86, {EPOCH}\ns_mov_b64 exec, 1\nbuffer_store_dword v145, off, {S(SWS)}, s86 sc1\ns_mov_b64 exec, -1")
        P.cond_end(); P(f"{Lb}:")
        for i, kk in enumerate(order):
            m = []
            for f in range(4):
                k, r = self.p5_breg(kk, f); acc = vr(ACC+4*f, 4)
                m.append(f"{MF} {acc}, {ar(r,4)}, {vr(UF+4*kk,4)}, {acc}")
            fl = ul(order[i + UD]) if i + UD < 28 else []
            j = i + 8
            if j == 19: P.wait_tag("woutL"); P("s_barrier")
            if 16 <= j < 28: fl = fl + self.p5_reads(order[j])
            P.add(mix(m, fl))
        OO = 160
        for c in range(2):
            for f in (2*c, 2*c+1):
                for k in range(2): P(f"v_cvt_pk_bf16_f32 v{OO+2*f+k}, v{ACC+4*f+2*k}, v{ACC+4*f+2*k+1}")
        if self.opt.get("spinM") is not None:
            P(f"s_cmp_lg_u32 s{sM}, {self.opt['spinM']}\ns_cbranch_scc1 L_nospin\ns_memrealtime s[96:97]\ns_waitcnt lgkmcnt(0)\ns_add_u32 s98, s96, 500\nL_spin:\ns_memrealtime s[96:97]\ns_waitcnt lgkmcnt(0)\ns_sub_u32 s97, s98, s96\ns_cmp_gt_i32 s97, 0\ns_cbranch_scc1 L_spin\nL_nospin:")
        if self.opt.get("thr"):
            P(f"s_memrealtime s[96:97]\ns_waitcnt lgkmcnt(0)\ns_sub_u32 s96, s96, s98\ns_mul_i32 s96, s96, s{sM}\ns_cmp_gt_u32 s96, {self.opt['thr']}\ns_cbranch_scc1 L_end")
        for c in range(2):
            for k in range(2): P(f"v_permlane16_swap_b32 v{OO+4*c+k}, v{OO+4*c+2+k}")
            P(f"buffer_store_dwordx4 {vr(OO+4*c,4)}, v240, {S(SOUT)}, s92 offen offset:{c*64} {self.opt.get('ost', 'nt')}")
        self.stamp("end")

    def build(self):
        P = self.P
        self.prologue()
        for k, ph in enumerate([self.phase1, self.phase2, self.phase3, self.phase4, self.phase5]):
            if k < self.stop: ph()
        if self.stamps:
            P("s_memtime s[98:99]\nv_writelane_b32 v7, s98, 63")
            P(f"""v_writelane_b32 v7, s{sM}, 61
            s_lshl_b32 s86, s2, 10
            s_lshl_b32 s87, s{sW}, 8
            s_add_u32 s86, s86, s87
            s_add_u32 s86, s86, {STAMP}
            v_lshlrev_b32 v12, 2, v0
            buffer_store_dword v7, v12, {S(SWS)}, s86 offen""")
        if self.opt.get("dbg"):
            sel = [self.names.index(n) for n in self.opt["dbg"]]
            P("s_load_dwordx2 s[64:65], s[0:1], 72\nv_not_b32 v12, v7\nv_readlane_b32 s86, v12, 0\nv_writelane_b32 v13, s86, 0")
            for k, i in enumerate(sel): P(f"v_readlane_b32 s86, v7, {i}\ns_nop 3\nv_writelane_b32 v13, s86, {k+1}")
            P(f"v_lshlrev_b32 v12, 2, v0\ns_mov_b64 exec, {(1 << (len(sel)+1)) - 1}\ns_cmp_lg_u32 s{sW}, 0\ns_cbranch_scc1 L_end\nglobal_atomic_umax v12, v13, s[64:65] sc1")
        P("L_end:\ns_endpgm")
        A = Asm()
        A.begin_kernel(NAME, 256, 256, 163840)
        A.lines += P.finalize()
        A.end_kernel(NAME, 256, 256)
        return A

HEADER = open("sequential_preLN__linear_attn_block__mixer_gmlp__prompt.s.ref").read().split("; Override")[0]
def generate(path, plain=False, **kw):
    g = G(**kw); A = g.build()
    t = A.text(HEADER)
    if plain: t = t.replace(f"; @launch kernel={NAME} grid", "; @launch grid")
    open(path, "w").write(t)
    return g.names
if __name__ == "__main__":
    import argparse
    ap = argparse.ArgumentParser(); ap.add_argument("out"); ap.add_argument("--stop", type=int, default=99); ap.add_argument("--stamps", action="store_true"); ap.add_argument("--opt", default="{}")
    a = ap.parse_args()
    generate(a.out, plain=True, stop=a.stop, stamps=a.stamps, opt=eval(a.opt))
```

```python
import sys, struct
sys.path.insert(0, "gen")
from asmlib import Asm, vr, ar, sr
from emit import Prog, spread, interleave

NAME = "sequential_preLN__linear_attn_block__mixer_gmlp__prompt_kernel"
def f2u(x): return struct.unpack("<I", struct.pack("<f", x))[0]

F1, F2, F3, F3B, F4, F1B = 0x0, 0x2000, 0x2800, 0x4800, 0x5000, 0x6000
FP = 0x7000; EPOCH = 0x9000; KZ = 0x9080; XID = 0x9100
KV = 0xA000; KVS = 1152
STAMP = 0x80000
HST = 0xC0000
PQ, H, Z2, Z1, U, STATS = 0x100000, 0x300000, 0x500000, 0x900000, 0xD00000, 0x1100000
WS_BYTES = 0x1200000
R1 = 8
SX, SWQKV, SWO, SWIN, SWSP, SBSP, SWOUT, SOUT, SWS = 8, 12, 16, 20, 24, 28, 32, 36, 40
def S(d): return f"s[{d}:{d+3}]"
sTB, sE, sFB, sM, sXCC = 3, 4, 5, 6, 7
sX, sJ, sW, sSPIN = 48, 49, 50, 51
sLOG2E, sEPS6, sK2, sONE = 52, 54, 56, 58
sA8, sA4 = 62, 63
sRB, sCBK = 100, 101
sT4, sF4 = 88, 89
vL16, vI, vG, vFLAG, vSW = 1, 2, 3, 4, 6
vT = [8, 9, 10, 11]
SPIN_MAX = 1 << 16
MF = "v_mfma_f32_16x16x32_bf16"
K1C = -2.302208198
WT, WD = Prog.WT, Prog.WD
NOPIF = ("NOPIF",)

def L(s): return [x.strip() for x in s.split("\n") if x.strip()]
def mix(m, f, lead=0):
    if not m: return list(f)
    return m[:lead] + spread(m[lead:], f)
def weave(a, b, g=3):
    groups = [b[i:i+g] for i in range(0, len(b), g)]
    if not groups: return list(a)
    out = []; n = len(groups); ai = 0
    for k, grp in enumerate(groups):
        tgt = (k * len(a) + len(a) // 2) // n if len(a) else 0
        out += a[ai:tgt]; ai = max(ai, tgt); out += grp
    return out + a[ai:]
def zipped(lists):
    out = []; n = max(len(l) for l in lists)
    for k in range(n):
        for l in lists:
            if k < len(l): out.append(l[k])
    return out

def lay2(m, reads, other, nr=None):
    k = min(len(m) - 1, (len(reads) + 1) // 2) if nr is None else nr
    if not reads: return [("wait_ds",)] + mix(m, other)
    return [("wait_ds",)] + mix(m[:k], reads) + mix(m[k:], other)

class G:
    def __init__(self, stop=99, stamps=False, opt=None):
        global U, H, R1, F1
        R1 = (opt or {}).get('R1', 8); F1 = 0x14000 if R1 > 8 else 0
        H = PQ if (opt or {}).get('ov', 1) else 0x300000
        U = Z1 if (opt or {}).get('uz', 0) else 0xD00000
        self.P = Prog(); self.stop = stop; self.stamps = stamps; self.nst = 0; self.names = []
        self.opt = opt or {}
        self.map84 = self.opt.get("map84", 1)
        self.T4 = sA8 if self.map84 else sTB; self.F4 = sA4 if self.map84 else sFB
    def stamp(self, name, fine=False):
        if self.stamps and (not fine or self.opt.get("fine")):
            k = self.nst; self.nst += 1; self.names.append(name)
            self.P(f"{'s_memtime' if self.opt.get('cyc') else 's_memrealtime'} s[98:99]\nv_writelane_b32 v7, s98, {k}")
    def dmai(self, voff, srd, soff, tag):
        nt = " nt" if (self.opt.get("nt", 0) >> {SX: 0, SWQKV: 1, SWO: 2, SWIN: 3, SWSP: 4, SWOUT: 5}[srd]) & 1 else ""
        if tag.startswith("st") and int(tag[2:]) < self.opt.get("ntst", 0) and (srd == SX or self.opt.get("ntw", 1)): nt = " nt"
        return ("T", f"buffer_load_dwordx4 v{voff}, {S(srd)}, s{soff} offen{nt} lds", tag)
    def srds(self, lst):
        for d, p, n in lst:
            self.P(f"s_mov_b32 s{d}, s{p}\ns_and_b32 s{d+1}, s{p+1}, 0xffff\ns_mov_b32 s{d+2}, {n}\ns_mov_b32 s{d+3}, 0x20000")
    def set_flag(self, mask, local=False):
        P = self.P
        P(f"s_mov_b64 exec, {mask:#x}\nv_mov_b32 v5, s{sE}")
        if local: self.local([f"buffer_store_dword v5, v{vFLAG}, {S(SWS)}, 0 offen @SC"], flag=True)
        else: P(f"buffer_store_dword v5, v{vFLAG}, {S(SWS)}, 0 offen sc1")
        P("s_mov_b64 exec, -1")
    def local(self, items, tag=None, flag=False):
        P = self.P
        dm = self.opt.get("dmode", 1)
        if not flag and dm == 0:
            for x in items: P(x.replace(" @SC", " sc1"), tag)
            return
        P.alt_begin(sM, "" if flag or dm == 1 else {2: " nt", 3: " sc0"}[dm])
        for x in items: P(x, tag)
        P.alt_end()
    def local4(self, items, tag=None):
        if self.map84:
            for x in items: self.P(x.replace(" @SC", " sc1"), tag)
        else: self.local(items, tag)
    def thru(self, items, tag=None):
        for x in items: self.P(x.replace(" @SC", " sc1"), tag)
    def wave(self, w, fn):
        P = self.P; Lb = P.lab("Lw")
        P(f"s_cmp_lg_u32 s{sW}, {w}\ns_cbranch_scc1 {Lb}")
        P.cond_begin(); fn(); P.cond_end()
        P(f"{Lb}:")
    def wave0(self, fn): self.wave(0, fn)
    def spin_tail(self, Lb, E):
        self.P(f"s_add_u32 s{sSPIN}, s{sSPIN}, 1\ns_cbranch_vccz {E}\ns_cmp_lt_u32 s{sSPIN}, {SPIN_MAX}\ns_cbranch_scc1 {Lb}")
    def poll(self, vaddr, x4=False, soff="0"):
        P = self.P; Lb = P.lab("Lp"); E = P.lab("Le")
        P(f"s_mov_b32 s{sSPIN}, 0\n{Lb}:")
        if x4:
            P(f"buffer_load_dwordx4 v[12:15], v{vaddr}, {S(SWS)}, {soff} offen sc1\ns_waitcnt vmcnt(0)")
            P("\n".join(f"v_xor_b32 v{r}, s{sE}, v{r}" for r in range(12, 16)) + "\nv_or3_b32 v12, v12, v13, v14\nv_or_b32 v12, v12, v15\nv_cmp_ne_u32 vcc, 0, v12")
        else:
            P(f"buffer_load_dword v12, v{vaddr}, {S(SWS)}, {soff} offen sc1\ns_waitcnt vmcnt(0)\nv_cmp_ne_u32 vcc, s{sE}, v12")
        self.spin_tail(Lb, E); P(f"{E}:")
    def poll2(self, vaddr, soff, gap):
        P = self.P; Lb = P.lab("Lp"); E = P.lab("Le")
        ld = lambda r: f"buffer_load_dword v{r}, v{vaddr}, {S(SWS)}, {soff} offen sc1"
        P(f"s_mov_b32 s{sSPIN}, 0\n{ld(12)}\ns_sleep {gap}\n{Lb}:\n{ld(5)}\ns_waitcnt vmcnt(1)\nv_cmp_ne_u32 vcc, s{sE}, v12\ns_cbranch_vccz {E}")
        P(f"{ld(12)}\ns_waitcnt vmcnt(1)\nv_cmp_ne_u32 vcc, s{sE}, v5")
        self.spin_tail(Lb, E); P(f"{E}:")
    def check_retry(self, load, cmp):
        P = self.P; Lb = P.lab("Lk"); E = P.lab("Le")
        P(f"s_mov_b32 s{sSPIN}, 0\n{cmp}\ns_cbranch_vccz {E}")
        P.cond_begin()
        P(f"{Lb}:\n{load}\ns_waitcnt vmcnt(0)\n{cmp}")
        self.spin_tail(Lb, E)
        P.cond_end(); P(f"{E}:")
    def barrier(self):
        self.P.wait_ds(); self.P("s_barrier")
    def xreduce(self, regs, tmp, ops=("v_permlane32_swap_b32", "v_permlane16_swap_b32")):
        P = self.P
        for op in ops:
            for k, r in enumerate(regs): P(f"v_mov_b32 v{tmp+k}, v{r}")
            for k, r in enumerate(regs): P(f"{op} v{tmp+k}, v{r}")
            for k, r in enumerate(regs): P(f"v_add_f32 v{r}, v{r}, v{tmp+k}")
    def finstats(self, sums, n, outA, outB):
        ls = []
        for k, (s, q) in enumerate(sums):
            ls.append([f"v_mul_f32 v{s}, {f2u(-1.0/n):#x}, v{s}", f"v_mul_f32 v{q}, {f2u(1.0/n):#x}, v{q}",
                       f"v_fma_f32 v{q}, -v{s}, v{s}, v{q}", f"v_max_f32 v{q}, 0, v{q}", f"v_add_f32 v{q}, {f2u(1e-5):#x}, v{q}",
                       f"v_rsq_f32 v{outA[k]}, v{q}", f"v_mul_f32 v{outB[k]}, v{s}, v{outA[k]}"])
        self.P.add(zipped(ls))
    def phi_pair(self, x, t, out):
        return [f"v_pk_mul_f32 {vr(t,2)}, {vr(x,2)}, s[{sLOG2E}:{sLOG2E+1}]",
                f"v_max_f32 v{x}, 0, v{x}", f"v_max_f32 v{x+1}, 0, v{x+1}",
                f"v_min_f32 v{t}, 0, v{t}", f"v_min_f32 v{t+1}, 0, v{t+1}",
                f"v_exp_f32 v{t}, v{t}", f"v_exp_f32 v{t+1}, v{t+1}",
                f"v_pk_add_f32 {vr(x,2)}, {vr(x,2)}, s[{sEPS6}:{sEPS6+1}]",
                f"v_pk_add_f32 {vr(x,2)}, {vr(x,2)}, {vr(t,2)}",
                f"v_cvt_pk_bf16_f32 v{out}, v{x}, v{x+1}"]
    def gelu_pair(self, x, t, k1):
        return [f"v_pk_mul_f32 {vr(t,2)}, {vr(x,2)}, {vr(x,2)}",
                f"v_pk_fma_f32 {vr(t,2)}, {vr(t,2)}, s[{sK2}:{sK2+1}], {vr(k1,2)}",
                f"v_pk_mul_f32 {vr(t,2)}, {vr(t,2)}, {vr(x,2)}",
                f"v_exp_f32 v{t}, v{t}", f"v_exp_f32 v{t+1}, v{t+1}",
                f"v_pk_add_f32 {vr(t,2)}, {vr(t,2)}, s[{sONE}:{sONE+1}]",
                f"v_rcp_f32 v{t}, v{t}", f"v_rcp_f32 v{t+1}, v{t+1}",
                f"v_pk_mul_f32 {vr(x,2)}, {vr(x,2)}, {vr(t,2)}"]
    @staticmethod
    def bc(r): return vr(r & ~1, 2), r & 1
    def affine_pair(self, x, t, A, B, cs, a_bc):
        if a_bc:
            bn, bb = self.bc(B); an, ab = self.bc(A)
            return [f"v_pk_mul_f32 {vr(t,2)}, {vr(cs,2)}, {bn} op_sel:[0,{bb}] op_sel_hi:[1,{bb}]",
                    f"v_pk_fma_f32 {vr(x,2)}, {vr(x,2)}, {an}, {vr(t,2)} op_sel:[0,{ab},0] op_sel_hi:[1,{ab},1]"]
        cn, cb = self.bc(cs)
        return [f"v_pk_mul_f32 {vr(t,2)}, {vr(B,2)}, {cn} op_sel:[0,{cb}] op_sel_hi:[1,{cb}]",
                f"v_pk_fma_f32 {vr(x,2)}, {vr(x,2)}, {vr(A,2)}, {vr(t,2)}"]

    def prologue(self):
        P = self.P
        P(f"""
        s_cmp_ge_u32 s2, 256
        s_cbranch_scc1 L_end
        s_load_dwordx4 s[64:67], s[0:1], 0
        v_lshrrev_b32 v1, 6, v0
        v_and_b32 v0, 63, v0
        v_readfirstlane_b32 s{sW}, v1
        s_and_b32 s{sX}, s2, 7
        s_lshr_b32 s{sJ}, s2, 3
        v_lshrrev_b32 v{vG}, 4, v0
        s_lshr_b32 s{sA8}, s{sX}, 1
        s_lshl_b32 s{sA8}, s{sA8}, 3
        s_lshr_b32 s86, s{sJ}, 2
        s_add_u32 s{sA8}, s{sA8}, s86
        s_and_b32 s{sA4}, s{sX}, 1
        s_lshl_b32 s{sA4}, s{sA4}, 2
        {f's_xor_b32 s86, s86, s{sJ}' if self.opt.get('hx') else f's_mov_b32 s86, s{sJ}'}
        s_and_b32 s86, s86, 3
        s_add_u32 s{sA4}, s{sA4}, s86
        """)
        if self.opt.get("thr"): P("s_memrealtime s[98:99]\ns_waitcnt lgkmcnt(0)")
        if self.stamps: P("v_mov_b32 v7, 0\ns_memtime s[98:99]\nv_writelane_b32 v7, s98, 62")
        self.stamp("start")

    def late_setup(self):
        P = self.P
        self.srds([(SWS, 84, WS_BYTES)])
        P(f"s_mov_b32 s86, {EPOCH}\nbuffer_load_dword v225, off, {S(SWS)}, s86 sc1")
        self.srds([(SWO, 68, 524288), (SWIN, 72, 1835008), (SWSP, 74, 8388608), (SBSP, 76, 4096), (SWOUT, 78, 917504), (SOUT, 80, 2097152)])
        P(f"""
        v_lshlrev_b32 v{vL16}, 4, v0
        v_and_b32 v{vI}, 15, v0
        s_getreg_b32 s{sXCC}, hwreg(HW_REG_XCC_ID, 0, 4)
        s_lshr_b32 s{sRB}, s{sJ}, 4
        s_lshl_b32 s86, s{sX}, 1
        s_add_u32 s{sRB}, s{sRB}, s86
        s_and_b32 s{sCBK}, s{sJ}, 15
        s_lshr_b32 s{sTB}, s{sJ}, 3
        s_lshl_b32 s86, s{sX}, 2
        s_add_u32 s{sTB}, s{sTB}, s86
        s_and_b32 s{sFB}, s{sJ}, 7
        s_lshl_b32 s86, s2, 2
        s_add_u32 s86, s86, {F1}
        v_lshl_add_u32 v{vFLAG}, v0, 10, s86
        s_lshl_b32 s86, s{sCBK}, 4
        s_add_u32 s86, s86, s{sRB}
        s_lshl_b32 s86, s86, 2
        s_add_u32 s86, s86, {(F3 - 17*1024) & 0xffffffff}
        v_lshl_add_u32 v5, v0, 10, s86
        v_cmp_lt_u32 vcc, 16, v0
        v_cndmask_b32 v{vFLAG}, v{vFLAG}, v5, vcc
        s_lshl_b32 s86, s{sRB}, 7
        s_lshl_b32 s87, s{sCBK}, 2
        s_add_u32 s86, s86, s87
        s_add_u32 s87, s86, {F2}
        v_writelane_b32 v{vFLAG}, s87, 16
        s_add_u32 s87, s86, {F3B}
        v_writelane_b32 v{vFLAG}, s87, 25
        s_lshl_b32 s86, s{sA8 if self.map84 else sTB}, 7
        s_lshl_b32 s87, s{sA4 if self.map84 else sFB}, 2
        s_add_u32 s86, s86, s87
        s_add_u32 s87, s86, {F4}
        v_writelane_b32 v{vFLAG}, s87, 26
        s_lshl_b32 s86, s{sA8}, 7
        s_lshl_b32 s87, s{sA4}, 2
        s_add_u32 s86, s86, s87
        s_add_u32 s87, s86, {F1B}
        v_writelane_b32 v{vFLAG}, s87, 27
        s_mov_b32 s{sLOG2E}, {f2u(1.4426950408889634):#x}
        s_mov_b32 s{sLOG2E+1}, {f2u(1.4426950408889634):#x}
        s_mov_b32 s{sEPS6}, {f2u(1e-6):#x}
        s_mov_b32 s{sEPS6+1}, {f2u(1e-6):#x}
        s_mov_b32 s{sK2}, {f2u(K1C*0.044715):#x}
        s_mov_b32 s{sK2+1}, {f2u(K1C*0.044715):#x}
        s_mov_b32 s{sONE}, 1.0
        s_mov_b32 s{sONE+1}, 1.0
        """)

    def phase1(self):
        P = self.P
        SCR = 147456
        vX = [216, 217]; vWd = [218, 219]; vA = [220, 221]; vO = [222, 223]; vB = 224
        OWN = 16; BK = 24; BV = 32; ONES = 40; ACK = 48; ACV = 64; CSK = 80; CSV = 84; DS = 88; DQ = 92
        ACQ = 96; CSQ = 112; ST = 120; STQ = 152
        P(f"""
        s_lshl_b32 s88, s{sA8}, 16
        s_lshl_b32 s87, s{sW}, 14
        s_add_u32 s88, s88, s87
        s_lshl_b32 s90, s{sA4}, 7
        s_mul_i32 s87, s{sW}, {16*3072}
        s_add_u32 s90, s90, s87
        s_lshl_b32 s91, s{sW}, 11
        v_lshrrev_b32 v5, 3, v0
        v_and_b32 v6, 7, v0
        v_xor_b32 v12, v6, v{vG}
        v_lshlrev_b32 v12, 4, v12
        v_lshl_add_u32 v{vX[0]}, v5, 10, v12
        v_xor_b32 v{vX[1]}, 64, v{vX[0]}
        v_add_u32 v{vX[1]}, 8192, v{vX[1]}
        v_and_b32 v12, 2, v5
        v_xor_b32 v12, v6, v12
        v_lshlrev_b32 v12, 4, v12
        v_mul_u32_u24 v13, 3072, v5
        v_add_u32 v{vWd[0]}, v13, v12
        v_xor_b32 v{vWd[1]}, 64, v{vWd[0]}
        v_add_u32 v{vWd[1]}, {8*3072}, v{vWd[1]}
        s_waitcnt lgkmcnt(0)
        """)
        P("""s_load_dwordx2 s[84:85], s[0:1], 80
        s_load_dwordx2 s[68:69], s[0:1], 16
        s_load_dwordx8 s[72:79], s[0:1], 32
        s_load_dwordx2 s[80:81], s[0:1], 64""")
        self.srds([(SX, 64, 2097152), (SWQKV, 66, 1572864)])
        def issue_stage(s):
            slot = (s % 6) * 24576; out = []
            if s < 8:
                parts = [(0, SX, vX, 88, s * 128), (8192, SWQKV, vWd, 90, s * 64 * 3072 + 1024), (16384, SWQKV, vWd, 90, s * 64 * 3072 + 2048)]
            else:
                parts = [(8192 * k, SWQKV, vWd, 90, c * 64 * 3072) for k, c in enumerate(range(3 * (s - 8), min(8, 3 * (s - 8) + 3)))]
            for lo, srd, vo, sb, so in parts:
                out.append([f"s_add_u32 m0, s91, {slot + lo}", f"s_add_u32 s60, s{sb}, {so}", self.dmai(vo[0], srd, 60, f"st{s}")])
                out.append([f"s_add_u32 m0, s91, {slot + lo + 1024}", self.dmai(vo[1], srd, 60, f"st{s}")])
            return out
        if self.opt.get("rot1", 2):
            P(f"s_lshr_b32 s92, s{sJ}, 2" if self.opt.get("rot1", 2) == 1 else f"s_lshr_b32 s92, s{sJ}, 2\ns_and_b32 s92, s92, 6")
            def issue_stage(s):
                slot = (s % 6) * 24576; out = []
                def two(lo, srd, vo, pre):
                    out.append([f"s_add_u32 m0, s91, {slot + lo}"] + pre + [self.dmai(vo[0], srd, 60, f"st{s}")])
                    out.append([f"s_add_u32 m0, s91, {slot + lo + 1024}", self.dmai(vo[1], srd, 60, f"st{s}")])
                if s < 8:
                    two(0, SX, vX, [f"s_add_u32 s61, s92, {s}", "s_and_b32 s61, s61, 7", "s_lshl_b32 s60, s61, 7", "s_add_u32 s60, s60, s88"])
                    two(8192, SWQKV, vWd, [f"s_mul_i32 s61, s61, {64*3072}", "s_add_u32 s61, s61, s90", "s_add_u32 s60, s61, 1024"])
                    two(16384, SWQKV, vWd, ["s_add_u32 s60, s61, 2048"])
                else:
                    for k, c in enumerate(range(3 * (s - 8), min(8, 3 * (s - 8) + 3))):
                        two(8192 * k, SWQKV, vWd, [f"s_add_u32 s61, s92, {c}", "s_and_b32 s61, s61, 7", f"s_mul_i32 s61, s61, {64*3072}", "s_add_u32 s60, s61, s90"])
                return out
        flat = lambda g: [x for y in g for x in y]
        D = self.opt.get("D", 3)
        self.stamp("pre", True)
        for s in range(2): P.add(flat(issue_stage(s)))
        self.stamp("iss01", True)
        self.late_setup()
        P(f"""s_lshl_b32 s93, s{sA4}, 2
        s_add_u32 s93, s93, s{sW}
        s_mul_i32 s94, s93, {KVS}
        s_add_u32 s94, s94, {KV}
        s_lshl_b32 s95, s{sA4}, 2
        s_add_u32 s95, s95, {KZ}
        v_lshlrev_b32 v226, 7, v0""")
        Lb = P.lab("Lz")
        P(f"s_cmp_lg_u32 s{sA8}, 0\ns_cbranch_scc1 {Lb}"); P.cond_begin()
        P(f"""v_mov_b32 v12, 0
        v_mov_b32 v13, 0
        v_mov_b32 v14, 0
        v_mov_b32 v15, 0
        buffer_store_dwordx4 v[12:15], v{vL16}, {S(SWS)}, s94 offen sc1
        s_mov_b64 exec, 0xff
        buffer_store_dwordx4 v[12:15], v{vL16}, {S(SWS)}, s94 offen offset:1024 sc1
        s_mov_b64 exec, -1""")
        P.cond_end(); P(f"{Lb}:")
        def w0():
            P(f"""s_getpc_b64 s[86:87]
            L_pc:
            s_and_b32 s61, s{sJ}, 7
            s_lshl_b32 s61, s61, 13
            v_add_u32 v231, s61, v226
            v_min_u32 v231, L_end-L_pc, v231
            global_load_dword v239, v231, s[86:87]""")
        self.wave(0, w0)
        self.wave(1, lambda: P(f"s_lshl_b32 s86, s2, 13\ns_mov_b32 exec_lo, 0xfcfcfcfc\ns_mov_b32 exec_hi, 0xfcfcfcfc\nbuffer_load_dword v235, v226, {S(SX)}, s86 offen\ns_mov_b64 exec, -1"))
        self.wave(2, lambda: P(f"s_mul_i32 s86, s2, {36*128}\ns_add_u32 s86, s86, {3072*128}\ns_mov_b32 exec_hi, 15\nbuffer_load_dword v236, v226, {S(SWQKV)}, s86 offen\ns_mov_b64 exec, -1"))
        self.wave(3, lambda: P(f"""s_lshl_b32 s86, s{sX}, 7
            s_lshl_b32 s87, s{sJ}, 2
            s_add_u32 s86, s86, s87
            s_add_u32 s86, s86, {XID}
            v_mov_b32 v5, s{sXCC}
            s_mov_b64 exec, 1
            buffer_store_dword v5, off, {S(SWS)}, s86 sc1
            s_mov_b64 exec, -1"""))
        P.items.append(("count1",))
        def pf1(srd, per, d):
            P(f"s_lshl_b32 s86, s2, 2\ns_add_u32 s86, s86, s{sW}\ns_mul_i32 s86, s86, {per*128}\ns_mov_b64 exec, {(1<<per)-1}\nbuffer_load_dword v{d}, v226, {S(srd)}, s86 offen\ns_mov_b64 exec, -1")
        def hook(pt):
            if self.opt.get("ov", 1) and pt == self.opt.get("pt2", 3):
                P(f"s_mov_b64 exec, 0x3f\nbuffer_load_dword v241, v240, {S(SWS)}, 0 offen\ns_mov_b64 exec, -1")
            if self.opt.get("c3", -1) == pt:
                P(f"""v_bfe_u32 v5, v0, 3, 1
                v_xor_b32 v242, v0, v5
                v_and_b32 v242, 1, v242
                v_xor_b32 v242, 1, v242
                v_bfe_u32 v243, v0, 2, 1
                v_lshl_add_u32 v242, v243, 1, v242
                v_mul_u32_u24 v242, 3584, v242
                v_and_b32 v243, 3, v0
                v_lshl_add_u32 v242, v243, 9, v242
                v_xor_b32 v5, 1, v5
                v_mul_u32_u24 v5, {1920 - 384}, v5
                v_add_u32 v242, v242, v5
                s_lshl_b32 s86, s{sJ}, 2
                s_add_u32 s86, s86, s{sW}
                s_mul_i32 s86, s86, {4*3584}
                s_mov_b64 exec, {self.opt.get('c3m', 0xffff)}
                buffer_load_dword v242, v242, {S(SWIN)}, s86 offen offset:384
                s_mov_b64 exec, -1""")
            if self.opt.get("c3o", -1) == pt:
                P(f"""s_lshl_b32 s86, s{sJ}, 2
                s_add_u32 s86, s86, s{sW}
                s_lshl_b32 s86, s86, 12
                v_lshlrev_b32 v5, 10, v0
                s_mov_b64 exec, 0xf
                buffer_load_dword v243, v5, {S(SWO)}, s86 offen offset:384
                s_mov_b64 exec, -1""")
            for key, off, d in (("xl0", 1792, 240), ("xl1", 0, 241)):
                if self.opt.get(key, -1) == pt: self.xl(off, d)
            if self.opt.get("ptouch", -1) == pt: P(f"s_mov_b64 exec, 0xffffff\nbuffer_load_dword v237, v238, {S(SWS)}, 0 offen {self.opt.get('tm', '')}\ns_mov_b64 exec, -1")
            if self.opt.get("pwo", 7) == pt: pf1(SWO, 4, 232)
            if self.opt.get("pwin", 7) == pt: pf1(SWIN, 14, 233)
            if self.opt.get("pwout", 7) == pt: pf1(SWOUT, 7, 234)
        for s in range(2, D): P.add(flat(issue_stage(s)))
        P(f"""
        v_lshrrev_b32 v12, 1, v{vI}
        v_xor_b32 v12, v12, v{vG}
        v_lshlrev_b32 v12, 4, v12
        v_lshl_add_u32 v{vA[0]}, v{vI}, 7, v12
        v_xor_b32 v{vA[1]}, 64, v{vA[0]}
        v_add_u32 v{vO[0]}, s91, v{vA[0]}
        v_add_u32 v{vO[1]}, s91, v{vA[1]}
        v_lshrrev_b32 v12, 2, v{vI}
        v_lshl_add_u32 v13, v{vG}, 3, v12
        v_and_b32 v14, 2, v12
        v_and_b32 v15, 1, v{vG}
        v_lshl_or_b32 v14, v15, 2, v14
        v_bfe_u32 v15, v0, 1, 1
        s_lshl_b32 s86, s{sW}, 1
        v_add_u32 v15, s86, v15
        v_xor_b32 v14, v14, v15
        v_lshlrev_b32 v14, 4, v14
        v_lshl_add_u32 v14, v13, 7, v14
        v_and_b32 v15, 1, v0
        v_lshl_add_u32 v{vB}, v15, 3, v14
        """)
        for k in range(4): P(f"v_mov_b32 v{ONES+k}, 0x3f803f80")
        P(f"""s_lshl_b32 s86, s{sW}, 6
        s_add_u32 s86, s86, {SCR}
        v_lshl_add_u32 v212, v{vI}, 2, s86
        v_lshlrev_b32 v213, 4, v{vG}
        v_add_u32 v213, {SCR}, v213
        v_lshlrev_b32 v214, 2, v{vI}
        v_add_u32 v214, {SCR}, v214
        s_add_u32 s86, s91, {SCR + 1024}
        v_add_u32 v227, s86, v{vL16}
        v_lshl_add_u32 v228, v{vG}, 4, s86
        v_lshl_add_u32 v229, v0, 2, s86
        v_lshlrev_b32 v215, 2, v0
        v_and_b32 v12, 3, v0
        v_cmp_eq_u32 s[44:45], 1, v12
        v_cmp_eq_u32 s[46:47], 2, v12
        v_cmp_eq_u32 s[82:83], 3, v12""")
        if self.opt.get('ptouch', -1) >= 0: P(f"""s_lshr_b32 s86, s{sJ}, 2
        s_lshl_b32 s87, s{sX}, 3
        s_add_u32 s86, s86, s87
        s_and_b32 s87, s{sJ}, 3
        s_lshl_b32 s96, s86, 5
        s_lshl_b32 s97, s87, 2
        s_add_u32 s96, s96, s97
        s_add_u32 s96, s96, s{sW}
        s_lshl_b32 s96, s96, 10
        s_add_u32 s96, s96, {H}
        v_and_b32 v12, 7, v0
        v_lshlrev_b32 v12, 7, v12
        v_bfe_u32 v13, v0, 3, 1
        v_lshl_add_u32 v12, v13, 14, v12
        v_add_u32 v238, s96, v12
        s_lshl_b32 s96, s86, 12
        s_lshl_b32 s97, s87, 8
        s_add_u32 s96, s96, s97
        s_lshr_b32 s97, s{sW}, 1
        s_lshl_b32 s97, s97, 10
        s_add_u32 s96, s96, s97
        s_add_u32 s96, s96, {HST}
        v_and_b32 v12, 1, v0
        v_lshlrev_b32 v12, 7, v12
        v_bfe_u32 v13, v0, 1, 1
        v_lshl_add_u32 v12, v13, 11, v12
        v_add_u32 v12, s96, v12
        v_cmp_lt_u32 vcc, 15, v0
        v_cndmask_b32 v238, v238, v12, vcc
        s_lshl_b32 s96, s{sRB}, 15
        s_lshl_b32 s97, s{sCBK}, 11
        s_add_u32 s96, s96, s97
        s_lshl_b32 s97, s{sW}, 9
        s_add_u32 s96, s96, s97
        s_add_u32 s96, s96, {STATS}
        v_and_b32 v12, 3, v0
        v_lshl_add_u32 v12, v12, 7, s96
        v_cmp_lt_u32 vcc, 19, v0
        v_cndmask_b32 v238, v238, v12, vcc""")
        P(f"""s_lshr_b32 s86, s{sJ}, 2
                s_lshl_b32 s87, s{sX}, 3
                s_add_u32 s86, s86, s87
                s_lshl_b32 s87, s86, 6
                s_add_u32 s87, s87, {FP}
                v_mov_b32 v240, s87
                v_readlane_b32 s87, v{vFLAG}, 16
                s_lshl_b32 s86, s86, 12
                v_writelane_b32 v240, s87, 1
                s_and_b32 s87, s{sJ}, 3
                s_lshl_b32 s87, s87, 8
                s_add_u32 s86, s86, s87
                s_lshr_b32 s87, s{sW}, 1
                s_lshl_b32 s87, s87, 10
                s_add_u32 s86, s86, s87
                s_add_u32 s86, s86, {HST}
                v_writelane_b32 v240, s86, 2
                s_add_u32 s87, s86, 128
                v_writelane_b32 v240, s87, 3
                s_add_u32 s87, s86, 2048
                v_writelane_b32 v240, s87, 4
                s_add_u32 s87, s86, 2176
                v_writelane_b32 v240, s87, 5""")
        cur = [0]
        def setbase(slot, regs):
            want = (slot // 2) * 49152; out = []
            if want != cur[0]:
                out = [f"v_add_u32 v{r}, {want - cur[0]}, v{r}" if want > cur[0] else f"v_subrev_u32 v{r}, {cur[0] - want}, v{r}" for r in regs]
                cur[0] = want
            return (slot % 2) * 24576, out
        def reads(ks, so):
            t = ks & 1; out = []
            for base, lo in ((BK, 8192), (BV, 16384)):
                for h in range(2): out.append(f"ds_read_b64_tr_b16 {vr(base+4*t+2*h,2)}, v{vB} offset:{so + lo + t*4096 + h*512}")
            for rf in range(4): out.append(f"ds_read_b128 {ar((ks*4+rf)*4,4)}, v{vA[t]} offset:{so + rf*2048}")
            out.append(f"ds_read_b128 {vr(OWN+4*t,4)}, v{vO[t]} offset:{so}")
            return out
        def mfmas(ks):
            t = ks & 1; m = []
            c = lambda r: vr(r, 4) if ks else "0"
            m.append(f"{MF} {vr(DS,4)}, {vr(OWN+4*t,4)}, {vr(ONES,4)}, {c(DS)}")
            m.append(f"{MF} {vr(DQ,4)}, {vr(OWN+4*t,4)}, {vr(OWN+4*t,4)}, {c(DQ)}")
            m.append(f"{MF} {vr(CSK,4)}, {vr(ONES,4)}, {vr(BK+4*t,4)}, {c(CSK)}")
            m.append(f"{MF} {vr(CSV,4)}, {vr(ONES,4)}, {vr(BV+4*t,4)}, {c(CSV)}")
            for rf in range(4):
                for base, acc in ((BK, ACK), (BV, ACV)):
                    m.append(f"{MF} {vr(acc+4*rf,4)}, {ar((ks*4+rf)*4,4)}, {vr(base+4*t,4)}, {c(acc+4*rf)}")
            return m
        def lay(m, r, g):
            if not m: return r + flat(g)
            g = g + [[]] * (3 - len(g))
            return mix(m[:4], r[:5] + g[0]) + mix(m[4:7], r[5:]) + mix(m[7:9], g[1]) + m[9:10] + mix(m[10:], g[2])
        for s in range(8):
            P.wait_tag(f"st{s}"); self.barrier()
            if s == 0: self.stamp("st0")
            else: self.stamp(f"st{s}", True)
            if s == 2:
                P(f"v_readfirstlane_b32 s{sE}, v225\ns_mul_i32 s{sE}, s{sE}, 0x9e3779b1\ns_add_u32 s{sE}, s{sE}, 0x7f4a7c15")
                Lb = P.lab("Lz")
                P(f"s_or_b32 s86, s{sA8}, s{sW}\ns_cmp_lg_u32 s86, 0\ns_cbranch_scc1 {Lb}"); P.cond_begin()
                P(f"v_mov_b32 v5, s{sE}\ns_mov_b64 exec, 1\nbuffer_store_dword v5, off, {S(SWS)}, s95 sc1\ns_mov_b64 exec, -1")
                P.cond_end(); P(f"{Lb}:")
            so, adj = setbase(s % 6, vA + vO + [vB])
            iss = issue_stage(s + D) if s + D <= 10 else []
            if s == 6: P(f"buffer_load_dword v230, off, {S(SWS)}, s95 sc1")
            hook(s)
            h = len(iss) // 2
            P.add(adj + lay(mfmas(2*s - 1) if s else [], reads(2*s, so), iss[:h]))
            P.wait_ds()
            P.add(lay(mfmas(2*s), reads(2*s + 1, so), iss[h:]))
        for s in range(8 + D, 11): P.add(flat(issue_stage(s)))
        m = mfmas(15)
        sel = []
        for k, sm in ((1, 44), (2, 46), (3, 82)):
            sel += [f"v_cndmask_b32 v{DS}, v{DS}, v{DS+k}, s[{sm}:{sm+1}]", f"v_cndmask_b32 v{DQ}, v{DQ}, v{DQ+k}, s[{sm}:{sm+1}]"]
        fin = [f"v_mul_f32 v{DS}, {f2u(-1.0/512):#x}, v{DS}", f"v_mul_f32 v{DQ}, {f2u(1.0/512):#x}, v{DQ}", f"v_fma_f32 v{DQ}, -v{DS}, v{DS}, v{DQ}",
               f"v_max_f32 v{DQ}, 0, v{DQ}", f"v_add_f32 v{DQ}, {f2u(1e-5):#x}, v{DQ}", f"v_rsq_f32 v{DS+1}, v{DQ}"]
        P.add(m[:6] + mix(m[6:], sel + fin))
        P(f"""v_mul_f32 v{DS+2}, v{DS}, v{DS+1}
        s_mov_b32 exec_lo, 0x00f0000f
        s_mov_b32 exec_hi, 0xf0000f00
        ds_write_b32 v212, v{DS+1}
        ds_write_b32 v212, v{DS+2} offset:256
        s_mov_b64 exec, -1""")
        self.stamp("p1gemm")
        self.barrier()
        for rf in range(4):
            P(f"ds_read_b128 {vr(ST+8*rf,4)}, v213 offset:{rf*64}\nds_read_b128 {vr(ST+8*rf+4,4)}, v213 offset:{256+rf*64}")
        for rf in range(4):
            P(f"ds_read_b32 v{STQ+2*rf}, v214 offset:{rf*64}\nds_read_b32 v{STQ+2*rf+1}, v214 offset:{256+rf*64}")
        PK = 160; PV = 168; TT = 176; KVD = 184; ZD = 188
        for rf in range(4):
            ls = []
            for hp in range(2):
                x = ACK + 4*rf + 2*hp; t = TT + 2*hp
                ls.append(self.affine_pair(x, t, ST+8*rf+2*hp, ST+8*rf+4+2*hp, CSK, False) + self.phi_pair(x, t, PK + 2*rf + hp))
                x = ACV + 4*rf + 2*hp; t = TT + 4 + 2*hp
                ls.append(self.affine_pair(x, t, ST+8*rf+2*hp, ST+8*rf+4+2*hp, CSV, False) + [f"v_cvt_pk_bf16_f32 v{PV+2*rf+hp}, v{x}, v{x+1}"])
            P.add(zipped(ls))
        p2a, p2b = self.p2_setup()
        P(f"""{MF} {vr(KVD,4)}, {vr(PK,4)}, {vr(PV,4)}, 0
        {MF} {vr(ZD,4)}, {vr(PK,4)}, {vr(ONES,4)}, 0
        {MF} {vr(KVD,4)}, {vr(PK+4,4)}, {vr(PV+4,4)}, {vr(KVD,4)}
        {MF} {vr(ZD,4)}, {vr(PK+4,4)}, {vr(ONES,4)}, {vr(ZD,4)}""")
        P.add(p2a[:8])
        P(f"ds_write_b128 v227, {vr(KVD,4)}\nds_write_b128 v228, {vr(ZD,4)} offset:1024")
        P.add(p2a[8:])
        P.wait_ds()
        for t in range(5): P(f"ds_read_b32 v{192+t}, v229 offset:{t*256}")
        self.check_retry(f"buffer_load_dword v230, off, {S(SWS)}, s95 sc1", f"v_cmp_ne_u32 vcc, s{sE}, v230")
        for t in range(4): P(f"buffer_atomic_add_f32 v{192+t}, v215, {S(SWS)}, s94 offen offset:{t*256} sc1", "atom")
        P(f"s_mov_b64 exec, 0xffff\nbuffer_atomic_add_f32 v196, v215, {S(SWS)}, s94 offen offset:1024 sc1\ns_mov_b64 exec, -1", "atom")
        self.stamp("atom")
        hook(8)
        def qreads(ks):
            c = ks >> 1; t = ks & 1
            so, adj = setbase(2 + c // 3, [vB])
            return adj + [f"ds_read_b64_tr_b16 {vr(BK+4*(ks&3)+2*h,2)}, v{vB} offset:{so + (c%3)*8192 + t*4096 + h*512}" for h in range(2)]
        def qm(ks):
            b = vr(BK+4*(ks&3),4)
            out = [f"{MF} {vr(ACQ+4*rf,4)}, {b}, {ar((ks*4+rf)*4,4)}, {vr(ACQ+4*rf,4) if ks else '0'}" for rf in range(4)]
            return out + [f"{MF} {vr(CSQ,4)}, {b}, {vr(ONES,4)}, {vr(CSQ,4) if ks else '0'}"]
        P.wait_tag("st10"); self.barrier()
        P.add(qreads(0) + qreads(1))
        wo_e = self.wo_dma(0)
        p2b = p2b + L(f"""s_lshl_b32 s87, s{sA8}, 6
        s_add_u32 s87, s87, s93
        s_lshl_b32 s87, s87, 10
        s_add_u32 s64, s87, {PQ}
        s_add_u32 s65, s64, 32768""")
        n = (len(p2b) + 15) // 16
        for ks in range(16):
            if ks == self.opt.get("fa", -1):
                P.wait_tag("atom"); P("s_barrier")
                self.wave0(lambda: self.set_flag((1 << R1) - 1))
            P.add(mix(qm(ks), (qreads(ks + 2) if ks + 2 < 16 else []) + wo_e[len(wo_e)*ks//16:len(wo_e)*(ks+1)//16] + p2b[n*ks:n*ks+n]))
        PQR = 160
        one = self.opt.get("one", 0)
        if self.opt.get("fa", -1) >= 0: self.barrier()
        elif one == 0:
            P.wait_tag("atom"); self.barrier()
            self.wave0(lambda: self.set_flag((1 << R1) - 1))
        elif one == 1: self.barrier()
        self.stamp("F1a")
        hook(9)
        wo_l = self.wo_dma(1)
        for p in range(2):
            ls = []
            for rf in (2*p, 2*p+1):
                for hp in range(2):
                    x = ACQ + 4*rf + 2*hp; t = TT + 2*((2*rf+hp) % 4)
                    ls.append(self.affine_pair(x, t, STQ+2*rf, STQ+2*rf+1, CSQ+2*hp, True) + self.phi_pair(x, t, PQR + 2*rf + hp))
            P.add(zipped(ls))
            if one == 2 and p == 0:
                P.wait_tag("atom"); self.barrier()
                self.wave0(lambda: self.set_flag((1 << R1) - 1))
            P(f"buffer_store_dwordx4 {vr(PQR+4*p,4)}, v{vL16}, {S(SWS)}, s{64+p} offen sc1", "pq")
        nw = self.opt.get("nw", 8)
        P.add(weave(self.wo_reads(0) + self.wo_reads(1), wo_l[:3*nw]))
        P.wait_tag("pq")
        P("s_barrier")
        self.wave0(lambda: self.set_flag((1 << R1) - 1 if one == 1 else 1 << 27))
        self.stamp("F1")
        hook(10)
        P.add(wo_l[3*nw:])

    def p2_setup(self):
        a = L(f"""
        s_lshr_b32 s88, s{sJ}, 2
        s_lshl_b32 s86, s{sX}, 3
        s_add_u32 s88, s88, s86
        s_and_b32 s89, s{sJ}, 3
        v_lshrrev_b32 v12, 3, v0
        v_and_b32 v13, 6, v12
        v_and_b32 v14, 7, v0
        v_xor_b32 v13, v13, v14
        v_lshlrev_b32 v{vSW}, 4, v13
        v_lshl_add_u32 v200, v12, 10, v{vSW}
        s_lshl_b32 s90, s{sW}, 17
        s_lshl_b32 s86, s89, 8
        s_add_u32 s90, s90, s86
        s_lshl_b32 s91, s{sW}, 14
        s_add_u32 s96, s91, 65536
        s_cmp_eq_u32 s{sW}, 3
        s_cselect_b32 s91, 131072, s91""")
        b = L(f"""
        v_lshrrev_b32 v12, 2, v{vI}
        v_lshl_add_u32 v12, v{vG}, 2, v12
        v_and_b32 v13, 6, v12
        v_bfe_u32 v14, v0, 1, 1
        v_xor_b32 v13, v13, v14
        v_and_b32 v14, 1, v0
        v_lshlrev_b32 v14, 3, v14
        v_lshl_add_u32 v14, v12, 7, v14
        v_lshl_add_u32 v{vT[0]}, v13, 4, v14
        v_xor_b32 v{vT[1]}, 32, v{vT[0]}
        v_xor_b32 v{vT[2]}, 64, v{vT[0]}
        v_xor_b32 v{vT[3]}, 96, v{vT[0]}
        s_and_b32 s86, s{sW}, 1
        s_lshl_b32 s86, s86, 6""")
        for p in range(4):
            b += L(f"s_add_u32 s87, s{sW}, {p}\ns_and_b32 s87, s87, 2\ns_lshl_b32 s87, s87, 12\ns_add_u32 s87, s87, s91")
            for cf in range(2):
                b += [f"v_xor_b32 v{204+2*p+cf}, s86, v{vT[2*(p&1)+cf]}", f"v_add_u32 v{204+2*p+cf}, s87, v{204+2*p+cf}"]
        return a, b
    def wo_dma(self, half):
        out = []
        for i in range(8):
            for st in range(2):
                if self.opt.get('rotwo', 0):
                    if st == 0:
                        out += [f"s_add_u32 s61, s88, {i}", "s_and_b32 s61, s61, 7", "s_lshl_b32 s66, s61, 10", f"s_add_u32 s66, s66, s{96 if half else 91}", "s_mov_b32 m0, s66",
                                "s_lshl_b32 s61, s61, 13", "s_add_u32 s61, s61, s90", f"s_add_u32 s60, s61, {8*half*8192}", self.dmai(200, SWO, 60, f"wo{2*half}")]
                    else:
                        out += ["s_add_u32 m0, s66, 8192", "s_add_u32 s60, s60, 128", self.dmai(200, SWO, 60, f"wo{2*half}")]
                else:
                    out += [f"s_add_u32 m0, s{96 if half else 91}, {st*8192 + i*1024}", f"s_add_u32 s60, s90, {(8*half+i)*8192 + st*128}", self.dmai(200, SWO, 60, f"wo{2*half + i//4}")]
        return out
    def wo_reads(self, kk):
        return [WT(f"wo{kk}")] + [f"ds_read_b64_tr_b16 {ar(((kk*4+p)*2+cf)*4+2*h,2)}, v{204+2*p+cf} offset:{(kk&1)*4096 + h*2048}" for p in range(4) for cf in range(2) for h in range(2)]
    def xl(self, off, d):
        self.P(f"""v_mul_u32_u24 v5, 74, v0
        v_lshrrev_b32 v5, 10, v5
        v_mul_u32_u24 v{d}, {3584 - 14*128}, v5
        v_lshl_add_u32 v5, v0, 7, v{d}
        s_lshl_b32 s86, s{sJ}, 2
        s_add_u32 s86, s86, s{sW}
        s_mul_i32 s86, s86, {4*3584}
        s_add_u32 s86, s86, {off}
        s_mov_b32 exec_hi, 0xffffff
        buffer_load_dword v{d}, v5, s[44:47], s86 offen
        s_mov_b64 exec, -1""".replace("s[44:47]", S(SWIN)))
    def win_setup(self, v):
        return L(f"""v_lshrrev_b32 v{v}, 3, v0
        v_mul_u32_u24 v{v}, 3584, v{v}
        v_add_u32 v{v}, v{v}, v{vSW}
        s_min_u32 s70, s{sCBK}, 13
        s_lshl_b32 s70, s70, 7
        s_mul_i32 s71, s{sW}, {8*3584}
        s_add_u32 s70, s70, s71
        s_lshl_b32 s71, s{sW}, 10
""")
    def win_dma(self, half, t, v):
        n = 16 if half == 0 else self.opt.get('nw1', 10)
        if self.opt.get('rotw', 0) and t < n and n % 2 == 0:
            sg = "s_add_u32" if t < n // 2 else "s_sub_u32"
            r = 78 if half == 0 else 80
            return [f"s_add_u32 m0, s71, {half*65536 + t*4096}", f"{sg} m0, m0, s{r}", f"s_add_u32 s60, s70, {t*32*3584 + (1792 if half == 0 else 0)}", f"{sg} s60, s60, s{r+1}", self.dmai(v, SWIN, 60, f"win{half}")]
        return [f"s_add_u32 m0, s71, {half*65536 + t*4096}", NOPIF, f"s_add_u32 s60, s{82 if half else 70}, {t*32*3584 + (1792 if half == 0 else 0)}", NOPIF, self.dmai(v, SWIN, 60, f"win{half}")]

    def win0_dma(self, v):
        out = L(f"s_min_u32 s72, s{sCBK}, 13\ns_lshl_b32 s72, s72, 7\ns_mul_i32 s73, s{sW}, {128*3584}\ns_add_u32 s72, s72, s73\ns_lshl_b32 s73, s{sW}, 14")
        for i in range(16):
            out += [f"s_add_u32 m0, s73, {i*1024}", f"s_add_u32 s60, s72, {i*8*3584 + 1792}", self.dmai(v, SWIN, 60, "win0")]
        return out

    def phase2(self):
        P = self.P
        EX = 114688
        XR = 244; EPSQ = 124
        P(f"""s_lshl_b32 s86, s88, 15
        s_lshl_b32 s87, s89, 8
        s_add_u32 s86, s86, s87
        s_lshl_b32 s87, s{sW}, 6
        s_add_u32 s60, s86, s87
        s_lshl_b32 s87, s{sW}, 11
        s_add_u32 m0, s87, 147456
        v_lshrrev_b32 v12, 2, v0
        v_lshrrev_b32 v13, 3, v0
        v_xor_b32 v13, v13, v0
        v_and_b32 v13, 3, v13
        v_lshlrev_b32 v13, 4, v13
        v_lshl_add_u32 v12, v12, 10, v13""")
        P.add([self.dmai(12, SX, 60, "xt"), "s_add_u32 m0, s87, 148480", "s_add_u32 s60, s60, 16384", self.dmai(12, SX, 60, "xt")])
        P(f"""v_lshrrev_b32 v13, 1, v{vI}
        v_lshrrev_b32 v14, 1, v{vG}
        v_xor_b32 v13, v13, v14
        v_and_b32 v13, 3, v13
        v_lshlrev_b32 v13, 4, v13
        v_lshl_add_u32 v13, v{vI}, 6, v13
        v_and_b32 v14, 1, v{vG}
        v_lshl_add_u32 v13, v14, 3, v13
        s_add_u32 s87, s87, 147456
        v_add_u32 v20, s87, v13
        v_xor_b32 v21, 32, v20""")
        P(f"""s_lshl_b32 s86, s{sW}, 3
        s_mul_i32 s92, s86, {KVS}
        s_add_u32 s92, s92, {KV}
        s_add_u32 s93, s92, {4*KVS}
        s_lshl_b32 s94, s88, 5
        s_add_u32 s94, s94, s86
        s_lshl_b32 s94, s94, 10
        s_add_u32 s94, s94, {PQ}
        s_add_u32 s95, s94, 4096
        v_and_b32 v12, 7, v0
        v_mul_u32_u24 v12, {KVS}, v12
        v_lshl_add_u32 v19, v{vG}, 4, v12
        v_and_b32 v18, 31, v0
        v_lshlrev_b32 v18, 2, v18
        s_lshl_b32 s66, s{sX}, 7
        s_add_u32 s66, s66, {XID}
        s_lshl_b32 s83, s88, 6
        s_add_u32 s83, s83, {FP}
        s_lshl_b32 s74, s89, 2
        s_add_u32 s74, s74, s{sW}
        s_lshl_b32 s74, s74, 2
        s_add_u32 s74, s74, s83
        v_lshlrev_b32 v255, 2, v{vI}
        s_and_b32 s67, s2, {R1 - 1}
        s_lshl_b32 s67, s67, 10
        s_add_u32 s67, s67, {F1}
        s_lshr_b32 s97, s88, 1
        s_lshl_b32 s97, s97, 7
        s_add_u32 s97, s97, {F1B}
        v_and_b32 v16, 7, v0
        v_lshlrev_b32 v16, 2, v16""")
        for k in range(4): P(f"v_mov_b32 v{EPSQ+k}, s{sEPS6}")
        P.add(self.win_setup(123))
        P("s_mov_b32 s82, s70")
        if self.opt.get("redir", 1):
            Lb = P.lab("Lr")
            P(f"""s_cmp_lt_u32 s{sCBK}, 14
            s_cbranch_scc1 {Lb}
            s_mov_b32 s{SWIN}, s{SWSP}
            s_mov_b32 s{SWIN+1}, s{SWSP+1}
            s_mov_b32 s{SWIN+2}, 8388608
            s_lshl_b32 s86, s{sRB}, 1
            s_add_u32 s86, s86, s{sCBK}
            s_sub_u32 s86, s86, 14
            s_lshl_b32 s86, s86, 2
            s_add_u32 s86, s86, s{sW}
            s_mul_i32 s87, s86, 147
            s_lshr_b32 s87, s87, 12
            s_mul_i32 s87, s87, 420
            s_add_u32 s86, s86, s87
            s_lshl_b32 s86, s86, 12
            s_mov_b32 s70, s86
            s_mov_b32 s82, 0x40000000
            v_lshrrev_b32 v123, 4, v0
            v_lshlrev_b32 v123, 10, v123
            v_bfe_u32 v12, v0, 3, 1
            v_lshl_add_u32 v123, v12, 7, v123
            v_and_b32 v12, 7, v0
            v_lshl_add_u32 v123, v12, 4, v123
            v_add_u32 v123, {4096 - 1792}, v123
            s_sub_u32 s70, s70, 4096
            s_cmp_eq_u32 s86, 0
            s_cselect_b32 s70, 0x40000000, s70
            {Lb}:""")
        for p in range(1, 4):
            P(f"s_add_u32 s86, s{sW}, {p}\ns_and_b32 s86, s86, 3\ns_mul_i32 s86, s86, 12288\ns_add_u32 s86, s86, {EX + (p-1)*4096}")
            P(f"v_add_u32 v{118+p}, s86, v{vL16}")
        P(f"""s_mul_i32 s86, s{sW}, 12288
        s_add_u32 s86, s86, {EX}
        v_add_u32 v118, s86, v{vL16}
        s_lshl_b32 s64, s88, 5
        s_lshl_b32 s87, s89, 2
        s_add_u32 s64, s64, s87
        s_add_u32 s64, s64, s{sW}
        s_lshl_b32 s64, s64, 10
        s_add_u32 s64, s64, {H}
        s_add_u32 s65, s64, 16384
        s_lshl_b32 s61, s88, 12
        s_lshl_b32 s86, s89, 8
        s_add_u32 s61, s61, s86
        s_lshr_b32 s86, s{sW}, 1
        s_lshl_b32 s86, s86, 10
        s_add_u32 s61, s61, s86
        s_and_b32 s86, s{sW}, 1
        s_lshl_b32 s86, s86, 3
        s_add_u32 s61, s61, s86
        s_add_u32 s61, s61, {HST}
        v_lshlrev_b32 v122, 4, v{vI}
        v_lshl_add_u32 v122, v{vG}, 11, v122""")
        if self.opt.get("touch", 3) == 1:
            P(f"""v_and_b32 v12, 7, v0
            v_lshlrev_b32 v12, 7, v12
            v_bfe_u32 v13, v0, 3, 1
            v_lshl_add_u32 v12, v13, 14, v12
            s_mov_b64 exec, {self.opt.get('tmH', 0xffff)}
            buffer_load_dword v253, v12, {S(SWS)}, s64 offen {self.opt.get('tm', '')}
            v_and_b32 v12, 1, v0
            v_lshlrev_b32 v12, 7, v12
            v_bfe_u32 v13, v0, 1, 1
            v_lshl_add_u32 v12, v13, 11, v12
            s_mov_b64 exec, {self.opt.get('tmS', 0xf)}
            buffer_load_dword v254, v12, {S(SWS)}, s61 offen {self.opt.get('tm', '')}
            s_mov_b64 exec, -1""")
        fl2 = f"buffer_load_dwordx4 v[12:15], v{vL16}, {S(SWS)}, s67 offen sc1\n" + (f"v_mov_b32 v17, s{sE}" if self.opt.get("one", 0) == 1 else f"buffer_load_dword v17, v16, {S(SWS)}, s97 offen sc1")
        if self.opt.get("nbp", 0): self.wave0(lambda: P(fl2))
        P("s_sub_u32 s86, s96, s91")
        for r in range(204, 212): P(f"v_add_u32 v{r}, s86, v{r}")
        P.add(self.wo_reads(2) + self.wo_reads(3))
        P.wait_tag("xt")
        for a in range(2):
            for cf in range(2): P(f"ds_read_b64 {vr(XR+(a*2+cf)*2,2)}, v{20+cf} offset:{a*1024}")
        self.stamp("wo")
        cm = "\n".join(f"v_xor_b32 v{r}, s{sE}, v{r}" for r in (12, 13, 14, 15, 17)) + "\nv_or3_b32 v12, v12, v13, v14\nv_or3_b32 v12, v12, v15, v17\nv_cmp_ne_u32 vcc, 0, v12"
        def pl():
            if not self.opt.get("nbp", 0): P(fl2)
            self.check_retry(fl2, cm)
        self.wave0(pl)
        self.barrier()
        self.stamp("sync1")
        KR = 16; KP = 48; ZR = 64; ZC = 68; ZP = 70; PQR = 86; ACC = 128; OF = 192; ND = 212
        P(f"buffer_load_dwordx4 {vr(ZR,4)}, v19, {S(SWS)}, s92 offen offset:1024 sc1")
        P(f"buffer_load_dword v252, v18, {S(SWS)}, s66 offen sc1")
        for h in range(8):
            P(f"buffer_load_dwordx4 {vr(KR+4*h,4)}, v{vL16}, {S(SWS)}, s{92+h//4} offen offset:{(h%4)*KVS} sc1")
            P(f"buffer_load_dwordx4 {vr(PQR+4*h,4)}, v{vL16}, {S(SWS)}, s{94+h//4} offen offset:{(h%4)*1024} sc1")
        if self.opt.get("touch", 3) == 2:
            P(f"""v_and_b32 v12, 7, v0
            v_lshlrev_b32 v12, 7, v12
            v_bfe_u32 v13, v0, 3, 1
            v_lshl_add_u32 v12, v13, 14, v12
            s_mov_b64 exec, {self.opt.get('tmH', 0xffff)}
            buffer_load_dword v253, v12, {S(SWS)}, s64 offen {self.opt.get('tm', '')}
            v_and_b32 v12, 1, v0
            v_lshlrev_b32 v12, 7, v12
            v_bfe_u32 v13, v0, 1, 1
            v_lshl_add_u32 v12, v13, 11, v12
            s_mov_b64 exec, {self.opt.get('tmS', 0xf)}
            buffer_load_dword v254, v12, {S(SWS)}, s61 offen {self.opt.get('tm', '')}
            s_mov_b64 exec, -1""")
        wd = []
        if not self.opt.get("w0early", 0):
            for t in range(16): wd += self.win_dma(0, t, 123)
        NW1 = self.opt.get('nw1', 10)
        for t in range(NW1): wd += self.win_dma(1, t, 123)
        ni, ns = self.opt.get("ni", 0), self.opt.get("ns", 0)
        P.add(wd[:5*ni]); wd = wd[5*ni:]
        wds = wd[len(wd) - 5*ns:] if ns else []; wd = wd[:len(wd) - 5*ns]
        P(f"v_cvt_pk_bf16_f32 v{ZC}, v{ZR}, v{ZR+1}\nv_cvt_pk_bf16_f32 v{ZC+1}, v{ZR+2}, v{ZR+3}")
        P(f"v_cmp_ne_u32 vcc, s{sXCC}, v252")
        for h in range(8):
            for k in range(2): P(f"v_mov_b32_dpp v{ZP+2*h+k}, v{ZC+k} row_newbcast:{h} row_mask:0xf bank_mask:0xf")
        P(f"s_cmp_eq_u64 vcc, 0\ns_cselect_b32 s{sM}, {self.opt.get('fast', 1)}, 0")
        def ostep(kk):
            c = []; m = []
            for hh in range(2):
                h = 2*kk + hh
                c += [f"v_cvt_pk_bf16_f32 v{KP+2*h}, v{KR+4*h}, v{KR+4*h+1}", f"v_cvt_pk_bf16_f32 v{KP+2*h+1}, v{KR+4*h+2}, v{KR+4*h+3}"]
            for hh in range(2):
                h = 2*kk + hh
                for a in range(2):
                    m.append(f"v_mfma_f32_16x16x16_bf16 {vr(ND+8*(2*hh+a)+4,4)}, {vr(ZP+2*h,2)}, {vr(PQR+4*h+2*a,2)}, {vr(EPSQ,4)}")
            for hh in range(2):
                h = 2*kk + hh
                for a in range(2):
                    m.append(f"v_mfma_f32_16x16x16_bf16 {vr(ND+8*(2*hh+a),4)}, {vr(KP+2*h,2)}, {vr(PQR+4*h+2*a,2)}, 0")
            v = [f"v_rcp_f32 v{ND+8*q+4}, v{ND+8*q+4}" for q in range(4)]
            for hh in range(2):
                for a in range(2):
                    nd = ND + 8*(2*hh+a); o = OF + 8*(kk&1) + 4*a + 2*hh
                    v += [f"v_mul_f32 v{nd+k}, v{nd+k}, v{nd+4}" for k in range(4)]
                    v += [f"v_cvt_pk_bf16_f32 v{o}, v{nd}, v{nd+1}", f"v_cvt_pk_bf16_f32 v{o+1}, v{nd+2}, v{nd+3}"]
            return c, m, v
        def gstep(kk):
            m = []
            for p in range(4):
                for cf in range(2):
                    for a in range(2):
                        acc = vr(ACC + ((p*2+a)*2+cf)*4, 4)
                        m.append(f"{MF} {acc}, {ar(((kk*4+p)*2+cf)*4,4)}, {vr(OF+8*(kk&1)+4*a,4)}, {acc if kk else '0'}")
            return m
        c, m, v = ostep(0); P.add(c[:2] + mix(m[:4], c[2:]) + m[4:] + v)
        self.stamp("p2o0", True)
        if self.opt.get("xl1", -1) == 20: self.xl(0, 255)
        if self.opt.get("touch", 3) == 3 and not self.opt.get("ov", 1):
            P(f"""v_and_b32 v12, 7, v0
            v_lshlrev_b32 v12, 7, v12
            v_bfe_u32 v13, v0, 3, 1
            v_lshl_add_u32 v12, v13, 14, v12
            s_mov_b64 exec, {self.opt.get('tmH', 0xffff)}
            buffer_load_dword v253, v12, {S(SWS)}, s64 offen {self.opt.get('tm', '')}
            v_and_b32 v12, 1, v0
            v_lshlrev_b32 v12, 7, v12
            v_bfe_u32 v13, v0, 1, 1
            v_lshl_add_u32 v12, v13, 11, v12
            s_mov_b64 exec, {self.opt.get('tmS', 0xf)}
            buffer_load_dword v254, v12, {S(SWS)}, s61 offen {self.opt.get('tm', '')}
            s_mov_b64 exec, -1""")
        XF = 80
        xun = []
        for q in range(4):
            for k in range(2): xun += [f"v_lshlrev_b32 v{XF+4*q+2*k}, 16, v{XR+2*q+k}", f"v_and_b32 v{XF+4*q+2*k+1}, 0xffff0000, v{XR+2*q+k}"]
        xw = [f"ds_write_b128 v{118+p}, {vr(ACC+(p*4+q)*4,4)} offset:{q*1024}" for p in range(1, 4) for q in range(4)]
        for kk in range(4):
            g = gstep(kk)
            if kk < 3:
                c, m, v = ostep(kk+1)
                q_ = min(25, 5 * ((len(wd) // 5 + 3) // 4)); h_ = 5 * (q_ // 10)
                P.add(mix(m[:4], c) + mix(m[4:], wd[q_*kk:q_*kk+h_]))
                if kk == 2 and self.opt.get("ov", 1):
                    P(f"v_mov_b32 v253, s{sE}\ns_mov_b64 exec, 1")
                    self.local([f"buffer_store_dword v253, off, {S(SWS)}, s74 @SC"], flag=True)
                    P("s_mov_b64 exec, -1")
                P.add(mix(g, weave(v, wd[q_*kk+h_:q_*kk+q_], 5), 1))
            else:
                g = g[4:] + g[:4]
                P.add(mix(g[:9], wd[3*q_:3*q_+15]) + mix(g[9:], xw[:7]) + xw[7:])
        self.stamp("p2mm")
        fpl = f"buffer_load_dword v254, v255, {S(SWS)}, s83 offen sc1"
        if self.opt.get("ov", 1) and self.opt.get("fpa", 0) == 0: P(fpl)
        if self.opt.get("touch", 3) == 4:
            P(f"""v_and_b32 v12, 7, v0
            v_lshlrev_b32 v12, 7, v12
            v_bfe_u32 v13, v0, 3, 1
            v_lshl_add_u32 v12, v13, 14, v12
            s_mov_b64 exec, {self.opt.get('tmH', 0xffff)}
            buffer_load_dword v253, v12, {S(SWS)}, s64 offen {self.opt.get('tm', '')}
            v_and_b32 v12, 1, v0
            v_lshlrev_b32 v12, 7, v12
            v_bfe_u32 v13, v0, 1, 1
            v_lshl_add_u32 v12, v13, 11, v12
            s_mov_b64 exec, {self.opt.get('tmS', 0xf)}
            buffer_load_dword v254, v12, {S(SWS)}, s61 offen {self.opt.get('tm', '')}
            s_mov_b64 exec, -1""")
        P.add(weave(xun, wd[3*q_+15:], 5))
        for q in range(4):
            for k in range(2): P(f"v_pk_add_f32 {vr(ACC+4*q+2*k,2)}, {vr(ACC+4*q+2*k,2)}, {vr(XF+4*q+2*k,2)}")
        self.barrier()
        RB = 32; HO = 96
        if self.opt.get("ov", 1) and self.opt.get("fpa", 0) == 1: P(fpl)
        for q in range(4):
            for p in range(3): P(f"ds_read_b128 {vr(RB+(p*4+q)*4,4)}, v118 offset:{(p*4+q)*1024}")
        for q in range(4):
            for p in range(3):
                for k in range(2): P(f"v_pk_add_f32 {vr(ACC+4*q+2*k,2)}, {vr(ACC+4*q+2*k,2)}, {vr(RB+(p*4+q)*4+2*k,2)}")
            for k in range(2): P(f"v_cvt_pk_bf16_f32 v{HO+2*q+k}, v{ACC+4*q+2*k}, v{ACC+4*q+2*k+1}")
        if self.opt.get("ov", 1): self.check_retry(fpl, f"v_cmp_ne_u32 vcc, s{sE}, v254")
        self.local([f"buffer_store_dwordx4 {vr(HO+4*a,4)}, v{vL16}, {S(SWS)}, s{64+a} offen @SC" for a in range(2)], "hst")
        SS = 104
        ls = []
        for a in range(2):
            x = ACC + 8*a; s_ = SS + 4*a
            ls.append([f"v_pk_add_f32 {vr(s_,2)}, {vr(x,2)}, {vr(x+2,2)}", f"v_pk_mul_f32 {vr(s_+2,2)}, {vr(x,2)}, {vr(x,2)}",
                       f"v_pk_add_f32 {vr(s_,2)}, {vr(s_,2)}, {vr(x+4,2)}", f"v_pk_fma_f32 {vr(s_+2,2)}, {vr(x+2,2)}, {vr(x+2,2)}, {vr(s_+2,2)}",
                       f"v_pk_add_f32 {vr(s_,2)}, {vr(s_,2)}, {vr(x+6,2)}", f"v_pk_fma_f32 {vr(s_+2,2)}, {vr(x+4,2)}, {vr(x+4,2)}, {vr(s_+2,2)}",
                       f"v_add_f32 v{s_}, v{s_}, v{s_+1}", f"v_pk_fma_f32 {vr(s_+2,2)}, {vr(x+6,2)}, {vr(x+6,2)}, {vr(s_+2,2)}",
                       f"v_add_f32 v{s_+1}, v{s_+2}, v{s_+3}"])
        P.add(zipped(ls))
        self.xreduce([SS, SS+1, SS+4, SS+5], 112, ops=("v_permlane32_swap_b32",))
        P(f"""v_permlane16_swap_b32 v{SS}, v{SS+4}
        v_permlane16_swap_b32 v{SS+1}, v{SS+5}
        v_pk_add_f32 {vr(SS,2)}, {vr(SS,2)}, {vr(SS+4,2)}
        s_mov_b32 exec_hi, 0""")
        self.local([f"buffer_store_dwordx2 {vr(SS,2)}, v122, {S(SWS)}, s61 offen @SC"], "hst")
        P("s_mov_b64 exec, -1")
        P.add(wds)
        self.p3_setup()
        P.wait_tag("hst")
        self.barrier()
        self.wave0(lambda: self.set_flag(1 << 16, True))
        self.stamp("F2")

    def wsp_setup(self):
        o = L(f"""v_lshrrev_b32 v12, 3, v0
        v_and_b32 v13, 7, v0
        v_xor_b32 v13, v13, v{vG}
        v_lshlrev_b32 v13, 4, v13
        v_lshl_add_u32 v244, v12, 12, v13
        v_xor_b32 v245, 64, v244
        v_add_u32 v245, 32768, v245
        s_lshl_b32 s96, s{self.T4}, 18
        s_lshl_b32 s86, s{sW}, 10
        s_add_u32 s96, s96, s86
        s_lshl_b32 s97, s{sW}, 14
        v_lshrrev_b32 v12, 1, v{vI}
        v_xor_b32 v12, v12, v{vG}
        v_lshlrev_b32 v12, 4, v12
        v_lshl_add_u32 v12, v{vI}, 7, v12
        v_xor_b32 v13, 64, v12""")
        for p in range(4):
            o += L(f"s_add_u32 s86, s{sW}, {p}\ns_and_b32 s86, s86, 3\ns_lshl_b32 s86, s86, 11\ns_add_u32 s86, s86, s97\nv_add_u32 v{246+2*p}, s86, v12\nv_add_u32 v{247+2*p}, s86, v13")
        return o
    def wsp_issue(self, c, hi=False):
        out = [WD(f"wr{c-2}")] if c >= 2 and hi is False else []
        out += [NOPIF] * 6
        for i in range(8):
            out.append(f"s_add_u32 m0, s97, {(c&1)*8192 + i*1024 + (65536 if hi else 0)}")
            out.append(f"s_add_u32 s60, s96, {(i>>1)*65536 + c*128}" if i % 2 == 0 else NOPIF)
            out.append(self.dmai(244+(i&1), SWSP, 60, f"wsp{c}"))
        return out
    def wsp_read(self, c):
        return [WT(f"wsp{c}")] + [("T", f"ds_read_b128 {ar(((2*c+t)*4+p)*4,4)}, v{246+2*p+t} offset:{(c&1)*8192}", f"wr{c}") for t in range(2) for p in range(4)]
    def wsp_tohi(self): return [f"v_xor_b32 v{r}, 0x10000, v{r}" for r in range(246, 254)]
    KE = list(range(21, 28)); KT = list(range(9, 21)); KL = list(range(9))
    def wout_setup(self, v):
        return L(f"""v_lshrrev_b32 v{v}, 3, v0
        v_lshl_add_u32 v{v}, v{v}, 10, v{vSW}
        s_lshl_b32 s68, s{sW}, 13
        s_lshl_b32 s86, s{sFB}, 7
        s_add_u32 s68, s68, s86
        s_lshl_b32 s69, s{sW}, 10
        s_add_u32 s69, s69, 49152""")
    def wout(self, k, v, tag="wout"):
        return [f"s_add_u32 m0, s69, {k*4096}", f"s_add_u32 s61, s68, {k*4*8192}", self.dmai(v, SWOUT, 61, tag)]
    def wout_pf(self):
        if not self.opt.get("pfwo", 0): return []
        return L(f"""s_lshr_b32 s86, s{sJ}, 3
        s_lshl_b32 s86, s86, 2
        s_add_u32 s86, s86, s{sW}
        s_mul_i32 s86, s86, {42*1024}
        s_lshl_b32 s87, s{sFB}, 7
        s_add_u32 s86, s86, s87
        v_lshlrev_b32 v5, 10, v0
        s_mov_b32 exec_hi, 0x3ff
        buffer_load_dword v19, v5, {S(SWOUT)}, s86 offen
        s_mov_b64 exec, -1""")
    def pf_addr(self, v):
        return L(f"""v_bfe_u32 v{v}, v0, 2, 2
        v_lshlrev_b32 v{v}, 10, v{v}
        v_lshl_add_u32 v{v}, v{vG}, 12, v{v}
        v_and_b32 v5, 3, v0
        v_lshl_add_u32 v{v}, v5, 7, v{v}""")
    SCR3 = 131072
    def p3_setup(self):
        SCR = self.SCR3
        self.P(f"""s_lshl_b32 s90, s{sRB}, 3
        s_lshl_b32 s86, s{sW}, 1
        s_add_u32 s90, s90, s86
        s_lshl_b32 s93, s90, 11
        s_add_u32 s93, s93, {HST}
        s_lshl_b32 s90, s90, 14
        s_add_u32 s90, s90, {H}
        s_lshl_b32 s91, s{sW}, 9
        s_add_u32 s91, s91, {SCR + 512}
        s_lshl_b32 s67, s{sRB}, 7
        s_add_u32 s67, s67, {F2}
        v_lshlrev_b32 v240, 2, v{vI}
        v_mov_b32 v12, 0x3f803f80
        v_accvgpr_write_b32 a240, v12
        v_accvgpr_write_b32 a241, v12
        v_accvgpr_write_b32 a242, v12
        v_accvgpr_write_b32 a243, v12
        s_lshl_b32 s86, s{sW}, 5
        v_xor_b32 v15, s86, v{vT[0]}
        s_mul_i32 s74, s{sRB}, 14
        s_add_u32 s74, s74, s{sCBK}
        s_mul_i32 s74, s74, 3
        s_add_u32 s74, s74, s{sW}
        s_lshl_b32 s74, s74, 14
        s_add_u32 s74, s74, 512
        s_cmp_eq_u32 s{sW}, 3
        s_cselect_b32 s74, 0x1000000, s74""")

    def colsum(self, base, tmp, dst_off):
        rd = [[f"ds_read_b64_tr_b16 {vr(tmp+4*t+2*h,2)}, v15 offset:{t*4096 + h*2048}" for h in range(2)] for t in range(16)]
        out = rd[0] + rd[1] + rd[2]
        for t in range(16):
            out.append(f"{MF} {ar(236,4)}, {ar(240,4)}, {vr(tmp+4*t,4)}, {ar(236,4) if t else '0'}")
            if t + 3 < 16: out += rd[t+3]
        tail = L(f"s_lshl_b32 s86, s{sW}, 6\ns_add_u32 s86, s86, {dst_off}\nv_lshl_add_u32 v5, v{vI}, 2, s86\nds_write_b32 v5, a236")
        return out, tail

    def phase3(self):
        P = self.P
        SCR = self.SCR3
        HF = 16; BB = 144; A2 = 176; A1 = 212
        AON, AEX, ACS = 240, 244, 236
        Lskip = "L_p3skip"; Ljoin = "L_p3join"
        P(f"s_cmp_ge_u32 s{sCBK}, 14\ns_cbranch_scc1 {Lskip}")
        def breads(t):
            return [f"ds_read_b64_tr_b16 {vr(BB+16*(t&1)+4*f+2*h,2)}, v{vT[f]} offset:{t*4096 + h*2048}" for f in range(4) for h in range(2)]
        o, tl = self.colsum(0, 16, 133632); P.add(o + tl)
        P.add(breads(0))
        self.wave0(lambda: self.poll(240, soff="s67"))
        self.barrier()
        self.stamp("sync2")
        HS = A1; CS2 = A1 + 16; K1 = 254
        def hl(t):
            if t >= 16:
                a = t - 16
                return [f"buffer_load_dwordx4 {vr(HS+8*a+4*hf,4)}, v{vL16}, {S(SWS)}, s93 offen offset:{a*2048+hf*1024} sc1" for hf in range(2)] if a < 2 else []
            o = [f"s_add_u32 s64, s90, {t*1024}", f"s_add_u32 s65, s90, {16384 + t*1024}"] if t % 4 == 0 else []
            return o + [f"buffer_load_dwordx4 {vr(HF+(t*2+a)*4,4)}, v{vL16}, {S(SWS)}, s{64+a} offen offset:{(t%4)*1024} sc1" for a in range(2)]
        HD = self.opt.get("HD", 5)
        for t in range(HD): P.add(hl(t))
        P("v_add_u32 v5, 133632, v240")
        for f in range(4): P(f"ds_read_b32 v{CS2+f}, v5 offset:{f*64}")
        late = []
        for t in range(self.opt.get('nw1', 10), 16): late += self.win_dma(1, t, 241)
        misc = [f"v_lshrrev_b32 v241, 3, v0", "v_mul_u32_u24 v241, 3584, v241", f"v_add_u32 v241, v241, v{vSW}"] + self.wout_setup(242)
        P.add(misc)
        misc = self.wsp_setup() + L(f"""v_mov_b32 v{K1}, {f2u(K1C):#x}
        v_mov_b32 v{K1+1}, {f2u(K1C):#x}
        v_lshl_add_u32 v13, v{vI}, 2, s91
        v_lshl_add_u32 v14, v{vG}, 4, s91
        v_bfe_u32 v12, v0, 3, 1
        v_lshlrev_b32 v12, 8, v12
        v_lshl_add_u32 v12, v{vG}, 6, v12
        v_bfe_u32 v5, v0, 2, 1
        v_lshl_add_u32 v12, v5, 5, v12
        v_and_b32 v5, 1, v0
        v_lshl_add_u32 v12, v5, 4, v12
        v_cmp_eq_u32 s[72:73], 1, v5
        s_lshl_b32 s92, s{sRB}, 15
        s_lshl_b32 s86, s{sW}, 9
        s_add_u32 s92, s92, s86
        s_add_u32 s92, s92, {STATS}
        s_lshl_b32 s66, s{sCBK}, 11
        s_add_u32 s66, s66, s92""")
        nm = (len(misc) + 11) // 12
        for t in range(16):
            m = []
            for f in range(4):
                for a in range(2):
                    acc = vr(A2 + (a*4+f)*4, 4)
                    m.append(f"{MF} {acc}, {vr(HF+(t*2+a)*4,4)}, {vr(BB+16*(t&1)+4*f,4)}, {acc if t else '0'}")
            if t in (1, 4, 8, 12): self.stamp(f"z2k{t}", True)
            hh = hl(t + HD); g = max(1, len(hh) - 1)
            if t + HD >= 18:
                k = t + HD - 18
                hh = late[:10]; late = late[10:]; g = 5
            P.add(lay2(m, breads(t+1) if t < 15 else [], weave(misc[nm*t:nm*t+nm], hh, g)) if self.opt.get('lay', 1) else mix(m, weave((breads(t+1) if t < 15 else []) + misc[nm*t:nm*t+nm], hh, g)))
        self.stamp("z2mm")
        P.add(late)
        if self.opt.get("touch", 3): P(f"v_lshlrev_b32 v5, 7, v0\ns_mov_b64 exec, 0xf\nbuffer_load_dword a234, v5, {S(SWS)}, s66 offen\ns_mov_b64 exec, -1")
        if not self.map84: P(f"s_mov_b64 exec, {(1 << 25) | (1 << 26)}\nbuffer_load_dword a233, v{vFLAG}, {S(SWS)}, 0 offen\ns_mov_b64 exec, -1")
        if self.opt.get("l2pf", 2) == 1: P(f"buffer_load_dword a235, v242, {S(SWSP)}, s74 offen")
        LA = [208, 210]; LB = [209, 211]
        for a in range(2):
            x = HS + 8*a
            P(f"v_pk_add_f32 {vr(x,2)}, {vr(x,2)}, {vr(x+2,2)}\nv_pk_add_f32 {vr(x+4,2)}, {vr(x+4,2)}, {vr(x+6,2)}")
        for a in range(2):
            x = HS + 8*a
            P(f"v_pk_add_f32 {vr(x,2)}, {vr(x,2)}, {vr(x+4,2)}")
        self.barrier()
        self.xreduce([HS, HS+1, HS+8, HS+9], BB)
        self.finstats([(HS, HS+1), (HS+8, HS+9)], 512, LA, LB)
        for a in range(2): P(f"ds_write_b32 v13, v{LA[a]} offset:{a*64}\nds_write_b32 v13, v{LB[a]} offset:{128+a*64}")
        iss01 = self.wsp_issue(0) + self.wsp_issue(1)
        P.add(iss01[:12]); iss01 = iss01[12:]
        P.wait_ds()
        RA = BB; RBb = BB + 8
        for a in range(2): P(f"ds_read_b128 {vr(RA+4*a,4)}, v14 offset:{a*64}\nds_read_b128 {vr(RBb+4*a,4)}, v14 offset:{128+a*64}")
        P.add(iss01[:6]); iss01 = iss01[6:]
        TT = BB + 16; SM = A1; SQ2 = A1 + 8
        for k in self.KE: iss01 += self.wout(k, 242, "woutE")
        for f in range(4):
            ls = []
            for a in range(2):
                for hp in range(2):
                    x = A2 + (a*4+f)*4 + 2*hp; t = TT + 2*(2*a+hp); sm = SM + 4*a + 2*hp; sq = SQ2 + 4*a + 2*hp
                    l = self.affine_pair(x, t, RA+4*a+2*hp, RBb+4*a+2*hp, CS2+f, False) + self.gelu_pair(x, t, K1)
                    if f == 0: l += [f"v_pk_mul_f32 {vr(sq,2)}, {vr(x,2)}, {vr(x,2)}"]
                    else: l += [f"v_pk_fma_f32 {vr(sq,2)}, {vr(x,2)}, {vr(x,2)}, {vr(sq,2)}",
                                f"v_pk_add_f32 {vr(sm,2)}, {vr(sm if f > 1 else A2 + a*16 + 2*hp,2)}, {vr(x,2)}"]
                    ls.append(l)
            self.stamp(f"z2e{f}", True)
            P.add(weave(zipped(ls), iss01[[0, 21, 42, 54][f]:[21, 42, 54, 63][f]]))
        def val(a, r, st): return (SQ2 if st else SM) + 4*a + r
        L1 = A1 + 16; L2 = A1 + 24
        z1pre = [f"v_add_u32 v{r}, 65536, v{r}" for r in vT + [15]]
        for a, bm in ((0, 0x3), (1, 0xc)):
            for r in range(4):
                for st in range(2): P(f"v_add_f32_dpp v{L1+2*r+st}, v{val(a,r,st)}, v{val(a,r,st)} row_ror:8 row_mask:0xf bank_mask:{bm:#x}")
        P.add(z1pre)
        P.wait_tag("win1")
        for rh, bm in ((0, 0x5), (1, 0xa)):
            for rl in range(2):
                for st in range(2):
                    s_ = L1 + 2*(2*rh+rl) + st
                    P(f"v_add_f32_dpp v{L2+2*rl+st}, v{s_}, v{s_} row_half_mirror row_mask:0xf bank_mask:{bm:#x}")
        P("s_barrier")
        for qp in ("[1,0,3,2]", "[2,3,0,1]"):
            for k in range(4): P(f"v_add_f32_dpp v{L2+k}, v{L2+k}, v{L2+k} quad_perm:{qp} row_mask:0xf bank_mask:0xf")
        P.add(breads(0))
        P(f"""v_cndmask_b32 v{L2}, v{L2}, v{L2+2}, s[72:73]
        v_cndmask_b32 v{L2+1}, v{L2+1}, v{L2+3}, s[72:73]
        v_mov_b32 v{L2+2}, s{sE}
        v_mov_b32 v{L2+3}, s{sE}
        s_mov_b32 exec_lo, 0x33333333
        s_mov_b32 exec_hi, 0x33333333""")
        self.local([f"buffer_store_dwordx4 {vr(L2,4)}, v12, {S(SWS)}, s66 offen @SC"])
        P("s_mov_b64 exec, -1")
        self.stamp("z2ep")
        i2, i3, i4, i5 = [self.wsp_issue(c) for c in range(2, 6)]
        r0, r1, r2, r3 = [self.wsp_read(c) for c in range(4)]
        GS = HF
        misc = L(f"""v_lshrrev_b32 v12, 5, v0
        v_lshlrev_b32 v12, 11, v12
        v_and_b32 v13, 31, v0
        v_lshl_add_u32 v12, v13, 4, v12
        v_lshl_add_u32 v13, v13, 2, s91
        s_lshl_b32 s93, s{sRB}, 2
        s_add_u32 s93, s93, s{sW}
        s_mul_i32 s93, s93, 7168
        s_add_u32 s93, s93, {Z2}""")
        for f in range(4):
            misc += L(f"""s_lshl_b32 s86, s{sCBK}, 2
            s_add_u32 s86, s86, {f}
            s_mul_i32 s87, s86, 37
            s_lshr_b32 s87, s87, 8
            s_mul_i32 s87, s87, {64*7 - 7}
            s_add_u32 s86, s86, s87
            s_lshl_b32 s86, s86, 10
            s_add_u32 s{64+f}, s86, s93""")
        misc += L(f"""s_lshl_b32 s93, s{sRB}, 3
        s_lshl_b32 s86, s{sW}, 1
        s_add_u32 s93, s93, s86
        s_mul_i32 s93, s93, 56
        s_lshl_b32 s86, s{sCBK}, 2
        s_add_u32 s93, s93, s86
        s_lshl_b32 s93, s93, 9
        s_add_u32 s93, s93, {Z1}
        s_add_u32 s94, s93, {56*512}""")
        T1 = self.opt.get("T1", 8); TG = self.opt.get("TG", 5); TF = self.opt.get("TF", 13)
        gll = []
        for m_ in range(7): gll += [f"s_add_u32 s60, s92, {m_*4096}", f"buffer_load_dwordx4 {vr(GS+4*m_,4)}, v12, {S(SWS)}, s60 offen sc1"]
        gl = "\n".join(gll)
        misc = misc + L(f"""v_bfe_u32 v5, v0, 4, 1
        v_bfe_u32 v241 , v0, 5, 1""") if False else misc
        def z1k(t, extra):
            m = []
            for f in range(4):
                for a in range(2):
                    acc = vr(A1 + (a*4+f)*4, 4)
                    m.append(f"{MF} {acc}, {vr(BB+16*(t&1)+4*f,4)}, {vr(HF+(t*2+a)*4,4)}, {acc if t else '0'}")
            nxt = breads(t+1) if t < 15 else []
            self.stamp(f"z1k{t}", True) if t in (0, 2, 4, T1, 10, 14) else None
            P.add(lay2(m, nxt, extra) if self.opt.get('lay', 1) else mix(m, weave(nxt, extra)))
        bq = i2 + i3
        ex = {0: misc[:9], 1: r0, 2: r1, 3: misc[9:18], 4: gll, 5: bq[:13] , 6: bq[13:19] + misc[18:22]}
        bq = bq[19:]
        for t in range(T1): z1k(t, ex.get(t, []))
        self.stamp("z1a")
        RA2 = HF + 28; RB2 = HF + 36; ZO = HF
        cmpc = "\n".join(f"v_xor_b32 v{GS+4*m_+2}, s{sE}, v{GS+4*m_+2}" for m_ in range(7))
        cmpc += f"\nv_or3_b32 v5, v{GS+2}, v{GS+6}, v{GS+10}\nv_or3_b32 v5, v5, v{GS+14}, v{GS+18}\nv_or3_b32 v5, v5, v{GS+22}, v{GS+26}\nv_cmp_ne_u32 vcc, 0, v5"
        self.check_retry(gl, cmpc)
        self.stamp("gath", True)
        P(f"v_pk_add_f32 {vr(GS,2)}, {vr(GS,2)}, {vr(GS+4,2)}\nv_pk_add_f32 {vr(GS+8,2)}, {vr(GS+8,2)}, {vr(GS+12,2)}\nv_pk_add_f32 {vr(GS+16,2)}, {vr(GS+16,2)}, {vr(GS+20,2)}")
        P(f"v_pk_add_f32 {vr(GS,2)}, {vr(GS,2)}, {vr(GS+8,2)}\nv_pk_add_f32 {vr(GS+16,2)}, {vr(GS+16,2)}, {vr(GS+24,2)}\nv_pk_add_f32 {vr(GS,2)}, {vr(GS,2)}, {vr(GS+16,2)}")
        P.add(bq[:3]); bq = bq[3:]
        self.xreduce([GS, GS+1], GS+2, ops=("v_permlane32_swap_b32",))
        self.finstats([(GS, GS+1)], 896, [GS+4], [GS+5])
        P(f"""ds_write_b32 v13, v{GS+4} offset:256
        ds_write_b32 v13, v{GS+5} offset:384
        v_bfe_u32 v12, v0, 4, 1
        v_bfe_u32 v13, v0, 5, 1
        v_lshl_add_u32 v12, v12, 1, v13
        v_lshl_add_u32 v12, v12, 4, v{vI}
        v_lshlrev_b32 v12, 4, v12""")
        P.add(bq[:3] + misc[22:30]); bq = bq[3:]
        P.wait_ds()
        for a in range(2): P(f"ds_read_b128 {vr(RA2+4*a,4)}, v14 offset:{256+a*64}\nds_read_b128 {vr(RB2+4*a,4)}, v14 offset:{384+a*64}")
        P.add(misc[30:41] + bq[:10]); bq = bq[10:]
        nb = self.opt.get("nb", 6)
        for f in range(4):
            for a in range(2):
                for hp in range(2):
                    x = A2 + (a*4+f)*4 + 2*hp
                    P(f"v_pk_fma_f32 {vr(x,2)}, {vr(x,2)}, {vr(RA2+4*a+2*hp,2)}, {vr(RB2+4*a+2*hp,2)}")
            for a in range(2):
                for hp in range(2):
                    x = A2 + (a*4+f)*4 + 2*hp
                    P(f"v_cvt_pk_bf16_f32 v{ZO+4*f+2*a+hp}, v{x}, v{x+1}")
            if f: P(f"buffer_store_dwordx4 {vr(ZO+4*(f-1),4)}, v12, {S(SWS)}, s{64+f-1} offen sc1", "z2n")
            for hp in range(2): P(f"v_permlane16_swap_b32 v{ZO+4*f+hp}, v{ZO+4*f+2+hp}")
        P(f"buffer_store_dwordx4 {vr(ZO+12,4)}, v12, {S(SWS)}, s67 offen sc1", "z2n")
        self.stamp("z2st", True)
        TR = self.opt.get("TR", 13)
        cq_ = i4 + i5
        ex = {T1: bq[:9] , T1 + 1: bq[9:18], T1 + 2: bq[18:], T1 + 3: misc[41:], TR: r2, TR + 1: r3}
        for t in range(T1, 16):
            if t == TF:
                P.wait_tag("z2n"); P("s_barrier")
                self.wave0(lambda: self.set_flag(0xff << 17))
                self.stamp("F3")
            e = ex.get(t)
            if e is None:
                e = []
                if t > TR + 1: e = cq_[:13 if t == TR + 2 else 6]; cq_ = cq_[len(e):]
            z1k(t, e)
        C1 = A2; Z1O = A2 + 16
        o, tl = self.colsum(65536, 32, SCR + 256)
        P.add(weave(o, [f"v_subrev_u32 v{vT[f]}, 65536, v{vT[f]}" for f in range(4)] + L(f"v_lshlrev_b32 v12, 4, v{vG}\nv_add_u32 v12, {SCR+256}, v12\nv_lshlrev_b32 v13, 3, v0") + cq_, 3) + tl)
        self.barrier()
        self.stamp("z1mm")
        for f in range(4): P(f"ds_read_b128 {vr(C1+4*f,4)}, v12 offset:{f*64}")
        ep = []
        for f in range(4):
            ls = []
            for a in range(2):
                for hp in range(2):
                    x = A1 + (a*4+f)*4 + 2*hp; t = TT + 2*(2*a+hp)
                    ls.append(self.affine_pair(x, t, LA[a], LB[a], C1+4*f+2*hp, True))
            ep += zipped(ls)
        d67 = self.wsp_issue(6, True) + self.wsp_issue(7, True)
        P.add(self.p4_setup())
        self.wave0(lambda: P(self.f3load))
        P.add(weave(ep, d67))
        P(f"s_branch {Ljoin}")
        P(f"{Lskip}:")
        P.cond_begin()
        P("s_waitcnt vmcnt(0) lgkmcnt(0)")
        mode = self.opt.get("ina", 0)
        if mode:
            P(f"""s_lshl_b32 s86, s{sRB}, 1
            s_add_u32 s86, s86, s{sCBK}
            s_sub_u32 s86, s86, 14
            s_lshl_b32 s86, s86, 2
            s_add_u32 s86, s86, s{sW}
            s_lshr_b32 s87, s86, 4
            s_lshl_b32 s87, s87, 20
            s_and_b32 s86, s86, 15
            s_mul_i32 s86, s86, {12*4096}
            s_add_u32 s64, s86, s87""")
            P.add(self.pf_addr(14))
            def pfh(h): return [f"s_add_u32 s65, s64, {k*16384 + h*512}\nbuffer_load_dword v{16+3*h+k+4}, v14, {S(SWSP)}, s65 offen" for k in range(3)]
            for x in pfh(0): P(x)
            P.add(self.wsp_setup() + self.wout_setup(15))
            if mode == 2:
                for x in pfh(1): P(x)
            P.add(self.wsp_issue(0) + self.wsp_issue(1))
            if mode == 1:
                for x in pfh(1): P(x)
            P.add(self.wsp_issue(6, True) + self.wsp_issue(7, True))
            P.add(self.wsp_read(0) + self.wsp_read(1) + self.wsp_issue(2) + self.wsp_issue(3))
            for k in self.KE: P.add(self.wout(k, 15, "woutE"))
            P.add(self.wsp_read(2) + self.wsp_read(3) + self.wsp_issue(4) + self.wsp_issue(5) + self.p4_setup())
        else:
            if self.opt.get("l2pf", 2):
                P(f"""s_lshl_b32 s86, s{sRB}, 1
                s_add_u32 s86, s86, s{sCBK}
                s_sub_u32 s86, s86, 14
                s_lshl_b32 s86, s86, 2
                s_add_u32 s86, s86, s{sW}
                s_lshl_b32 s60, s86, 16""")
                P.add(self.pf_addr(12))
                if self.opt.get("redir", 1):
                    P(f"""v_lshrrev_b32 v13, 3, v0
                    v_lshlrev_b32 v13, 12, v13
                    v_bfe_u32 v5, v0, 1, 2
                    v_lshl_add_u32 v13, v5, 10, v13
                    v_and_b32 v5, 1, v0
                    v_lshl_add_u32 v13, v5, 7, v13
                    buffer_load_dword v16, v13, {S(SWSP)}, s60 offen offset:256
                    s_add_u32 s60, s60, 32768
                    buffer_load_dword v17, v13, {S(SWSP)}, s60 offen offset:256
                    s_add_u32 s60, s60, 32768""")
                else:
                    for k in range(4): P(f"buffer_load_dword v{16+k}, v12, {S(SWSP)}, s60 offen\ns_add_u32 s60, s60, 16384")
                if self.opt.get("l2pf", 2) == 3:
                    P(f"""s_sub_u32 s60, s60, 65024
                    v_lshrrev_b32 v13, 3, v0
                    v_lshlrev_b32 v13, 12, v13
                    v_bfe_u32 v5, v0, 1, 2
                    v_lshl_add_u32 v13, v5, 10, v13
                    v_and_b32 v5, 1, v0
                    v_lshl_add_u32 v13, v5, 7, v13
                    buffer_load_dword v20, v13, {S(SWSP)}, s60 offen
                    s_add_u32 s60, s60, 32768
                    buffer_load_dword v21, v13, {S(SWSP)}, s60 offen""")
                if self.opt.get("l2pf", 2) == 4:
                    P("s_sub_u32 s64, s60, 65024")
                if self.opt.get("l2pf", 2) == 2:
                    P("s_sub_u32 s60, s60, 65024")
                    for k in range(4): P(f"buffer_load_dword v{20+k}, v12, {S(SWSP)}, s60 offen\ns_add_u32 s60, s60, 16384")
            if self.opt.get("pwout", 7) == -1:
                P(f"""s_lshl_b32 s86, s{sRB}, 1
                s_add_u32 s86, s86, s{sCBK}
                s_sub_u32 s86, s86, 14
                s_lshl_b32 s86, s86, 2
                s_add_u32 s86, s86, s{sW}
                s_mul_i32 s86, s86, {56*128}
                v_lshlrev_b32 v5, 7, v0
                s_mov_b32 exec_hi, 0xffffff
                buffer_load_dword v24, v5, {S(SWOUT)}, s86 offen
                s_mov_b64 exec, -1""")
            P.add(self.wsp_setup() + self.wout_setup(15))
            P.add(self.wsp_issue(0) + self.wsp_issue(1))
            P.add(self.wout_pf())
            for k in self.KE: P.add(self.wout(k, 15, "woutE"))
            if self.opt.get("l2pf", 2) == 4:
                P.add(self.pf_addr(14))
                for k in range(4): P(f"buffer_load_dword v{20+k}, v14, {S(SWSP)}, s64 offen\ns_add_u32 s64, s64, 16384")
            P.add(self.wsp_issue(6, True) + self.wsp_issue(7, True))
            P.add(self.wsp_read(0) + self.wsp_read(1) + self.wsp_issue(2) + self.wsp_issue(3) + self.wsp_read(2) + self.wsp_read(3))
            P.add(self.wsp_issue(4) + self.wsp_issue(5) + self.p4_setup())
        P(self.f3load)
        P(f"s_mov_b32 s93, {WS_BYTES}\ns_mov_b32 s94, {WS_BYTES}\nv_lshlrev_b32 v13, 3, v0")
        P("s_waitcnt vmcnt(0) lgkmcnt(0)")
        P.cond_end()
        P(f"{Ljoin}:")
        self.stamp("wsp")

    def p5_breg(self, kk, f):
        if kk >= 21: return ("a", (kk - 21) * 16 + 4*f)
        i = self.order5.index(kk) - 7
        return ("a", 112 + (i % 9) * 16 + 4*f)
    def p5_reads(self, kk):
        out = []
        want = 49152 if kk < 16 else 49152 + 65536
        if self.cur5 != want:
            d = want - self.cur5
            out += [f"v_add_u32 v{vT[f]}, {d}, v{vT[f]}" if d > 0 else f"v_subrev_u32 v{vT[f]}, {-d}, v{vT[f]}" for f in range(4)]; self.cur5 = want
        for f in range(4):
            k, r = self.p5_breg(kk, f)
            for h in range(2): out.append(f"ds_read_b64_tr_b16 {ar(r+2*h,2)}, v{vT[f]} offset:{(kk%16)*4096 + h*2048}")
        return out

    f3load = f"buffer_load_dword v17, v16, {S(SWS)}, s75 offen sc1"
    def p4_setup(self):
        return L(f"""s_mul_i32 s90, s{self.F4}, 7
        s_add_u32 s91, s90, 6
        s_lshr_b32 s90, s90, 2
        s_lshr_b32 s91, s91, 2
        s_lshl_b32 s92, s{self.F4}, 6
        s_lshl_b32 s86, s{sW}, 4
        s_add_u32 s92, s92, s86
        s_mul_i32 s92, s92, 7168
        s_add_u32 s92, s92, {Z2}
        v_add_u32 v18, 4096, v{vL16}
        s_lshl_b32 s86, s90, 4
        s_lshl_b32 s87, s91, 4
        s_add_u32 s87, s87, 15
        v_add_u32 v16, s86, v0
        v_min_u32 v16, s87, v16
        v_lshlrev_b32 v16, 2, v16
        s_lshl_b32 s75, s{sX}, 10
        s_add_u32 s75, s75, {F3}""") + ([] if self.map84 or self.opt.get('uz', 0) else L(f"""s_lshl_b32 s86, s{self.T4}, 2
        s_add_u32 s86, s86, s{sW}
        s_mul_i32 s86, s86, {28*1024}
        s_mul_i32 s87, s{self.F4}, 3584
        s_add_u32 s86, s86, s87
        s_add_u32 s86, s86, {U}
        v_lshlrev_b32 v5, 7, v0
        s_mov_b64 exec, 0xfffffff
        buffer_load_dword v20, v5, {S(SWS)}, s86 offen
        s_mov_b64 exec, -1"""))

    def phase4(self):
        P = self.P
        ACC = 16; BB = 128
        self.order5 = self.KE + list(range(16, 21)) + list(range(9, 16)) + self.KL
        self.cur5 = 0
        self.wave0(lambda: self.check_retry(self.f3load, f"v_cmp_ne_u32 vcc, s{sE}, v17"))
        P("s_barrier")
        self.stamp("sync3")
        def bload(ks):
            out = [f"s_add_u32 s60, s92, {ks*7168}"]
            for f in range(7):
                out.append(f"buffer_load_dwordx4 {vr(BB+28*(ks%3)+4*f,4)}, v{vL16 if f < 4 else 14}, {S(SWS)}, s60 offen offset:{(f%4)*1024} sc1")
            return out
        P("v_mov_b32 v14, v18")
        for ks in range(2): P.add(bload(ks))
        P(f"v_mov_b32 v244, {f2u(K1C):#x}")
        late_setup = L(f"""v_lshrrev_b32 v249, 3, v0
        v_lshl_add_u32 v249, v249, 10, v{vSW}
        s_lshl_b32 s95, s{self.T4}, 2
        s_add_u32 s95, s95, s{sW}
        s_lshl_b32 s88, s{sTB}, 2
        s_add_u32 s88, s88, s{sW}
        s_lshr_b32 s64, s{self.T4}, 1
        s_lshl_b32 s64, s64, 7
        s_add_u32 s64, s64, {F3B}
        v_add_u32 v250, s90, v0
        v_min_u32 v250, s91, v250
        v_lshlrev_b32 v250, 2, v250
        s_mul_i32 s65, s95, 56
        s_mul_i32 s87, s{self.F4}, 7
        s_add_u32 s65, s65, s87
        s_lshl_b32 s65, s65, 9
        s_add_u32 s65, s65, {Z1}
        s_lshl_b32 s66, s95, 5
        v_lshlrev_b32 v244, 1, v{vI}
        s_lshl_b32 s67, s88, 4
        s_lshl_b32 s87, s{sFB}, 1
        s_add_u32 s67, s67, s87
        s_lshl_b32 s67, s67, 10
        s_add_u32 s67, s67, {H}
        s_mul_i32 s78, s88, {28*1024}
        s_add_u32 s78, s78, {U}
        s_mul_i32 s79, s95, 28
        s_mul_i32 s87, s{self.F4}, 7
        s_lshr_b32 s87, s87, 1
        s_add_u32 s79, s79, s87
        s_lshl_b32 s79, s79, 10
        s_add_u32 s79, s79, {U}""")
        for p in range(1, 4):
            late_setup += L(f"s_add_u32 s86, s{sW}, {p}\ns_and_b32 s86, s86, 3\ns_mul_i32 s86, s86, 21504\ns_add_u32 s86, s86, {(p-1)*7168}\nv_add_u32 v{245+p}, s86, v{vL16}")
        late_setup += L(f"s_mul_i32 s86, s{sW}, 21504\nv_add_u32 v255, s86, v{vL16}")
        A1 = 212; GT = [15, 245, 254, 255]
        def gelu(q):
            a, f = q >> 2, q & 3; x0 = A1 + 4*q; ls = []
            for e in range(4):
                x = x0 + e; t = GT[e]
                ls.append([f"v_mul_f32 v{t}, v{x}, v{x}", f"v_fma_f32 v{t}, v{t}, s{sK2}, v244", f"v_mul_f32 v{t}, v{t}, v{x}", f"v_exp_f32 v{t}, v{t}",
                           f"v_add_f32 v{t}, 1.0, v{t}", f"v_rcp_f32 v{t}, v{t}", f"v_mul_f32 v{x}, v{x}, v{t}"])
            return zipped(ls) + [f"v_cvt_pk_bf16_f32 v{x0}, v{x0}, v{x0+1}", f"v_cvt_pk_bf16_f32 v{x0+1}, v{x0+2}, v{x0+3}",
                                 ("T", f"buffer_store_dwordx2 {vr(x0,2)}, v13, {S(SWS)}, s{93+a} offen offset:{f*512} sc1", "z1st")]
        Z1R = 212; BS = 226; HR = 228
        GP = self.opt.get("GP", 8)
        if GP:
            P(f"v_mov_b32 v245, {f2u(K1C):#x}")
            b2 = bload(2)
            pk = []
            for q0 in range(0, GP, 2):
                ls = [self.gelu_pair(A1 + 4*q0 + 2*e, 112 + 2*e, 244) for e in range(4)]
                pk += zipped(ls)
                for q in (q0, q0 + 1):
                    x0 = A1 + 4*q
                    pk += [f"v_cvt_pk_bf16_f32 v{x0}, v{x0}, v{x0+1}", f"v_cvt_pk_bf16_f32 v{x0+1}, v{x0+2}, v{x0+3}",
                           ("T", f"buffer_store_dwordx2 {vr(x0,2)}, v13, {S(SWS)}, s{93+(q>>2)} offen offset:{(q&3)*512} sc1", "z1st")]
            P.add(b2[:1] + weave(pk, b2[1:], 1))
        fl = f"buffer_load_dword v254, v250, {S(SWS)}, s64 offen sc1"
        wt = []
        for k in self.KT: wt += self.wout(k, 249, "woutT")
        for ks in range(16):
            m = []
            if ks < 15: fp = [(f, p) for f in range(7) for p in range(4)]
            else: fp = [(f, p) for p in (1, 2, 3, 0) for f in range(7)]
            for f, p in fp:
                acc = vr(ACC + (p*7+f)*4, 4)
                m.append(f"{MF} {acc}, {vr(BB+28*(ks%3)+4*f,4)}, {ar((ks*4+p)*4,4)}, {acc if ks else '0'}")
            if ks in (1, 2, 4, 8, 12, 15): self.stamp(f"p4k{ks}", True)
            if ks <= 14:
                ld = bload(ks + 2) if ks <= 13 and not (GP and ks == 0) else []
                pre = {1: self.wsp_read(4), 2: self.wsp_read(5), 3: self.wsp_tohi() + self.wsp_read(6), 4: self.wsp_read(7)}.get(ks, [])
                G0 = self.opt.get("G0", 0)
                if G0 <= ks < G0 + 8 - GP: pre = weave(gelu(ks - G0 + GP), pre, 1)
                if 8 <= ks <= 14: pre = pre + self.p5_reads(self.KE[ks - 8])
                if ks in (9, 10): pre = pre + late_setup[(ks-9)*25:(ks-9)*25+25]
                if ks == max(G0 + 9 - GP, 6):
                    P.add([WD("wr4", "wr5", "wr6", "wr7"), WT("z1st", "woutE"), "s_barrier"])
                    self.wave0(lambda: self.set_flag(1 << 25, not self.map84))
                if ks == 7 and GP < 6: P.wait_tag("woutE"); P("s_barrier")
                if ks == 14: pre = pre + wt[:12]
                if ks == self.opt.get("FL", 13): pre = pre + [fl]
                if ld: body = mix(m[:3], ld[:2]) + interleave(m[3:21], ld[2:], 3, 1) + m[21:]
                else: body = m
                out = []; nm_ = 0; pi = 0
                for x in body:
                    out.append(x)
                    if isinstance(x, str) and x.startswith("v_mfma"):
                        nm_ += 1
                        tgt = len(pre) * nm_ // 28
                        out += pre[pi:tgt]; pi = tgt
                P.add(out)
            else:
                self.check_retry(fl, f"v_cmp_ne_u32 vcc, s{sE}, v254")
                w = [f"buffer_load_dwordx2 {vr(Z1R+2*f,2)}, v13, {S(SWS)}, s65 offen offset:{f*512} sc1" for f in range(7)]
                w += [f"buffer_load_ushort v{BS}, v244, {S(SBSP)}, s66 offen"]
                xw = [f"ds_write_b128 v{245+p}, {vr(ACC+(p*7+f)*4,4)} offset:{f*1024}" for p in range(1, 4) for f in range(7)]
                P.add(mix(m[:10], w[:4]) + mix(m[10:], weave(xw[:16], w[4:], 1)) + xw[16:])
        self.stamp("p4mm")
        ZF = BB; UO = BB + 48
        v = [f"v_lshlrev_b32 v{BS}, 16, v{BS}"]
        for f in range(7):
            for k in range(2):
                v += [f"v_lshlrev_b32 v{ZF+4*f+2*k}, 16, v{Z1R+2*f+k}", f"v_and_b32 v{ZF+4*f+2*k+1}, 0xffff0000, v{Z1R+2*f+k}",
                      f"v_pk_add_f32 {vr(ACC+4*f+2*k,2)}, {vr(ACC+4*f+2*k,2)}, {vr(BS,2)} op_sel_hi:[1,0]"]
        P.add(wt[12:24])
        self.barrier()
        RB = ACC + 28
        for f in range(7):
            for p in range(3): P(f"ds_read_b128 {vr(RB+(p*7+f)*4,4)}, v255 offset:{(p*7+f)*1024}")
        P.add(wt[24:] + v)
        P(f"buffer_load_dwordx4 {vr(HR,4)}, v{vL16}, {S(SWS)}, s67 offen sc1\nbuffer_load_dwordx4 {vr(HR+4,4)}, v{vL16}, {S(SWS)}, s67 offen offset:1024 sc1")
        for f in range(7):
            for p in range(3):
                for k in range(2): P(f"v_pk_add_f32 {vr(ACC+4*f+2*k,2)}, {vr(ACC+4*f+2*k,2)}, {vr(RB+(p*7+f)*4+2*k,2)}")
            for k in range(2): P(f"v_pk_mul_f32 {vr(ACC+4*f+2*k,2)}, {vr(ACC+4*f+2*k,2)}, {vr(ZF+4*f+2*k,2)}")
            for k in range(2): P(f"v_cvt_pk_bf16_f32 v{UO+2*f+k}, v{ACC+4*f+2*k}, v{ACC+4*f+2*k+1}")
        Lo = P.lab("Lo"); Le = P.lab("Le")
        P(f"s_bitcmp1_b32 s{self.F4}, 0\ns_cbranch_scc1 {Lo}")
        P.cond_begin()
        self.local4([f"buffer_store_dwordx4 {vr(UO+4*k,4)}, v{vL16}, {S(SWS)}, s79 offen offset:{k*1024} @SC" for k in range(3)]
                   + [f"buffer_store_dwordx2 {vr(UO+12,2)}, v13, {S(SWS)}, s79 offen offset:3072 @SC"])
        P(f"s_branch {Le}")
        P.cond_end()
        P(f"{Lo}:")
        P.cond_begin()
        self.local4([f"buffer_store_dwordx2 {vr(UO,2)}, v13, {S(SWS)}, s79 offen offset:512 @SC"]
                   + [f"buffer_store_dwordx4 {vr(UO+2+4*k,4)}, v{vL16}, {S(SWS)}, s79 offen offset:{1024+k*1024} @SC" for k in range(3)])
        P.cond_end()
        P(f"{Le}:")
        P(f"""v_bfe_u32 v240, v0, 4, 1
        v_bfe_u32 v5, v0, 5, 1
        v_lshl_add_u32 v240, v240, 1, v5
        v_lshlrev_b32 v240, 4, v240
        v_lshl_add_u32 v240, v{vI}, 10, v240
        s_lshl_b32 s92, s88, 14
        s_lshl_b32 s87, s{sFB}, 7
        s_add_u32 s92, s92, s87
        s_lshl_b32 s66, s{sTB}, 7
        s_add_u32 s66, s66, {F4}
        v_and_b32 v243, 7, v0
        v_lshlrev_b32 v243, 2, v243""")
        P("s_waitcnt vmcnt(0)")
        self.barrier()
        self.wave0(lambda: self.set_flag(1 << 26, not self.map84))
        self.stamp("F4")

    def phase5(self):
        P = self.P
        UF = 16; ACC = 128; HR = 228
        order = self.order5
        late = []
        for k in self.KL: late += self.wout(k, 249, "woutL")
        lm = self.opt.get("late", 0)
        if lm == 0: P.add(late)
        for kk in order[7:16]: P.add(self.p5_reads(kk))
        for f in range(4):
            for k in range(2):
                P(f"v_lshlrev_b32 v{ACC+4*f+2*k}, 16, v{HR+2*f+k}\nv_and_b32 v{ACC+4*f+2*k+1}, 0xffff0000, v{HR+2*f+k}")
        self.wave0(lambda: self.poll2(243, "s66", self.opt["pp"]) if self.opt.get("pp") else self.poll(243, soff="s66"))
        P("s_barrier")
        self.stamp("sync4")
        def ul(kk):
            o = [f"s_add_u32 s60, s78, {(kk//4)*4096}"]
            if kk % 7 == 3: return o + [f"buffer_load_dwordx2 {vr(UF+4*kk+2*h,2)}, v13, {S(SWS)}, s60 offen offset:{(kk%4)*1024 + h*512} sc1" for h in range(2)]
            return o + [f"buffer_load_dwordx4 {vr(UF+4*kk,4)}, v{vL16}, {S(SWS)}, s60 offen offset:{(kk%4)*1024} sc1"]
        if self.opt.get("pfu", 0):
            P(f"""s_mul_i32 s86, s{sFB}, 3584
            s_add_u32 s86, s86, s78
            v_lshlrev_b32 v5, 7, v0
            s_mov_b64 exec, 0xfffffff
            buffer_load_dword v144, v5, {S(SWS)}, s86 offen sc1
            s_mov_b64 exec, -1""")
        UD = self.opt.get("UD", 10)
        for i in range(UD): P.add(ul(order[i]))
        if lm == 1: P.add(late)
        Lb = P.lab("Lz")
        P(f"s_or_b32 s86, s2, s{sW}\ns_cmp_lg_u32 s86, 0\ns_cbranch_scc1 {Lb}")
        P.cond_begin()
        P(f"v_mov_b32 v145, s{sE}\ns_mov_b32 s86, {EPOCH}\ns_mov_b64 exec, 1\nbuffer_store_dword v145, off, {S(SWS)}, s86 sc1\ns_mov_b64 exec, -1")
        P.cond_end(); P(f"{Lb}:")
        for i, kk in enumerate(order):
            m = []
            for f in range(4):
                k, r = self.p5_breg(kk, f); acc = vr(ACC+4*f, 4)
                m.append(f"{MF} {acc}, {ar(r,4)}, {vr(UF+4*kk,4)}, {acc}")
            fl = ul(order[i + UD]) if i + UD < 28 else []
            j = i + 8
            if j == 19: P.wait_tag("woutL"); P("s_barrier")
            if 16 <= j < 28: fl = fl + self.p5_reads(order[j])
            P.add(mix(m, fl))
        OO = 160
        for c in range(2):
            for f in (2*c, 2*c+1):
                for k in range(2): P(f"v_cvt_pk_bf16_f32 v{OO+2*f+k}, v{ACC+4*f+2*k}, v{ACC+4*f+2*k+1}")
        if self.opt.get("spinM") is not None:
            P(f"s_cmp_lg_u32 s{sM}, {self.opt['spinM']}\ns_cbranch_scc1 L_nospin\ns_memrealtime s[96:97]\ns_waitcnt lgkmcnt(0)\ns_add_u32 s98, s96, 500\nL_spin:\ns_memrealtime s[96:97]\ns_waitcnt lgkmcnt(0)\ns_sub_u32 s97, s98, s96\ns_cmp_gt_i32 s97, 0\ns_cbranch_scc1 L_spin\nL_nospin:")
        if self.opt.get("thr"):
            P(f"s_memrealtime s[96:97]\ns_waitcnt lgkmcnt(0)\ns_sub_u32 s96, s96, s98\ns_mul_i32 s96, s96, s{sM}\ns_cmp_gt_u32 s96, {self.opt['thr']}\ns_cbranch_scc1 L_end")
        for c in range(2):
            for k in range(2): P(f"v_permlane16_swap_b32 v{OO+4*c+k}, v{OO+4*c+2+k}")
            P(f"buffer_store_dwordx4 {vr(OO+4*c,4)}, v240, {S(SOUT)}, s92 offen offset:{c*64} {self.opt.get('ost', 'nt')}")
        self.stamp("end")

    def build(self):
        P = self.P
        self.prologue()
        for k, ph in enumerate([self.phase1, self.phase2, self.phase3, self.phase4, self.phase5]):
            if k < self.stop: ph()
        if self.stamps:
            P("s_memtime s[98:99]\nv_writelane_b32 v7, s98, 63")
            P(f"""v_writelane_b32 v7, s{sM}, 61
            s_lshl_b32 s86, s2, 10
            s_lshl_b32 s87, s{sW}, 8
            s_add_u32 s86, s86, s87
            s_add_u32 s86, s86, {STAMP}
            v_lshlrev_b32 v12, 2, v0
            buffer_store_dword v7, v12, {S(SWS)}, s86 offen""")
        if self.opt.get("dbg"):
            sel = [self.names.index(n) for n in self.opt["dbg"]]
            P("s_load_dwordx2 s[64:65], s[0:1], 72\nv_not_b32 v12, v7\nv_readlane_b32 s86, v12, 0\nv_writelane_b32 v13, s86, 0")
            for k, i in enumerate(sel): P(f"v_readlane_b32 s86, v7, {i}\ns_nop 3\nv_writelane_b32 v13, s86, {k+1}")
            P(f"v_lshlrev_b32 v12, 2, v0\ns_mov_b64 exec, {(1 << (len(sel)+1)) - 1}\ns_cmp_lg_u32 s{sW}, 0\ns_cbranch_scc1 L_end\nglobal_atomic_umax v12, v13, s[64:65] sc1")
        P("L_end:\ns_endpgm")
        A = Asm()
        A.begin_kernel(NAME, 256, 256, 163840)
        A.lines += P.finalize()
        A.end_kernel(NAME, 256, 256)
        return A

HEADER = open("sequential_preLN__linear_attn_block__mixer_gmlp__prompt.s.ref").read().split("; Override")[0]
NOTES = """; One persistent launch, 256 workgroups (one per CU), five GEMM phases (generated by a script, fully unrolled):
;   P1  LN(x) folded into q,k,v = x@wqkv (row stats + column sums applied in the epilogue), phi, per-head k^T v / sum(k) -> fp32 atomics
;   P2  o = (phi(q) kv) / den, h = x + o@wo, partial row stats of h        P3  z = gelu(LN(h)@w_in), LN of the second half
; Hand-offs go through d_ws: stores drained with s_waitcnt, then a flag word; consumers poll with sc1 loads (bounded spins).
; Flags hold a per-launch tag derived from the tag word the previous launch left in d_ws (only used to tell this launch's flags from old ones).
; Stores are write-through (sc1); where all consumers share the id class (id & 7) and the XCC_ID table shows that class on one XCD,
; plain stores are used instead (same L2); any other placement takes the write-through path.
"""
def generate(path, plain=False, **kw):
    g = G(**kw); A = g.build()
    t = A.text(HEADER)
    if plain: t = t.replace(f"; @launch kernel={NAME} grid", "; @launch grid")
    t = t.replace(".text\n", ".text\n" + NOTES, 1)
    open(path, "w").write(t)
    return g.names
if __name__ == "__main__":
    import argparse
    ap = argparse.ArgumentParser(); ap.add_argument("out"); ap.add_argument("--stop", type=int, default=99); ap.add_argument("--stamps", action="store_true"); ap.add_argument("--opt", default="{}")
    a = ap.parse_args()
    generate(a.out, plain=True, stop=a.stop, stamps=a.stamps, opt=eval(a.opt))
```
